```python
import torch

def _softmax(x, axis=-1):
    return torch.softmax(x, dim=axis)

def _gelu(x):
    return torch.nn.functional.gelu(x, approximate='tanh')

def _silu(x):
    return torch.nn.functional.silu(x)

def _sigmoid(x):
    return torch.sigmoid(x)

def _layernorm(x, axis=-1, eps=1e-05):
    m = x.mean(dim=axis, keepdim=True)
    v = x.var(dim=axis, keepdim=True, unbiased=False)
    return (x - m) / torch.sqrt(v + eps)

def _scatter_add(tgt, idx, src, axis=0):
    return tgt.clone().index_add_(axis, idx, src)

def _segment_sum(src, seg, n):
    out = torch.zeros((n,) + src.shape[1:], dtype=src.dtype)
    return out.index_add_(0, seg, src)

def _pad(x, pw):
    flat = tuple((v for pair in reversed(pw) for v in pair))
    return torch.nn.functional.pad(x, flat)
kernel_name = 'recurrent_scan__memory_aug_recurrent_mem_tr__mixer_s_mlp__prompt'

def setup_inputs():

    _w = lambda a: (lambda t: t.to(torch.bfloat16) if t.is_floating_point() else t)(torch.as_tensor(a))

    def _A_setup():
        B, S, Dm = (1, 2048, 1024)
        H, Dh = (32, 128)
        M, seg = (8, 32)
        seg = min(seg, S)
        S = S // seg * seg
        return {'x': _w((lambda *s: torch.randn(*s, dtype=torch.bfloat16) * 0.05)(B, S, Dm)), 'mem0': _w((lambda *s: torch.randn(*s, dtype=torch.bfloat16) * 0.2)(B, M, Dm)), 'Wq': _w((lambda *s: torch.randn(*s, dtype=torch.bfloat16) * 1.6)(Dm, H, Dh) * Dm ** (-0.5)), 'Wk': _w((lambda *s: torch.randn(*s, dtype=torch.bfloat16) * 1.6)(Dm, H, Dh) * Dm ** (-0.5)), 'Wv': _w((lambda *s: torch.randn(*s, dtype=torch.bfloat16) * 0.2)(Dm, H, Dh) * Dm ** (-0.5)), 'Wo': _w((lambda *s: torch.randn(*s, dtype=torch.bfloat16) * 0.2)(H, Dh, Dm) * (H * Dh) ** (-0.5)), 'seg_len': seg}
    _A_in = _A_setup()

    def _B_setup():
        B, S, D, F = (1, 2048, 1024, 3584)
        return {'x': _w((lambda *s: torch.randn(*s, dtype=torch.bfloat16) * 0.05)(B, S, D)), 'w1': _w((lambda *s: torch.randn(*s, dtype=torch.bfloat16) * 3.2)(D, D) * D ** (-0.5)), 'w2': _w((lambda *s: torch.randn(*s, dtype=torch.bfloat16) * 3.2)(D, D) * D ** (-0.5)), 'w3': _w((lambda *s: torch.randn(*s, dtype=torch.bfloat16) * 3.2)(D, F) * D ** (-0.5)), 'w4': _w((lambda *s: torch.randn(*s, dtype=torch.bfloat16) * 3.2)(F, D) * F ** (-0.5))}
    _B_in = _B_setup()
    return {'A_x': _A_in['x'], 'A_mem0': _A_in['mem0'], 'A_Wq': _A_in['Wq'], 'A_Wk': _A_in['Wk'], 'A_Wv': _A_in['Wv'], 'A_Wo': _A_in['Wo'], 'A_seg_len': _A_in['seg_len'], 'B_x': _B_in['x'], 'B_w1': _B_in['w1'], 'B_w2': _B_in['w2'], 'B_w3': _B_in['w3'], 'B_w4': _B_in['w4']}

def reference(A_x, A_mem0, A_Wq, A_Wk, A_Wv, A_Wo, A_seg_len, B_x, B_w1, B_w2, B_w3, B_w4):

    def _A_ref(x, mem0, Wq, Wk, Wv, Wo, seg_len):
        B, S, Dm = x.shape
        H, Dh = (Wq.shape[1], Wq.shape[2])
        M = mem0.shape[1]
        scale = Dh ** (-0.5)
        n_seg = S // seg_len
        L = M + seg_len
        idx = torch.arange(L)
        mask = (idx[:, None] < M) | (idx[:, None] >= idx[None, :])
        mem = mem0
        outs = []
        for s in range(n_seg):
            xs = x[:, s * seg_len:(s + 1) * seg_len, :].clone()
            h = torch.concatenate([mem, xs], axis=1)
            q = torch.einsum('btd,dhe->bhte', h, Wq)
            k = torch.einsum('btd,dhe->bhte', h, Wk)
            v = torch.einsum('btd,dhe->bhte', h, Wv)
            scores = torch.einsum('bhqe,bhke->bhqk', q, k) * scale
            scores = torch.where(mask[None, None], scores, -1000000000.0)
            p = _softmax(scores, axis=-1)
            o = torch.einsum('bhqk,bhke->bhqe', p, v)
            o = torch.einsum('bhte,hed->btd', o, Wo)
            mem = o[:, :M, :].clone()
            outs.append(o[:, M:, :])
        return torch.concatenate(outs, axis=1)

    def _B_ref(x, w1, w2, w3, w4):
        B, S, D = x.shape
        h = _gelu(_layernorm(x, axis=-1) @ w1)
        c = D // 4
        g0 = _pad(h[:, :, 0 * c:1 * c], ((0, 0), (1, 0), (0, 0)))[:, :S, :]
        g1 = _pad(h[:, :, 1 * c:2 * c], ((0, 0), (0, 1), (0, 0)))[:, 1:, :]
        g2 = _pad(h[:, :, 2 * c:3 * c], ((0, 0), (2, 0), (0, 0)))[:, :S, :]
        g3 = _pad(h[:, :, 3 * c:], ((0, 0), (0, 2), (0, 0)))[:, 2:, :]
        hs = torch.concatenate([g0, g1, g2, g3], axis=-1) @ w2
        x1 = x + hs
        h2 = _gelu(_layernorm(x1, axis=-1) @ w3) @ w4
        return x1 + h2
    x = A_x
    xn = _layernorm(x, axis=-1)
    s = _A_ref(xn, A_mem0, A_Wq, A_Wk, A_Wv, A_Wo, A_seg_len)
    g = _silu(_B_ref(xn, B_w1, B_w2, B_w3, B_w4))
    return x + s * g
```

```python
import re
import sys


def v(i, n=1):
    return f"v{i}" if n == 1 else f"v[{i}:{i + n - 1}]"


def a(i, n=1):
    return f"a{i}" if n == 1 else f"a[{i}:{i + n - 1}]"


def s(i, n=1):
    return f"s{i}" if n == 1 else f"s[{i}:{i + n - 1}]"


def r(i, n=1):
    return v(i, n) if i < 256 else a(i - 256, n)


class Asm:
    def __init__(self):
        self.lines = []
        self._uid = 0

    def __call__(self, txt):
        for ln in txt.split("\n"):
            ln = ln.strip()
            if ln:
                self.lines.append(ln)

    def label(self, name):
        self.lines.append(f"{name}:")

    def raw(self, txt):
        self.lines.append(txt)

    def c(self, txt):
        self.lines.append(f"    ; {txt}")

    def uid(self, base="L"):
        self._uid += 1
        return f"{base}_{self._uid}"

    def nop(self, n):
        while n > 0:
            k = min(n, 16)
            self(f"s_nop {k - 1}")
            n -= k

    def text(self):
        return "\n".join(self.lines) + "\n"


_REG = re.compile(r"^(-|\|)?(abs\()?([vas])(\d+)\)?\|?$")
_RNG = re.compile(r"^(-)?([vas])\[(\d+):(\d+)\]$")
TRANS = ("v_exp_", "v_log_", "v_rcp_", "v_rsq_", "v_sqrt_", "v_sin_", "v_cos_")


def regs_of(tok):
    tok = tok.strip()
    m = _REG.match(tok)
    if m:
        return {(m.group(3), int(m.group(4)))}
    m = _RNG.match(tok)
    if m:
        return {(m.group(2), k) for k in range(int(m.group(3)), int(m.group(4)) + 1)}
    if tok in ("vcc", "vcc_lo", "vcc_hi"):
        return {("vcc", 0)}
    if tok in ("exec", "exec_lo", "exec_hi"):
        return {("exec", 0)}
    if tok == "m0":
        return {("m0", 0)}
    return set()


class Ins:
    __slots__ = ("txt", "op", "ops", "mods", "w", "rd", "cls", "passes", "srcc", "ab", "dpp", "ws",
                 "target", "line", "lds", "wide_data", "sdwa", "dreg")

    def __init__(self, txt, line):
        self.txt = txt
        self.line = line
        body = txt.split(";")[0].strip()
        parts = body.split(None, 1)
        self.op = parts[0]
        rest = parts[1] if len(parts) > 1 else ""
        toks = [t.strip() for t in rest.split(",")] if rest else []
        self.mods = []
        if toks:
            last = toks[-1].split()
            if last:
                toks[-1] = last[0]
                self.mods = last[1:]
        self.ops = toks
        self.w = set()
        self.rd = set()
        self.cls = "other"
        self.passes = 0
        self.srcc = set()
        self.ab = set()
        self.dpp = False
        self.sdwa = False
        self.ws = 1
        self.target = None
        self.lds = False
        self.wide_data = set()
        self.dreg = None
        self.parse()

    def parse(self):
        op, o = self.op, self.ops
        R = [regs_of(t) for t in o]
        allmods = " ".join(self.mods)
        if op.startswith("v_mfma") or op.startswith("v_smfmac"):
            self.cls = "mfma"
            self.passes = 8 if "32x32" in op else 4
            if "4x4x4" in op:
                self.passes = 2
            self.w = set(R[0])
            self.dreg = o[0]
            if op.startswith("v_smfmac"):
                self.srcc = set(R[0])
                self.ab = R[1] | R[2] | R[3]
            else:
                self.srcc = set(R[3])
                self.ab = R[1] | R[2]
            self.rd = self.srcc | self.ab
        elif op.startswith("v_"):
            self.cls = "valu"
            if re.search(r"\b(row_|quad_perm|wave_|row_bcast|bank_mask|row_mask)", allmods) or op.endswith("_dpp"):
                self.dpp = True
            if "dst_sel" in allmods or op.endswith("_sdwa") or "op_sel" in allmods:
                self.sdwa = True
            if op.startswith("v_cmpx"):
                self.w = R[0] | {("exec", 0)}
                for x in R[1:]:
                    self.rd |= x
            elif op.startswith("v_permlane") and "swap" in op:
                self.w = R[0] | R[1]
                self.rd = R[0] | R[1]
            elif "_co_" in op and not op.startswith("v_mad"):
                self.w = R[0] | R[1]
                for x in R[2:]:
                    self.rd |= x
            elif op.startswith("v_nop"):
                pass
            else:
                self.w = set(R[0])
                for x in R[1:]:
                    self.rd |= x
                if op.startswith(("v_fmac", "v_mac", "v_pk_fmac", "v_dot2c", "v_writelane")) or self.dpp or self.sdwa:
                    self.rd |= R[0]
                if op.startswith("v_cndmask") and len(o) == 3:
                    self.rd |= {("vcc", 0)}
        elif op.startswith("ds_"):
            self.cls = "ds"
            if op.startswith(("ds_read", "ds_bpermute", "ds_permute", "ds_swizzle")) or "_rtn" in op:
                self.w = set(R[0])
                for x in R[1:]:
                    self.rd |= x
                if "d16" in op:
                    self.rd |= R[0]
            else:
                for x in R:
                    self.rd |= x
        elif op.startswith(("buffer_", "global_")):
            self.cls = "vmem"
            self.lds = ("lds" in self.mods) or ("_lds_" in op)
            if op.startswith(("buffer_wbl2", "buffer_inv")):
                pass
            elif self.lds:
                for x in R:
                    self.rd |= x
                self.rd |= {("m0", 0)}
            elif "_load" in op:
                self.w = set(R[0])
                for x in R[1:]:
                    self.rd |= x
                if "d16" in op:
                    self.rd |= R[0]
            elif "_atomic" in op:
                if op.startswith("buffer_"):
                    for x in R:
                        self.rd |= x
                    if "sc0" in self.mods:
                        self.w = set(R[0])
                else:
                    if "sc0" in self.mods:
                        self.w = set(R[0])
                        for x in R[1:]:
                            self.rd |= x
                    else:
                        for x in R:
                            self.rd |= x
            else:
                for x in R:
                    self.rd |= x
                if op.endswith(("x3", "x4")):
                    self.wide_data = set(R[0] if op.startswith("buffer_") else R[1])
        elif op.startswith("s_"):
            self.cls = "salu"
            if op == "s_nop":
                self.ws = int(o[0], 0) + 1
            elif op.startswith(("s_cbranch", "s_branch")):
                self.cls = "branch"
                self.target = o[0]
            elif op.startswith(("s_load", "s_memtime", "s_memrealtime", "s_buffer_load")):
                self.cls = "smem"
                self.w = set(R[0])
                for x in R[1:]:
                    self.rd |= x
            elif op.startswith(("s_cmp", "s_waitcnt", "s_barrier", "s_endpgm", "s_sleep", "s_setprio", "s_bitcmp",
                                "s_setreg", "s_sethalt")):
                for x in R:
                    self.rd |= x
            else:
                self.w = set(R[0]) if R else set()
                for x in R[1:]:
                    self.rd |= x
                if "saveexec" in op:
                    self.w |= {("exec", 0)}
                if op.startswith(("s_addk", "s_mulk", "s_cmov")):
                    self.rd |= R[0]


def _waitvals(ins):
    t = ins.txt.split(";")[0]
    vm = re.search(r"vmcnt\((\d+)\)", t)
    lg = re.search(r"lgkmcnt\((\d+)\)", t)
    return (int(vm.group(1)) if vm else None, int(lg.group(1)) if lg else None)


def check(text, verbose=True):
    ins = []
    labels = {}
    in_text = True
    for ln_no, ln in enumerate(text.split("\n"), 1):
        t = ln.split(";")[0].strip()
        if not t:
            continue
        if t.startswith(".section") or t.startswith(".amdhsa") or t.startswith(".end_amdhsa"):
            in_text = False
        if t == ".text":
            in_text = True
        if t.startswith("."):
            continue
        if not in_text:
            continue
        if t.endswith(":"):
            labels[t[:-1]] = len(ins)
            continue
        ins.append(Ins(ln.strip(), ln_no))
    n = len(ins)

    def succ(i):
        x = ins[i]
        out = []
        if x.op == "s_endpgm":
            return out
        if x.cls == "branch":
            if x.target in labels:
                out.append(labels[x.target])
            if x.op == "s_branch":
                return out
        if i + 1 < n:
            out.append(i + 1)
        return out

    errs = []
    T_AB = {2: 5, 4: 8, 8: 12, 16: 20}
    T_OV = {2: 4, 4: 6, 8: 10, 16: 18}
    T_WAR = {2: 1, 4: 3, 8: 7, 16: 15}

    def need(p, c):
        req = 0
        pw_v = {x for x in p.w if x[0] in "va" and len(x[0]) == 1}
        pw_s = {x for x in p.w if x[0] in ("s", "vcc")}
        if p.cls == "valu":
            if c.cls == "mfma" and pw_v & c.rd:
                req = max(req, 2)
            if c.cls == "vmem" and pw_s & c.rd:
                req = max(req, 5)
            if c.cls == "valu" and pw_s & c.rd:
                req = max(req, 4 if c.op.startswith(("v_readlane", "v_writelane")) else 2)
            if c.cls == "valu" and pw_v & c.rd:
                if c.dpp or c.op.startswith("v_permlane"):
                    req = max(req, 2)
                if c.op.startswith(("v_readlane", "v_readfirstlane")):
                    req = max(req, 1)
                if p.op.startswith(TRANS) and not c.op.startswith(TRANS):
                    req = max(req, 1)
                if p.sdwa:
                    req = max(req, 1)
            if ("exec", 0) in p.w:
                if c.cls == "valu" and c.dpp:
                    req = max(req, 5)
                if c.cls == "mfma" or c.op.startswith(("v_readlane", "v_readfirstlane", "v_writelane", "v_permlane")):
                    req = max(req, 4)
                if c.cls == "valu" and ("exec", 0) in c.rd:
                    req = max(req, 2)
        if p.cls == "mfma":
            if c.cls == "mfma":
                if p.w & c.ab:
                    req = max(req, T_AB[p.passes])
                if p.w & c.srcc:
                    if c.srcc == p.w and c.passes == p.passes:
                        req = max(req, 2 if p.passes == 2 else 0)
                    else:
                        req = max(req, T_OV[p.passes])
                elif p.w & c.w:
                    req = max(req, T_OV[p.passes])
            elif c.cls in ("valu", "vmem", "ds"):
                if p.w & (c.rd | c.w):
                    req = max(req, T_AB[p.passes])
                if c.cls == "valu" and p.srcc & c.w:
                    req = max(req, T_WAR[p.passes])
                if c.cls in ("vmem", "ds") and p.srcc & c.w:
                    req = max(req, T_WAR[p.passes])
        if p.cls == "salu" and ("m0", 0) in p.w and c.cls == "vmem" and c.lds:
            req = max(req, 1)
        if p.wide_data and (p.wide_data & c.w):
            req = max(req, 2 if c.cls in ("valu", "mfma") else 1)
        return req

    for i, p in enumerate(ins):
        if not (p.cls in ("valu", "mfma") or p.wide_data or (p.cls == "salu" and ("m0", 0) in p.w)):
            continue
        maxd = 20 if p.cls == "mfma" else 5
        seen = set()
        stack = [(j, 0, (p.passes - 2) if p.cls == "mfma" else 0) for j in succ(i)]
        while stack:
            j, d, pf = stack.pop()
            c = ins[j]
            if c.cls == "mfma":
                d = max(d, pf)
                pf = d + 1 + c.passes - 2
            if d >= maxd:
                continue
            if (j, d, pf) in seen:
                continue
            seen.add((j, d, pf))
            rq = need(p, c)
            if rq > d:
                errs.append(f"HAZARD need {rq} have {d}: L{p.line} '{p.txt}' -> L{c.line} '{c.txt}'")
            for k in succ(j):
                stack.append((k, d + c.ws, pf))

    for i, p in enumerate(ins):
        if p.cls in ("vmem", "ds", "smem") and p.w:
            kind = "vm" if p.cls == "vmem" else "lg"
            cap = 64 if kind == "vm" else 16
            seen = set()
            stack = [(j, 0 if p.cls != "smem" else -1) for j in succ(i)]
            reported = False
            while stack and not reported:
                j, na = stack.pop()
                if (j, na) in seen:
                    continue
                seen.add((j, na))
                c = ins[j]
                if c.op == "s_waitcnt":
                    vm, lg = _waitvals(c)
                    val = vm if kind == "vm" else lg
                    if val is not None and (val == 0 or (na >= 0 and val <= na)):
                        continue
                touch = p.w & (c.w if 'repoll' in p.txt else (c.rd | c.w))
                if touch:
                    if not (c.cls == p.cls and p.cls != "smem" and not (p.w & c.rd)):
                        errs.append(f"WAITCNT: L{p.line} '{p.txt}' -> L{c.line} '{c.txt}' (after={na})")
                        reported = True
                        break
                    else:
                        if p.w <= c.w:
                            continue
                nn = na
                if kind == "vm" and c.cls == "vmem" and not c.op.startswith(("buffer_wbl2", "buffer_inv")):
                    nn = min(na + 1, cap)
                if kind == "lg":
                    if c.cls == "ds" and na >= 0:
                        nn = min(na + 1, cap)
                for k in succ(j):
                    stack.append((k, nn))
    if verbose:
        for e in errs[:60]:
            print(e, file=sys.stderr)
        print(f"hazard check: {len(errs)} problems in {n} instructions", file=sys.stderr)
    return errs


HEADER = """.amdgcn_target "amdgcn-amd-amdhsa--gfx950"
.text
"""


def kernel_begin(A, name):
    A.raw(".text")
    A.raw(f".globl {name}")
    A.raw(".p2align 8")
    A.raw(f".type {name},@function")
    A.raw(f"{name}:")


def kernel_desc(A, name, nvgpr=256, accum=256, nsgpr=102):
    A.raw('.section .rodata,"a"')
    A.raw(".p2align 6")
    A.raw(f".amdhsa_kernel {name}")
    A.raw(f"  .amdhsa_next_free_vgpr {nvgpr}")
    A.raw(f"  .amdhsa_next_free_sgpr {nsgpr}")
    A.raw(f"  .amdhsa_accum_offset {accum}")
    A.raw("  .amdhsa_group_segment_fixed_size 0")
    A.raw("  .amdhsa_kernarg_size 120")
    A.raw("  .amdhsa_user_sgpr_count 2")
    A.raw("  .amdhsa_user_sgpr_kernarg_segment_ptr 1")
    A.raw("  .amdhsa_system_sgpr_workgroup_id_x 1")
    A.raw(".end_amdhsa_kernel")
```

```python
import math
from asmlib import *
import layout as L
from chain import S_WS, sX, sT, sWv, sBud
from gemm import f32, vLane

QF, KF, VF, KMF, VMF = 0, 16, 48, 80, 96
S0, S1, SM = 112, 116, 120
B0, B1, BM = 124, 128, 132
PT, PM, DEN, OA, ONES, OP = 136, 140, 144, 148, 180, 184
t0, t1, t2 = 200, 201, 202
vL16, vKMa, vVMa, vFl, vOne, vZ, vPg, vPd = range(204, 212)
sQ, sK0, sK1, sV0, sV1, sKM, sVM, sO, sFQ, sFO, sS, sCc, sNc, sH = range(15, 29)
sQt, sT0, sT1, sPg = 30, 31, 32, 33
sI = {18: 34, 16: 35, 8: 36, 2: 37, 0: 38, 7: 39}


def rt_init(A, sr):
    A(f"s_lshl_b32 s{sr}, {s(sX)}, 5")
    A(f"s_add_u32 s{sr}, s{sr}, {s(sT)}")
    A(f"s_lshl_b32 s{sr}, s{sr}, 2")
    A(f"s_add_u32 s{sr}, s{sr}, {s(sWv)}")
    A(f"s_lshl_b32 s{sr}, s{sr}, 10")
    A(f"s_add_u32 s{sr}, s{sr}, {hex(L.STAMP + (3 << 20))}")


def rt_stamp(A, sr, vt, vz):
    A(f"s_memrealtime s[{sr + 2}:{sr + 3}]")
    A("s_waitcnt lgkmcnt(0)")
    A(f"v_mov_b32 {v(vt)}, s{sr + 2}")
    A("s_mov_b64 exec, 1")
    A(f"buffer_store_dword {v(vt)}, {v(vz)}, {s(S_WS, 4)}, s{sr} offen")
    A("s_mov_b64 exec, -1")
    A(f"s_add_u32 s{sr}, s{sr}, 4")


def attention(A, pfx, exit_lbl, P):
    def mf(d, a_, b_, c_):
        A(f"v_mfma_f32_16x16x32_bf16 {v(d, 4)}, {v(a_, 4)}, {v(b_, 4)}, {v(c_, 4) if c_ is not None else 0}")

    def ld(dst, va, so, off):
        A(f"buffer_load_dwordx4 {v(dst, 4)}, {v(va)}, {s(S_WS, 4)}, {s(so)} offen offset:{off} sc1")

    A(f"s_lshl_b32 {s(sH)}, {s(sT)}, 1")
    A(f"s_lshr_b32 {s(sT0)}, {s(sWv)}, 1")
    A(f"s_add_u32 {s(sH)}, {s(sH)}, {s(sT0)}")
    A(f"s_and_b32 {s(sQt)}, {s(sWv)}, 1")
    A(f"v_lshlrev_b32 {v(vL16)}, 4, {v(vLane)}")
    A(f"v_and_b32 {v(t0)}, 15, {v(vLane)}")
    A(f"v_lshrrev_b32 {v(t1)}, 4, {v(vLane)}")
    A(f"v_and_b32 {v(t2)}, 7, {v(vLane)}")
    A(f"v_lshl_add_u32 {v(t2)}, {v(t1)}, 3, {v(t2)}")
    A(f"v_lshlrev_b32 {v(vKMa)}, 4, {v(t2)}")
    A(f"v_bfe_u32 {v(vVMa)}, {v(vL16)}, 1, 8")
    A(f"v_min_u32 {v(vFl)}, 2, {v(vLane)}")
    A(f"v_lshlrev_b32 {v(vFl)}, 13, {v(vFl)}")
    A(f"s_lshl_b32 {s(sT0)}, {s(sH)}, {L.FC}")
    A(f"s_sub_u32 {s(sT0)}, {L.T_FILL * 8192 + (4 << L.FS) - (4 << L.FC)}, {s(sT0)}")
    g2 = P.get("g2", 0)
    inc = lambda k: s(sI[k]) if g2 else 1 << k
    if g2:
        A(f"s_cmp_eq_u32 {s(sX)}, 7")
        A(f"s_cselect_b32 {s(sS)}, {g2 + 1}, 0")
        A(f"s_cselect_b32 {s(sT1)}, {4 << L.FS}, 0")
        A(f"s_sub_u32 {s(sT0)}, {s(sT0)}, {s(sT1)}")
    A("s_mov_b64 exec, 0xf0")
    A(f"v_lshl_add_u32 {v(vFl)}, {v(vLane)}, {L.FC}, {s(sT0)}")
    A("s_mov_b64 exec, -1")
    A(f"v_mov_b32 {v(vOne)}, 1")
    A(f"v_mov_b32 {v(vZ)}, 0")
    A(f"s_lshl_b32 {s(sT0)}, {s(sQt)}, 4")
    A(f"v_add_u32 {v(t0)}, {s(sT0)}, {v(t0)}")
    A(f"v_lshlrev_b32 {v(t2)}, 2, {v(t1)}")
    A(f"v_sub_u32 {v(t0)}, {v(t0)}, {v(t2)}")
    A(f"v_mov_b32 {v(t2)}, 0xf149f2ca")
    for kt in range(2):
        for r_ in range(4):
            A(f"v_cmp_le_i32 vcc, {16 * kt + r_}, {v(t0)}")
            A("s_nop 1")
            A(f"v_cndmask_b32 {v(B0 + 4 * kt + r_)}, {v(t2)}, 0, vcc")
    A(f"v_cmp_le_u32 vcc, 2, {v(t1)}")
    A("s_nop 1")
    for r_ in range(4):
        A(f"v_cndmask_b32 {v(BM + r_)}, {v(t2)}, 0, vcc")
        A(f"v_mov_b32 {v(ONES + r_)}, 0x3f803f80")
    cval = (128 ** -0.5) * math.log2(math.e)
    A(f"s_mov_b32 {s(sCc)}, {f32(cval)}")
    A(f"s_mov_b32 {s(sNc)}, {f32(-cval)}")
    A(f"s_lshl_b32 {s(sT0)}, {s(sH)}, 12")
    A(f"s_add_u32 {s(sK0)}, {s(sT0)}, {hex(L.K)}")
    A(f"s_add_u32 {s(sK1)}, {s(sK0)}, 131072")
    A(f"s_lshl_b32 {s(sT1)}, {s(sQt)}, 17")
    A(f"s_add_u32 {s(sT0)}, {s(sT0)}, {s(sT1)}")
    A(f"s_add_u32 {s(sQ)}, {s(sT0)}, {hex(L.Q)}")
    A(f"s_add_u32 {s(sO)}, {s(sT0)}, {hex(L.O)}")
    A(f"s_lshl_b32 {s(sT0)}, {s(sH)}, 13")
    A(f"s_add_u32 {s(sV0)}, {s(sT0)}, {hex(L.VT)}")
    A(f"s_add_u32 {s(sV1)}, {s(sV0)}, 4096")
    A(f"s_lshl_b32 {s(sT0)}, {s(sH)}, 11")
    A(f"s_add_u32 {s(sKM)}, {s(sT0)}, {hex(L.KM)}")
    A(f"s_add_u32 {s(sVM)}, {s(sT0)}, {hex(L.VM)}")
    A(f"s_lshl_b32 {s(sT0)}, {s(sH)}, {L.FC}")
    A(f"s_add_u32 {s(sFQ)}, {s(sT0)}, {hex(L.FLAGS + L.F_T)}")
    A(f"s_lshl_b32 {s(sT0)}, {s(sH)}, 3")
    A(f"s_lshl_b32 {s(sT1)}, {s(sQt)}, 2")
    A(f"s_add_u32 {s(sT0)}, {s(sT0)}, {s(sT1)}")
    A(f"s_add_u32 {s(sFO)}, {s(sT0)}, {hex(L.FLAGS + L.F_O)}")
    if not g2:
        A(f"s_mov_b32 {s(sS)}, 0")
    if P.get("diag"):
        rt_init(A, 40)
        A(f"s_lshl3_add_u32 s40, {s(sS)}, s40")
    apl = P.get("apl", 0)
    if apl:
        A(f"s_lshl_b32 {s(sT0)}, {s(sQt)}, 7")
        A(f"v_and_b32 {v(vPg)}, 7, {v(vLane)}")
        A(f"v_lshl_add_u32 {v(vPg)}, {v(vPg)}, 8, {s(sT0)}")
    else:
        A(f"v_and_b32 {v(vPg)}, 1, {v(vLane)}")
        A(f"v_lshlrev_b32 {v(vPg)}, 2, {v(vPg)}")
    A(f"s_mov_b32 {s(sPg)}, {hex(L.FLAGS + L.F_PRG)}")
    if g2:
        for sh, regs in ((18, (sQ, sK0, sK1, sV0, sV1, sO)), (16, (sKM, sVM)), (8, (sFO,)), (2, (sPg,)), (L.FS, (sFQ,))):
            A(f"s_lshl_b32 {s(sT0)}, {s(sS)}, {sh}")
            for x in regs:
                A(f"s_add_u32 {s(x)}, {s(x)}, {s(sT0)}")

    def poll(lbl, ok, va, so, mask, slp):
        A.label(lbl)
        A(f"buffer_load_dword {v(t0)}, {v(va)}, {s(S_WS, 4)}, {s(so)} offen sc1")
        A("s_waitcnt vmcnt(0)")
        A(f"v_cmp_eq_u32 vcc, 0, {v(t0)}")
        A(f"s_and_b32 {s(sT0)}, vcc_lo, {mask}")
        A(f"s_cbranch_scc0 {ok}")
        A(f"s_sleep {slp}")
        A(f"s_sub_u32 {s(sBud)}, {s(sBud)}, 1")
        A(f"s_cbranch_scc0 {lbl}")
        A(f"s_branch {exit_lbl}")

    def peek(_=None):
        A(f"v_mov_b32 {v(vPd)}, 0")
        A(f"s_mov_b64 exec, {(1 << apl) - 1 << 8 - apl}")
        A(f"buffer_atomic_add {v(vPd)}, {v(vPg)}, {s(S_WS, 4)}, {s(sVM)} offen sc0 sc1")
        A("s_mov_b64 exec, -1")

    def tok():
        for kk in range(4):
            ld(QF + 4 * kk, vL16, sQ, kk * 1024)
            ld(KF + 4 * kk, vL16, sK0, kk * 1024)
            ld(KF + 16 + 4 * kk, vL16, sK1, kk * 1024)
        if apl:
            peek(1 << 16 if not g2 else None)
        else:
            A(f"buffer_load_dword {v(vPd)}, {v(vPg)}, {s(S_WS, 4)}, {s(sPg)} offen sc1")
        for et in range(8):
            ld(VF + 4 * et, vL16, sV0 if et < 4 else sV1, (et & 3) * 1024)

    def flag(n):
        A(f"s_waitcnt vmcnt({n})")
        A("s_mov_b64 exec, 1")
        A(f"buffer_store_dword {v(vOne)}, {v(vZ)}, {s(S_WS, 4)}, {s(sFO)} offen sc1")
        A("s_mov_b64 exec, -1")
        A(f"s_add_u32 {s(sFO)}, {s(sFO)}, {inc(8)}")
        if P.get("diag"):
            rt_stamp(A, 40, t0, vZ)
            if g2:
                A(f"s_and_b32 {s(sT0)}, {inc(2)}, 8")
                A(f"s_add_u32 s40, s40, {s(sT0)}")

    if g2:
        A(f"s_cmp_eq_u32 {s(sS)}, 0")
        A(f"s_cbranch_scc1 {pfx}_fp")
        A(f"s_sub_u32 {s(sT1)}, {s(sFO)}, {256 * P.get('g2a', 5)}")
        poll(f"{pfx}_gp", f"{pfx}_fp", vZ, sT1, 1, 32)
    poll(f"{pfx}_fp", f"{pfx}_fok", vFl, sFQ, -1, 8)
    A.label(f"{pfx}_fok")
    tok()
    A("s_waitcnt vmcnt(0)")
    A.label(f"{pfx}_top")
    ex = 2 if P.get("diag") else 1
    if g2:
        A(f"s_cmp_ge_u32 {s(sS)}, {g2}")
        A(f"s_cselect_b32 {inc(0)}, 2, 1")
        for k in (18, 16, 8, 2, 7):
            A(f"s_lshl_b32 {inc(k)}, {inc(0)}, {k}")
    for kk in range(4):
        A(f"s_waitcnt vmcnt({9 + 3 * (3 - kk) + ex})")
        mf(S0, KF + 4 * kk, QF + 4 * kk, S0 if kk else B0)
        mf(S1, KF + 16 + 4 * kk, QF + 4 * kk, S1 if kk else B1)
    for x in (sQ, sK0, sK1, sV0, sV1):
        A(f"s_add_u32 {s(x)}, {s(x)}, {inc(18)}")
    A(f"s_add_u32 {s(sFQ)}, {s(sFQ)}, {inc(L.FS)}")
    A(f"s_waitcnt vmcnt({8 + ex})")
    A(f"v_cmp_eq_u32 vcc, {-1 if apl else 0}, {v(vPd)}")
    A.nop(1)
    A(f"v_max3_f32 {v(t2)}, {v(S0)}, {v(S0 + 1)}, {v(S0 + 2)}")
    A.nop(2)
    A(f"v_max3_f32 {v(t2)}, {v(t2)}, {v(S0 + 3)}, {v(S1)}")
    A(f"v_max3_f32 {v(t2)}, {v(t2)}, {v(S1 + 1)}, {v(S1 + 2)}")
    A(f"v_max_f32 {v(t2)}, {v(t2)}, {v(S1 + 3)}")
    if apl:
        A(f"s_cbranch_vccz {pfx}_mp")
        A(f"s_cmp_eq_u32 {s(sS)}, {63 if P.get('apz', 0) else 99}")
        A(f"s_cbranch_scc1 {pfx}_mp")
        A.label(f"{pfx}_pp")
        peek()
        A(f"s_sub_u32 {s(sBud)}, {s(sBud)}, 1")
        A(f"s_cbranch_scc1 {exit_lbl}")
        A("s_waitcnt vmcnt(0)")
        A(f"v_cmp_eq_u32 vcc, -1, {v(vPd)}")
        A(f"s_cbranch_vccnz {pfx}_pp")
    else:
        A(f"s_cmp_ge_u32 {s(sS)}, {P.get('alead', 56)}")
        A(f"s_cselect_b32 {s(sT1)}, 1, 2")
        A(f"s_and_b32 {s(sT0)}, vcc_lo, {s(sT1)}")
        A(f"s_cbranch_scc0 {pfx}_mp")
        poll(f"{pfx}_pp", f"{pfx}_pok", vPg, sPg, s(sT1), P.get('aps', 2))
        A.label(f"{pfx}_pok")
        A(f"s_cmp_eq_u32 {s(sT1)}, 2")
        A(f"s_cbranch_scc1 {pfx}_mp")
        A(f"s_sleep {P.get('apd3', 8)}")
        A(f"s_cmp_eq_u32 {s(sS)}, 63")
        A(f"s_cbranch_scc1 {pfx}_mp")
        A(f"s_sleep {P.get('apd', 40)}")
    A.label(f"{pfx}_mp")
    for kk in range(4):
        ld(KMF + 4 * kk, vKMa, sKM, kk * 512)
    for k in range(8):
        A(f"buffer_load_dwordx2 {v(VMF + 2 * k, 2)}, {v(vVMa)}, {s(S_WS, 4)}, {s(sVM)} offen offset:{k * 256} sc1")
    A(f"buffer_load_dword {v(vPd)}, {v(vFl)}, {s(S_WS, 4)}, {s(sFQ)} offen sc1")
    for kk in range(4):
        A(f"s_waitcnt vmcnt({12 - kk})")
        mf(SM, KMF + 4 * kk, QF + 4 * kk, SM if kk else BM)
        b = KMF + 4 * kk
        if kk == 0:
            A(f"v_max3_u32 {v(t0)}, {v(b)}, {v(b + 1)}, {v(b + 2)}")
            A(f"v_max_u32 {v(t0)}, {v(t0)}, {v(b + 3)}")
        else:
            A(f"v_max3_u32 {v(t0)}, {v(t0)}, {v(b)}, {v(b + 1)}")
            A(f"v_max3_u32 {v(t0)}, {v(t0)}, {v(b + 2)}, {v(b + 3)}")
    for k in range(4):
        b = VMF + 4 * k
        A(f"s_waitcnt vmcnt({7 - 2 * k})")
        A(f"v_max3_u32 {v(t0)}, {v(t0)}, {v(b)}, {v(b + 1)}")
        A(f"v_max3_u32 {v(t0)}, {v(t0)}, {v(b + 2)}, {v(b + 3)}")
    A(f"v_cmp_eq_u32 vcc, -1, {v(t0)}")
    A(f"s_cbranch_vccz {pfx}_mok")
    if P.get("asl", 1):
        A(f"s_sleep {P.get('asl', 1)}")
    A(f"s_sub_u32 {s(sBud)}, {s(sBud)}, 1")
    A(f"s_cbranch_scc0 {pfx}_mp")
    A(f"s_branch {exit_lbl}")
    A.label(f"{pfx}_mok")
    if P.get("diag"):
        rt_stamp(A, 40, t0, vZ)
    for i in range(4):
        A(f"v_mul_f32 {v(SM + i)}, {s(sCc)}, {v(SM + i)}")
    A(f"v_max3_f32 {v(t0)}, {v(t2)}, {v(SM)}, {v(SM + 1)}")
    A(f"v_max3_f32 {v(t0)}, {v(t0)}, {v(SM + 2)}, {v(SM + 3)}")
    A(f"v_mov_b32 {v(t1)}, {v(t0)}")
    A(f"s_add_u32 {s(sKM)}, {s(sKM)}, {inc(16)}")
    A(f"s_add_u32 {s(sVM)}, {s(sVM)}, {inc(16)}")
    A(f"v_permlane32_swap_b32 {v(t0)}, {v(t1)}")
    A(f"v_max_f32 {v(t0)}, {v(t0)}, {v(t1)}")
    A(f"v_mov_b32 {v(t1)}, {v(t0)}")
    A.nop(2)
    A(f"v_permlane16_swap_b32 {v(t0)}, {v(t1)}")
    A(f"v_max_f32 {v(t0)}, {v(t0)}, {v(t1)}")
    for i in range(12):
        A(f"v_sub_f32 {v(S0 + i)}, {v(S0 + i)}, {v(t0)}")
    for i in range(12):
        A(f"v_exp_f32 {v(S0 + i)}, {v(S0 + i)}")
        if i >= 2 and i % 2 == 0:
            A(f"v_cvt_pk_bf16_f32 {v(PT + i // 2 - 1)}, {v(S0 + i - 2)}, {v(S0 + i - 1)}")
    A.nop(1)
    A(f"v_cvt_pk_bf16_f32 {v(PT + 5)}, {v(S0 + 10)}, {v(S0 + 11)}")
    mf(DEN, ONES, PT, None)
    mf(OA, VF, PT, None)
    A(f"v_mfma_f32_16x16x16_bf16 {v(DEN, 4)}, {v(ONES, 2)}, {v(PM, 2)}, {v(DEN, 4)}")
    for et in range(1, 8):
        mf(OA + 4 * et, VF + 4 * et, PT, None)
    A(f"v_rcp_f32 {v(t0)}, {v(DEN)}")
    for et in range(8):
        A(f"v_mfma_f32_16x16x16_bf16 {v(OA + 4 * et, 4)}, {v(VMF + 2 * et, 2)}, {v(PM, 2)}, {v(OA + 4 * et, 4)}")
    A(f"v_mov_b32 {v(t1)}, {v(t0)}")
    A(f"s_waitcnt vmcnt({ex - 1})")
    A(f"v_cmp_eq_u32 vcc, 0, {v(vPd)}")
    for ks in range(4):
        b = OA + 8 * ks
        if ks == 3:
            A.nop(1)
        for i in range(4):
            A(f"v_pk_mul_f32 {v(b + 2 * i, 2)}, {v(b + 2 * i, 2)}, {v(t0, 2)}")
        for i in range(4):
            A(f"v_cvt_pk_bf16_f32 {v(OP + 4 * ks + i)}, {v(b + 2 * i)}, {v(b + 2 * i + 1)}")
        A(f"buffer_store_dwordx4 {v(OP + 4 * ks, 4)}, {v(vL16)}, {s(S_WS, 4)}, {s(sO)} offen offset:{ks * 1024} sc1")
    A(f"s_add_u32 {s(sO)}, {s(sO)}, {inc(18)}")
    A(f"s_add_u32 {s(sPg)}, {s(sPg)}, {inc(2)}")
    A(f"s_add_u32 {s(sS)}, {s(sS)}, {inc(0)}")
    A(f"s_cmp_ge_u32 {s(sS)}, 64")
    A(f"s_cbranch_scc1 {pfx}_last")
    A(f"s_cbranch_vccnz {pfx}_slow")
    if g2 and P.get("g2f", 1):
        A(f"s_cmp_gt_u32 {s(sS)}, {g2}")
        A(f"s_cbranch_scc1 {pfx}_slow")
    tok()
    flag(21)
    A(f"s_branch {pfx}_top")
    A.label(f"{pfx}_slow")
    flag(0)
    A(f"s_branch {pfx}_fp")
    A.label(f"{pfx}_last")
    flag(0)
    A(f"s_branch {exit_lbl}")
```

```python
from asmlib import *
import layout as L

S_WS = 4
S_W = 8
sX, sT, sWv, sH, sC = 12, 13, 14, 15, 16
sStep = 17
sAL, sAR, sZld, sZst, sOst, sOld0, sOld1, sMst, sVMst, sKT, sVT = range(18, 29)
sBud = 29
sCc, sNegC = 30, 31
sT0, sT1, sT2, sT3 = 32, 33, 34, 35
sM0a, sKM = 36, 37
sMK = 38
sPRG = 39
S_PTR = 40
S_CNT = 48
S_ST = 60
S_DBG = 60
sSTO = 58
sDM = 3
sD, sFw = 0, 1
vRW = 77

ACC = 0
AL, AR = 32, 48
VACC = 64
VT_, ONES = 96, 100
FW, FK = 104, 108
IDX = 112
vWO, vXrd, vXwr, vG16, vZst, vOst, vMst, vVMst, vPF, vPFi, vPFd, vBias, vZrd = range(113, 126)
t0, t1 = 126, 127
t2, t3 = 94, 95
WV = 128

X1 = 0
X2 = 16384
KT = 24576
WVB = 32768
OOB = 0x7F000000


def mpos(A, dst, tmp, P):
    A(f"s_lshl_b32 {s(dst)}, {s(sT)}, 9")
    if P.get("msw", 0):
        A(f"s_and_b32 {s(tmp)}, {s(sT)}, 8")
        A(f"s_lshl_b32 {s(tmp)}, {s(tmp)}, 7")
        A(f"s_xor_b32 {s(dst)}, {s(dst)}, {s(tmp)}")


def quart(A, dst, shift, rot):
    if rot:
        A(f"s_lshr_b32 {s(dst)}, {s(sT)}, {rot - 1}")
        A(f"s_add_u32 {s(dst)}, {s(dst)}, {s(sWv)}")
        A(f"s_and_b32 {s(dst)}, {s(dst)}, 3")
        A(f"s_lshl_b32 {s(dst)}, {s(dst)}, {shift}")
    else:
        A(f"s_lshl_b32 {s(dst)}, {s(sWv)}, {shift}")


def rotx(A, dst, mode, mask, shift, cu):
    if mode == 2:
        A(f"s_xor_b32 {s(dst)}, {s(sWv)}, {s(cu)}")
    else:
        A(f"s_mov_b32 {s(dst)}, {s(sWv) if mode == 1 else s(cu) if mode else 0}")
    A(f"s_and_b32 {s(dst)}, {s(dst)}, {mask}")
    A(f"s_lshl_b32 {s(dst)}, {s(dst)}, {shift}")


def srd(A, dst, ptr, nbytes):
    A(f"s_mov_b32 {s(dst)}, {s(ptr)}")
    A(f"s_and_b32 {s(dst + 1)}, {s(ptr + 1)}, 0xffff")
    A(f"s_mov_b32 {s(dst + 2)}, {hex(nbytes)}")
    A(f"s_mov_b32 {s(dst + 3)}, 0x20000")


def read_counts(A, lbl, exit_lbl):
    A(f"v_and_b32 {v(t0)}, 7, {v(t2)}")
    A(f"v_lshlrev_b32 {v(t0)}, 5, {v(t0)}")
    A.label(lbl)
    A(f"buffer_load_dword {v(t1)}, {v(t0)}, {s(S_DBG, 4)}, 0 offen sc1")
    A("s_waitcnt vmcnt(0)")
    for i in range(8):
        A(f"v_readlane_b32 {s(S_CNT + i)}, {v(t1)}, {i}")
    A("s_nop 3")
    A(f"s_add_u32 {s(sT1)}, {s(S_CNT)}, {s(S_CNT + 1)}")
    for i in range(2, 8):
        A(f"s_add_u32 {s(sT1)}, {s(sT1)}, {s(S_CNT + i)}")
    A(f"s_cmp_ge_u32 {s(sT1)}, 256")
    A(f"s_cbranch_scc1 {lbl}_ok")
    A(f"s_sub_u32 {s(sBud)}, {s(sBud)}, 1")
    A(f"s_cbranch_scc1 {exit_lbl}")
    A("s_sleep 4")
    A(f"s_branch {lbl}")
    A.label(f"{lbl}_ok")


def wait_a(A, lbl, exit_lbl, va, vd):
    A(f"v_mov_b32 {v(va)}, 0")
    A.label(lbl)
    A(f"buffer_load_dword {v(vd)}, {v(va)}, {s(S_DBG, 4)}, 0 offen offset:{L.D_A} sc1")
    A("s_waitcnt vmcnt(0)")
    A(f"v_cmp_gt_u32 vcc, 4, {v(vd)}")
    A(f"s_cbranch_vccz {lbl}_ok")
    A("s_sleep 4")
    A(f"s_sub_u32 {s(sBud)}, {s(sBud)}, 1")
    A(f"s_cbranch_scc0 {lbl}")
    A(f"s_branch {exit_lbl}")
    A.label(f"{lbl}_ok")


def wait_fill(A, lbl, exit_lbl, lane, va, vd):
    A(f"v_lshlrev_b32 {v(va)}, 2, {v(lane)}")
    A(f"s_mov_b32 {s(sT0)}, {hex(L.FLAGS + L.F_FILL)}")
    A.label(lbl)
    A(f"buffer_load_dword {v(vd)}, {v(va)}, {s(S_WS, 4)}, {s(sT0)} offen sc1")
    A("s_waitcnt vmcnt(0)")
    A(f"v_cmp_eq_u32 vcc, 0, {v(vd)}")
    A(f"s_cbranch_vccz {lbl}_ok")
    A("s_sleep 4")
    A(f"s_sub_u32 {s(sBud)}, {s(sBud)}, 1")
    A(f"s_cbranch_scc0 {lbl}")
    A(f"s_branch {exit_lbl}")
    A.label(f"{lbl}_ok")


def slot_assign(A, pfx, exit_lbl):
    A(f"s_cmp_lg_u32 {s(sWv)}, 0")
    A(f"s_cbranch_scc1 {pfx}_slot_wait")
    A(f"s_getreg_b32 {s(sX)}, hwreg(HW_REG_XCC_ID, 0, 4)")
    A(f"s_and_b32 {s(sX)}, {s(sX)}, 7")
    A(f"s_lshl_b32 {s(sT0)}, {s(sX)}, 5")
    A(f"v_mov_b32 {v(t0)}, 0")
    A(f"v_mov_b32 {v(t1)}, 1")
    A("s_mov_b64 exec, 1")
    A(f"buffer_atomic_add {v(t1)}, {v(t0)}, {s(S_DBG, 4)}, {s(sT0)} offen sc0 sc1")
    A("s_waitcnt vmcnt(0)")
    A("s_mov_b64 exec, -1")
    A(f"v_readfirstlane_b32 {s(sT)}, {v(t1)}")
    A("s_nop 3")
    A(f"s_cmp_lt_u32 {s(sT)}, 32")
    A(f"s_cbranch_scc1 {pfx}_slot_pub")
    read_counts(A, f"{pfx}_ovf_cnt", exit_lbl)
    A(f"v_mov_b32 {v(t0)}, 0")
    A(f"v_mov_b32 {v(t1)}, 1")
    A("s_mov_b64 exec, 1")
    A(f"buffer_atomic_add {v(t1)}, {v(t0)}, {s(S_DBG, 4)}, 0 offen offset:{L.D_OVF} sc0 sc1")
    A("s_waitcnt vmcnt(0)")
    A("s_mov_b64 exec, -1")
    A(f"v_readfirstlane_b32 {s(sT1)}, {v(t1)}")
    A("s_nop 3")
    for i in range(8):
        A(f"s_min_u32 {s(sT2)}, {s(S_CNT + i)}, 32")
        A(f"s_sub_u32 {s(sT3)}, 32, {s(sT2)}")
        A(f"s_mov_b32 {s(sX)}, {i}")
        A(f"s_add_u32 {s(sT)}, {s(sT2)}, {s(sT1)}")
        A(f"s_cmp_lt_u32 {s(sT1)}, {s(sT3)}")
        A(f"s_cbranch_scc1 {pfx}_slot_pub")
        A(f"s_sub_u32 {s(sT1)}, {s(sT1)}, {s(sT3)}")
    A(f"s_mov_b32 {s(sX)}, 8")
    A(f"s_mov_b32 {s(sT)}, 0")
    A.label(f"{pfx}_slot_pub")
    A(f"v_mov_b32 {v(t0)}, 0")
    A(f"v_mov_b32 {v(t1)}, {s(sX)}")
    A(f"v_mov_b32 {v(t3)}, {s(sT)}")
    A(f"ds_write_b32 {v(t0)}, {v(t1)}")
    A(f"ds_write_b32 {v(t0)}, {v(t3)} offset:4")
    A("s_waitcnt lgkmcnt(0)")
    A.label(f"{pfx}_slot_wait")
    A("s_barrier")
    A(f"v_mov_b32 {v(t0)}, 0")
    A(f"ds_read_b32 {v(t1)}, {v(t0)}")
    A(f"ds_read_b32 {v(t3)}, {v(t0)} offset:4")
    A("s_waitcnt lgkmcnt(0)")
    A(f"v_readfirstlane_b32 {s(sX)}, {v(t1)}")
    A(f"v_readfirstlane_b32 {s(sT)}, {v(t3)}")
    A("s_nop 3")
    A("s_barrier")


def chain_prologue(A, pfx, P, mid, last):
    lane = t2
    A(f"s_lshr_b32 {s(sH)}, {s(sT)}, 1")
    A(f"s_lshl_b32 {s(sT0)}, {s(sX)}, 4")
    A(f"s_add_u32 {s(sH)}, {s(sH)}, {s(sT0)}")
    A(f"s_and_b32 {s(sC)}, {s(sT)}, 1")
    vW1, vW2, vT1, vT1v, vT2, rowl, cc = 64, 65, 66, 67, 68, 69, 70
    sLW = sM0a
    A(f"s_lshl_b32 {s(sLW)}, {s(sWv)}, 15")
    A(f"s_add_u32 {s(sLW)}, {s(sLW)}, {WVB}")
    A(f"v_lshrrev_b32 {v(t0)}, 3, {v(lane)}")
    A(f"v_and_b32 {v(t1)}, 7, {v(lane)}")
    A(f"v_lshlrev_b32 {v(t0)}, 13, {v(t0)}")
    A(f"v_lshl_add_u32 {v(vW1)}, {v(t1)}, 4, {v(t0)}")
    A(f"v_lshrrev_b32 {v(t0)}, 2, {v(lane)}")
    A(f"v_and_b32 {v(cc)}, 3, {v(lane)}")
    A(f"v_lshlrev_b32 {v(t0)}, 11, {v(t0)}")
    A(f"v_lshl_add_u32 {v(vW2)}, {v(cc)}, 4, {v(t0)}")
    A(f"v_lshrrev_b32 {v(t0)}, 5, {v(lane)}")
    A(f"v_lshlrev_b32 {v(rowl)}, 4, {v(t0)}")
    A(f"v_bfe_u32 {v(t0)}, {v(lane)}, 4, 1")
    A(f"v_lshl_add_u32 {v(rowl)}, {v(t0)}, 2, {v(rowl)}")
    A(f"v_bfe_u32 {v(t0)}, {v(lane)}, 2, 1")
    A(f"v_add_u32 {v(rowl)}, {v(rowl)}, {v(t0)}")
    A(f"v_bfe_u32 {v(t0)}, {v(lane)}, 3, 1")
    A(f"v_lshl_add_u32 {v(rowl)}, {v(t0)}, 3, {v(rowl)}")
    A(f"v_lshl_add_u32 {v(t0)}, {v(rowl)}, 7, {s(sLW)}")
    A(f"v_lshl_add_u32 {v(vT1v)}, {v(cc)}, 3, {v(t0)}")
    A(f"v_lshl_add_u32 {v(t0)}, {v(rowl)}, 6, {s(sLW)}")
    v3 = P.get("v3", 0)
    A(f"v_lshl_add_u32 {v(vT2)}, {v(cc)}, {3 if v3 else 4}, {v(t0)}")
    A(f"v_lshlrev_b32 {v(vG16)}, 4, {v(lane)}")
    A(f"v_add_u32 {v(vWO)}, {s(sLW)}, {v(vG16)}")
    vTq, vTv = 32, 36
    f16 = v3 and P.get("f16", 0)
    if v3:
        A(f"v_lshlrev_b32 {v(t0)}, 7, {v(rowl)}")
        A(f"v_lshl_add_u32 {v(41)}, {v(cc)}, 3, {v(t0)}")
        A(f"v_lshl_add_u32 {v(41)}, {s(sWv)}, 5, {v(41)}")
        A(f"v_and_b32 {v(t1)}, 1, {v(cc)}")
        A(f"v_lshl_add_u32 {v(40)}, {v(t1)}, 3, {v(t0)}")
        A(f"v_lshrrev_b32 {v(t1)}, 1, {v(cc)}")
        A(f"v_lshl_add_u32 {v(40)}, {v(t1)}, 5, {v(40)}")
        A(f"s_lshr_b32 {s(sT0)}, {s(sWv)}, 1")
        A(f"s_and_b32 {s(sT1)}, {s(sWv)}, 1")
        A(f"v_lshl_add_u32 {v(40)}, {s(sT0)}, 6, {v(40)}")
        A(f"v_lshl_add_u32 {v(40)}, {s(sT1)}, 4, {v(40)}")
        for dq in range(4):
            A(f"s_xor_b32 {s(sT0)}, {s(sWv)}, {dq}")
            A(f"s_lshl_b32 {s(sT0)}, {s(sT0)}, 15")
            A(f"s_add_u32 {s(sT0)}, {s(sT0)}, {WVB}")
            A(f"v_add_u32 {v(vTq + dq)}, {s(sT0)}, {v(40)}")
            A(f"v_add_u32 {v(vTv + dq)}, {s(sT0)}, {v(41)}")
    sB1, sB2 = sT2, sT3
    quart(A, sB1, 21, P.get("rM", 0))
    A(f"s_lshl_b32 {s(sT0)}, {s(sH)}, 8")
    A(f"s_add_u32 {s(sB1)}, {s(sB1)}, {s(sT0)}")
    A(f"s_lshl_b32 {s(sT0)}, {s(sC)}, 7")
    A(f"s_add_u32 {s(sB1)}, {s(sB1)}, {s(sT0)}")
    A(f"s_lshl_b32 {s(sB2)}, {s(sX)}, 22")
    quart(A, sT0, 20, P.get("rO", 0))
    A(f"s_add_u32 {s(sB2)}, {s(sB2)}, {s(sT0)}")
    A(f"s_lshl_b32 {s(sT0)}, {s(sT)}, 6")
    A(f"s_add_u32 {s(sB2)}, {s(sB2)}, {s(sT0)}")
    if v3:
        rotx(A, sT0, P["xM"], 3, 19, sT)
        A(f"s_add_u32 {s(sB1)}, {s(sB1)}, {s(sT0)}")
        rotx(A, sT0, P["xO"], 7, 17, sT)
        A(f"s_add_u32 {s(sB2)}, {s(sB2)}, {s(sT0)}")

    mats = [["q", "k", "v", "o"], ["k", "v", "q", "o"], ["v", "k", "q", "o"]][P.get("mo", 0)]
    nt = {m: " nt" if (P.get("nt", 0) >> i) & 1 else "" for i, m in enumerate("qkvo")}
    ptr = {"q": S_PTR, "k": S_PTR + 2, "v": S_PTR + 4, "o": S_PTR + 6}

    c3 = P.get("c3", 1)
    vC3a, vC3b, vC3d, sO3 = 80, 81, 82, sMK + 1
    if c3 == 1:
        A(f"v_bfe_u32 {v(t0)}, {v(lane)}, 2, 1")
        A(f"v_lshl_add_u32 {v(t0)}, {s(sT)}, 1, {v(t0)}")
        A(f"v_lshlrev_b32 {v(t0)}, 13, {v(t0)}")
        A(f"v_lshl_add_u32 {v(vC3a)}, {v(cc)}, 10, {v(t0)}")
        A(f"v_and_b32 {v(t0)}, 7, {v(lane)}")
        A(f"v_lshl_add_u32 {v(t0)}, {s(sT)}, 3, {v(t0)}")
        A(f"v_lshlrev_b32 {v(vC3b)}, 10, {v(t0)}")
    elif c3:
        A(f"v_lshrrev_b32 {v(t0)}, 5, {v(lane)}")
        A(f"v_lshl_add_u32 {v(t0)}, {s(sT)}, 1, {v(t0)}")
        A(f"v_lshlrev_b32 {v(t0)}, 13, {v(t0)}")
        A(f"v_and_b32 {v(t1)}, 31, {v(lane)}")
        A(f"v_lshl_add_u32 {v(vC3a)}, {v(t1)}, 7, {v(t0)}")
        A(f"v_lshl_add_u32 {v(t0)}, {s(sT)}, 6, {v(lane)}")
        A(f"v_lshlrev_b32 {v(vC3b)}, 7, {v(t0)}")

    def issue(m, j):
        if j == 0:
            srd(A, S_W, ptr[m], 8 * 1024 * 1024)
            if c3 == 1:
                A(f"s_sub_u32 {s(sO3)}, {3 * 128 + 127}, {s(ptr[m])}")
                A(f"s_and_b32 {s(sO3)}, {s(sO3)}, 0x380")
                if v3:
                    A(f"s_lshr_b32 {s(sT1)}, {s(sO3)}, {6 if m == 'o' else 7}")
                    if m == "o":
                        rotx(A, sT1, P["xO"], 6, 17, sT1)
                    else:
                        rotx(A, sT1, P["xM"], 3, 19, sT1)
                    A(f"s_add_u32 {s(sO3)}, {s(sO3)}, {s(sT1)}")
                A(f"s_andn2_b32 {s(sT0)}, {s(sB2 if m == 'o' else sB1)}, {hex(0xe0fff if m == 'o' else 0x180fff)}")
                A(f"s_add_u32 {s(sO3)}, {s(sO3)}, {s(sT0)}")
            elif c3:
                A(f"s_andn2_b32 {s(sO3)}, {s(sB2 if m == 'o' else sB1)}, 0xfff")
        if c3:
            A(f"s_xor_b32 {s(sT0)}, {s(sO3)}, {hex(128 * j * 2048 if m == 'o' else 64 * j * 8192)}")
            if P.get("c3w", 0):
                A(f"buffer_load_dwordx2 {v(vC3d, 2)}, {v(vC3b if m == 'o' else vC3a)}, {s(S_W, 4)}, {s(sT0)} offen offset:60")
            else:
                A(f"buffer_load_dword {v(vC3d)}, {v(vC3b if m == 'o' else vC3a)}, {s(S_W, 4)}, {s(sT0)} offen")
        for p in range(8):
            if m == "o":
                A(f"s_xor_b32 {s(sT0)}, {s(sB2)}, {hex((128 * j + 16 * p) * 2048)}")
            else:
                A(f"s_xor_b32 {s(sT0)}, {s(sB1)}, {hex((64 * j + 8 * p) * 8192)}")
            A(f"s_add_u32 m0, {s(sLW)}, {j * 8192 + p * 1024}")
            A("s_nop 0")
            A(f"buffer_load_dwordx4 {v(vW2 if m == 'o' else vW1)}, {s(S_W, 4)}, {s(sT0)} offen{nt[m]} lds")

    def consume(m, j):
        if m == "o":
            for jj in range(2):
                for t in range(2):
                    for p in range(0, 8, 2):
                        off = j * 8192 + (64 * jj + 32 * (p >> 2) + 2 * ((p >> 1) & 1)) * 64 + (32 if v3 else 8) * t
                        A(f"ds_read_b64_tr_b16 {v((jj * 2 + t) * 8 + p, 2)}, {v(vT2)} offset:{off}")
        else:
            if v3:
                A("s_barrier")
            for t in range(4):
                for p in range(0, 8, 2):
                    off = j * 8192 + (32 * (p >> 2) + 2 * ((p >> 1) & 1)) * 128
                    ad = f"{v((vTv if m == 'v' else vTq) + t)} offset:{off}" if v3 else f"{v(vT1v)} offset:{off + 32 * t}"
                    if m == "v":
                        A(f"ds_read_b64_tr_b16 {v(WV + (j * 4 + t) * 8 + p, 2)}, {ad}")
                    else:
                        d = (0 if m == "q" else 128) + (t * 4 + j) * 8 + p
                        A(f"ds_read_b64_tr_b16 {v(t * 8 + p, 2) if f16 else a(d, 2)}, {ad}")
        A("s_waitcnt lgkmcnt(0)")
        if v3 and m != "o":
            A("s_barrier")
        if m == "o":
            for t in range(4):
                for hf in range(2):
                    A(f"ds_write_b128 {v(vWO)}, {v(t * 8 + 4 * hf, 4)} offset:{(j * 4 + t) * 2048 + hf * 1024}")
            A("s_waitcnt lgkmcnt(0)")

    def convert(m, j):
        if not f16 or m == "o":
            return
        for t in range(4):
            for p in range(8):
                x = WV + (j * 4 + t) * 8 + p if m == "v" else t * 8 + p
                u = 42 + 2 * (p & 1)
                A(f"v_lshlrev_b32 {v(u)}, 16, {v(x)}")
                A(f"v_and_b32 {v(u + 1)}, 0xffff0000, {v(x)}")
                A(f"v_cvt_pk_f16_f32 {v(x)}, {v(u)}, {v(u + 1)}")
            if m != "v":
                for p in range(8):
                    A(f"v_accvgpr_write_b32 {a((0 if m == 'q' else 128) + (t * 4 + j) * 8 + p)}, {v(t * 8 + p)}")

    seq = [(m, j) for m in mats for j in range(4)]
    A(f"v_min_u32 {v(73)}, 8, {v(lane)}")
    A(f"v_lshlrev_b32 {v(73)}, 5, {v(73)}")
    A(f"v_mov_b32 {v(t0)}, {L.D_A}")
    A(f"v_cmp_gt_u32 vcc, 8, {v(lane)}")
    A(f"v_lshlrev_b32 {v(74)}, 2, {v(lane)}")
    A(f"v_add_u32 {v(74)}, {hex(L.FLAGS + L.F_FILL)}, {v(74)}")
    A(f"v_cndmask_b32 {v(73)}, {v(t0)}, {v(73)}, vcc")
    A(f"v_and_b32 {v(75)}, 1, {v(lane)}")
    A(f"s_lshl_b32 {s(sT0)}, {s(sH)}, {L.FC}")
    A(f"s_add_u32 {s(sT0)}, {s(sT0)}, {hex(L.FLAGS + L.F_T + L.T_K * 8192)}")
    A(f"v_lshl_add_u32 {v(75)}, {v(75)}, 13, {s(sT0)}")
    ops = []
    D = 4
    ot = P.get("ot", 0)
    if ot:
        vOT, S_O = 71, 96
        srd(A, S_O, ptr["o"], 8 * 1024 * 1024)
        A(f"v_lshlrev_b32 {v(vOT)}, 12, {v(lane)}")
        A(f"v_lshl_add_u32 {v(vOT)}, {s(sC)}, 11, {v(vOT)}")

    def otouch(i):
        j = i + ot - 12
        if ot and 0 <= j < 4:
            A(f"s_andn2_b32 {s(sT0)}, {s(sB2)}, 0x7f")
            A(f"s_add_u32 {s(sT0)}, {s(sT0)}, {hex(128 * j * 2048)}")
            A(f"buffer_load_dwordx2 {v(86, 2)}, {v(vOT)}, {s(S_O, 4)}, {s(sT0)} offen offset:60")
            ops.append(-1)
    for i in range(D):
        issue(*seq[i])
        ops += [i] * (8 + (c3 > 0))
    e1, e2 = P.get("e1", 6), P.get("e2", 14)
    for i in range(16):
        A(f"s_waitcnt vmcnt({len(ops) - 1 - max(k for k, x in enumerate(ops) if x == i)})")
        if P.get("diag"):
            A(f"s_memrealtime s[{64 + 2 * i}:{65 + 2 * i}]")
        if i == e1 + 4:
            for k in range(8):
                A(f"v_readlane_b32 {s(S_CNT + k)}, {v(72)}, {k}")
            A(f"v_readlane_b32 {s(sMK)}, {v(72)}, 8")
            A("s_nop 3")
            A(f"s_add_u32 {s(sT1)}, {s(S_CNT)}, {s(S_CNT + 1)}")
            for k in range(2, 8):
                A(f"s_add_u32 {s(sT1)}, {s(sT1)}, {s(S_CNT + k)}")
            A(f"s_cmp_ge_u32 {s(sMK)}, 4")
            A(f"s_cselect_b32 {s(sT1)}, {s(sT1)}, 0")
            A(f"s_cmp_ge_u32 {s(sT1)}, 256")
            A(f"s_cselect_b32 {s(sMK)}, 0, 1")
        if i == e2:
            A(f"buffer_load_dword {v(76)}, {v(74)}, {s(S_WS, 4)}, 0 offen sc1")
            A(f"buffer_load_dword {v(79)}, {v(75)}, {s(S_WS, 4)}, 0 offen sc1")
            ops += [-1, -1]
        if i == 15:
            last()
        if D < 4 and i + D < 16:
            issue(*seq[i + D])
            ops += [i + D] * (8 + (c3 > 0))
        consume(*seq[i])
        if i == e1:
            A(f"buffer_load_dword {v(72)}, {v(73)}, {s(S_DBG, 4)}, 0 offen sc1")
            A(f"buffer_load_dwordx2 {v(84, 2)}, off, {s(S_DBG, 4)}, 0 offset:{L.D_NB} sc1")
            ops += [-1, -1]
        if D == 4 and i + 4 < 16:
            issue(*seq[i + 4])
            ops += [i + 4] * (8 + (c3 > 0))
            otouch(i + 4)
        convert(*seq[i])
        if i == 11:
            mid()

    if P.get("diag"):
        A("s_memrealtime s[96:97]")


def chain_consts(A, P):
    lane = t2
    n_, g_ = 64, 65
    A(f"v_and_b32 {v(n_)}, 15, {v(lane)}")
    A(f"v_lshrrev_b32 {v(g_)}, 4, {v(lane)}")
    A(f"v_bfe_u32 {v(t0)}, {v(lane)}, 4, 1")
    A(f"v_lshlrev_b32 {v(t0)}, 2, {v(t0)}")
    A(f"v_sub_u32 {v(t0)}, {v(n_)}, {v(t0)}")
    A(f"v_mov_b32 {v(66)}, 0x3f80")
    A(f"v_mov_b32 {v(67)}, 0x3f800000")
    A(f"s_and_b32 {s(sT1)}, {s(sWv)}, 1")
    A(f"s_lshl_b32 {s(sT0)}, {s(sT1)}, 3")
    A(f"v_subrev_u32 {v(71)}, {s(sT0)}, {v(t0)}")
    v3 = P.get("v3", 0)
    ix = 69
    if v3:
        A(f"v_lshrrev_b32 {v(70)}, 3, {v(n_)}")
        A(f"v_and_b32 {v(ix)}, 5, {v(n_)}")
        A(f"v_lshl_add_u32 {v(ix)}, {v(70)}, 1, {v(ix)}")
        A(f"v_sub_u32 {v(t0)}, {v(t0)}, {v(n_)}")
        A(f"v_add_u32 {v(t0)}, {v(t0)}, {v(ix)}")
        A(f"v_and_b32 {v(70)}, 2, {v(n_)}")
        A(f"v_lshl_add_u32 {v(t0)}, {v(70)}, 4, {v(t0)}")
    for base, dd, src in ((FW, 32, t0), (FK, 0, t0)) if v3 else ((FW, 0, 71), (FK, 8, t0)):
        for rg in range(2):
            A(f"v_cmp_eq_u32 vcc, {dd + 2 * rg}, {v(src)}")
            A("s_nop 1")
            A(f"v_cndmask_b32 {v(t1)}, 0, {v(66)}, vcc")
            A(f"v_cmp_eq_u32 vcc, {dd + 2 * rg + 1}, {v(src)}")
            A("s_nop 1")
            A(f"v_cndmask_b32 {v(base + rg)}, {v(t1)}, {v(67)}, vcc")
            A(f"v_mov_b32 {v(base + rg + 2)}, {v(base + rg)}")
            if v3 and base == FK:
                A(f"v_mov_b32 {v(FW + rg + 2)}, {v(base + rg)}")
    A(f"v_mov_b32 {v(t1)}, 0x4444")
    A(f"v_mov_b32 {v(t3)}, 0xeeee")
    A(f"v_cmp_gt_u32 vcc, 8, {v(n_)}")
    A("s_nop 1")
    A(f"v_cndmask_b32 {v(IDX)}, {v(t3)}, {v(t1)}, vcc")
    A(f"v_lshrrev_b32 {v(t0)}, 1, {v(g_)}")
    A(f"v_lshlrev_b32 {v(t0)}, 7, {v(t0)}")
    A(f"v_lshl_add_u32 {v(t0)}, {v(n_)}, 4, {v(t0)}")
    A(f"v_and_b32 {v(t1)}, 1, {v(g_)}")
    A(f"v_lshl_add_u32 {v(t0)}, {v(t1)}, 3, {v(t0)}")
    A(f"v_mov_b32 {v(t3)}, {hex(OOB)}")
    A(f"v_cndmask_b32 {v(vOst)}, {v(t3)}, {v(t0)}, vcc")
    A(f"v_lshlrev_b32 {v(t0)}, 3, {v(n_)}")
    A(f"v_lshl_add_u32 {v(t0)}, {v(t1)}, 7, {v(t0)}")
    A(f"v_cmp_le_u32 vcc, 2, {v(g_)}")
    A("s_nop 1")
    A(f"v_cndmask_b32 {v(vVMst)}, {v(t3)}, {v(t0)}, vcc")
    A(f"v_mov_b32 {v(t0)}, 0xf149f2ca")
    A(f"v_cndmask_b32 {v(vBias)}, {v(t0)}, 0, vcc")
    A(f"v_lshrrev_b32 {v(t0)}, 3, {v(n_)}")
    A(f"v_cmp_eq_u32 vcc, {s(sT1)}, {v(t0)}")
    A(f"v_and_b32 {v(t0)}, 7, {v(n_)}")
    A(f"v_lshlrev_b32 {v(t0)}, 4, {v(t0)}")
    A(f"v_lshl_add_u32 {v(t0)}, {v(g_)}, 7, {v(t0)}")
    A(f"v_cndmask_b32 {v(vZst)}, {v(t3)}, {v(vG16)}, vcc")
    A(f"v_cndmask_b32 {v(vMst)}, {v(t3)}, {v(t0)}, vcc")
    A(f"s_lshl_b32 {s(sT0)}, {s(sWv)}, 11")
    A(f"v_add_u32 {v(vXrd)}, {s(sT0)}, {v(vG16)}")
    A(f"s_lshr_b32 {s(sT0)}, {s(sWv)}, 1")
    A(f"s_lshl_b32 {s(sT0)}, {s(sT0)}, 10")
    A(f"s_lshl_b32 {s(sT1)}, {s(sT1)}, 3")
    A(f"s_add_u32 {s(sT0)}, {s(sT0)}, {s(sT1)}")
    A(f"v_add_u32 {v(vXwr)}, {s(sT0)}, {v(vG16)}")
    A(f"v_lshrrev_b32 {v(t0)}, 3, {v(n_)}")
    A(f"v_lshl_add_u32 {v(vZrd)}, {v(t0)}, 11, {v(vG16)}")
    if v3:
        A(f"v_lshrrev_b32 {v(71)}, 1, {v(g_)}")
        A(f"v_cmp_ne_u32 vcc, 0, {v(70)}")
        A(f"v_lshlrev_b32 {v(t0)}, 4, {v(n_)}")
        A(f"v_lshl_add_u32 {v(t0)}, {v(t1)}, 8, {v(t0)}")
        A(f"v_lshl_add_u32 {v(vZst)}, {v(71)}, 3, {v(t0)}")
        A(f"v_lshrrev_b32 {v(vVMst)}, 1, {v(vZst)}")
        A(f"v_lshlrev_b32 {v(ix)}, 4, {v(ix)}")
        A(f"v_lshl_add_u32 {v(t0)}, {v(t1)}, 7, {v(ix)}")
        A(f"v_lshl_add_u32 {v(t0)}, {v(71)}, 3, {v(t0)}")
        A(f"v_cndmask_b32 {v(vMst)}, {v(t0)}, {v(t3)}, vcc")
        A(f"v_lshl_add_u32 {v(t0)}, {v(71)}, 7, {v(ix)}")
        A(f"v_lshl_add_u32 {v(t0)}, {v(t1)}, 3, {v(t0)}")
        A(f"v_cndmask_b32 {v(vZrd)}, {v(t0)}, {v(t3)}, vcc")
        A(f"v_cndmask_b32 {v(vOst)}, {v(t3)}, {v(t0)}, vcc")
    A(f"s_mov_b32 {s(sStep)}, 0")
    A(f"s_lshl_b32 {s(sT0)}, {s(sX)}, 14")
    quart(A, sT1, 12, P.get("rM", 0))
    A(f"s_add_u32 {s(sAL)}, {s(sT0)}, {s(sT1)}")
    if v3:
        rotx(A, sT1, P["xM"], 3, 10, sT)
        A(f"s_add_u32 {s(sAL)}, {s(sAL)}, {s(sT1)}")
    A(f"s_xor_b32 {s(sAR)}, {s(sAL)}, 0x4000")
    A(f"s_add_u32 {s(sAL)}, {s(sAL)}, {hex(L.STEP + L.S_MEML)}")
    A(f"s_add_u32 {s(sAR)}, {s(sAR)}, {hex(L.STEP + L.S_MEMR)}")
    if P.get("swp"):
        A(f"s_mov_b32 {s(sT0)}, {s(sAL)}")
        A(f"s_mov_b32 {s(sAL)}, {s(sAR)}")
        A(f"s_mov_b32 {s(sAR)}, {s(sT0)}")
    A(f"s_lshl_b32 {s(sZld)}, {s(sH)}, 12")
    A(f"s_add_u32 {s(sZld)}, {s(sZld)}, {hex(L.STEP + L.S_Z)}")
    A(f"s_lshl_b32 {s(sT0)}, {s(sC)}, 11")
    if v3:
        A(f"s_lshl_b32 {s(sT1)}, {s(sWv)}, 9")
    else:
        A(f"s_lshr_b32 {s(sT1)}, {s(sWv)}, 1")
        A(f"s_lshl_b32 {s(sT1)}, {s(sT1)}, 10")
    A(f"s_add_u32 {s(sT0)}, {s(sT0)}, {s(sT1)}")
    A(f"s_add_u32 {s(sZst)}, {s(sZld)}, {s(sT0)}")
    if P.get("pa"):
        A(f"s_lshl_b32 {s(sT0)}, {s(sC)}, 11")
        A(f"s_xor_b32 {s(sT0)}, {s(sT0)}, 2048")
        A(f"s_add_u32 {s(sZld)}, {s(sZld)}, {s(sT0)}")
    A(f"s_lshl_b32 {s(sT0)}, {s(sX)}, 15")
    A(f"s_add_u32 {s(sT0)}, {s(sT0)}, {hex(L.STEP + L.S_OB)}")
    A(f"s_lshl_b32 {s(sT1)}, {s(sT)}, 10")
    A(f"s_add_u32 {s(sOst)}, {s(sT0)}, {s(sT1)}")
    A(f"s_lshl_b32 {s(sT1)}, {s(sWv)}, 8")
    A(f"s_add_u32 {s(sOst)}, {s(sOst)}, {s(sT1)}")
    quart(A, sT1, 13, P.get("rO", 0))
    A(f"s_add_u32 {s(sOld0)}, {s(sT0)}, {s(sT1)}")
    A(f"s_add_u32 {s(sOld1)}, {s(sOld0)}, 4096")
    if v3:
        rotx(A, sT1, P["xO"], 7, 10, sT)
        A(f"s_add_u32 {s(sOld0)}, {s(sOld0)}, {s(sT1)}")
    A(f"s_lshl_b32 {s(sT0)}, {s(sX)}, 14")
    mpos(A, sT1, sT2, P)
    A(f"s_add_u32 {s(sT0)}, {s(sT0)}, {s(sT1)}")
    if v3:
        A(f"s_bitcmp1_b32 {s(sWv)}, 0")
        A(f"s_cselect_b32 {s(sT1)}, 256, 0")
    else:
        A(f"s_cmp_eq_u32 {s(sWv)}, 0")
        A(f"s_cselect_b32 {s(sT1)}, {hex(L.S_MEMR - L.S_MEML)}, 0")
    A(f"s_add_u32 {s(sT0)}, {s(sT0)}, {s(sT1)}")
    A(f"s_add_u32 {s(sMst)}, {s(sT0)}, {hex(L.STEP + (0 if P.get('pa') else L.STEP_STRIDE) + L.S_MEML)}")
    if not v3:
        A(f"s_cmp_lt_u32 {s(sWv)}, 2")
        A(f"s_cselect_b32 {s(sMst)}, {s(sMst)}, {hex(OOB)}")
    A(f"s_lshl_b32 {s(sT0)}, {s(sC)}, 6")
    A(f"s_lshl_b32 {s(sT1)}, {s(sWv)}, 4")
    A(f"s_add_u32 {s(sT0)}, {s(sT0)}, {s(sT1)}")
    A(f"s_lshl_b32 {s(sT1)}, {s(sH)}, 7")
    A(f"s_add_u32 {s(sT0)}, {s(sT0)}, {s(sT1)}")
    A(f"s_lshl_b32 {s(sVMst)}, {s(sT0)}, 4")
    A(f"s_add_u32 {s(sVMst)}, {s(sVMst)}, {hex(L.VM)}")
    A(f"s_lshl_b32 {s(sKM)}, {s(sH)}, 2")
    A(f"s_lshl_b32 {s(sT1)}, {s(sC)}, 1")
    A(f"s_add_u32 {s(sKM)}, {s(sKM)}, {s(sT1)}")
    A(f"s_lshr_b32 {s(sT1)}, {s(sWv)}, 1")
    A(f"s_add_u32 {s(sKM)}, {s(sKM)}, {s(sT1)}")
    A(f"s_lshl_b32 {s(sKM)}, {s(sKM)}, 9")
    A(f"s_add_u32 {s(sKM)}, {s(sKM)}, {hex(L.KM)}")
    A(f"s_bitcmp1_b32 {s(sWv)}, 0")
    if v3:
        A(f"s_cselect_b32 {s(sT1)}, 256, 0")
        A(f"s_add_u32 {s(sKM)}, {s(sKM)}, {s(sT1)}")
    else:
        A(f"s_cselect_b32 {s(sKM)}, {s(sKM)}, {hex(OOB)}")
    A(f"s_lshl_b32 {s(sVT)}, {s(sT0)}, 6")
    A(f"s_add_u32 {s(sVT)}, {s(sVT)}, {hex(L.VT)}")
    A(f"s_lshl_b32 {s(sKT)}, {s(sH)}, 12")
    A(f"s_lshl_b32 {s(sM0a)}, {s(sWv)}, 11")
    A(f"s_and_b32 {s(sT1)}, {s(sM0a)}, 2048")
    if P.get("pa"):
        A(f"s_lshl_b32 {s(sT0)}, {s(sC)}, 11")
        A(f"s_xor_b32 {s(sT1)}, {s(sT1)}, {s(sT0)}")
    A(f"s_add_u32 {s(sKT)}, {s(sKT)}, {s(sT1)}")
    A(f"s_lshr_b32 {s(sT1)}, {s(sWv)}, 1")
    A(f"s_lshl_b32 {s(sT1)}, {s(sT1)}, 17")
    A(f"s_add_u32 {s(sKT)}, {s(sKT)}, {s(sT1)}")
    A(f"s_add_u32 {s(sKT)}, {s(sKT)}, {hex(L.K)}")
    A(f"s_add_u32 {s(sM0a)}, {s(sM0a)}, {KT}")
    import math
    import struct
    cval = (128 ** -0.5) * math.log2(math.e)
    cb = struct.unpack("<I", struct.pack("<f", cval))[0]
    A(f"s_mov_b32 {s(sCc)}, {hex(cb)}")
    A(f"s_mov_b32 {s(sNegC)}, {hex(cb | 0x80000000)}")
    for i in range(4):
        A(f"v_mov_b32 {v(ONES + i)}, 0x3f803f80")
    A(f"v_mov_b32 {v(vPF)}, {hex(OOB)}")
    A(f"v_mov_b32 {v(vPFi)}, 0")
    A(f"v_and_b32 {v(t1)}, 1, {v(lane)}")
    A(f"v_mov_b32 {v(vRW)}, {hex(OOB)}")
    if P.get("kdd", 1):
        A(f"s_lshl_b32 {s(sT0)}, {s(sC)}, 3")
        A(f"s_lshl_b64 exec, 0xff, {s(sT0)}")
    else:
        A("s_mov_b64 exec, 0xffff")
    A(f"s_add_u32 {s(sT0)}, {s(sKT)}, {hex(32 * 8192)}")
    A(f"v_lshl_add_u32 {v(vPF)}, {v(n_)}, 7, {s(sT0)}")
    A(f"v_mov_b32 {v(vPFi)}, {hex(32 * 8192)}")
    A("s_mov_b32 exec_lo, 0xff0000")
    A(f"s_add_u32 {s(sT0)}, {s(sVT)}, {hex(32 * 8192)}")
    A(f"v_lshl_add_u32 {v(vPF)}, {v(n_)}, 7, {s(sT0)}")
    A(f"v_mov_b32 {v(vPFi)}, {hex(32 * 8192)}")
    A("s_mov_b32 exec_lo, 0x000f000f")
    A("s_mov_b32 exec_hi, 0x000f000f")
    A(f"s_and_b32 {s(sT1)}, {s(sWv)}, 1")
    A(f"s_lshl_b32 {s(sT1)}, {s(sT1)}, 7")
    A(f"s_add_u32 {s(sT0)}, {s(sZst)}, {s(sT1)}")
    A(f"v_lshl_add_u32 {v(vRW)}, {v(n_)}, 7, {s(sZst)}" if v3 else f"v_lshl_add_u32 {v(vRW)}, {v(n_)}, 8, {s(sT0)}")
    A("s_mov_b32 exec_lo, 0x00300030")
    A("s_mov_b32 exec_hi, 0x00300030")
    A(f"v_lshl_add_u32 {v(vRW)}, {v(t1)}, 7, {s(sOst)}")
    A("s_mov_b32 exec_lo, 0x00400040")
    A("s_mov_b32 exec_hi, 0x00400040")
    A(f"s_lshl_b32 {s(sT0)}, {s(sX)}, 14")
    mpos(A, sT1, sT2, P)
    A(f"s_add_u32 {s(sT1)}, {s(sT0)}, {s(sT1)}")
    A(f"s_add_u32 {s(sT1)}, {s(sT1)}, {hex(L.STEP + L.S_MEML)}")
    A(f"s_andn2_b32 {s(sDM)}, {s(sT1)}, 0x3ff")
    A(f"s_andn2_b32 {s(sT2)}, {s(sOst)}, 0x3ff")
    A(f"s_cmp_eq_u32 {s(sWv)}, 1")
    A(f"s_cselect_b32 {s(sDM)}, {s(sT2)}, {s(sDM)}")
    A(f"s_bitcmp0_b32 {s(sWv)}, 0")
    A(f"s_cselect_b32 {s(sDM)}, {s(sZst)}, {s(sDM)}")
    A(f"s_add_u32 {s(sDM)}, {s(sDM)}, {hex(2 * L.STEP_STRIDE)}")
    A(f"s_lshl_b32 {s(sT2)}, {s(sWv)}, 7")
    A(f"s_add_u32 {s(sT1)}, {s(sT1)}, {s(sT2)}")
    A(f"v_mov_b32 {v(vRW)}, {s(sT1)}")
    A("s_mov_b32 exec_lo, 0x00800080")
    A("s_mov_b32 exec_hi, 0x00800080")
    A(f"s_add_u32 {s(sT0)}, {s(sT0)}, {s(sT2)}")
    A(f"s_add_u32 {s(sT0)}, {s(sT0)}, {hex(L.STEP + L.S_MEMR)}")
    A(f"v_mov_b32 {v(vRW)}, {s(sT0)}")
    A("s_mov_b64 exec, -1")
    A(f"v_lshl_add_u32 {v(vRW)}, {v(g_)}, 18, {v(vRW)}")
    A("s_mov_b32 exec_lo, 0")
    A("s_mov_b32 exec_hi, 0x300")
    A(f"s_lshl_b32 {s(sT0)}, {s(sH)}, {L.FC}")
    A(f"s_add_u32 {s(sT0)}, {s(sT0)}, {hex(L.FLAGS + L.F_T + L.T_K * 8192)}")
    A(f"v_lshl_add_u32 {v(vPF)}, {v(t1)}, 13, {s(sT0)}")
    A("s_mov_b32 exec_hi, 0x3c00")
    A(f"s_mov_b32 {s(sT0)}, {hex(L.FLAGS + L.F_T + L.T_FILL * 8192 + (3 << L.FS) - (10 << L.FC))}")
    A(f"v_lshl_add_u32 {v(vPF)}, {v(n_)}, {L.FC}, {s(sT0)}")
    A("s_mov_b32 exec_hi, 0x3f00")
    A(f"v_mov_b32 {v(vPFi)}, {1 << L.FS}")
    A("s_mov_b64 exec, -1")


def kv_wait(A, lbl, exit_lbl, back):
    A("s_mov_b32 exec_lo, 0")
    A(f"s_mov_b32 exec_hi, {hex(0x3f00 if back else 0x300)}")
    A(f"v_subrev_u32 {v(t1)}, {back // 4 << L.FS}, {v(vPF)}")
    A.label(lbl)
    A(f"buffer_load_dword {v(t0)}, {v(t1)}, {s(S_WS, 4)}, 0 offen sc1")
    A("s_waitcnt vmcnt(0)")
    A(f"v_cmp_eq_u32 vcc, 0, {v(t0)}")
    A(f"s_cbranch_vccz {lbl}_ok")
    A("s_sleep 2")
    A(f"s_sub_u32 {s(sBud)}, {s(sBud)}, 1")
    A(f"s_cbranch_scc0 {lbl}")
    A(f"s_branch {exit_lbl}")
    A.label(f"{lbl}_ok")


def kt_issue(A, vt=True):
    A(f"s_mov_b32 m0, {s(sM0a)}")
    A(f"buffer_load_dwordx4 {v(VT_, 4)}, {v(vG16)}, {s(S_WS, 4)}, {s(sVT)} offen sc1")
    A(f"buffer_load_dwordx4 {v(vG16)}, {s(S_WS, 4)}, {s(sKT)} offen sc1 lds")
    A(f"buffer_load_dwordx4 {v(vG16)}, {s(S_WS, 4)}, {s(sKT)} offen offset:1024 sc1 lds")
    A(f"s_add_u32 {s(sKT)}, {s(sKT)}, {hex(32 * 8192)}")
    if vt:
        A(f"s_add_u32 {s(sVT)}, {s(sVT)}, {hex(32 * 8192)}")


STAMP_NAMES = []


def chain_loop(A, pfx, fast, exit_lbl, P):
    diag = P.get("diag", False)
    loc = "" if fast else " sc1"
    tails = []
    names = []
    FC = {"al": S_CNT, "ar": S_CNT + 1, "z": S_CNT + 2, "o": S_CNT + 3}

    def stamp(name):
        if diag and len(names) < 18 and name not in ("al3", "o3", "al1", "al2", "ar1", "ar2", "z1", "z2", "o1", "o2", "o4", "o5", "o6"):
            A(f"s_memtime {s(S_ST + 2 * len(names), 2)}")
            names.append(name)

    vmn = [0]
    vidx = {}

    def ld(dst, so, j, track=True):
        A(f"buffer_load_dwordx4 {v(dst, 4)}, {v(vG16)}, {s(S_WS, 4)}, {s(so)} offen offset:{j * 1024} sc1")
        if track:
            vidx[dst] = vmn[0]
            vmn[0] += 1

    def chk_parts(name, j, n, base, reissue):
        lbl = f"{pfx}_{name}{j}"
        b = base + 4 * j

        def p0():
            A(f"s_waitcnt vmcnt({vmn[0] - 1 - vidx[b]})")
            A(f"v_max3_u32 {v(t0)}, {v(b)}, {v(b + 1)}, {v(b + 2)}")

        def p1():
            A(f"v_max_u32 {v(t0)}, {v(t0)}, {v(b + 3)}")
            A(f"v_cmp_eq_u32 vcc, -1, {v(t0)}")

        def p2():
            A(f"s_cbranch_vccnz {lbl}_f")
            A.label(lbl)
            stamp(f"{name}{j}")
            nn = j + 1
            while nn < n and vidx.get(base + 4 * nn, -1) > vidx[b]:
                nn += 1
            younger = vmn[0] - 1 - vidx[base + 4 * (nn - 1)]
            tails.append((name, lbl, j, nn, b, reissue, younger))
        return [p0, p1, p2]

    def chk(*a_, **k_):
        for p in chk_parts(*a_, **k_):
            p()

    def smf(d, a_, b_):
        A(f"v_smfmac_f32_16x16x64_bf16 {v(d, 4)}, {v(a_, 4)}, {r(b_, 8)}, {v(IDX)}")

    def qk(T, j, ab):
        smf(ACC + 4 * T, ab + 4 * j, 256 + (T * 4 + j) * 8)

    def cvtwr(b, off, part=3):
        if part & 1:
            A(f"v_cvt_pk_bf16_f32 {v(b)}, {v(b)}, {v(b + 1)}")
            A(f"v_cvt_pk_bf16_f32 {v(b + 1)}, {v(b + 2)}, {v(b + 3)}")
        if part & 2:
            A(f"ds_write_b64 {v(vXwr)}, {v(b, 2)} offset:{off}")

    def x1wr(T, part=3):
        slot = 2 * ((T & 3) >> 1) + (T >> 2) + 4 * (T & 1)
        cvtwr(ACC + 4 * T, X1 + slot * 2048, part)

    def vsm(j, t, which):
        smf(VACC + 4 * t, (AL if which == 0 else AR) + 4 * j, WV + (j * 4 + t) * 8)

    def mf(d, a_, b_, c_):
        A(f"v_mfma_f32_16x16x32_bf16 {v(d, 4)}, {v(a_, 4)}, {v(b_, 4)}, {v(c_, 4) if c_ is not None else 0}")

    def run(ms, fill):
        for i in range(len(ms) + 1):
            for f in fill.get(i, []):
                f()
            if i < len(ms):
                ms[i]()

    def add(fill, i, f):
        fill.setdefault(i, []).append(f)

    zero = [ACC + i for i in range(32)] + [VACC + i for i in range(16)]
    A.label(f"{pfx}_top")
    A("s_barrier")
    for x in zero[:P["dM"]]:
        A(f"v_mov_b32 {v(x)}, 0")
    if P["dM"] > 48:
        A.nop(P["dM"] - 48)
    stamp("top")
    for j in range(4):
        ld(AL + 4 * j, sAL, j)
    for x in zero[P["dM"]:]:
        A(f"v_mov_b32 {v(x)}, 0")
    re_al = lambda j: ld(AL + 4 * j, sAL, j, False)
    re_ar = lambda j: ld(AR + 4 * j, sAR, j, False)
    seq = [(T, j) for j in range(4) for T in range(8)]
    vall = [(j, t, w) for j in range(4) for t in range(4) for w in range(2)]
    v1 = [(j, t, 0) for j in range(4) for t in range(4)][:P["nV1"]]
    vrest = [x for x in vall if x not in v1]
    ms = [(lambda T=T, j=j: qk(T, j, AL)) for T, j in seq] + [(lambda x=x: vsm(*x)) for x in v1]
    fill = {}
    cA = P["cA"]
    for j in range(4):
        parts = chk_parts("al", j, 4, AL, re_al)
        for k, p in enumerate(parts):
            add(fill, max(0, cA * j - 2 + k), p)
    for jj in range(4):
        pos = min(len(ms), P["pAR"] + P["sp"] * jj)
        if pos < 0:
            ld(AR + 4 * jj, sAR, jj)
        else:
            add(fill, pos, lambda jj=jj: ld(AR + 4 * jj, sAR, jj))

    def pf():
        vmn[0] += 1
        if P.get("xp"):
            A(f"buffer_load_dword {v(vPFd)}, {v(vG16)}, {s(S_WS, 4)}, {s(sAL)} offen sc1")
            return
        A(f"buffer_load_dword {v(vPFd)}, {v(vPF)}, {s(S_WS, 4)}, 0 offen sc1")
        A(f"v_add_u32 {v(vPF)}, {v(vPF)}, {v(vPFi)}")
    add(fill, min(len(ms), max(P["pAR"] + P["sp"] * 4, P["pPF"])), pf)
    run(ms, fill)
    stamp("ALe")
    tm = P["tm"]
    seq2 = [(T, j) for j in range(4 - tm) for T in range(8)] + [(T, j) for T in range(8) for j in range(4 - tm, 4)]
    ms = [(lambda T=T, j=j: qk(T, j, AR)) for T, j in seq2]
    fill = {}
    for j in range(4):
        parts = chk_parts("ar", j, 4, AR, re_ar)
        assert P["cR"] * j <= min(i for i, x in enumerate(seq2) if x[1] == j)
        for k, p in enumerate(parts):
            add(fill, max(0, P["cR"] * j - 2 + k), p)
    for _ in range(3):
        x = vrest.pop(0)
        ms.append(lambda x=x: vsm(*x))
    add(fill, 32, lambda: stamp("i32"))

    def prg():
        A("s_mov_b64 exec, 1")
        A(f"buffer_store_dword {v(ONES)}, off, {s(S_WS, 4)}, {s(sPRG)} sc1")
        A("s_mov_b64 exec, -1")
        A(f"s_add_u32 {s(sPRG)}, {s(sPRG)}, 4")
    add(fill, 3 * P["cR"] + 1, prg)
    for T in range(8):
        add(fill, seq2.index((T, 3)) + 4, lambda T=T: x1wr(T, 1))
        add(fill, min(len(ms), seq2.index((T, 3)) + 5), lambda T=T: x1wr(T, 2))
    run(ms, fill)
    A("s_waitcnt lgkmcnt(0)")
    stamp("B1w")
    A("s_barrier")
    stamp("B1")
    A(f"ds_read_b128 {v(0, 4)}, {v(vXrd)} offset:{X1}")
    A(f"ds_read_b128 {v(8, 4)}, {v(vXrd)} offset:{X1 + 8192}")
    A(f"ds_read_b128 {v(4, 4)}, {v(vXrd)} offset:{X1 + 1024}")
    A(f"ds_read_b128 {v(12, 4)}, {v(vXrd)} offset:{X1 + 9216}")

    def ktrd(j):
        A(f"ds_read_b128 {v(AL + 4 * j, 4)}, {v(vG16)} offset:{KT + j * 1024}")
        A(f"ds_read_b128 {v(AR + 4 * j, 4)}, {v(vG16)} offset:{KT + 4096 + j * 1024}")

    for _ in range(P["nV2"]):
        vsm(*vrest.pop(0))
    A("s_waitcnt lgkmcnt(3)")
    mf(16, 0, FW, None)
    A("s_waitcnt lgkmcnt(2)")
    mf(20, 8, FW, None)
    A("s_waitcnt lgkmcnt(1)")
    mf(16, 4, FW, 16)
    A("s_waitcnt lgkmcnt(0)")
    mf(20, 12, FW, 20)
    for _ in range(2):
        vsm(*vrest.pop(0))
    A(f"v_cvt_pk_bf16_f32 {v(28)}, {v(16)}, {v(17)}")
    A(f"v_cvt_pk_bf16_f32 {v(29)}, {v(18)}, {v(19)}")
    A(f"v_cvt_pk_bf16_f32 {v(30)}, {v(20)}, {v(21)}")
    A(f"v_cvt_pk_bf16_f32 {v(31)}, {v(22)}, {v(23)}")
    A(f"buffer_store_dwordx4 {v(28, 4)}, {v(vZst)}, {s(S_WS, 4)}, {s(sZst)} offen{loc}")
    stamp("Zst")
    re_z = lambda j: ld(4 * j, sZld, j, False)
    ms = [(lambda x=x: vsm(*x)) for x in vrest]
    nv = len(ms)
    fill = {}
    for j in range(4):
        lastuse = max([i for i, x in enumerate(vrest) if x[0] == j], default=-1)
        add(fill, max(lastuse + 1, j), lambda j=j: ktrd(j))
    for jj in range(4):
        add(fill, min(nv, max(0, nv - P["pZ"]) + P["sp"] * jj), lambda jj=jj: ld(4 * jj, sZld, jj))
    for i in range(4):
        add(fill, 4 + i, lambda i=i: A(f"v_mov_b32 {v(16 + i)}, {v(vBias)}"))
    for tt in range(4):
        lastuse = max(i for i, x in enumerate(vrest) if x[1] == tt)
        if tt == 3:
            add(fill, nv, lambda: A.nop(3))
        add(fill, min(nv, lastuse + 4), lambda tt=tt: cvtwr(VACC + 4 * tt, X2 + tt * 2048, 1))
        add(fill, min(nv, lastuse + 5), lambda tt=tt: cvtwr(VACC + 4 * tt, X2 + tt * 2048, 2))
    run(ms, fill)
    A("s_waitcnt lgkmcnt(0)")
    A("s_barrier")
    stamp("B2")
    A(f"ds_read_b128 {v(80, 4)}, {v(vXrd)} offset:{X2}")
    A(f"ds_read_b128 {v(84, 4)}, {v(vXrd)} offset:{X2 + 1024}")
    wbuf = [72, 32, 40, 48, 56, 80, 88]
    wq = [(f, hf) for f in range(16) for hf in range(2)]

    def wrd(n=1):
        for _ in range(n):
            f, hf = wq.pop(0)
            A(f"ds_read_b128 {v(wbuf[f % 7] + 4 * hf, 4)}, {v(vWO)} offset:{f * 2048 + hf * 1024}")

    wrd(2)
    SM, S0, S1 = 16, 20, 24
    ms = []
    fill = {}
    for kk in range(4):
        ms.append(lambda kk=kk: mf(SM, 4 * kk, 4 * kk, SM))
        ms.append(lambda kk=kk: mf(S0, AL + 4 * kk, 4 * kk, S0 if kk else None))
        ms.append(lambda kk=kk: mf(S1, AR + 4 * kk, 4 * kk, S1 if kk else None))
        for k, p in enumerate(chk_parts("z", kk, 4, 0, re_z)):
            add(fill, max(0, 3 * kk - 2 + k), p)
    add(fill, 12, lambda: A("s_waitcnt lgkmcnt(2)"))
    xs = "" if P.get("xs", 0) & 1 else " sc1"
    xk = "" if P.get("xs", 0) & 2 else " sc1"
    add(fill, 12, lambda: A(f"buffer_store_dwordx4 {v(28, 4)}, {v(vMst)}, {s(S_WS, 4)}, {s(sKM)} offen{xk}"))
    ms.append(lambda: mf(88, FK, 80, None))
    ms.append(lambda: mf(88, FK, 84, 88))
    add(fill, 10, lambda: [A(f"v_mov_b32 {v(VACC + i)}, 0") for i in range(2)])
    add(fill, 11, lambda: [A(f"v_mov_b32 {v(VACC + i)}, 0") for i in range(2, 4)])
    add(fill, 13, lambda: A(f"v_max3_f32 {v(t0)}, {v(SM)}, {v(SM + 1)}, {v(SM + 2)}"))
    run(ms, fill)
    A(f"v_max3_f32 {v(t0)}, {v(t0)}, {v(SM + 3)}, {v(S0)}")
    A(f"v_max3_f32 {v(t0)}, {v(t0)}, {v(S0 + 1)}, {v(S0 + 2)}")
    A(f"v_max3_f32 {v(t1)}, {v(S1)}, {v(S1 + 1)}, {v(S1 + 2)}")
    A(f"v_max3_f32 {v(t0)}, {v(t0)}, {v(S0 + 3)}, {v(S1 + 3)}")
    A(f"v_max_f32 {v(t0)}, {v(t0)}, {v(t1)}")
    A(f"v_max_f32 {v(t1)}, {v(t0)}, {v(t1)}")
    wrd(2)
    A(f"v_permlane32_swap_b32 {v(t0)}, {v(t1)}")
    A(f"v_max_f32 {v(28)}, {v(t0)}, {v(t1)}")
    A(f"v_max_f32 {v(t1)}, {v(t0)}, {v(t1)}")
    A(f"v_cvt_pk_bf16_f32 {v(92)}, {v(88)}, {v(89)}")
    A(f"v_cvt_pk_bf16_f32 {v(93)}, {v(90)}, {v(91)}")
    A(f"v_permlane16_swap_b32 {v(28)}, {v(t1)}")
    A(f"v_max_f32 {v(t0)}, {v(28)}, {v(t1)}")
    A(f"v_mul_f32 {v(t0)}, {s(sNegC)}, {v(t0)}")
    A(f"buffer_store_dwordx2 {v(92, 2)}, {v(vVMst)}, {s(S_WS, 4)}, {s(sVMst)} offen{xs}")
    order = list(range(S0, S0 + 8)) + list(range(SM, SM + 4))
    for i, x in enumerate(order):
        A(f"v_fma_f32 {v(x)}, {v(x)}, {s(sCc)}, {v(t0)}")
        if i >= 1:
            A(f"v_exp_f32 {v(order[i - 1])}, {v(order[i - 1])}")
        if i in (3, 5, 7, 9):
            k = (i - 3) // 2
            A(f"v_cvt_pk_bf16_f32 {v(80 + k)}, {v(order[i - 3])}, {v(order[i - 2])}")
        if i == 11:
            mf(28, ONES, 80, None)
    A(f"v_exp_f32 {v(order[11])}, {v(order[11])}")
    A(f"v_cvt_pk_bf16_f32 {v(84)}, {v(SM)}, {v(SM + 1)}")
    mf(88, VT_, 80, None)
    A(f"v_cvt_pk_bf16_f32 {v(85)}, {v(SM + 2)}, {v(SM + 3)}")
    wrd(2)
    A(f"v_mfma_f32_16x16x16_bf16 {v(28, 4)}, {v(ONES, 2)}, {v(84, 2)}, {v(28, 4)}")
    A(f"v_mfma_f32_16x16x16_bf16 {v(88, 4)}, {v(92, 2)}, {v(84, 2)}, {v(88, 4)}")
    wrd(4)
    A(f"s_cmp_eq_u32 {s(sStep)}, 63")
    A(f"v_rcp_f32 {v(t0)}, {v(28)}")
    A(f"v_mov_b32 {v(VACC + 4)}, 0")
    A(f"v_mov_b32 {v(VACC + 5)}, 0")
    for i in range(4):
        A(f"v_mul_f32 {v(88 + i)}, {v(88 + i)}, {v(t0)}")
    A(f"v_cvt_pk_bf16_f32 {v(t0)}, {v(88)}, {v(89)}")
    A(f"v_cvt_pk_bf16_f32 {v(t1)}, {v(90)}, {v(91)}")
    A(f"buffer_store_dwordx2 {v(t0, 2)}, {v(vOst)}, {s(S_WS, 4)}, {s(sOst)} offen{loc}")
    stamp("Ost")
    A(f"s_cbranch_scc1 {exit_lbl}")
    A(f"v_cmp_eq_u32 vcc, 0, {v(vPFd)}")
    A(f"s_add_u32 {s(sKM)}, {s(sKM)}, 65536")
    A(f"s_and_b32 {s(sT0)}, vcc_hi, 0x3f00")
    A(f"s_cbranch_scc1 {pfx}_kvw")
    A.label(f"{pfx}_kvok")
    if not P.get("ktp"):
        kt_issue(A)
    assert len(wq) == 22
    wrd(4)
    A(f"v_mov_b32 {v(VACC + 6)}, 0")
    A(f"v_mov_b32 {v(VACC + 7)}, 0")
    re_o = lambda j, tr=False: ld(4 * j, sOld0 if j < 4 else sOld1, j & 3, tr)
    for x in (sAL, sAR, sZld, sZst, sOst, sVMst):
        A(f"s_add_u32 {s(x)}, {s(x)}, {hex(L.STEP_STRIDE)}")
    A(f"s_add_u32 {s(sStep)}, {s(sStep)}, 1")
    if P.get("dO", 0):
        A.nop(P["dO"])
    stamp("Old")
    ms = []
    fill = {}
    for j in range(8):
        if j < P["nO"]:
            re_o(j, True)
        else:
            add(fill, 2 * (j - P["nO"]) + 1, lambda j=j: re_o(j, True))
    issued = [14]
    for f in range(16):
        j, tt = f >> 1, f & 1
        ms.append(lambda f=f, j=j, tt=tt: smf(VACC + 4 * tt, 4 * j, wbuf[f % 7]))
        if tt == 0:
            parts = chk_parts("o", j, 8, 0, re_o)
            add(fill, max(0, f - 1), parts[0])
            add(fill, max(0, f - 1), parts[1])
            add(fill, f, parts[2])
            add(fill, f, lambda f=f: A(f"s_waitcnt lgkmcnt({min(15, issued[0] - 2 * (f + 2))})"))

        def more():
            if wq:
                wrd(2)
                issued[0] += 2
        add(fill, f + 1, more)
    if P.get("ktp"):
        add(fill, 15, lambda: kt_issue(A))
    run(ms, fill)
    A.nop(5)
    cvtwr(VACC, X1)
    cvtwr(VACC + 4, X1 + 2048)
    A("s_waitcnt lgkmcnt(0)")
    A("s_barrier")
    stamp("B3")
    A(f"ds_read_b128 {v(80, 4)}, {v(vG16)} offset:{X1}")
    A(f"ds_read_b128 {v(32, 4)}, {v(vG16)} offset:{X1 + 2048}")
    A(f"ds_read_b128 {v(84, 4)}, {v(vG16)} offset:{X1 + 1024}")
    A(f"ds_read_b128 {v(36, 4)}, {v(vG16)} offset:{X1 + 3072}")
    A(f"s_add_u32 {s(sOld0)}, {s(sOld0)}, {hex(L.STEP_STRIDE)}")
    A(f"s_add_u32 {s(sOld1)}, {s(sOld1)}, {hex(L.STEP_STRIDE)}")
    A("s_waitcnt lgkmcnt(3)")
    mf(88, 80, FW, None)
    A("s_waitcnt lgkmcnt(2)")
    mf(92, 32, FW, None)
    A("s_waitcnt lgkmcnt(1)")
    mf(88, 84, FW, 88)
    A("s_waitcnt lgkmcnt(0)")
    mf(92, 36, FW, 92)
    A(f"s_cmp_eq_u32 {s(sWv)}, 0")
    A.nop(4)
    A(f"v_cvt_pk_bf16_f32 {v(80)}, {v(88)}, {v(89)}")
    A(f"v_cvt_pk_bf16_f32 {v(81)}, {v(90)}, {v(91)}")
    A.nop(1)
    A(f"v_cvt_pk_bf16_f32 {v(82)}, {v(92)}, {v(93)}")
    A(f"v_cvt_pk_bf16_f32 {v(83)}, {v(94)}, {v(95)}")
    A(f"s_cbranch_scc1 {pfx}_mst_r")
    A(f"s_cmp_eq_u32 {s(sWv)}, 1")
    A(f"s_cbranch_scc0 {pfx}_mst_d")
    A(f"buffer_store_dwordx4 {v(80, 4)}, {v(vMst)}, {s(S_WS, 4)}, {s(sMst)} offen{loc}")
    A(f"s_branch {pfx}_mst_d")
    A.label(f"{pfx}_mst_r")
    A(f"buffer_store_dwordx4 {v(80, 4)}, {v(vMst)}, {s(S_WS, 4)}, {s(sMst)} offen sc1")
    A.label(f"{pfx}_mst_d")
    stamp("Mst")
    A(f"s_add_u32 {s(sMst)}, {s(sMst)}, {hex(L.STEP_STRIDE)}")
    if diag:
        A(f"s_and_b32 {s(sT0)}, {s(sStep)}, 7")
        A(f"s_cbranch_scc1 {pfx}_top")
        A("s_memrealtime s[100:101]")
        A("s_waitcnt lgkmcnt(0)")
        A(f"v_mov_b32 {v(t0)}, 0")
        A(f"v_writelane_b32 {v(t0)}, s100, 31")
        for i in range(len(names)):
            A(f"v_writelane_b32 {v(t0)}, {s(S_ST + 2 * i)}, {i}")
        for i in range(4):
            A(f"v_writelane_b32 {v(t0)}, {s(S_CNT + i)}, {24 + i}")
        A(f"v_writelane_b32 {v(t0)}, s56, 30")
        A(f"v_writelane_b32 {v(t0)}, s96, 28")
        A(f"v_writelane_b32 {v(t0)}, s98, 29")
        A(f"v_lshrrev_b32 {v(t1)}, 2, {v(vG16)}")
        A("s_mov_b32 exec_hi, 0")
        A(f"buffer_store_dword {v(t0)}, {v(t1)}, {s(S_WS, 4)}, {s(sSTO)} offen")
        A("s_mov_b64 exec, -1")
        A(f"s_add_u32 {s(sSTO)}, {s(sSTO)}, 128")
        STAMP_NAMES[:] = names
    A(f"s_branch {pfx}_top")
    A.label(f"{pfx}_kvw")
    kv_wait(A, f"{pfx}_kvp", exit_lbl, 4)
    A("s_mov_b64 exec, -1")
    A(f"s_branch {pfx}_kvok")

    def test(b):
        A(f"v_max3_u32 {v(t0)}, {v(b)}, {v(b + 1)}, {v(b + 2)}")
        A(f"v_max_u32 {v(t0)}, {v(t0)}, {v(b + 3)}")
        A(f"v_cmp_eq_u32 vcc, -1, {v(t0)}")

    for name, lbl, j, n, b, reissue, younger in tails:
        A.label(f"{lbl}_f")
        for jj in range(j, n):
            reissue(jj)
        A(f"s_sub_u32 {s(sBud)}, {s(sBud)}, 1")
        A(f"s_cbranch_scc1 {exit_lbl}")
        if diag:
            A(f"s_add_u32 {s(FC[name])}, {s(FC[name])}, 1")
        A(f"s_waitcnt vmcnt({0 if younger else n - 1 - j})")
        test(b)
        A(f"s_cbranch_vccnz {lbl}_f")
        A(f"s_branch {lbl}")


def chain_body(A, pfx, exit_lbl, P):
    import chain2

    def mid():
        chain_consts(A, P)
        A(f"s_lshl_b32 {s(sT0)}, {s(sH)}, 3")
        A(f"s_lshl_b32 {s(sT1)}, {s(sC)}, 2")
        A(f"s_add_u32 {s(sT0)}, {s(sT0)}, {s(sT1)}")
        A(f"s_add_u32 {s(sT0)}, {s(sT0)}, {s(sWv)}")
        A(f"s_mov_b32 {s(sPRG)}, {hex(OOB)}")
        A(f"s_cmp_eq_u32 {s(sT0)}, {2 if P.get('v3') else 3}")
        A(f"s_cselect_b32 {s(sPRG)}, {hex(L.FLAGS + L.F_PRG)}, {s(sPRG)}")

    def last():
        A("s_waitcnt vmcnt(0)")
        A(f"v_min_u32 {v(76)}, {v(76)}, {v(79)}")
        A(f"v_cmp_eq_u32 vcc, 0, {v(76)}")
        A(f"s_cmp_eq_u32 {s(sMK)}, 0")
        A(f"s_cbranch_scc0 {pfx}_sl0")
        A(f"s_cbranch_vccnz {pfx}_sl1")
        A(f"s_branch {pfx}_kv0_ok")
        A.label(f"{pfx}_sl0")
        read_counts(A, f"{pfx}_mode_cnt", exit_lbl)
        wait_a(A, f"{pfx}_wa", exit_lbl, t0, t1)
        A.label(f"{pfx}_sl1")
        wait_fill(A, f"{pfx}_wf", exit_lbl, t2, t0, 0)
        kv_wait(A, f"{pfx}_kv0", exit_lbl, 0)
        A("s_mov_b32 exec_lo, 0")
        A("s_mov_b32 exec_hi, 0x3f00")
        A(f"v_add_u32 {v(vPF)}, {1 << L.FS}, {v(vPF)}")
        A("s_mov_b64 exec, -1")
        kt_issue(A, not P.get("v3"))
        A(f"buffer_load_dword {v(vPFd)}, {v(vRW)}, {s(S_WS, 4)}, 0 offen sc1")
    chain_prologue(A, pfx, P, mid, last)
    if P.get("diag"):
        A(f"s_lshl_b32 {s(sT0)}, {s(sX)}, 5")
        A(f"s_add_u32 {s(sT0)}, {s(sT0)}, {s(sT)}")
        A(f"s_lshl_b32 {s(sT0)}, {s(sT0)}, 2")
        A(f"s_add_u32 {s(sT0)}, {s(sT0)}, {s(sWv)}")
        A(f"s_lshl_b32 {s(sSTO)}, {s(sT0)}, 13")
        A(f"s_add_u32 {s(sSTO)}, {s(sSTO)}, {hex(L.STAMP)}")
        A(f"s_lshl_b32 {s(sT0)}, {s(sT0)}, 10")
        A(f"s_add_u32 {s(sT0)}, {s(sT0)}, {hex(L.STAMP + (3 << 20))}")
        A(f"v_mov_b32 {v(t0)}, 0")
        for i in range(16):
            A(f"v_writelane_b32 {v(t0)}, s{64 + 2 * i}, {i}")
        A(f"v_lshrrev_b32 {v(t1)}, 2, {v(vG16)}")
        A(f"buffer_store_dword {v(t0)}, {v(t1)}, {s(S_WS, 4)}, {s(sT0)} offen")
    import chain3
    (chain3 if P.get("v3") else chain2).mr_init(A, pfx, exit_lbl, P)
    if P.get("diag"):
        A("s_mov_b32 s9, 0")
    if P.get("diag"):
        A("s_memrealtime s[98:99]")
        if P.get("v3"):
            A("s_waitcnt lgkmcnt(0)")
            A("s_mov_b32 s38, s98")
    A(f"s_min_u32 {s(sT0)}, {s(S_CNT)}, {s(S_CNT + 1)}")
    A(f"s_cmp_ge_u32 {s(sT0)}, 32")
    if P.get("pa"):
        A("s_waitcnt vmcnt(0)")
    if P.get("v3"):
        chain3.loops(A, pfx, exit_lbl, P)
        return
    if P.get("force_slow"):
        A(f"s_branch {pfx}s_top")
    A(f"s_cbranch_scc0 {pfx}s_top")
    if P.get("pa"):
        import chain2
        chain2.chain_loop(A, pfx + "f", True, exit_lbl, P)
        chain2.chain_loop(A, pfx + "s", False, exit_lbl, P)
        return
    chain_loop(A, pfx + "f", True, exit_lbl, P)
    chain_loop(A, pfx + "s", False, exit_lbl, P)
```

```python
import math
import struct
from asmlib import *
import layout as L
import chain
from chain import *


LIM = 2000
sBase, WIN = 2, 1 << 26
sOff, sKV = 11, 10
vRS = vPFd
LOFF = X2 + 1024 + 8
sClk, sKMp, sVMp, sRSw, sRSr, sLSw, sRem = 40, 42, 43, 44, 45, 46, 47
sMRb, sIncB, sARo, sPFa, sMso = 52, 53, 54, 55, 59


def anchor(A, lbl, P, init=False):
    A(f"s_memrealtime {s(sT0, 2)}")
    A(f"s_mov_b32 {s(sRem)}, 16")
    A(f"v_mov_b32 {v(t0)}, {LOFF}")
    A("s_waitcnt lgkmcnt(0)")
    A.label(lbl)
    A(f"s_memrealtime {s(sT2, 2)}")
    A(f"s_memtime {s(sClk, 2)}")
    A(f"s_sub_u32 {s(sRem)}, {s(sRem)}, 1")
    A(f"s_cselect_b32 {s(sT0)}, -1, {s(sT0)}")
    A("s_waitcnt lgkmcnt(0)")
    A(f"s_cmp_eq_u32 {s(sT2)}, {s(sT0)}")
    A(f"s_cbranch_scc1 {lbl}")
    A(f"s_mul_i32 {s(sT2)}, {s(sT2)}, {P.get('K', 22)}")
    A(f"s_sub_u32 {s(sT0)}, {s(sClk)}, {s(sT2)}")
    if not P.get("flt", 1):
        A(f"v_mov_b32 {v(t1)}, {s(sT0)}")
        A(f"ds_write_b32 {v(t0)}, {v(t1)}")
        return
    if init:
        A(f"v_mov_b32 {v(80)}, {s(sT0)}")
        A(f"v_mov_b32 {v(81)}, 0")
    else:
        A(f"s_flbit_i32_b32 {s(sT1)}, {s(sStep)}")
        A(f"s_sub_u32 {s(sT1)}, 31, {s(sT1)}")
        A(f"s_min_u32 {s(sT1)}, {s(sT1)}, {P.get('fa', 3)}")
        A(f"s_sub_u32 {s(sT0)}, {s(sT0)}, {s(sOff)}")
        A(f"s_ashr_i32 {s(sT1)}, {s(sT0)}, {s(sT1)}")
        A(f"s_sub_u32 {s(sT0)}, {s(sT0)}, {s(sT1)}")
        A(f"s_add_u32 {s(sT1)}, {s(sT1)}, {s(sOff)}")
        A(f"v_mov_b32 {v(80)}, {s(sT1)}")
        A(f"v_mov_b32 {v(81)}, {s(sT0)}")
    A(f"ds_write_b64 {v(t0)}, {v(80, 2)}")


def mr_init(A, pfx, exit_lbl, P):
    A.label(f"{pfx}_nb")
    A(f"v_readfirstlane_b32 {s(sT1)}, {v(84)}")
    A(f"v_readfirstlane_b32 {s(sT0)}, {v(85)}")
    A.nop(4)
    A(f"s_and_b32 {s(sT2)}, {s(sT0)}, {s(sT1)}")
    A(f"s_cbranch_scc1 {pfx}_nb_ok")
    A(f"buffer_load_dwordx2 {v(84, 2)}, off, {s(S_DBG, 4)}, 0 offset:{L.D_NB} sc1")
    A(f"s_sub_u32 {s(sBud)}, {s(sBud)}, 1")
    A(f"s_cbranch_scc1 {exit_lbl}")
    A("s_waitcnt vmcnt(0)")
    A(f"s_branch {pfx}_nb")
    A.label(f"{pfx}_nb_ok")
    A(f"s_and_b32 {s(sT1)}, {s(sT1)}, 1")
    A(f"s_lshl_b32 {s(sT1)}, {s(sT1)}, 13")
    A(f"s_add_u32 {s(sMRb)}, {s(sT1)}, {hex(L.MR + 65536)}")
    A(f"s_and_b32 {s(sT0)}, {s(sT0)}, 1")
    A(f"s_lshl_b32 {s(sT0)}, {s(sT0)}, 13")
    A(f"s_sub_u32 {s(sIncB)}, {s(sT0)}, {s(sT1)}")
    A(f"s_add_u32 {s(sIncB)}, {s(sIncB)}, 65536")

    def spread(dst, src):
        A(f"s_and_b32 {s(sT1)}, {s(src)}, 0x6000")
        A(f"s_add_u32 {s(dst)}, {s(src)}, {s(sT1)}")
    A(f"s_lshl_b32 {s(sT0)}, {s(sX)}, 14")
    mpos(A, sT1, sT2, P)
    A(f"s_add_u32 {s(sMso)}, {s(sT0)}, {s(sT1)}")
    spread(sMso, sMso)
    A(f"s_xor_b32 {s(sT0)}, {s(sT0)}, 0x4000")
    quart(A, sT1, 12, P.get("rM", 0))
    A(f"s_add_u32 {s(sARo)}, {s(sT0)}, {s(sT1)}")
    spread(sARo, sARo)
    A(f"s_xor_b32 {s(sT2)}, {s(sMRb)}, 0x2000")
    A(f"s_lshl_b32 {s(sT0)}, {s(sWv)}, 14")
    A(f"s_lshl_b32 {s(sT1)}, {s(sT)}, 8")
    A(f"s_add_u32 {s(sT1)}, {s(sT1)}, {s(sT2)}")
    A(f"s_add_u32 {s(sPFa)}, {s(sT0)}, {s(sT1)}")
    A(f"v_writelane_b32 {v(vPF)}, {s(sPFa)}, 39")
    A(f"s_lshl_b32 {s(sT0)}, {s(sX)}, 15")
    A(f"s_add_u32 {s(sRSw)}, {s(sT0)}, {s(sT1)}")
    A(f"s_xor_b32 {s(sT0)}, {s(sT0)}, 0x8000")
    flt = P.get("flt", 1)
    A(f"s_add_u32 {s(sRSr)}, {s(sT0)}, {s(sT1 if flt else sT2)}")
    A(f"s_cmp_eq_u32 {s(sWv)}, {P.get('rsw', 0)}")
    A(f"s_cselect_b32 {s(sRSw)}, {s(sRSw)}, {hex(OOB)}")
    A(f"s_cmp_eq_u32 {s(sWv)}, 3")
    A(f"s_cselect_b32 {s(sRSr)}, {s(sRSr)}, {hex(OOB)}")
    A(f"s_lshl_b32 {s(sT0)}, {s(sX)}, 14")
    A(f"s_add_u32 {s(sT0)}, {s(sT0)}, {hex(L.STEP + L.STEP_STRIDE + L.S_MEMR)}")
    A(f"s_mul_i32 {s(sT1)}, {s(sT)}, {6 if flt else 4}")
    A(f"s_add_u32 {s(sT1)}, {s(sT1)}, {s(sWv)}")
    A(f"s_lshl_b32 {s(sT1)}, {s(sT1)}, 2")
    A(f"s_add_u32 {s(sLSw)}, {s(sT0)}, {s(sT1)}")
    A(f"s_mov_b32 {s(sKMp)}, {hex(OOB)}")
    A(f"s_mov_b32 {s(sVMp)}, {hex(OOB)}")
    anchor(A, f"{pfx}_an", P, True)
    A(f"s_sub_u32 {s(sBase)}, {s(sT2)}, {hex(1 << 17)}")
    for i in list(range(32)) + list(range(VACC, VACC + 16)):
        A(f"v_mov_b32 {v(i)}, 0")
    A("s_waitcnt lgkmcnt(0)")


def chain_loop(A, pfx, fast, exit_lbl, P):
    diag = P.get("diag", False)
    tb = P.get("tb", 1)
    flt = P.get("flt", 1)
    loc = "" if fast else " sc1"
    tails = []
    names = []
    FC = {"al": S_CNT, "ar": S_CNT + 1, "z": S_CNT + 2, "o": S_CNT + 3}
    SKIP = ("o1", "o2", "o3", "o4", "o5", "o6")
    fine = P.get("fine", 0)

    def stamp(name, grp=0):
        if fine and name != "top" and not (grp & fine):
            return
        if not fine and name[0] == "_":
            return
        if diag and len(names) < 18 and name not in SKIP:
            A(f"s_memtime {s(S_ST + 2 * len(names), 2)}")
            names.append(name)

    vmn = [0]
    vidx = {}

    msw = P.get("msw", 0)

    def madr():
        if msw:
            A(f"v_bfe_u32 {v(94)}, {v(vXrd)}, 11, 1")
            A(f"v_lshl_add_u32 {v(94)}, {v(94)}, 10, {v(vG16)}")
            A(f"v_xor_b32 {v(95)}, 0x400, {v(94)}")

    def ld(dst, so, j, track=True):
        if msw and so in (sAL, sAR):
            A(f"buffer_load_dwordx4 {v(dst, 4)}, {v(94 + (j & 1))}, {s(S_WS, 4)}, {s(so)} offen offset:{(j & 2) * 1024} sc1")
        else:
            mod = "sc1"
            if track and so == sAR:
                mod = ["sc1", "", "sc0", "nt", "sc0 sc1"][P.get("arm", 0)]
            A(f"buffer_load_dwordx4 {v(dst, 4)}, {v(vG16)}, {s(S_WS, 4)}, {s(so)} offen offset:{j * 1024} {mod}")
        if track:
            vidx[dst] = vmn[0]
            vmn[0] += 1

    def vm(txt):
        A(txt)
        vmn[0] += 1

    def wt(b):
        A(f"s_waitcnt vmcnt({vmn[0] - 1 - vidx[b]})")

    def test(b):
        A(f"v_max_u32 {v(t0)}, {v(b)}, {v(b + 2)}")
        A(f"v_cmp_eq_u32 vcc, -1, {v(t0)}")

    def chk_parts(name, j, n, base, reissue):
        lbl = f"{pfx}_{name}{j}"
        b = base + 4 * j

        def p0():
            wt(b)
            test(b)

        def p1():
            A(f"s_cbranch_vccnz {lbl}_f")
            A.label(lbl)
            stamp(f"{name}{j}", 24)
            nn = j + 1
            while nn < n and vidx.get(base + 4 * nn, -1) > vidx[b]:
                nn += 1
            younger = vmn[0] - 1 - vidx[base + 4 * (nn - 1)]
            tails.append((name, lbl, j, nn, b, reissue, younger))
        return [p0, p1]

    def chk4(base, lbl):
        return [lambda: A(f"v_max3_u32 {v(t0)}, {v(base)}, {v(base + 4)}, {v(base + 8)}"),
                lambda: A(f"v_max_u32 {v(t0)}, {v(t0)}, {v(base + 12)}"),
                lambda: A(f"v_cmp_eq_u32 vcc, -1, {v(t0)}"),
                lambda: A(f"s_cbranch_vccnz {lbl}")]

    def budget(name):
        A(f"s_sub_u32 {s(sBud)}, {s(sBud)}, 1")
        A(f"s_cbranch_scc1 {exit_lbl}")
        if diag and name:
            A(f"s_add_u32 {s(FC[name])}, {s(FC[name])}, 1")

    def smf(d, a_, b_):
        A(f"v_smfmac_f32_16x16x64_bf16 {v(d, 4)}, {v(a_, 4)}, {r(b_, 8)}, {v(IDX)}")

    def qk(T, j, a_):
        smf(ACC + 4 * T, a_, 256 + (T * 4 + j) * 8)

    def cvtwr(b, off, part=3):
        if part & 1:
            A(f"v_cvt_pk_bf16_f32 {v(b)}, {v(b)}, {v(b + 1)}")
            A(f"v_cvt_pk_bf16_f32 {v(b + 1)}, {v(b + 2)}, {v(b + 3)}")
        if part & 2:
            A(f"ds_write_b64 {v(vXwr)}, {v(b, 2)} offset:{off}")

    def x1wr(T, part=3):
        slot = 2 * ((T & 3) >> 1) + (T >> 2) + 4 * (T & 1)
        cvtwr(ACC + 4 * T, X1 + slot * 2048, part)

    def vsm(a_, j, t):
        smf(VACC + 4 * t, a_, WV + (j * 4 + t) * 8)

    def mf(d, a_, b_, c_):
        A(f"v_mfma_f32_16x16x32_bf16 {v(d, 4)}, {v(a_, 4)}, {v(b_, 4)}, {v(c_, 4) if c_ is not None else 0}")

    def run(ms, fill):
        assert max(fill, default=0) <= len(ms)
        for i in range(len(ms) + 1):
            for f in fill.get(i, []):
                f()
            if i < len(ms):
                ms[i]()

    def add(fill, i, f):
        fill.setdefault(i, []).append(f)

    def ring(x):
        A(f"s_add_u32 {s(x)}, {s(x)}, {hex(L.STEP_STRIDE)}")
        A(f"s_bitset0_b32 {s(x)}, 20")

    ZERO = [ACC + i for i in range(32)] + [VACC + i for i in range(16)]

    def zero(regs):
        for x in regs:
            A(f"v_mov_b32 {v(x)}, 0")

    nD = P["nD"]
    assert nD >= 1
    src = lambda j: (AR if j < nD else AL) + 4 * j
    X2a, X2b, FKr, VMq = [src(j) for j in range(4)]
    vL = [(AL + 4 * j, j, t) for j in range(nD) for t in range(4)]
    nVL = min(P["nVL"], len(vL))
    vrest = vL[nVL:] + [(src(j), j, t) for j in range(2) for t in range(4)] + [(src(j), j, t) for t in range(4) for j in range(2, 4)]
    late = sorted({x[0] for x in vL[nVL:]})
    kreg = [80, 84] + [AL + 4 * j for j in range(nD) if AL + 4 * j not in late]
    nKE = len(kreg)
    kreg += [AR + 4 * j for j in range(nD, 4)] + [88, 92] + late
    KQ = lambda tile, kk: kreg[2 * kk + tile]

    def kt(i):
        A(f"ds_read_b128 {v(kreg[i], 4)}, {v(vG16)} offset:{KT + (i & 1) * 4096 + (i >> 1) * 1024}")

    A(".p2align 6")
    for _ in range(P.get("pad", 0)):
        A("s_nop 0")
    A.label(f"{pfx}_top")
    madr()
    tch = P.get("tch", 0)
    if tch:
        A(f"v_bfe_u32 {v(t0)}, {v(vG16)}, 2, 7")
        A(f"v_lshl_add_u32 {v(t0)}, {s(sT)}, 7, {v(t0)}")
    A("s_barrier")

    def prg():
        A("s_mov_b64 exec, 1")
        vm(f"buffer_store_dword {v(ONES)}, off, {s(S_WS, 4)}, {s(sPRG)} sc1")
        A("s_mov_b64 exec, -1")

    def pf():
        vidx[vPFd] = vmn[0]
        vm(f"buffer_load_dword {v(vPFd)}, {v(vPF)}, {s(S_WS, 4)}, 0 offen sc1")

    def post(so, c, mod):
        raw = f"s_sub_u32 {s(sT0)}, {s(sT0)}, {s(sD)}" if flt and so == sRSw else ""
        return [f"s_sub_u32 {s(sT0)}, {s(sClk)}, {s(sOff)}\n s_add_u32 {s(sT0)}, {s(sT0)}, {c}", raw, f"v_mov_b32 {v(t1)}, {s(sT0)}",
                f"buffer_store_dword {v(t1)}, off, {s(S_WS, 4)}, {s(so)}{mod}"]

    stamp("_B0", 48)
    A.nop(P["dL"])
    gA, gR = P.get("gA", 0), P.get("gR", 0)
    pre = [f"v_mov_b32 {v(t1)}, {LOFF}", f"ds_read_b128 {v(88, 4)}, {v(vXrd)} offset:{X2}", f"ds_read_b64 {v(92, 2)}, {v(vXrd)} offset:{X2 + 1024}",
           f"ds_read_b64 {v(t0, 2)}, {v(t1)}" if flt else f"ds_read_b32 {v(t1)}, {v(t1)}", lambda: kt(0), lambda: kt(1)]
    for j in range(4):
        ld(AL + 4 * j, sAL, j)
        if tch == j + 1:
            vm(f"buffer_load_dword {v(vPFd)}, {v(t0)}, {s(S_WS, 4)}, {s(sAR)} offen sc1")
        if gA and j < 3:
            for x in pre[2 * j:2 * j + 2]:
                A(x) if isinstance(x, str) else x()
            A.nop(gA)
    if not gA:
        for x in pre:
            A(x) if isinstance(x, str) else x()
    A.nop(P["dR"])
    stamp("top")
    for j in range(1 if gR else 4):
        ld(AR + 4 * j, sAR, j)
    A("s_waitcnt lgkmcnt(2)")
    A(f"v_readfirstlane_b32 {s(sOff)}, {v(t0 if flt else t1)}")
    if flt:
        A(f"v_readfirstlane_b32 {s(sD)}, {v(t1)}")
    A.label(f"{pfx}_lp")
    ms = [(lambda T=T, j=j: qk(T, j, AL + 4 * j)) for j in range(nD) for T in range(8)] + [(lambda x=x: vsm(*x)) for x in vL[:nVL]]
    fill = {}
    add(fill, 0, lambda: wt(AL))
    add(fill, 0, lambda: stamp("al0", 48))
    if gR:
        for j in range(1, 4):
            add(fill, P.get("gR0", 0) + gR * (j - 1), lambda j=j: ld(AR + 4 * j, sAR, j))
    cA = min(P["cA"], len(ms) - 3)
    if cA > 8:
        add(fill, 8, lambda: wt(AL + 4))
    add(fill, cA, lambda: wt(AL + 12))
    for k, f in enumerate(chk4(AL, f"{pfx}_al_f")):
        add(fill, cA + (0, 0, 1, 3)[k], f)
    kq = min(P.get("kq", 10), len(ms) - 3)
    add(fill, kq, lambda: vm(f"buffer_store_dwordx4 {v(88, 4)}, {v(vMst)}, {s(S_WS, 4)}, {s(sKMp)} offen sc1"))
    add(fill, kq + 1, lambda: vm(f"buffer_store_dwordx2 {v(92, 2)}, {v(vVMst)}, {s(S_WS, 4)}, {s(sVMp)} offen sc1"))
    add(fill, kq + 2, lambda: A(f"s_mov_b32 {s(sKMp)}, {hex(OOB)}\n s_mov_b32 {s(sVMp)}, {hex(OOB)}"))
    if P.get("pfe", 1):
        add(fill, kq + 3, pf)
    kr = P.get("kr", kq + 4)
    for i in range(4):
        add(fill, kr - 2 + i // 2, lambda i=i: A(f"v_mov_b32 {v(88 + i)}, -1"))
    add(fill, kr, lambda: vm(f"buffer_store_dwordx4 {v(88, 4)}, {v(vG16)}, {s(S_WS, 4)}, {s(sDM)} offen{loc}"))
    for i in (1, 3, 5, 7, 9, 11, 13, 15, 17, 19, 21, 23):
        if i <= len(ms):
            add(fill, i, lambda i=i: stamp(f"_a{i}", 32))
    run(ms, fill)
    for i in range(2, nKE):
        kt(i)
    stamp("ALe", 34)

    def addops(j):
        TM = 88
        ops = [lambda: wt(AR + 4 * j)]
        if j < nD:
            return ops

        def fm(i, h):
            sel = " op_sel:[1,0,1]" if h else ""
            return lambda: A(f"v_fma_mix_f32 {v(TM + 2 * i + h)}, {v(AR + 4 * j + i)}, 1.0, {v(AL + 4 * j + i)}{sel} op_sel_hi:[1,0,1]")

        def cv(i):
            return lambda: A(f"v_cvt_pk_bf16_f32 {v(AL + 4 * j + i)}, {v(TM + 2 * i)}, {v(TM + 2 * i + 1)}")
        return [lambda: [ops[0](), fm(0, 0)()], fm(0, 1), fm(1, 0), fm(1, 1), cv(0), fm(2, 0), fm(2, 1), cv(1), fm(3, 0), fm(3, 1), cv(2), cv(3)]

    tm = P["tm"]
    seq = [(T, j) for j in range(4 - tm) for T in range(8)] + [(T, j) for T in range(8) for j in range(4 - tm, 4)]
    first = lambda j: min(i for i, x in enumerate(seq) if x[1] == j)
    ms = [(lambda T=T, j=j: qk(T, j, src(j))) for T, j in seq]
    fill = {}
    add(fill, 0, lambda: wt(AR))
    add(fill, 0, lambda: stamp("ar0", 32))
    q = []
    for j in range(nD, 4):
        q += [(f, first(j) - 1) for f in addops(j)]
    i = P.get("ar0", 4)
    for j in range(1, nD):
        if not q or first(j) < i:
            add(fill, first(j), addops(j)[0])
    while q:
        n = max(-(-(k + 1) // (dl - i + 1)) for k, (f, dl) in enumerate(q))
        for _ in range(n):
            add(fill, i, q.pop(0)[0])
        i += 1
    if nD == 4:
        i = first(3) + 1
    for k, f in enumerate(chk4(AR, f"{pfx}_ar_f")):
        add(fill, i + (0, 0, 1, 3)[k], f)
    i += 3
    assert i <= seq.index((0, 3)) + 5
    i = max(i, P.get("pPF", 0))
    add(fill, i + 1, prg)
    if tb:
        add(fill, i - 4, lambda: A(f"s_memtime {s(sClk, 2)}"))
        po = post(sRSw, P["cR"], " offset:128 sc1")
        add(fill, i + 1, lambda: A("s_waitcnt lgkmcnt(0)"))
        for k in range(4):
            add(fill, i + 1 + (k + 1) // 2, lambda k=k: (vm if k == 3 else A)(po[k]))
    if not P.get("pfe", 1):
        add(fill, i + 3, pf)
    for k in range(nKE, 8 - len(late)):
        add(fill, min(31, i + 5 + 2 * (k - nKE)), lambda k=k: kt(k))
    for _ in range(3):
        x = vrest.pop(0)
        ms.append(lambda x=x: vsm(*x))
    add(fill, 32, lambda: stamp("i32", 2))
    for i in (1, 3, 5, 7, 9, 11, 13, 15, 17, 20, 24, 28, 35):
        add(fill, i, lambda i=i: stamp(f"_q{i}", 2))
    for T in range(8):
        add(fill, seq.index((T, 3)) + 4, lambda T=T: x1wr(T, 1))
        add(fill, min(len(ms), seq.index((T, 3)) + 5), lambda T=T: x1wr(T, 2))
    run(ms, fill)
    A("s_waitcnt lgkmcnt(0)")
    stamp("B1w")
    A("s_barrier")
    stamp("B1", 3)
    A(f"ds_read_b128 {v(0, 4)}, {v(vXrd)} offset:{X1}")
    A(f"ds_read_b128 {v(8, 4)}, {v(vXrd)} offset:{X1 + 8192}")
    A(f"ds_read_b128 {v(4, 4)}, {v(vXrd)} offset:{X1 + 1024}")
    A(f"ds_read_b128 {v(12, 4)}, {v(vXrd)} offset:{X1 + 9216}")
    for _ in range(P["nV2"]):
        vsm(*vrest.pop(0))
    A("s_waitcnt lgkmcnt(3)")
    mf(16, 0, FW, None)
    A("s_waitcnt lgkmcnt(2)")
    mf(20, 8, FW, None)
    A("s_waitcnt lgkmcnt(1)")
    mf(16, 4, FW, 16)
    A("s_waitcnt lgkmcnt(0)")
    mf(20, 12, FW, 20)
    for _ in range(2):
        vsm(*vrest.pop(0))
    A(f"s_cmp_eq_u32 {s(sStep)}, 63")
    A(f"v_cvt_pk_bf16_f32 {v(28)}, {v(16)}, {v(17)}")
    A(f"v_cvt_pk_bf16_f32 {v(29)}, {v(18)}, {v(19)}")
    A(f"v_cvt_pk_bf16_f32 {v(30)}, {v(20)}, {v(21)}")
    A(f"v_cvt_pk_bf16_f32 {v(31)}, {v(22)}, {v(23)}")
    vm(f"buffer_store_dwordx4 {v(28, 4)}, {v(vZst)}, {s(S_WS, 4)}, {s(sZst)} offen{loc}")
    stamp("Zst", 1)
    A(f"s_cbranch_scc1 {pfx}_last")
    vlast = list(vrest)
    A(f"ds_write_b128 {v(vXrd)}, {v(28, 4)} offset:{X1}")

    def zld(track=True):
        for j in range(2):
            ld(8 + 4 * j, sZld, j, track)

    def zown():
        A(f"ds_read_b128 {v(0, 4)}, {v(vZrd)} offset:{X1}")
        A(f"ds_read_b128 {v(4, 4)}, {v(vZrd)} offset:{X1 + 4096}")

    SM, S0, S1 = 16, 20, 24

    def sc(kk):
        return [lambda: mf(S0, KQ(0, kk), 4 * kk, S0 if kk else None), lambda: mf(S1, KQ(1, kk), 4 * kk, S1 if kk else None),
                lambda: mf(SM, 4 * kk, 4 * kk, SM)]
    nv = len(vrest)
    ms = [(lambda x=x: vsm(*x)) for x in vrest] + sc(0) + sc(1)
    nm = len(ms)
    va, pZ = P["va"], P["pZ"]
    fill = {}
    nds = [0]

    def ds(f):
        def g():
            f()
            nds[0] += 1
        return g
    for i in range(4):
        add(fill, 1 + i // 2, lambda i=i: A(f"v_mov_b32 {v(SM + i)}, {v(vBias)}"))
    add(fill, 0, lambda: A(f"v_add_u32 {v(vPF)}, {v(vPF)}, {v(vPFi)}"))
    add(fill, 0, lambda: A(f"s_add_u32 {s(sPRG)}, {s(sPRG)}, 4"))
    mr = [f"s_add_u32 {s(sAR)}, {s(sMRb)}, {s(sARo)}", f"s_add_u32 {s(sMst)}, {s(sMst)}, {hex(L.STEP_STRIDE)}\n s_bitset0_b32 {s(sMst)}, 20",
          f"s_add_u32 {s(sT0)}, {s(sMRb)}, {s(sMso)}", f"s_cmp_eq_u32 {s(sWv)}, 0", f"s_cselect_b32 {s(sMst)}, {s(sT0)}, {s(sMst)}",
          f"s_cmp_eq_u32 {s(sStep)}, 30", f"s_cselect_b32 {s(sT0)}, {s(sIncB)}, 0x10000", f"s_add_u32 {s(sMRb)}, {s(sMRb)}, {s(sT0)}",
          f"s_sub_u32 {s(sRem)}, 0x20000, {s(sT0)}", f"s_add_u32 {s(sPFa)}, {s(sPFa)}, {s(sRem)}", f"v_writelane_b32 {v(vPF)}, {s(sPFa)}, 39"]
    for k, x in enumerate(mr):
        add(fill, va + 1 + k // 2, lambda x=x: A(x))

    def b2():
        A("s_waitcnt lgkmcnt(0)")
        A("s_barrier")
        stamp("B2", 1)
        zown()
        nds[0] = 0
    add(fill, va, b2)
    for k in range(8 - len(late), 8):
        lastuse = max([i for i, x in enumerate(vrest) if x[0] == kreg[k]], default=-1)
        add(fill, lastuse + 1, ds(lambda k=k: kt(k)))
    if pZ <= nm:
        add(fill, pZ, zld)
    add(fill, nv, lambda: A(f"s_waitcnt lgkmcnt({nds[0]})"))
    add(fill, nv, lambda: stamp("_vn", 1))
    for tt in range(4):
        lastuse = max(i for i, x in enumerate(vrest) if x[2] == tt)
        add(fill, lastuse + 4, lambda tt=tt: cvtwr(VACC + 4 * tt, X2 + tt * 2048, 1))
        add(fill, lastuse + 5, ds(lambda tt=tt: cvtwr(VACC + 4 * tt, X2 + tt * 2048, 2)))
    run(ms, fill)
    stamp("_own", 1)
    A("s_waitcnt lgkmcnt(0)")
    A("s_barrier")
    stamp("B2b", 1)
    A(f"ds_read_b128 {v(X2a, 4)}, {v(vXrd)} offset:{X2}")
    A(f"ds_read_b128 {v(X2b, 4)}, {v(vXrd)} offset:{X2 + 1024}")
    if pZ > nm:
        zld()
    wbuf = [72] + [x for x in (32, 40, 48, 56) if x != VMq & ~7] + [80, 88, VMq & ~7]
    wx = P.get("wx", 0)
    if wx:
        assert P["nO"] == 4
        w_ = wbuf
        wreg = [16, w_[0], w_[1], w_[2], 24, w_[3], w_[4], w_[5], w_[6], w_[0], w_[1], w_[2], 0, w_[3], w_[4], w_[5]]
        order = [1, 2, 3, 0, 4, 5, 6, 7, 8] + list(range(9, 16))
        after = {1: 1, 2: 1, 3: 2, 5: 1, 6: 1, 7: 1}
        npre = 9
        if wx == 2:
            assert ONES == VT_ + 4
            wreg = wreg[:9] + [VT_] + wreg[9:15]
            del after[7]
            npre = 10
    else:
        wreg = [wbuf[f % 7] for f in range(16)]
        order = list(range(16))
        after = {f: 1 for f in range(9)}
        npre = 7
    wq = [(f, hf) for f in order for hf in range(2)]
    lq = []

    def wrd(n=1):
        for _ in range(n):
            f, hf = wq.pop(0)
            lq.append(f)
            A(f"ds_read_b128 {v(wreg[f] + 4 * hf, 4)}, {v(vWO)} offset:{f * 2048 + hf * 1024}")

    wt(vPFd)
    A(f"v_cmp_eq_u32 vcc, 0, {v(vPFd)}")
    if flt:
        rsl = f"buffer_load_dword {v(vRS)}, off, {s(S_WS, 4)}, {s(sRSr)} offset:128 sc1"
        A(f"s_cmp_eq_u32 {s(sWv)}, 3")
        A(f"s_cselect_b32 {s(sFw)}, {s(sLSw)}, {hex(OOB)}")
    else:
        rsl = f"buffer_load_dword {v(vRS)}, {v(t1)}, {s(S_WS, 4)}, {s(sRSr)} offen offset:128 sc1"
        A(f"v_and_b32 {v(t1)}, 0x1f0, {v(vG16)}")
        A(f"v_lshlrev_b32 {v(t1)}, 4, {v(t1)}")
    A(f"s_and_b32 {s(sKV)}, vcc_hi, 0x3f00")
    if tb:
        vm(rsl)
    for i in range(8):
        A(f"v_mov_b32 {v(VACC + i)}, 0")
    fk = [lambda: mf(FKr, FK, X2a, None), lambda: mf(FKr, FK, X2b, FKr)]
    fkc = [lambda: A(f"v_cvt_pk_bf16_f32 {v(VMq)}, {v(FKr)}, {v(FKr + 1)}"), lambda: A(f"v_cvt_pk_bf16_f32 {v(VMq + 1)}, {v(FKr + 2)}, {v(FKr + 3)}"),
           lambda: A(f"ds_write_b64 {v(vXrd)}, {v(VMq, 2)} offset:{X2 + 1024}")]
    fkp = P.get("fkp", 0)
    if not fkp:
        A("s_waitcnt lgkmcnt(0)")
        fk[0]()
        wrd(2)
        fk[1]()
    A("s_waitcnt lgkmcnt(0)")
    stamp("own", 1)
    A.label(f"{pfx}_zw")
    ms = sc(2) + sc(3)
    fill = {}
    add(fill, 0, lambda: wt(8))
    add(fill, 0, lambda: stamp("z0", 5))
    add(fill, 3, lambda: wt(12))
    add(fill, 4, lambda: A(f"v_max_u32 {v(t0)}, {v(8)}, {v(12)}"))
    add(fill, 4, lambda: A(f"v_cmp_eq_u32 vcc, -1, {v(t0)}"))
    add(fill, 6, lambda: A(f"s_cbranch_vccnz {pfx}_z_f"))
    run(ms, fill)
    stamp("z1", 5)
    A(f"ds_write_b128 {v(vXrd)}, {v(28, 4)} offset:{X2}")
    E = 0

    def soft(extra):
        def ex(i):
            for f in extra.get(i, []):
                f()
        for i in range(8):
            A(f"v_exp_f32 {v(E + i)}, {v(S0 + i)}")
            ex(i)
            if i in (2, 4, 6):
                A(f"v_cvt_pk_bf16_f32 {v(80 + i // 2 - 1)}, {v(E + i - 2)}, {v(E + i - 1)}")
        A(f"v_mul_f32 {v(E + 8)}, {s(sCc)}, {v(SM)}")
        A(f"v_cvt_pk_bf16_f32 {v(83)}, {v(E + 6)}, {v(E + 7)}")
        A(f"v_mul_f32 {v(E + 9)}, {s(sCc)}, {v(SM + 1)}")
        A(f"v_exp_f32 {v(E + 8)}, {v(E + 8)}")
        mf(28, ONES, 80, None)
        A(f"v_mul_f32 {v(E + 10)}, {s(sCc)}, {v(SM + 2)}")
        A(f"v_exp_f32 {v(E + 9)}, {v(E + 9)}")
        mf(88, VT_, 80, None)
        A(f"v_mul_f32 {v(E + 11)}, {s(sCc)}, {v(SM + 3)}")
        A(f"v_exp_f32 {v(E + 10)}, {v(E + 10)}")
        A(f"v_exp_f32 {v(E + 11)}, {v(E + 11)}")
        A(f"v_cvt_pk_bf16_f32 {v(84)}, {v(E + 8)}, {v(E + 9)}")
        A(f"v_cvt_pk_bf16_f32 {v(85)}, {v(E + 10)}, {v(E + 11)}")
        if 8 in extra:
            ex(8)
        else:
            A.nop(2)
        A(f"v_mfma_f32_16x16x16_bf16 {v(28, 4)}, {v(ONES, 2)}, {v(84, 2)}, {v(28, 4)}")
        A(f"v_mfma_f32_16x16x16_bf16 {v(88, 4)}, {v(VMq, 2)}, {v(84, 2)}, {v(88, 4)}")
        if 9 in extra:
            ex(9)
        else:
            A.nop(5)
        A(f"v_rcp_f32 {v(t0)}, {v(28)}")
        A(f"v_subrev_u32 {v(t1)}, 0x21800000, {v(28)}")
        A(f"v_cmp_lt_u32 vcc, 0x3c000000, {v(t1)}")
        for i in range(4):
            A(f"v_mul_f32 {v(88 + i)}, {v(88 + i)}, {v(t0)}")
        A(f"s_and_b32 {s(sT0)}, vcc_lo, 0xff")
        A(f"v_cvt_pk_bf16_f32 {v(t0)}, {v(88)}, {v(89)}")
        A(f"v_cvt_pk_bf16_f32 {v(t1)}, {v(90)}, {v(91)}")

    if fkp:
        ext = {0: [fk[0]], 2: [fk[1]], 7: fkc[:2], 8: [lambda: A("s_nop 0"), fkc[2], lambda: wrd(1)], 9: [lambda: wrd(5)]}
    else:
        fkc[0]()
        fkc[1]()
        assert 0
    soft(ext)
    A(f"s_cbranch_scc1 {pfx}_sm_f")
    A.label(f"{pfx}_ost")
    vm(f"buffer_store_dwordx2 {v(t0, 2)}, {v(vOst)}, {s(S_WS, 4)}, {s(sOst)} offen{loc}")
    stamp("Ost", 12)
    wrd(len(wq) - 2 * (16 - npre))
    A(f"s_cmp_lg_u32 {s(sKV)}, 0")
    A(f"s_cbranch_scc1 {pfx}_kvw")
    A.label(f"{pfx}_kvok")
    re_o = lambda j, tr=False: ld(4 * j, sOld0 if j < 4 else sOld1, j & 3, tr)
    for x in (sAL, sZld, sZst, sOst, sDM):
        ring(x)
    A(f"s_add_u32 {s(sStep)}, {s(sStep)}, 1")
    A(f"s_mov_b32 {s(sKMp)}, {s(sKM)}")
    A(f"s_mov_b32 {s(sVMp)}, {s(sVMst)}")
    A(f"s_add_u32 {s(sVMst)}, {s(sVMst)}, 65536")
    A(f"s_add_u32 {s(sKM)}, {s(sKM)}, 65536")
    A(f"s_add_u32 {s(sRSw)}, {s(sRSw)}, {s(sRem)}")
    if P.get("dO", 0):
        A.nop(P["dO"])
    stamp("Old", 8)
    ms = []
    fill = {}
    for j in range(8):
        if j < P["nO"]:
            re_o(j, True)
        else:
            add(fill, 2 * (j - P["nO"]) + 1, lambda j=j: re_o(j, True))

    def lwait(*tags):
        A(f"s_waitcnt lgkmcnt({min(15, len(lq) - 1 - max(i for i, x in enumerate(lq) if x in tags))})")

    def kvm(k_, v_):
        A(f"buffer_store_dwordx4 {v(k_, 4)}, {v(vMst)}, {s(S_WS, 4)}, {s(sKM)} offen sc1")
        if v_ is not None:
            A(f"buffer_store_dwordx2 {v(v_, 2)}, {v(vVMst)}, {s(S_WS, 4)}, {s(sVMst)} offen sc1")

    for f in range(16):
        j, tt = f >> 1, f & 1
        ms.append(lambda f=f, j=j, tt=tt: smf(VACC + 4 * tt, 4 * j, wreg[f]))
        if tt == 0:
            parts = chk_parts("o", j, 8, 0, re_o)
            add(fill, max(0, f - 1), parts[0])
            add(fill, f, parts[1])
            add(fill, f, lambda f=f: lwait(f, f + 1))
        add(fill, f + 1, lambda f=f: wrd(2 * after.get(f, 0)))
    if wx == 2:
        for i in range(4):
            add(fill, 12 + i // 2, lambda i=i: A(f"v_mov_b32 {v(ONES + i)}, 0x3f803f80"))
    cf = P.get("cf", 11)
    if tb:
        add(fill, cf, lambda: A(f"s_memtime {s(sClk, 2)}"))
        if cf != 11:
            add(fill, cf + 3, lambda: A("s_waitcnt lgkmcnt(0)"))
        for k, x in enumerate(post(sLSw, P["cL"], loc)):
            add(fill, cf + (3 if k < 2 else 4), lambda x=x, k=k: (vm if k == 3 else A)(x))
    fw = lambda b: [f"v_add_u32 {v(b)}, {s(sD)}, {v(vRS)}\n v_add_u32 {v(b + 1)}, {s(sD)}, {v(vRS)}",
                    f"buffer_store_dwordx2 {v(b, 2)}, off, {s(S_WS, 4)}, {s(sFw)} offset:4{loc}"]
    if flt:
        fwp = P.get("fwp", 8)
        assert fwp % 2 == 0 and fwp < cf + 4
        add(fill, fwp, lambda: A(fw(t0)[0]))
        add(fill, fwp, lambda: vm(fw(t0)[1]))
    ktp = P.get("ktp", 1)
    if not ktp:
        add(fill, 16, lambda: kt_issue(A))
    else:
        add(fill, 16, lambda: [ring(sOld0), A(f"s_add_u32 {s(sOld1)}, {s(sOld0)}, 4096"), A.nop(P.get("x3n", 3))])
    run(ms, fill)
    cvtwr(VACC, X1)
    cvtwr(VACC + 4, X1 + 2048)
    stamp("_x3w", 8)
    if not ktp:
        ring(sOld0)
        A(f"s_add_u32 {s(sOld1)}, {s(sOld0)}, 4096")
    tv = P.get("tv", 2)
    if tv:
        A(f"v_lshrrev_b32 {v(t0)}, {2 if flt else 1}, {v(vG16)}")
        A(f"s_andn2_b32 {s(sT1)}, {s(sLSw)}, 0x3ff")
        if flt:
            A(f"v_mul_u32_u24 {v(t0)}, 3, {v(t0)}")
        A(f"s_cmp_eq_u32 {s(sWv)}, 2")
        A("s_cselect_b64 vcc, -1, 0")
        A(f"s_cmp_eq_u32 {s(sWv)}, 3")
    else:
        A(f"s_cmp_ge_u32 {s(sWv)}, 2")
    A("s_waitcnt lgkmcnt(0)")
    stamp("_B3w", 8)
    A("s_barrier")
    stamp("B3", 24)
    A(f"s_cbranch_scc1 {pfx}_{'tim' if tv else 'w23'}")
    if tv:
        A(f"s_cbranch_vccnz {pfx}_w23")
    A(f"ds_read_b128 {v(80, 4)}, {v(vG16)} offset:{X1}")
    A(f"ds_read_b128 {v(32, 4)}, {v(vG16)} offset:{X1 + 2048}")
    A(f"ds_read_b128 {v(84, 4)}, {v(vG16)} offset:{X1 + 1024}")
    A(f"ds_read_b128 {v(36, 4)}, {v(vG16)} offset:{X1 + 3072}")
    A.nop(P.get("kd", 0))
    kta = P.get("kta", 3 if tv else 0)

    def kt2(groups, tmp):
        vt = f"buffer_load_dwordx4 {v(VT_, 4)}, {v(vG16)}, {s(S_WS, 4)}, {s(sVT)} offen sc1"
        for dx, dt in groups:
            A(f"s_add_u32 m0, {s(sM0a)}, {2048 * dx - 4096 * dt}")
            A(f"s_sub_u32 {s(tmp)}, {s(sKT)}, {131072 * dt}")
            if dx:
                A(f"s_xor_b32 {s(tmp)}, {s(tmp)}, 2048")
            A(f"buffer_load_dwordx4 {v(vG16)}, {s(S_WS, 4)}, {s(tmp)} offen sc1 lds")
            A(f"buffer_load_dwordx4 {v(vG16)}, {s(S_WS, 4)}, {s(tmp)} offen offset:1024 sc1 lds")
        A(vt)
        A(f"s_add_u32 {s(sKT)}, {s(sKT)}, {hex(32 * 8192)}")
        A(f"s_add_u32 {s(sVT)}, {s(sVT)}, {hex(32 * 8192)}")
        return 2 * len(groups) + 1
    G2 = {2: [(0, 1), (0, 0)], 3: [(0, 1), (0, 0), (1, 1), (1, 0)]}.get(kta)
    G3 = {2: [(0, 1), (0, 0)], 3: []}.get(kta)
    if ktp and not kta:
        kt_issue(A)
    A(f"s_and_b32 {s(sT0)}, {s(sH)}, 3")
    A(f"s_cmp_lt_u32 {s(sT0)}, {nD}")
    zero(ZERO[:P.get("nZ", 12)])
    A(f"s_cbranch_scc1 {pfx}_mst_b")
    for fmt in ("f16", "bf16"):
        A(f"s_cmp_eq_u32 {s(sWv)}, 0")
        A("s_waitcnt lgkmcnt(3)")
        mf(88, 80, FW, None)
        A("s_waitcnt lgkmcnt(2)")
        mf(92, 32, FW, None)
        A("s_waitcnt lgkmcnt(1)")
        mf(88, 84, FW, 88)
        A("s_waitcnt lgkmcnt(0)")
        mf(92, 36, FW, 92)
        A.nop(5)
        A(f"v_cvt_pk_{fmt}_f32 {v(80)}, {v(88)}, {v(89)}")
        A(f"v_cvt_pk_{fmt}_f32 {v(81)}, {v(90)}, {v(91)}")
        A(f"s_cbranch_scc0 {pfx}_mst_{fmt}")
        A(f"v_cvt_pk_{fmt}_f32 {v(82)}, {v(92)}, {v(93)}")
        A(f"v_cvt_pk_{fmt}_f32 {v(83)}, {v(94)}, {v(95)}")
        A(f"buffer_store_dwordx4 {v(80, 4)}, {v(vMst)}, {s(S_WS, 4)}, {s(sMst)} offen sc1")
        A(f"s_branch {pfx}_mst_d")
        A.label(f"{pfx}_mst_{fmt}")
        A(f"v_cvt_pk_{fmt}_f32 {v(82)}, {v(92)}, {v(93)}")
        A(f"v_cvt_pk_{fmt}_f32 {v(83)}, {v(94)}, {v(95)}")
        if fmt == "f16":
            A(f"s_branch {pfx}_mst_l")
            A.label(f"{pfx}_mst_b")
    A.label(f"{pfx}_mst_l")
    A(f"buffer_store_dwordx4 {v(80, 4)}, {v(vMst)}, {s(S_WS, 4)}, {s(sMst)} offen{loc}")
    A.label(f"{pfx}_mst_d")
    stamp("Mst", 24)
    if kta == 1:
        kt_issue(A)
    elif kta:
        kt2([], None)
    zero(ZERO[P.get("nZ", 12):])
    if kta < 2:
        A(f"s_waitcnt vmcnt({0 if kta else 1})")
    A.label(f"{pfx}_end")
    stamp("_end", 16)
    nT = len(names)
    if fine & 16:
        names += ["_t1", "_t2"]
    ring(sLSw)
    if diag:
        A(f"s_and_b32 {s(sT0)}, {s(sStep)}, {P.get('dm', 7)}")
        A(f"s_cbranch_scc1 {pfx}_top")
        A("s_memrealtime s[100:101]")
        A("s_memtime s[34:35]")
        A("s_waitcnt lgkmcnt(0)")
        A(f"v_mov_b32 {v(t0)}, 0")
        A(f"v_writelane_b32 {v(t0)}, s100, 31")
        A(f"v_writelane_b32 {v(t0)}, s34, 23")
        A(f"v_writelane_b32 {v(t0)}, {s(sOff)}, 19")
        for i in range(3):
            A(f"v_writelane_b32 {v(t0)}, s{8 + i}, {20 + i}")
        for i in range(len(names)):
            A(f"v_writelane_b32 {v(t0)}, {s(S_ST + 2 * i)}, {i}")
        for i in range(4):
            A(f"v_writelane_b32 {v(t0)}, {s(S_CNT + i)}, {24 + i}")
        A(f"v_writelane_b32 {v(t0)}, s56, 30")
        A(f"v_writelane_b32 {v(t0)}, s96, 28")
        A(f"v_writelane_b32 {v(t0)}, s98, 29")
        A(f"v_lshrrev_b32 {v(t1)}, 2, {v(vG16)}")
        A("s_mov_b32 exec_hi, 0")
        A(f"buffer_store_dword {v(t0)}, {v(t1)}, {s(S_WS, 4)}, {s(sSTO)} offen")
        A("s_mov_b64 exec, -1")
        A(f"s_add_u32 {s(sSTO)}, {s(sSTO)}, 128")
        chain.STAMP_NAMES[:] = names
    A(f"s_branch {pfx}_top")
    A.label(f"{pfx}_kvw")
    kv_wait(A, f"{pfx}_kvp", exit_lbl, 4)
    A("s_mov_b64 exec, -1")
    A(f"s_branch {pfx}_kvok")
    A.label(f"{pfx}_w23")
    if tb and not tv:
        A(f"s_cmp_eq_u32 {s(sWv)}, 3")
        A(f"s_cbranch_scc1 {pfx}_tim")
    A.nop(P.get("kd2", 0))
    if kta >= 2:
        assert tv
        kt2(G2, sT0)
    elif ktp:
        kt_issue(A)
    if tb:
        anchor(A, f"{pfx}_an", P)
    zero(ZERO)
    A("s_waitcnt vmcnt(0) lgkmcnt(0)")
    A(f"s_branch {pfx}_end")
    if tb and tv:
        assert ktp and (kta == 3 or not flt)
        A.label(f"{pfx}_tim")
        nw = 3 if flt else 2
        P2 = 60
        A(f"buffer_load_dwordx{nw} {v(80, nw)}, {v(t0)}, {s(S_WS, 4)}, {s(sT1)} offen sc1")
        n2, n3 = P.get("n2", 30), P.get("n3", 30)
        if not flt:
            A(f"v_subrev_u32 {v(85)}, {s(sBase)}, {v(vRS)}")
        A(f"s_add_u32 {s(sT2)}, {s(sOff)}, {s(sBase)}")
        p2 = f"buffer_load_dwordx{nw} {v(P2, nw)}, {v(t0)}, {s(S_WS, 4)}, {s(sT1)} offen sc1"
        for i in range(len(ZERO) + 1):
            if i == n2:
                A(p2)
            if i == n3:
                nk = kt2(G3, sT0) if kta >= 2 else (kt_issue(A), 3)[1]
            zero(ZERO[i:i + 1])
        A(f"s_waitcnt vmcnt({nk + 1})")
        A(f"s_memtime {s(sClk, 2)}")
        A(f"v_subrev_u32 {v(80)}, {s(sBase)}, {v(80)}")
        A(f"v_subrev_u32 {v(81)}, {s(sBase)}, {v(81)}")
        if flt:
            A(f"v_subrev_u32 {v(85)}, {s(sBase)}, {v(82)}")
        A(f"v_max3_u32 {v(84)}, {v(80)}, {v(81)}, {v(85)}")
        A(f"v_cmp_lt_u32 vcc, {hex(WIN)}, {v(84)}")
        A(f"s_cbranch_vccz {pfx}_tim3")
        A(f"s_waitcnt vmcnt({nk if n2 <= n3 else 0}) lgkmcnt(0)")
        A.label(f"{pfx}_tim0")
        A(f"s_memtime {s(sClk, 2)}")
        A(f"v_subrev_u32 {v(80)}, {s(sBase)}, {v(P2)}")
        A(f"v_subrev_u32 {v(81)}, {s(sBase)}, {v(P2 + 1)}")
        A(f"v_subrev_u32 {v(85)}, {s(sBase)}, {v(P2 + 2 if flt else vRS)}")
        A(f"v_max3_u32 {v(84)}, {v(80)}, {v(81)}, {v(85)}")
        A(f"v_cmp_lt_u32 vcc, {hex(WIN)}, {v(84)}")
        A(f"s_cbranch_vccnz {pfx}_tim2")
        A.label(f"{pfx}_tim3")
        if fine & 16:
            A(f"s_memtime {s(S_ST + 2 * nT, 2)}")
        if tv == 2:
            dpp = lambda k: f"v_max_u32_dpp {v(84)}, {v(84)}, {v(84)} row_ror:{k} row_mask:0xf bank_mask:0xf"
            A(dpp(8))
            A(f"s_add_u32 {s(sRSr)}, {s(sRSr)}, {s(sRem)}")
            A(f"s_mov_b32 {s(sRem)}, {s(sT2)}")
            A(dpp(4))
            A(f"s_add_u32 {s(sBase)}, {s(sOff)}, 2048")
            A.nop(1)
            A(dpp(2))
            A.nop(2)
            A(dpp(1))
            A.nop(1)
            for k in range(4):
                A(f"v_readlane_b32 {s(sT0 + k)}, {v(84)}, {16 * k}")
            A.nop(P.get("rln", 2))
            A(f"s_max_u32 {s(sT0)}, {s(sT0)}, {s(sT1)}")
            A(f"s_max_u32 {s(sT2)}, {s(sT2)}, {s(sT3)}")
            A(f"s_max_u32 {s(sT0)}, {s(sT0)}, {s(sT2)}")
            A(f"s_add_u32 {s(sRem)}, {s(sRem)}, {s(sT0)}")
            A("s_waitcnt lgkmcnt(0)")
            A(f"s_sub_u32 {s(sRem)}, {s(sRem)}, {s(sClk)}")
            A(f"s_sub_u32 {s(sBase)}, {s(sClk)}, {s(sBase)}")
            if diag:
                A(f"s_mov_b32 s8, {s(sRem)}")
            A(f"s_max_i32 {s(sRem)}, {s(sRem)}, 0")
            A(f"s_min_i32 {s(sRem)}, {s(sRem)}, {LIM}")
            if fine & 16:
                A(f"s_memtime {s(S_ST + 2 * nT + 2, 2)}")
            A(".p2align 3")
            A.label(f"{pfx}_tlp")
            A(f"s_sub_u32 {s(sRem)}, {s(sRem)}, 28")
            A(f"s_cbranch_scc0 {pfx}_tlp")
        else:
            A(f"s_add_u32 {s(sRSr)}, {s(sRSr)}, {s(sRem)}")
            A("s_waitcnt lgkmcnt(0)")
            A(f"s_sub_u32 {s(sRem)}, {s(sClk)}, {s(sT2)}")
            A(f"s_min_u32 {s(sRem)}, {s(sRem)}, {hex(1 << 30)}")
            A(f"s_add_u32 {s(sT0)}, {s(sRem)}, {LIM}")
            A(f"v_min_u32 {v(84)}, {s(sT0)}, {v(84)}")
            if diag:
                A(f"s_sub_u32 s8, 0, {s(sRem)}")
            if fine & 16:
                A(f"s_memtime {s(S_ST + 2 * nT + 2, 2)}")
            A.label(f"{pfx}_tlp")
            A(f"v_cmp_lt_u32 vcc, {s(sRem)}, {v(84)}")
            A(f"s_add_u32 {s(sRem)}, {s(sRem)}, {P.get('tc', 50)}")
            A(f"s_cbranch_vccnz {pfx}_tlp")
            if diag:
                A(f"s_add_u32 s8, s8, {s(sRem)}")
            A(f"s_sub_u32 {s(sBase)}, {s(sClk)}, {s(sOff)}")
            A(f"s_sub_u32 {s(sBase)}, {s(sBase)}, 2048")
        if kta < 3:
            A(f"s_waitcnt vmcnt({(0 if n2 <= n3 else 1) + (kta == 2)})")
        A(f"s_branch {pfx}_end")
        A.label(f"{pfx}_tim2")
        if flt:
            A("s_waitcnt vmcnt(0)")
            A(fw(80)[0])
            A(fw(80)[1])
        else:
            A(f"v_and_b32 {v(t1)}, 0x1f0, {v(vG16)}")
            A(f"v_lshlrev_b32 {v(t1)}, 4, {v(t1)}")
        A("s_waitcnt lgkmcnt(0)")
        A(f"s_sub_u32 {s(sT0)}, {s(sClk)}, {s(sT2)}")
        A(f"s_cmp_gt_u32 {s(sT0)}, {hex(1 << 18)}")
        A(f"s_cbranch_scc1 {pfx}_tim3")
        A(p2)
        A(rsl)
        budget(None)
        if diag:
            A("s_add_u32 s9, s9, 1")
        A(f"s_waitcnt vmcnt({1 if flt else 0})")
        A(f"s_branch {pfx}_tim0")
    if tb and not tv:
        assert not flt
        A.label(f"{pfx}_tim")
        A(f"v_lshrrev_b32 {v(t0)}, 1, {v(vG16)}")
        A(f"s_andn2_b32 {s(sT1)}, {s(sLSw)}, 0x1ff")
        A(f"buffer_load_dwordx2 {v(80, 2)}, {v(t0)}, {s(S_WS, 4)}, {s(sT1)} offen sc1")
        n2 = P.get("n2", 30)
        if ktp:
            kt_issue(A)
        zero(ZERO[:n2])
        A(f"buffer_load_dwordx2 {v(62, 2)}, {v(t0)}, {s(S_WS, 4)}, {s(sT1)} offen sc1")
        zero(ZERO[n2:])
        A(f"s_waitcnt vmcnt({4 if ktp else 1})")
        A(f"v_subrev_u32 {v(80)}, {s(sBase)}, {v(80)}")
        A(f"v_subrev_u32 {v(81)}, {s(sBase)}, {v(81)}")
        A(f"v_subrev_u32 {v(85)}, {s(sBase)}, {v(vRS)}")
        A(f"v_max_u32 {v(84)}, {v(80)}, {v(81)}")
        A(f"v_cmp_lt_u32 vcc, {hex(WIN)}, {v(84)}")
        A(f"s_cbranch_vccz {pfx}_tim1")
        A.label(f"{pfx}_tim0")
        A("s_waitcnt vmcnt(0)")
        A(f"v_subrev_u32 {v(80)}, {s(sBase)}, {v(62)}")
        A(f"v_subrev_u32 {v(81)}, {s(sBase)}, {v(63)}")
        A(f"v_subrev_u32 {v(85)}, {s(sBase)}, {v(vRS)}")
        A(f"v_max_u32 {v(84)}, {v(80)}, {v(81)}")
        A.label(f"{pfx}_tim1")
        if fine & 16:
            A(f"s_memtime {s(S_ST + 2 * nT, 2)}")
        A(f"s_memtime {s(sClk, 2)}")
        A(f"v_max_u32 {v(84)}, {v(84)}, {v(85)}")
        for k in (8, 4, 2, 1):
            A.nop(2)
            A(f"v_max_u32_dpp {v(84)}, {v(84)}, {v(84)} row_ror:{k} row_mask:0xf bank_mask:0xf")
        A.nop(1)
        for k in range(4):
            A(f"v_readlane_b32 {s(sT0 + k)}, {v(84)}, {16 * k}")
        A.nop(2)
        A(f"s_max_u32 {s(sT0)}, {s(sT0)}, {s(sT1)}")
        A(f"s_max_u32 {s(sT2)}, {s(sT2)}, {s(sT3)}")
        A(f"s_max_u32 {s(sT0)}, {s(sT0)}, {s(sT2)}")
        A(f"s_cmp_gt_u32 {s(sT0)}, {hex(WIN)}")
        A(f"s_cbranch_scc1 {pfx}_tim2")
        A.label(f"{pfx}_tim3")
        A(f"s_add_u32 {s(sRSr)}, {s(sRSr)}, {s(sRem)}")
        A(f"s_add_u32 {s(sT0)}, {s(sT0)}, {s(sOff)}")
        A(f"s_add_u32 {s(sT0)}, {s(sT0)}, {s(sBase)}")
        A("s_waitcnt lgkmcnt(0)")
        A(f"s_sub_u32 {s(sRem)}, {s(sT0)}, {s(sClk)}")
        A(f"s_sub_u32 {s(sBase)}, {s(sClk)}, {s(sOff)}")
        A(f"s_sub_u32 {s(sBase)}, {s(sBase)}, 2048")
        if diag:
            A(f"s_mov_b32 s8, {s(sRem)}")
        A(f"s_max_i32 {s(sRem)}, {s(sRem)}, 0")
        A(f"s_min_i32 {s(sRem)}, {s(sRem)}, {LIM}")
        if fine & 16:
            A(f"s_memtime {s(S_ST + 2 * nT + 2, 2)}")
        A(".p2align 3")
        A.label(f"{pfx}_tlp")
        A(f"s_sub_u32 {s(sRem)}, {s(sRem)}, 28")
        A(f"s_cbranch_scc0 {pfx}_tlp")
        if ktp:
            A("s_waitcnt vmcnt(1)")
        A(f"s_branch {pfx}_end")
        A.label(f"{pfx}_tim2")
        A(f"s_andn2_b32 {s(sT1)}, {s(sLSw)}, 0x1ff")
        A(f"v_and_b32 {v(t1)}, 0x1f0, {v(vG16)}")
        A(f"v_lshlrev_b32 {v(t1)}, 4, {v(t1)}")
        A("s_waitcnt vmcnt(0) lgkmcnt(0)")
        A(f"s_sub_u32 {s(sT0)}, {s(sClk)}, {s(sOff)}")
        A(f"s_sub_u32 {s(sT0)}, {s(sT0)}, {s(sBase)}")
        A(f"s_cmp_gt_u32 {s(sT0)}, {hex(1 << 18)}")
        A(f"s_cbranch_scc1 {pfx}_tim3")
        A(f"buffer_load_dwordx2 {v(62, 2)}, {v(t0)}, {s(S_WS, 4)}, {s(sT1)} offen sc1")
        A(f"buffer_load_dword {v(vRS)}, {v(t1)}, {s(S_WS, 4)}, {s(sRSr)} offen offset:128 sc1")
        budget(None)
        if diag:
            A("s_add_u32 s9, s9, 1")
        A(f"s_branch {pfx}_tim0")
    A.label(f"{pfx}_last")
    kvm(28, None)
    for x in vlast:
        vsm(*x)
    A.nop(8)
    for tt in range(4):
        cvtwr(VACC + 4 * tt, X2 + tt * 2048)
    A("s_waitcnt lgkmcnt(0)")
    A("s_barrier")
    A(f"ds_read_b128 {v(X2a, 4)}, {v(vXrd)} offset:{X2}")
    A(f"ds_read_b128 {v(X2b, 4)}, {v(vXrd)} offset:{X2 + 1024}")
    A("s_waitcnt lgkmcnt(0)")
    fk[0]()
    fk[1]()
    A.nop(8)
    fkc[0]()
    fkc[1]()
    A(f"buffer_store_dwordx2 {v(VMq, 2)}, {v(vVMst)}, {s(S_WS, 4)}, {s(sVMst)} offen sc1")
    A(f"s_branch {exit_lbl}")
    for nme in ("al", "ar"):
        A.label(f"{pfx}_{nme}_f")
        A("s_waitcnt lgkmcnt(0)")
        madr()
        for j in range(4):
            ld(AL + 4 * j, sAL, j, False)
        if nme == "ar":
            for j in range(4):
                ld(AR + 4 * j, sAR, j, False)
        budget(nme)
        zero(ZERO)
        A("s_waitcnt vmcnt(0)")
        A(f"s_branch {pfx}_lp")
    A.label(f"{pfx}_z_f")
    zld(False)
    budget("z")
    A.nop(4)
    for i in range(4):
        A(f"v_mov_b32 {v(SM + i)}, {v(vBias)}")
    for f in sc(0) + sc(1):
        f()
    A("s_waitcnt vmcnt(0)")
    A(f"s_branch {pfx}_zw")
    A.label(f"{pfx}_sm_f")
    A(f"v_max3_f32 {v(t0)}, {v(SM)}, {v(SM + 1)}, {v(SM + 2)}")
    A(f"v_max_f32 {v(t0)}, {v(t0)}, {v(SM + 3)}")
    A(f"v_mul_f32 {v(t0)}, {s(sCc)}, {v(t0)}")
    for i in range(0, 8, 2):
        A(f"v_max3_f32 {v(t0)}, {v(t0)}, {v(S0 + i)}, {v(S0 + i + 1)}")
    for op in ("v_permlane32_swap_b32", "v_permlane16_swap_b32"):
        A(f"v_mov_b32 {v(t1)}, {v(t0)}")
        A.nop(2)
        A(f"{op} {v(t0)}, {v(t1)}")
        A(f"v_max_f32 {v(t0)}, {v(t0)}, {v(t1)}")
    ic = struct.unpack("<I", struct.pack("<f", 1.0 / ((128 ** -0.5) * math.log2(math.e))))[0]
    A(f"v_mul_f32 {v(t1)}, {hex(ic)}, {v(t0)}")
    for i in range(8):
        A(f"v_sub_f32 {v(S0 + i)}, {v(S0 + i)}, {v(t0)}")
    for i in range(4):
        A(f"v_sub_f32 {v(SM + i)}, {v(SM + i)}, {v(t1)}")
    soft({})
    A(f"s_branch {pfx}_ost")

    for name, lbl, j, n, b, reissue, younger in tails:
        A.label(f"{lbl}_f")
        for jj in range(j, n):
            reissue(jj)
        budget(name)
        A(f"s_waitcnt vmcnt({0 if younger else n - 1 - j})")
        test(b)
        A(f"s_cbranch_vccnz {lbl}_f")
        if tb and 2 * j >= cf:
            A("s_waitcnt lgkmcnt(0)")
            A(f"s_memtime {s(sClk, 2)}")
            if 2 * j > cf + 2:
                A("s_waitcnt lgkmcnt(0)")
                A(f"s_sub_u32 {s(sClk)}, {s(sClk)}, {(2 * j - cf) * 32 - 40}")
        A(f"s_branch {lbl}")
```

```python
import math
import struct
from asmlib import *
import layout as L
import chain
from chain import *

LIM = 2000
sBase, sOff, sKV, sNan = 2, 11, 10, 0
sClk, sNo, sTM, sRSw, sRSr, sLSw, sRem = 40, 42, 43, 44, 45, 46, 47
sMRb, sIncB, sARo, sPFa, sMso = 52, 53, 54, 55, 59
sOld, sInc, sOwn, sML = sOld0, sOld1, sNegC, sM0a
sStp = sKV
sDr, sM, sM0, sMp = sPRG, sH, sC, sKT
OFFL = X2 + 2048
sRT = 80
TW = 3
SH, ZO, X3 = X1, X2, X2 + 4096
RR, QA, KA, VA, TM = 64, 80, 84, 88, 92
ZP, VMq, vMs, vRS = vXrd, vBias, vZrd, vPFd
FR = lambda j, dq: 16 * j + 4 * dq
ORD = ["L0 L1 R0 R1 L2 R2 L3 R3", "L0 R0 L1 R1 L2 R2 L3 R3", "L0 L1 R0 L2 R1 R2 L3 R3", "L0 L1 L2 R0 R1 R2 L3 R3", "L0 L1 L2 L3 R0 R1 R2 R3",
       "L0 L1 R0 L2 R1 L3 R2 R3", "L0 L1 R0 R1 R2 R3 L2 L3", "R0 L0 R1 L1 R2 L2 R3 L3", "L0 R0 R1 L1 R2 L2 R3 L3"]
MP = [
    "p a a a a c w b o o v B r r r p a a a a c w b o o m m B r p m a r m a r m a m a c w b o L o p m a F m a B r m a r m a r c w b m m o o B r m r m r m "
    "m m m m k m k q k q k m m",
    "p a a a a c w b o o p a a a a c w b o o v B2 r r r r r r p a a a a c w b o o m L m F m p a m a m a m a c w b m m o o B2 r m r m r m r m r r "
    "m m m m m m m k m k q k q k m m",
    "p a a a a c w b o F o p a a a a c w b o o v v B2 r p a r a a a c w b o r o r p m a r m a r m a L m a c w b m m m m m B2 r m r m r m r o r o r "
    "m m m m m m m k m k q k q k m m",
    "p a a a a c w b o F o p a a a a c B r w b r o r o m m p B r m a r m a r m a m a c w b o L o p m a m a B r m a r m a r c w b m m o o m B r m r m r m "
    "m m m k m k q k q k m m",
    "p a a a a c w b o F o p a a a a c w b B r o r o r v m p m a B r m a r m a r m a c m w b o L o p m a m a m a B r m a r c m r w b m o o m m B r m r m r m "
    "m m k m k q k q k m m",
    "p a a a a c w b o F o p a a a a c B r r r w b o o m m m p a m B r a m r a m r a v w c m b o L o p a m a m a m B r a m w c m r b o r o m m B r m r m r "
    "m m q q q m k m k k C m k n1 C",
    "p a a a a c w b o F o p a a a a c B r w3 b o wc o r v r m m v m B p a m r a m r a m r a v w3 c m wc b o L o p a m a m a m a m B c m r b o w3 o wc "
    "v r m r m m m B m r m r v r q q q k m k m k n1 C m k n1 C",
    "p a a h a a c h b o F o p a a a a c B r w3 b o wc o r v r m m v B m p r a m r a m r a m a m w3 c m wc b o L o m p a m B r a m r a m r a v w3 c "
    "m wc b o o m m B r m r m r m q q q k m k m k n1 C m k n1 C",
    "p a a a a c b o w o F p a a a a c B r w3 b o wc o r v r m m v B m p r a m r a m r a m a m w3 c m wc b o L o m p a m B r a m r a m r a v w3 c "
    "m wc b o o m m B r m r m r m q q q k m k m k n1 C m k n1 C",
    "p a a a a c b o w o F v p a a a a c B r w3 b o wc o r v r m m v B m p r a m r a m r a m a m w3 c m wc b o L o m p a m B a m r a m r a v r c "
    "v w3 b o wc o m m m m B r m r m r v q q q k m k m k n1 C m k n1 C",
    "p a a a a c b o w o F v p a a a a c B r w3 b o wc o r v r m m v B m p r a m r a m r a m a m w3 c m wc b o L o m p a m B r a m r a m r a v w3 c "
    "m wc b o o m m B r m r m r m q q q k m k m k n1 C m k n1 C",
]


def mr_init(A, pfx, exit_lbl, P):
    A.label(f"{pfx}_nb")
    A(f"v_readfirstlane_b32 {s(sT1)}, {v(84)}")
    A(f"v_readfirstlane_b32 {s(sT0)}, {v(85)}")
    A.nop(4)
    A(f"s_and_b32 {s(sT2)}, {s(sT0)}, {s(sT1)}")
    A(f"s_cbranch_scc1 {pfx}_nb_ok")
    A(f"buffer_load_dwordx2 {v(84, 2)}, off, {s(S_DBG, 4)}, 0 offset:{L.D_NB} sc1")
    A(f"s_sub_u32 {s(sBud)}, {s(sBud)}, 1")
    A(f"s_cbranch_scc1 {exit_lbl}")
    A("s_waitcnt vmcnt(0)")
    A(f"s_branch {pfx}_nb")
    A.label(f"{pfx}_nb_ok")
    A(f"s_and_b32 {s(sT1)}, {s(sT1)}, 1")
    A(f"s_lshl_b32 {s(sT1)}, {s(sT1)}, 13")
    A(f"s_add_u32 {s(sMRb)}, {s(sT1)}, {hex(L.MR + 65536)}")
    A(f"s_and_b32 {s(sT0)}, {s(sT0)}, 1")
    A(f"s_lshl_b32 {s(sT0)}, {s(sT0)}, 13")
    A(f"s_sub_u32 {s(sIncB)}, {s(sT0)}, {s(sT1)}")
    A(f"s_add_u32 {s(sIncB)}, {s(sIncB)}, 65536")

    def spread(dst, src):
        A(f"s_and_b32 {s(sT1)}, {s(src)}, 0x6000")
        A(f"s_add_u32 {s(dst)}, {s(src)}, {s(sT1)}")
    A(f"s_and_b32 {s(sMso)}, {s(sMst)}, 0x7fff")
    spread(sMso, sMso)
    A(f"s_and_b32 {s(sARo)}, {s(sAR)}, 0x7fff")
    spread(sARo, sARo)
    A(f"s_xor_b32 {s(sT2)}, {s(sMRb)}, 0x2000")
    A(f"s_lshl_b32 {s(sT0)}, {s(sWv)}, 14")
    A(f"s_lshl_b32 {s(sT1)}, {s(sT)}, 8")
    A(f"s_add_u32 {s(sT1)}, {s(sT1)}, {s(sT2)}")
    A(f"s_add_u32 {s(sPFa)}, {s(sT0)}, {s(sT1)}")
    A(f"v_writelane_b32 {v(vPF)}, {s(sPFa)}, 39")
    A(f"s_lshl_b32 {s(sT0)}, {s(sX)}, 15")
    A(f"s_add_u32 {s(sRSw)}, {s(sT0)}, {s(sT1)}")
    A(f"s_xor_b32 {s(sT0)}, {s(sT0)}, 0x8000")
    A(f"s_add_u32 {s(sRSr)}, {s(sT0)}, {s(sT2)}")
    A(f"s_lshl_b32 {s(sT0)}, {s(sX)}, 14")
    A(f"s_add_u32 {s(sT0)}, {s(sT0)}, {hex(L.STEP + L.STEP_STRIDE + L.S_MEMR)}")
    A(f"s_lshl_b32 {s(sT1)}, {s(sT)}, 3")
    A(f"s_add_u32 {s(sLSw)}, {s(sT0)}, {s(sT1)}")
    A(f"s_andn2_b32 {s(sT0)}, {s(sMst)}, 0x3ff")
    A(f"s_add_u32 {s(sT0)}, {s(sT0)}, {hex(2 * L.STEP_STRIDE)}")
    A(f"s_cmp_eq_u32 {s(sWv)}, 1")
    A(f"s_cselect_b32 {s(sLSw)}, {s(sT0)}, {s(sLSw)}")
    for x in (sZld, sZst, sOst, sOld):
        A(f"s_add_u32 {s(x)}, {s(x)}, {hex(3 * L.STEP_STRIDE)}")
    A(f"s_sub_u32 {s(sDM)}, {s(sDM)}, {hex(L.STEP_STRIDE)}")
    if P["on"]:
        A(f"s_andn2_b32 {s(sT0)}, {s(sRSw)}, 0x1f00")
        A(f"s_add_u32 {s(sT0)}, {s(sT0)}, 0x4000")
        A(f"s_cmp_eq_u32 {s(sWv)}, {TW}")
        A(f"s_cselect_b32 {s(sDM)}, {s(sT0)}, {s(sDM)}")
        A(f"s_lshl_b32 {s(sT0)}, {s(sX)}, 14")
        A(f"s_add_u32 {s(sT0)}, {s(sT0)}, {s(sMRb)}")
        A(f"s_sub_u32 {s(sRSw)}, {s(sT0)}, {65536 + 128}")
        A(f"s_cmp_eq_u32 {s(sT)}, 0")
        A(f"s_cselect_b32 {s(sRSr)}, {s(sRSw)}, {hex(OOB)}")
    for x in (sKM, sVMst):
        A(f"s_sub_u32 {s(x)}, {s(x)}, 65536")
    A(f"s_cmp_eq_u32 {s(sWv)}, {TW}")
    A(f"s_cselect_b32 {s(sDr)}, 0, {s(sDr)}")
    for x in (sM, sM0):
        A(f"s_mov_b32 {s(x)}, 0")
    A(f"s_cselect_b32 {s(sMp)}, 0, {s(sMp)}")
    A(f"s_mov_b32 {s(sStep)}, -1")
    A(f"s_memrealtime {s(sT0, 2)}")
    A(f"s_memtime {s(sClk, 2)}")
    A("s_waitcnt lgkmcnt(0)")
    A(f"s_mul_i32 {s(sT0)}, {s(sT0)}, 22")
    A(f"s_sub_u32 {s(sOff)}, {s(sClk)}, {s(sT0)}")
    A(f"s_sub_u32 {s(sOwn)}, {s(sT0)}, {hex(1 << 17)}")
    A(f"s_sub_u32 {s(sTM)}, {s(sOwn)}, {hex(1 << 17)}")
    if P.get("diag"):
        A("s_mov_b32 s57, s96")


def chain_loop(A, pfx, w, fast, exit_lbl, P):
    diag = P.get("diag", False)
    loc = "" if fast else " sc1"
    tim = w == TW
    names = []
    FC = {"m": S_CNT, "oi": S_CNT + 1, "z": S_CNT + 2, "o": S_CNT + 3}
    fine = P.get("fine", 0)

    def stamp(name, grp=0):
        if fine and name != "top" and not (grp & fine):
            return
        if not fine and name[0] == "_":
            return
        if diag and len(names) < 10:
            A(f"s_memtime {s(S_ST + 2 * len(names), 2)}")
            names.append(name)

    vmn = [0]
    vidx = {}

    def vm(txt, dst=None):
        A(txt)
        if dst is not None:
            vidx[dst] = vmn[0]
        vmn[0] += 1

    def ldx(dst, so, j, track=True):
        if j:
            A(f"s_xor_b32 {s(sT0)}, {s(so)}, {j << 10}")
        (vm if track else lambda t, d: A(t))(f"buffer_load_dwordx4 {v(dst, 4)}, {v(vG16)}, {s(S_WS, 4)}, {s(sT0 if j else so)} offen sc1", dst)

    def wt(*bs):
        A(f"s_waitcnt vmcnt({vmn[0] - 1 - max(vidx[b] for b in bs)})")

    lq = []

    def ds(txt, tag=None):
        A(txt)
        lq.append(tag)

    def lw(*tags):
        ix = [i for i, x in enumerate(lq) if x in tags]
        if ix:
            n = min(15, len(lq) - 1 - max(ix))
            A(f"s_waitcnt lgkmcnt({n})")
            del lq[:len(lq) - n]

    def lw0():
        A("s_waitcnt lgkmcnt(0)")
        lq.clear()

    def budget(name):
        A(f"s_sub_u32 {s(sBud)}, {s(sBud)}, 1")
        A(f"s_cbranch_scc1 {exit_lbl}")
        if diag and name:
            A(f"s_add_u32 {s(FC[name])}, {s(FC[name])}, 1")

    def exact(regs, lbl):
        A(f"v_max_u32 {v(t0)}, {v(regs[0])}, {v(regs[1])}")
        for i in range(2, len(regs), 2):
            A(f"v_max3_u32 {v(t0)}, {v(t0)}, {v(regs[i])}, {v(regs[i + 1])}")
        A(f"v_cmp_eq_u32 vcc, -1, {v(t0)}")
        A(f"s_cbranch_vccnz {lbl}")

    f16 = P.get("f16", 0)

    def smf(d, a_, b_, fmt="bf16"):
        A(f"v_smfmac_f32_16x16x64_{fmt} {v(d, 4)}, {v(a_, 4)}, {r(b_, 8)}, {v(IDX)}")

    def mf(d, a_, b_, c_):
        A(f"v_mfma_f32_16x16x32_bf16 {v(d, 4)}, {v(a_, 4)}, {v(b_, 4)}, {v(c_, 4) if c_ is not None else 0}")

    def cvt(d, a_, fmt="bf16"):
        return f"v_cvt_pk_{fmt}_f32 {v(d)}, {v(a_)}, {v(a_ + 1)}"

    def do(f):
        A(f) if isinstance(f, str) else f()

    def ring(x):
        return [f"s_add_u32 {s(x)}, {s(x)}, {hex(L.STEP_STRIDE)}", f"s_bitset0_b32 {s(x)}, 20"]

    def addops(j):
        if f16:
            return [f"v_pk_add_f16 {v(FR(j, 0) + i)}, {v(FR(j, 0) + i)}, {v(RR + 4 * j + i)}" for i in range(4)]
        o = []
        for i in range(4):
            a_, b_ = RR + 4 * j + i, FR(j, 0) + i
            o.append(f"v_fma_mix_f32 {v(TM + (i & 1))}, {v(a_)}, 1.0, {v(b_)} op_sel_hi:[1,0,1]")
            o.append(f"v_fma_mix_f32 {v(a_)}, {v(a_)}, 1.0, {v(b_)} op_sel:[1,0,1] op_sel_hi:[1,0,1]")
            o.append(f"v_cvt_pk_bf16_f32 {v(b_)}, {v(TM + (i & 1))}, {v(a_)}")
        return [o[0], o[1], o[3], o[4], o[2], o[6], o[5], o[7], o[9], o[10], o[8], o[11]]

    shw = lambda j: f"ds_write_b128 {v(vG16)}, {v(FR(j, 0), 4)} offset:{SH + j * 4096 + w * 1024}"
    kreg = [RR + 4 * j for j in range(4)] + [16 + 4 * j for j in range(4)]
    KQ = lambda tile, kk: kreg[2 * kk + tile]

    def kt(i):
        ds(f"ds_read_b128 {v(kreg[i], 4)}, {v(vG16)} offset:{KT + (i & 1) * 4096 + (i >> 1) * 1024}", f"k{i}")

    sal = []

    def fil(n):
        while n and sal:
            A(sal.pop(0))
            n -= 1
        A.nop(n)

    qk, vl, nk = [], [], [0]

    def mm(n, vonly=False):
        for _ in range(n):
            if qk and not vonly:
                j, dq, m = qk.pop(0)
                lw((j, dq))
                smf(KA if m else QA, FR(j, dq), 256 + 128 * m + (dq * 4 + j) * 8, "f16" if f16 else "bf16")
            elif vl:
                j, dq = vl.pop(0)
                lw((j, dq))
                smf(VA, FR(j, dq), WV + (j * 4 + dq) * 8, "f16" if f16 else "bf16")
            else:
                continue
            for _ in range(2):
                if sal:
                    do(sal.pop(0))

    rsw = f"buffer_store_dword {v(t1)}, off, {s(S_WS, 4)}, {s(sRSw)} offset:132 sc1"
    on = P["on"]
    late_post = lambda d, x: f"v_and_b32 {v(d)}, 0x7fffffff, {v(x)}\n s_mov_b64 exec, 1\n buffer_atomic_smax {v(d)}, off, {s(S_WS, 4)}, {s(sRSw)} offset:4 sc1\n s_mov_b64 exec, -1"

    def kvst(f):
        if f == P["pk"]:
            vm(f"buffer_store_dwordx2 {v(ZP, 2)}, {v(vMst)}, {s(S_WS, 4)}, {s(sKM)} offen sc1")
        if f == P["pv"]:
            vm(f"buffer_store_dword {v(VMq)}, {v(vVMst)}, {s(S_WS, 4)}, {s(sVMst)} offen sc1")

    pfl = f"buffer_load_dword {v(vPFd)}, {v(vPF)}, {s(S_WS, 4)}, 0 offen sc1"

    def pause(nm):
        A(".p2align 3")
        A.label(f"{pfx}_{nm}1")
        A(f"s_sub_u32 {s(sRem)}, {s(sRem)}, 28")
        A(f"s_cbranch_scc0 {pfx}_{nm}1")

    A(".p2align 6")
    A.label(f"{pfx}_top")
    A("s_barrier")
    stamp("top")
    sal += ring(sZld) + ring(sZst) + ring(sOst) + ring(sOld) + ring(sDM) * (not (tim and on)) + [f"s_add_u32 {s(sStep)}, {s(sStep)}, 1"]
    if on:
        sal += [f"s_add_u32 {s(x)}, {s(x)}, 128" for x in (sRSw, sRSr)[:1 + tim]]
    sal += [f"s_add_u32 {s(sMst)}, {s(sMRb)}, {s(sMso)}"] if w < 2 else ring(sMst)
    zl = [f"v_mov_b32 {v(QA + i)}, 0" for i in range(12)]
    for k, x in enumerate(ORD[P["od"]].split()):
        j = int(x[1])
        ldx(FR(j, 0) if x[0] == "L" else RR + 4 * j, sAL if x[0] == "L" else sAR, j)
        if k < 7:
            n = P["sp"]
            if k >= 2 and len(zl) > P["zn"]:
                A(zl.pop(0))
                A(zl.pop(0))
                n -= 4
            fil(max(0, n))
    stamp("_iss", 48)
    while sal:
        A(sal.pop(0))
    if tim:
        A(f"s_memtime {s(sClk, 2)}")
        for i in range(11):
            A(f"s_memrealtime {s(sRT + 2 * i, 2)}")
        A(f"s_sub_u32 {s(sT0)}, {s(sM)}, {s(sM0)}")
        A(f"s_lshr_b32 {s(sT1)}, {s(sStep)}, 1")
        A(f"s_min_u32 {s(sT1)}, {s(sT1)}, {P['kof']}")
        A(f"s_ashr_i32 {s(sT0)}, {s(sT0)}, {s(sT1)}")
        A(f"s_add_u32 {s(sOff)}, {s(sOff)}, {s(sT0)}")
        A(f"s_sub_u32 {s(sT0)}, {s(sM0)}, {s(sMp)}")
        A(f"s_sub_u32 {s(sT0)}, {s(sT0)}, {s(sDr)}")
        A(f"s_ashr_i32 {s(sT0)}, {s(sT0)}, {P['ema']}")
        A(f"s_add_u32 {s(sDr)}, {s(sDr)}, {s(sT0)}")
        A(f"s_mov_b32 {s(sMp)}, {s(sM0)}")
        A(f"s_mov_b32 {s(sBase)}, {s(sOwn)}")
        A(f"v_mov_b32 {v(t0)}, {s(sOff)}")
        A(f"s_add_u32 {s(sT0)}, {s(sTM)}, {P['nom']}")
        if on:
            A(f"s_bitset0_b32 {s(sT0)}, 31")
        A(f"v_mov_b32 {v(t1)}, {s(sT0)}")
        A("s_waitcnt lgkmcnt(0)")
        ds(f"ds_write_b32 {v(vG16)}, {v(t0)} offset:{OFFL}")
        for i in range(1, 11):
            A(f"s_add_u32 {s(sRT)}, {s(sRT)}, {s(sRT + 2 * i)}")
            if len(zl) > P["zt"]:
                A(zl.pop(0))
        A(f"s_lshl1_add_u32 {s(sRT)}, {s(sRT)}, {s(sOff)}")
        A(f"s_sub_u32 {s(sM)}, {s(sClk)}, {s(sRT)}")
        A(f"s_add_u32 {s(sT0)}, {s(sM)}, {s(sDr)}")
        A(f"v_mov_b32 {v(t0)}, {s(sT0)}")
        vm(f"buffer_store_dwordx2 {v(t0, 2)}, off, {s(S_WS, 4)}, " + (f"{s(sRSr)} sc1" if on else f"{s(sRSw)} offset:128 sc1"))
    else:
        A.nop(P["zs"])
    kvst(-1)
    for x in zl:
        A(x)
    stamp("_wm", 48)
    if fine & 128:
        for k in range(8):
            A(f"s_waitcnt vmcnt({7 - k})")
            stamp(f"_a{k}", 128)
    prog = MP[P["mp"]].split()
    prog.append("G")
    for x, k in (("F", P["pF"]), ("L", P["pL"]), ("G", P["pG"] if w == 2 and not P.get("apl") else 99)):
        if k:
            prog.remove(x)
            if k < 40:
                prog.insert([i for i, y in enumerate(prog) if y in "omqv"][k - 1] + 1, x)
    prog = [x[0] if x[0] == "w" else x for x in prog if x[0] != "w" or int(x[1:] or "f", 16) >> w & 1]
    own, rdq, wrt, wdone, chk = [], [], [], [], []
    j, nb = -1, 0
    fm = "f16" if f16 else "bf16"
    def nxt(x, pop):
        q_ = vl if x == "v" else own if x == "o" else qk
        i = [y[2] for y in q_].index(0) if x == "q" else 0
        return q_.pop(i) if pop else q_[i] if q_ else None

    cq = [cvt(TM, QA), cvt(TM + 1, QA + 2)]
    for k, x in enumerate(prog):
        if x in "acC" and k + 1 < len(prog) and prog[k + 1] in "mqv":
            lw(nxt(prog[k + 1], False)[:2])
        if x == "C":
            A(cq.pop(0))
        elif x == "p":
            j += 1
            wt(FR(j, 0), RR + 4 * j)
            stamp(f"_p{j}", 32)
            ao = addops(j)
        elif x == "a":
            for _ in range(1 if f16 else 3):
                A(ao.pop(0))
        elif x == "c":
            assert not ao
            A(f"v_cmp_u_f16 vcc, {v(FR(j, 0))}, {v(FR(j, 0) + 2)}" if f16 else f"v_cmp_u_f32 vcc, {v(RR + 4 * j)}, {v(RR + 4 * j + 2)}")
        elif x == "w":
            nw = len(wdone)
            assert nw < j or not ao
            ds(shw(nw), ("w", nw))
            wdone.append(nw in chk)
            wrt.append(nw)
        elif x == "h":
            hf = int(not ao)
            ds(f"ds_write_b64 {v(vG16)}, {v(FR(j, 0) + 2 * hf, 2)} offset:{SH + j * 4096 + w * 1024 + 8 * hf}", ("w", j))
            if hf:
                wdone.append(False)
                wrt.append(j)
        elif x == "b":
            A(f"s_cbranch_vccnz {pfx}_m{j}_f")
            A.label(f"{pfx}_m{j}")
            own += [(j, 0, 0), (j, 0, 1)]
            vl.append((j, 0))
            vl.sort()
            chk.append(j)
        elif x[0] == "B":
            js = wrt[:int(x[1:] or 1)]
            del wrt[:len(js)]
            assert js[-1] in chk
            lw(("w", js[-1]))
            stamp(f"_w{js[-1]}", 2)
            A("s_barrier")
            stamp(f"_R{js[-1]}", 2)
            rdq += [(jj, dq) for jj in js for dq in range(1, 4)]
            if js[-1] == 3:
                assert not sal
                sal += [f"s_memtime {s(sClk, 2)}"] * tim + [f"s_add_u32 {s(sAR)}, {s(sMRb)}, {s(sARo)}"] + ring(sAL)
                sal += [f"s_cmp_eq_u32 {s(sStep)}, 30\n s_cselect_b32 {s(sT0)}, {s(sIncB)}, 0x10000", f"s_add_u32 {s(sMRb)}, {s(sMRb)}, {s(sT0)}",
                        f"s_sub_u32 {s(sInc)}, 0x20000, {s(sT0)}", f"s_add_u32 {s(sPFa)}, {s(sPFa)}, {s(sInc)}"]
        elif x == "r":
            jj, dq = rdq.pop(0)
            ds(f"ds_read_b128 {v(FR(jj, dq), 4)}, {v(vG16)} offset:{SH + jj * 4096 + (w ^ dq) * 1024}", (jj, dq))
            qk += [(jj, dq, 0), (jj, dq, 1)]
            vl.append((jj, dq))
            vl.sort()
        elif x == "L":
            vm(f"buffer_load_dwordx4 {v(VT_, 4)}, {v(vG16)}, {s(S_WS, 4)}, {s(sVT)} offen sc1", VT_)
            sal.insert(0, f"s_add_u32 {s(sVT)}, {s(sVT)}, {hex(32 * 8192)}")
        elif x == "F":
            vm(pfl, vPFd)
        elif x == "G":
            vm(f"buffer_store_dword {v(ONES)}, off, {s(S_WS, 4)}, {s(sPRG)} sc1")
            sal.insert(0, f"s_add_u32 {s(sPRG)}, {s(sPRG)}, 4")
        elif x == "k":
            kt(nk[0])
            nk[0] += 1
        elif x[0] == "n":
            fil(int(x[1:]))
        else:
            jj, dq, *m = nxt(x, True)
            lw((jj, dq))
            if x == "v":
                smf(VA, FR(jj, dq), WV + (jj * 4 + dq) * 8, fm)
            else:
                smf(KA if m[0] else QA, FR(jj, dq), 256 + 128 * m[0] + (dq * 4 + jj) * 8, fm)
            n = 2
            for y in prog[k + 1:]:
                if y in "omqv":
                    n -= y != "o" and (nxt(y, False) or (0, 0))[:2] in lq
                    break
                n -= 2 if y[0] == "B" else y not in "acC"
            for _ in range(n):
                if sal:
                    do(sal.pop(0))
    assert j == 3 and not (own or qk or rdq or wrt or sal)
    stamp("_qk", 2)
    mm(1)
    n = P["tn"]
    while nk[0] < 4:
        kt(nk[0])
        nk[0] += 1
        n -= 1
    A.nop(n - len(cq))
    for x in cq:
        A(x)
    A(cvt(TM + 2, KA))
    A(cvt(TM + 3, KA + 2))
    A("s_mov_b32 vcc_lo, 0xcccccccc")
    A("s_mov_b32 vcc_hi, 0xcccccccc")
    mf(KA, TM, FW, None)
    A(f"v_add_u32 {v(vPF)}, {v(vPF)}, {v(vPFi)}")
    if tim:
        lw0()
        A(f"s_sub_u32 {s(sOwn)}, {s(sClk)}, {s(sOff)}")
        mm(1)
        A(f"s_sub_u32 {s(sT0)}, {s(sOwn)}, {s(sTM)}")
        A(f"s_sub_u32 {s(sRem)}, {P['nom']}, {s(sT0)}")
        A(f"s_max_i32 {s(sRem)}, {s(sRem)}, 0")
    else:
        A(f"v_writelane_b32 {v(vPF)}, {s(sPFa)}, 39")
        A.nop(1)
        mm(1)
        A.nop(3)
    A(f"s_cmp_eq_u32 {s(sStep)}, 63")
    A(cvt(ZP, KA))
    A(cvt(ZP + 1, KA + 2))
    vm(f"buffer_store_dwordx2 {v(ZP, 2)}, {v(vZst)}, {s(S_WS, 4)}, {s(sZst)} offen{loc}")
    stamp("Zst", 3)
    A(f"s_cbranch_scc1 {pfx}_last")
    vlast = list(vl)
    ds(f"ds_write_b64 {v(vZst)}, {v(ZP, 2)} offset:{ZO + w * 512}")
    if tim:
        sal += [f"s_mov_b32 s82, {s(sT0)}"] * diag + [f"s_cmp_gt_u32 {s(sT0)}, {P['nom'] + P['tol']}", f"s_cselect_b32 {s(sT1)}, {P['pen']}, {s(sRem)}",
                f"s_add_u32 {s(sStp)}, {s(sT1)}, {s(sOwn)}", f"s_andn2_b32 {s(sNo)}, {s(sRSw)}, 0x1f00\n" * (not on) + f" v_mov_b32 {v(t0)}, {s(sM)}",
                f"s_add_u32 {s(sNo)}, {s(sNo)}, 0x4000\n" * (not on) + f" v_mov_b32 {v(t1)}, {s(sStp)}"]
    mm(P["nA"] - tim * P["nAt"])
    if tim:
        assert not sal
        pause("b2")
        mm(P["nAt"])
    assert all(x[0] for x in vl)
    lw0()
    A("s_barrier")
    stamp("_B2", 1)
    S0, S1, SM = 0, 4, VA
    SP = [(QA, KA, TM), (S0, S1, SM)]
    PB, PM, DEN, OA = TM, 64, 16, 8
    OC = 80

    def zld(track=True, js=(0, 1)):
        for j in js:
            (vm if track else lambda t, d: A(t))(f"buffer_load_dwordx4 {v(8 + 4 * j, 4)}, {v(vG16)}, {s(S_WS, 4)}, {s(sZld)} offen offset:{j * 1024} sc1", 8 + 4 * j)

    def zown(js=(0, 1)):
        for j in js:
            ds(f"ds_read_b128 {v(4 * j, 4)}, {v(vG16)} offset:{ZO + 1024 * j}", f"z{j}")

    def sc(kk):
        d, c = SP[kk >> 1], SP[kk == 3] if kk else (None,) * 3
        return [lambda: [lw(f"z{kk}", f"k{2 * kk}"), mf(d[0], KQ(0, kk), 4 * kk, c[0])],
                lambda: [lw(f"k{2 * kk + 1}"), mf(d[1], KQ(1, kk), 4 * kk, c[1])],
                lambda: mf(d[2], 4 * kk, 4 * kk, c[2])]
    vfold = [f"v_permlane32_swap_b32 {v(VA)}, {v(VA + 2)}", f"v_permlane32_swap_b32 {v(VA + 1)}, {v(VA + 3)}",
             f"v_pk_add_f32 {v(VA, 2)}, {v(VA, 2)}, {v(VA + 2, 2)}", cvt(VMq, VA)]
    wbuf = [32, 40, 48, 56, 64, 72, 88]
    wq = [(f, hf) for f in range(16) for hf in range(2)]

    def wline(f, hf):
        return f"ds_read_b128 {v(wbuf[f % 7] + 4 * hf, 4)}, {v(vWO)} offset:{f * 2048 + hf * 1024}"

    def wrd(n=1):
        for _ in range(n):
            f, hf = wq.pop(0)
            ds(wline(f, hf), f)

    LS, LA = 66, vRS
    lsa = f"s_andn2_b32 {s(sT3)}, {s(sLSw)}, 0xff\n v_bfe_u32 {v(LA)}, {v(vG16)}, 1, 8"
    lsl = f"buffer_load_dwordx2 {v(LS, 2)}, {v(LA)}, {s(S_WS, 4)}, {s(sT3)} offen sc1"
    if tim:
        vx = [lambda: vm(f"buffer_store_dwordx2 {v(t0, 2)}, off, {s(S_WS, 4)}, {s(sLSw)}{loc}"),
              lambda: [A(f"s_cmp_gt_u32 {s(sT0)}, {P['nom'] + P['tol']}"), A(f"s_cbranch_scc1 {pfx}_rp"), A.label(f"{pfx}_rq")],
              f"v_writelane_b32 {v(vPF)}, {s(sPFa)}, 39", lambda: [wt(vPFd), A(lsa)]]
    else:
        vx = [lambda: [wt(vPFd), A(f"v_cmp_eq_u32 {s(sNan, 2)}, 0, {v(vPFd)}")], f"s_and_b32 {s(sKV)}, {s(sNan + 1)}, 0x3f00"]
    zown((0,))
    nv = len(vl)
    s01 = sc(0) + sc(1)
    vf = list(vfold)
    for i in range(nv + 6):
        mm(1) if i < nv else s01[i - nv]()
        if i - P["pZ"] in (0, 1):
            zld(True, (i - P["pZ"],))
            stamp("_zl", 1 if i == P["pZ"] else 0)
        elif i == 0:
            zown((1,))
        elif nk[0] < 8 and (1, nk[0] - 4) not in vl:
            kt(nk[0])
            nk[0] += 1
        if i >= nv + 2:
            A(vf.pop(0))
        elif vx:
            do(vx.pop(0))
    assert nk[0] == 8 and not vx and not vf
    if P["pZ"] >= nv + 6:
        A.nop(4 * (P["pZ"] - nv - 6))
        zld()
        stamp("_zl", 1)
    assert P["nw0"] <= 8
    wrd(P["nw0"])
    A(f"v_mov_b32 {v(PM + 1)}, 0")
    if tim:
        vm(lsl, LS)
    lw("k7")
    stamp("_own", 1)
    so = [2, 0, 1] if P["smf"] else [0, 1, 2]
    wt(8)
    stamp("z0", 5)
    f = sc(2)
    f[so[0]]()
    f[so[1]]()
    A(f"v_cmp_u_f32 {s(sNan, 2)}, {v(8)}, {v(10)}")
    f[so[2]]()
    wt(12)
    stamp("_z1", 5)
    f = sc(3)
    f[so[0]]()
    f[so[1]]()
    A(f"v_cmp_u_f32 {s(sT0, 2)}, {v(12)}, {v(14)}")
    f[so[2]]()
    A(f"s_or_b64 {s(sNan, 2)}, {s(sNan, 2)}, {s(sT0, 2)}")
    A(f"s_cbranch_scc1 {pfx}_z_f")
    A.label(f"{pfx}_z")

    def soft(main):
        qp = "row_mask:0xf bank_mask:0xf"

        def ls(k):
            if tim and main and k == P["pl"]:
                A(f"s_buffer_load_dword {s(sNo)}, {s(S_WS, 4)}, {s(sDM if on else sNo)}")
        cnd = lambda b: f"v_cndmask_b32_dpp {v(b)}, {v(b + 2)}, {v(b)}, vcc quad_perm:[2,3,2,3] {qp}"
        ex = lambda b: f"v_exp_f32 {v(b)}, {v(b)}"
        mul = lambda b: f"v_mul_f32 {v(b)}, {s(sCc)}, {v(b)}"
        dup = lambda b: f"v_mov_b32_dpp {v(b + 1)}, {v(b)} quad_perm:[0,1,0,1] {qp}"
        m16 = lambda d, a_, c: f"v_mfma_f32_16x16x16_bf16 {v(d, 4)}, {v(a_, 2)}, {v(PM, 2)}, {v(d, 4) if c else 0}"
        zo = lambda i: f"v_mov_b32 {v(OC + i)}, 0"
        if P["smf"]:
            for x in [mul(SM), mul(SM + 1), ex(SM), ex(SM + 1), cnd(S0), cvt(PM, SM), cnd(S0 + 1), ex(S0), m16(DEN, ONES, 0), lambda: ls(0), ex(S0 + 1),
                      cnd(S1), m16(OA, VMq, 0), lambda: ls(1), cnd(S1 + 1), ex(S1), ex(S1 + 1), cvt(PB, S0), cvt(PB + 2, S1), zo(0), dup(PB), dup(PB + 2), zo(1), zo(2),
                      lambda: mf(DEN, ONES, PB, DEN), lambda: ls(2), zo(3), zo(4), lambda: mf(OA, VT_, PB, OA), lambda: ls(3), "s_nop 1", zo(5), zo(6), zo(7)]:
                do(x)
        else:
            for x in [cnd(S0), cnd(S0 + 1), ex(S0), ex(S0 + 1), cnd(S1), cnd(S1 + 1), ex(S1), ex(S1 + 1), cvt(PB, S0), cvt(PB + 2, S1), mul(SM), dup(PB), dup(PB + 2),
                      mul(SM + 1), ex(SM), lambda: mf(DEN, ONES, PB, None), lambda: ls(0), ex(SM + 1), lambda: mf(OA, VT_, PB, None), lambda: ls(1), cvt(PM, SM),
                      zo(0), zo(1), m16(DEN, ONES, 1), lambda: ls(2), zo(2), zo(3), m16(OA, VMq, 1), lambda: ls(3), "s_nop 0", zo(4), zo(5), zo(6), zo(7)]:
                do(x)
        A(f"v_rcp_f32 {v(t0)}, {v(DEN)}")
        A(f"v_subrev_u32 {v(t1)}, 0x21800000, {v(DEN)}")
        A(f"v_cmp_lt_u32 vcc, 0x3c000000, {v(t1)}")
        A(f"v_pk_mul_f32 {v(OA, 2)}, {v(OA, 2)}, {v(t0, 2)} op_sel_hi:[1,0]")
        A(f"v_pk_mul_f32 {v(OA + 2, 2)}, {v(OA + 2, 2)}, {v(t0, 2)} op_sel_hi:[1,0]")
        A(f"s_and_b32 {s(sT0)}, vcc_lo, 0xcccc")
        ls(4)
        A(cvt(t0, OA))
        A(cvt(t1, OA + 2))

    soft(True)
    A(f"s_cbranch_scc1 {pfx}_sm_f")
    A.label(f"{pfx}_ost")
    vm(f"buffer_store_dwordx2 {v(t0, 2)}, {v(vOst)}, {s(S_WS, 4)}, {s(sOst)} offen{loc}")
    stamp("Ost", 12)

    def timer(nm, reg, fin, ex):
        A.label(f"{pfx}_{nm}0")
        A(f"s_memtime {s(sClk, 2)}")
        on = nm == "tm" and P["on"]
        if on:
            A(f"v_readlane_b32 {s(sRT)}, {v(reg - 1)}, 32")
            A(f"v_readlane_b32 {s(sRT + 1)}, {v(reg)}, 32")
            A(f"v_readlane_b32 {s(sRT + 5)}, {v(reg)}, 0")
            A.label(f"{pfx}_{nm}5")
            A(f"s_add_u32 {s(sT2)}, {s(sOff)}, {s(sBase)}")
            A(f"s_sub_u32 {s(sT0)}, {s(sRT + 1)}, {s(sRT)}")
            A(f"s_sub_u32 {s(sT1)}, {s(sRT + 5)}, {s(sBase)}")
            A(f"s_sub_u32 {s(sT0)}, {s(sT0)}, {s(sNan)}")
            A(f"s_bitset0_b32 {s(sT1)}, 31")
            A(f"s_bitset0_b32 {s(sT0)}, 31")
            A("s_waitcnt lgkmcnt(0)")
        else:
            if nm == "tm":
                A(f"v_sub_u32 {v(reg)}, {v(reg)}, {v(reg - 1)}")
            else:
                A(f"v_readlane_b32 {s(sM0)}, {v(reg - 1)}, 0")
            A(f"v_subrev_u32 {v(reg)}, {s(sNan if nm == 'tm' else sBase)}, {v(reg)}")
            A(f"s_add_u32 {s(sT2)}, {s(sOff)}, {s(sBase)}")
            for k in (8, 4, 2, 1):
                ex(1 if k == 8 else 2)
                A(f"v_max_u32_dpp {v(reg)}, {v(reg)}, {v(reg)} row_ror:{k} row_mask:0xf bank_mask:0xf")
            A("s_waitcnt lgkmcnt(0)")
            A(f"v_readlane_b32 {s(sT0)}, {v(reg)}, 0")
            A(f"v_readlane_b32 {s(sT1)}, {v(reg)}, 16")
        A(f"s_sub_u32 {s(sT2)}, {s(sClk)}, {s(sT2)}")
        A(f"s_max_u32 {s(sT0)}, {s(sT0)}, {s(sT1)}")
        A(f"s_add_u32 {s(sT3)}, {s(sT2)}, 1536")
        A(f"s_cmp_gt_u32 {s(sT0)}, {s(sT3)}")
        A(f"s_cbranch_scc1 {pfx}_{nm}2")
        A.label(f"{pfx}_{nm}3")
        fin()
        A(f"s_sub_u32 {s(sRem)}, {s(sT0)}, {s(sT2)}")
        if diag:
            A(f"s_mov_b32 s{8 if nm == 'tm' else 10}, {s(sRem)}")
        if on:
            A(f"s_max_i32 {s(sRem)}, {s(sRem)}, {s(sNo)}")
            A(f"s_add_u32 {s(sT1)}, {s(sRem)}, {P['tl']}")
            A(f"s_cmp_gt_u32 {s(sT1)}, {P['tl'] + P['th']}")
            A(f"s_cbranch_scc1 {pfx}_{nm}4")
        A(f"s_max_i32 {s(sRem)}, {s(sRem)}, 0")
        pause(nm)

    def repoll(nm, adr, ldi):
        A.label(f"{pfx}_{nm}2")
        A(f"s_mov_b32 {s(sT0)}, {s(sT2)}")
        if nm == "to":
            A(f"s_mov_b32 {s(sM0)}, {s(sM)}")
        elif P["on"]:
            A(f"s_add_u32 {s(sTM)}, {s(sT2)}, {s(sBase)}")
            A(f"s_mov_b32 {s(sRem)}, 0")
        A(f"s_cmp_gt_u32 {s(sT2)}, {hex(1 << 18)}")
        A(f"s_cbranch_scc1 {pfx}_{nm}{1 if nm == 'tm' and P['on'] else 3}")
        if nm == "tm" and P["on"]:
            A.label(f"{pfx}_{nm}4")
            A(f"s_cmp_eq_u32 {s(sNo)}, 0")
            A(f"s_cbranch_scc1 {pfx}_{nm}6")
            A(f"s_mov_b32 {s(sNo)}, 0")
            A(f"s_xor_b32 {s(sT0)}, {s(sRSw)}, 0x4000")
            A(f"s_buffer_load_dwordx2 {s(sRT, 2)}, {s(S_WS, 4)}, {s(sT0)}")
            A(f"s_buffer_load_dwordx2 {s(sRT + 4, 2)}, {s(S_WS, 4)}, {s(sRSw)}")
            if diag:
                A("s_add_u32 s9, s9, 1")
            A("s_waitcnt lgkmcnt(0)")
            A(f"s_memtime {s(sClk, 2)}")
            A(f"s_branch {pfx}_{nm}5")
            A.label(f"{pfx}_{nm}6")
        A(adr)
        A(ldi)
        budget(None)
        if diag:
            A(f"s_add_u32 s9, s9, {1 if nm == 'tm' else 65536}")
        A("s_waitcnt vmcnt(0)")
        A(f"s_branch {pfx}_{nm}0")

    SN = 24
    sn = [f"v_mov_b32 {v(SN + i)}, -1" for i in range(4)]
    rst = lambda: vm(f"buffer_store_dwordx4 {v(SN, 4)}, {v(vG16)}, {s(S_WS, 4)}, {s(sDM)} offen{loc}")
    if tim:
        wt(LS)
        lq.clear()
        timer("to", LS + 1, lambda: [A(f"s_sub_u32 {s(sT1)}, {s(sNo)}, {s(sBase)}"), A(f"s_cmp_le_u32 {s(sT1)}, {s(sT3)}"),
                                      A(f"s_cselect_b32 {s(sT1)}, {s(sT1)}, 0"), A(f"s_max_u32 {s(sT0)}, {s(sT0)}, {s(sT1)}"),
                                      A(f"s_add_u32 {s(sML)}, {s(sT0)}, {P['cL']}"), A(f"s_add_u32 {s(sT0)}, {s(sT0)}, {P['cO']}")], A.nop)
    else:
        for x in sn:
            A(x)
        wrd(P["nw1"])
        A.nop(P["dr"])
        rst()
        if w == 1:
            vm(f"buffer_store_dwordx4 {v(SN, 4)}, {v(vG16)}, {s(S_WS, 4)}, {s(sLSw)} offen{loc}")
    stamp("_BOw", 8)
    A("s_barrier")
    stamp("Old", 8)
    rsa = f"v_and_b32 {v(t1)}, 0x1f0, {v(vG16)}\n v_lshlrev_b32 {v(t1)}, 4, {v(t1)}"
    if P["on"]:
        rsa = f"v_and_b32 {v(t1)}, 0x200, {v(vG16)}\n v_lshlrev_b32 {v(t1)}, 5, {v(t1)}\n v_xor_b32 {v(t1)}, {s(sRSw)}, {v(t1)}"
    rsl = f"buffer_load_dwordx2 {v(VT_, 2)}, {v(t1)}, {s(S_WS, 4)}, " + ("0 offen sc1" if on else f"{s(sRSr)} offen offset:128 sc1")
    if tim or w == 1:
        sal += ring(sLSw)
    sal += [f"s_add_u32 {s(x)}, {s(x)}, 65536" for x in (sKM, sVMst)]
    if tim:
        sal.append(f"s_add_u32 {s(sDM if on else sRSw)}, {s(sDM if on else sRSw)}, {s(sInc)}")
    for j in range(8):
        ldx(4 * j, sOld, j)
        if j < 7:
            n = min(2, len(wq) - 18)
            wrd(n)
            fil(max(0, P["spo"] - P["spr"] * n))
    while sal:
        A(sal.pop(0))
    if P["on"]:
        vm(f"buffer_load_dword {v(VT_ + 2)}, off, {s(S_WS, 4)}, {s(sOld)} sc1")
    if tim:
        A(rsa)
        if P["pr"] < 0:
            vm(rsl, "rs")
    stamp("_oi", 8)
    def oprod(f):
        lw(f)
        smf(OC + 4 * (f & 1), 4 * (f >> 1), wbuf[f % 7])
        if f < 9:
            wrd(2)
        if tim and f == P["pr"]:
            vm(rsl, "rs")
        kvst(f)

    late = lambda j: 0 < j < P["nC"] and j < P["nL"]
    for j in range(8):
        lw(2 * j - 1 if late(j) else 2 * j)
        wt(4 * j)
        stamp(f"o{j}" if j == 7 else f"_o{j}", 8 if j in (0, 7) else 64)
        if j < P["nC"]:
            A(f"v_cmp_u_f32 vcc, {v(4 * j)}, {v(4 * j + 2)}")
            if late(j):
                oprod(2 * j - 1)
            A(f"s_cbranch_vccnz {pfx}_o{j}_f")
            A.label(f"{pfx}_o{j}")
        oprod(2 * j)
        if not late(j + 1):
            oprod(2 * j + 1)
    A.nop(P.get("x3n", 5))
    x3o = X3 + (w >> 1) * 1024 + (w & 1) * 8
    A(cvt(OC, OC) + "\n" + cvt(OC + 1, OC + 2))
    A(f"ds_write_b64 {v(vG16)}, {v(OC, 2)} offset:{x3o}")
    A(cvt(OC + 2, OC + 4) + "\n" + cvt(OC + 3, OC + 6))
    A(f"ds_write_b64 {v(vG16)}, {v(OC + 2, 2)} offset:{x3o + 2048}")
    if P["nC"] < 8:
        A(f"v_cmp_u_f32 vcc, {v(OC + 4)}, {v(OC + 5)}")
        A(f"v_cmp_u_f32 {s(sNan, 2)}, {v(OC + 6)}, {v(OC + 7)}")
        A(f"s_or_b64 vcc, vcc, {s(sNan, 2)}")
        A(f"s_cbranch_scc1 {pfx}_o_f")
        A.label(f"{pfx}_o_ok")
    kvst(17)
    lw0()
    stamp("_B3w", 8)
    A("s_barrier")
    stamp("_B3", 24)
    A(f"ds_read_b128 {v(72, 4)}, {v(vG16)} offset:{X3 + (w & 1) * 2048}")
    A(f"ds_read_b128 {v(76, 4)}, {v(vG16)} offset:{X3 + (w & 1) * 2048 + 1024}")
    if not tim:
        A(f"s_mov_b32 m0, {KT + w * 2048}")
        A(f"s_cmp_lg_u32 {s(sKV)}, 0")
    A("s_waitcnt lgkmcnt(1)")
    mf(64, 72, FK, None)
    A("s_waitcnt lgkmcnt(0)")
    mf(64, 76, FK, 64)
    A.nop(8)
    A(cvt(68, 64, "f16"))
    A(cvt(69, 66, "f16"))
    vm(f"buffer_store_dwordx2 {v(68, 2)}, {v(vMs)}, {s(S_WS, 4)}, {s(sMst)} offen{' sc1' if w < 2 else loc}")
    stamp("Mst", 24)
    kvst(16)
    if tim:
        A(f"s_sub_u32 {s(sNan)}, {s(sBase)}, {s(sM0)}")
        A(f"s_sub_u32 {s(sNan)}, {s(sNan)}, {s(sDr)}")
        if P["on"]:
            A(f"s_brev_b32 {s(sNo)}, 1")
        wt("rs")
        timer("tm", VT_ + 1, lambda: [A(f"s_add_u32 {s(sT0)}, {s(sT0)}, {P['cR']}"), A(f"s_max_u32 {s(sT0)}, {s(sT0)}, {s(sML)}"),
                                       A(f"s_add_u32 {s(sTM)}, {s(sT0)}, {s(sBase)}")], A.nop)
        if not on:
            A(f"s_add_u32 {s(sRSr)}, {s(sRSr)}, {s(sInc)}")
    else:
        A(f"s_cbranch_scc1 {pfx}_kvw")
        A.label(f"{pfx}_kvok")
        A.nop(P.get("dk", 4))
        A(f"buffer_load_dwordx4 {v(vG16)}, {s(S_WS, 4)}, {s(sKT)} offen sc1 lds")
        A(f"buffer_load_dwordx4 {v(vG16)}, {s(S_WS, 4)}, {s(sKT)} offen offset:1024 sc1 lds")
        if w:
            A(f"s_mov_b32 m0, {KT + 3 * 2048}")
            A(f"s_xor_b32 {s(sT0)}, {s(sKT)}, {131072 if w == 1 else 2048}")
            A(f"buffer_load_dwordx4 {v(vG16)}, {s(S_WS, 4)}, {s(sT0)} offen offset:{(w - 1) * 1024} sc1 lds")
        A(f"s_add_u32 {s(sKT)}, {s(sKT)}, {hex(32 * 8192)}")
    stamp("_end", 16)
    if diag:
        A(f"s_add_u32 {s(sT0)}, {s(sStep)}, 1")
        A(f"s_and_b32 {s(sT0)}, {s(sT0)}, {P.get('dm', 7)}")
        A(f"s_cbranch_scc1 {pfx}_top")
        A("s_memrealtime s[100:101]")
        A("s_memtime s[34:35]")
        A("s_waitcnt lgkmcnt(0)")
        A(f"v_mov_b32 {v(t0)}, 0")
        A(f"v_writelane_b32 {v(t0)}, s100, 31")
        A(f"v_writelane_b32 {v(t0)}, s34, 23")
        A(f"s_add_u32 {s(sT0)}, {s(sOff)}, {s(sM0)}")
        A(f"v_writelane_b32 {v(t0)}, {s(sT0)}, 19")
        A(f"v_writelane_b32 {v(t0)}, s82, 18")
        for i in range(3):
            A(f"v_writelane_b32 {v(t0)}, s{8 + i}, {20 + i}")
        for i in range(len(names)):
            A(f"v_writelane_b32 {v(t0)}, {s(S_ST + 2 * i)}, {i}")
        for i in range(4):
            A(f"v_writelane_b32 {v(t0)}, {s(S_CNT + i)}, {24 + i}")
        A(f"v_writelane_b32 {v(t0)}, s56, 30")
        A(f"v_writelane_b32 {v(t0)}, s57, 28")
        A(f"v_writelane_b32 {v(t0)}, s38, 29")
        A(f"v_lshrrev_b32 {v(t1)}, 2, {v(vG16)}")
        A("s_mov_b32 exec_hi, 0")
        A(f"buffer_store_dword {v(t0)}, {v(t1)}, {s(S_WS, 4)}, {s(sSTO)} offen")
        A("s_mov_b64 exec, -1")
        A(f"s_add_u32 {s(sSTO)}, {s(sSTO)}, 128")
        if tim:
            A("s_memtime s[32:33]")
            A(f"s_sub_u32 {s(sTM)}, {s(sTM)}, s34")
            A("s_waitcnt lgkmcnt(0)")
            A(f"s_add_u32 {s(sTM)}, {s(sTM)}, s32")
            A(f"s_add_u32 {s(sTM)}, {s(sTM)}, 60")
        chain.STAMP_NAMES[:] = names
    A(f"s_branch {pfx}_top")
    if tim:
        repoll("to", lsa, lsl)
        repoll("tm", rsa, rsl)
        A.label(f"{pfx}_rp")
        A("s_nop 0\n" + late_post(t0, t1) if on else rsw)
        if diag:
            A(f"s_add_u32 {s(FC['o'])}, {s(FC['o'])}, 1")
        A(f"s_branch {pfx}_rq")
    else:
        A.label(f"{pfx}_kvw")
        kv_wait(A, f"{pfx}_kvp", exit_lbl, 4)
        A("s_mov_b64 exec, -1")
        A(f"s_branch {pfx}_kvok")
    A.label(f"{pfx}_last")
    for x in (sKM, sVMst):
        A(f"s_add_u32 {s(x)}, {s(x)}, 65536")
    A(f"buffer_store_dwordx2 {v(ZP, 2)}, {v(vMst)}, {s(S_WS, 4)}, {s(sKM)} offen sc1")
    vl[:] = vlast
    mm(len(vl))
    A.nop(8)
    for x in vfold:
        A(x)
        A.nop(2)
    A(f"buffer_store_dword {v(VMq)}, {v(vVMst)}, {s(S_WS, 4)}, {s(sVMst)} offen sc1")
    A(f"s_branch {exit_lbl}")
    for j in range(4):
        A.label(f"{pfx}_m{j}_f")
        A("s_waitcnt lgkmcnt(0)")
        for k in range(j, 4):
            ldx(FR(k, 0), sAL, k, False)
            ldx(RR + 4 * k, sAR, k, False)
        budget("m")
        A("s_waitcnt vmcnt(0)")
        exact([FR(j, 0), FR(j, 0) + 2, RR + 4 * j, RR + 4 * j + 2], f"{pfx}_m{j}_f")
        for x in addops(j):
            A(x)
        A("s_nop 0" if wdone[j] else shw(j))
        A(f"s_branch {pfx}_m{j}")
    A.label(f"{pfx}_z_f")
    zld(False)
    A(f"s_memtime {s(sT0, 2)}")
    A(f"ds_read_b32 {v(t0)}, {v(vG16)} offset:{OFFL}")
    A(f"s_sub_u32 {s(sT2)}, {s(sAR)}, {s(sARo)}")
    A(f"s_xor_b32 {s(sT2)}, {s(sT2)}, 0x2000")
    A(f"s_lshl_b32 {s(sT3)}, {s(sX)}, 15")
    A(f"s_add_u32 {s(sT2)}, {s(sT2)}, {s(sT3)}")
    A(f"s_lshl_b32 {s(sT3)}, {s(sT)}, 8")
    A(f"s_add_u32 {s(sT3)}, {s(sT3)}, {s(sT2)}")
    A(f"s_add_u32 {s(sT2)}, {s(sT2)}, 0x4000")
    A("s_waitcnt lgkmcnt(0)")
    A(f"s_sub_u32 {s(sT0)}, {s(sT0)}, {P['zl']}")
    A(f"v_sub_u32 {v(t0 if tim else t1)}, {s(sT0)}, {v(t0)}")
    if tim:
        A(f"v_max_u32 {v(t1)}, {v(t0)}, {v(t1)}")
    A(f"buffer_store_dword {v(t1)}, off, {s(S_WS, 4)}, {s(sT2)}{loc}")
    budget("z")
    A("s_waitcnt vmcnt(1)")
    A.label(f"{pfx}_z_g")
    exact([8, 10, 12, 14], f"{pfx}_z_h")
    for kk in (2, 3):
        for i in so:
            sc(kk)[i]()
    A(late_post(t1, t1) if on else f"buffer_store_dword {v(t1)}, off, {s(S_WS, 4)}, {s(sT3)} offset:132 sc1")
    A("s_mov_b32 vcc_lo, 0xcccccccc")
    A("s_mov_b32 vcc_hi, 0xcccccccc")
    A(f"s_branch {pfx}_z")
    A.label(f"{pfx}_z_h")
    zld(False)
    budget("z")
    A(f"v_add_u32 {v(t1)}, 300, {v(t1)}")
    A("s_waitcnt vmcnt(0)")
    A(f"s_branch {pfx}_z_g")
    A.label(f"{pfx}_sm_f")
    A("s_waitcnt vmcnt(0) lgkmcnt(0)")
    zld(False)
    zown()
    for i in range(8):
        kt(i)
    A("s_waitcnt vmcnt(0)")
    lw0()
    for kk in range(4):
        for f in sc(kk):
            f()
    A.nop(8)
    A(f"v_mov_b32 {v(PM + 1)}, 0")
    A(f"v_max_f32 {v(t0)}, {v(SM)}, {v(SM + 1)}")
    A(f"v_mul_f32 {v(t0)}, {s(sCc)}, {v(t0)}")
    for i in range(0, 8, 2):
        A(f"v_max3_f32 {v(t0)}, {v(t0)}, {v(S0 + i)}, {v(S0 + i + 1)}")
    for op in ("v_permlane32_swap_b32", "v_permlane16_swap_b32"):
        A(f"v_mov_b32 {v(t1)}, {v(t0)}")
        A.nop(2)
        A(f"{op} {v(t0)}, {v(t1)}")
        A(f"v_max_f32 {v(t0)}, {v(t0)}, {v(t1)}")
    ic = struct.unpack("<I", struct.pack("<f", 1.0 / ((128 ** -0.5) * math.log2(math.e))))[0]
    A(f"v_mul_f32 {v(t1)}, {hex(ic)}, {v(t0)}")
    A("s_mov_b32 vcc_lo, 0xcccccccc")
    A("s_mov_b32 vcc_hi, 0xcccccccc")
    for i in range(8):
        A(f"v_sub_f32 {v(S0 + i)}, {v(S0 + i)}, {v(t0)}")
    for i in range(2):
        A(f"v_sub_f32 {v(SM + i)}, {v(SM + i)}, {v(t1)}")
    A("s_waitcnt lgkmcnt(0)")
    A.nop(1)
    soft(False)
    if tim:
        A(lsa)
        A(lsl)
    A(f"s_branch {pfx}_ost")
    for j in range(P["nC"]):
        A.label(f"{pfx}_o{j}_f")
        A.nop(1)
        ks = range(j, min(8, j + P["nR"]))
        for k in ks:
            ldx(4 * k, sOld, k, False)
        if P["on"]:
            A(f"s_memtime {s(sT0, 2)}")
            A(f"ds_read_b32 {v(VT_ + 3)}, {v(vG16)} offset:{OFFL}")
            A("s_waitcnt lgkmcnt(0)")
            A(f"s_sub_u32 {s(sT0)}, {s(sT0)}, {P['zo'] + 60 * j}")
            A(f"v_sub_u32 {v(VT_ + 3)}, {s(sT0)}, {v(VT_ + 3)}")
            A(late_post(VT_ + 3, VT_ + 3))
        budget("oi")
        A(f"s_waitcnt vmcnt({int(P['on'])})")
        exact([4 * j, 4 * j + 2], f"{pfx}_o{j}_f")
        A(f"s_branch {pfx}_o{j}")
    if P["nC"] == 8:
        return
    A.label(f"{pfx}_o_f")
    A("s_waitcnt lgkmcnt(0)")
    for j in range(8):
        ldx(4 * j, sOld, j, False)
    budget("o")
    for i in range(8):
        A(f"v_mov_b32 {v(OC + i)}, 0")
    A("s_waitcnt vmcnt(0)")
    exact(list(range(0, 32, 2)), f"{pfx}_o_f")
    for f0 in range(0, 16, 4):
        for f in range(f0, f0 + 4):
            for hf in range(2):
                A(f"ds_read_b128 {v(32 + 8 * (f & 3) + 4 * hf, 4)}, {v(vWO)} offset:{f * 2048 + hf * 1024}")
        A("s_waitcnt lgkmcnt(0)")
        for f in range(f0, f0 + 4):
            smf(OC + 4 * (f & 1), 4 * (f >> 1), 32 + 8 * (f & 3))
    A.nop(8)
    for i in range(4):
        A(cvt(OC + i, OC + 2 * i))
    A(f"ds_write_b64 {v(vG16)}, {v(OC, 2)} offset:{x3o}")
    A(f"ds_write_b64 {v(vG16)}, {v(OC + 2, 2)} offset:{x3o + 2048}")
    A(f"s_branch {pfx}_o_ok")


def loops(A, pfx, exit_lbl, P):
    A(f"s_cselect_b32 {s(sT0)}, 0, 4")
    if P.get("force_slow"):
        A(f"s_mov_b32 {s(sT0)}, 4")
    A(f"s_add_u32 {s(sT0)}, {s(sT0)}, {s(sWv)}")
    for k in range(1, 8):
        A(f"s_cmp_eq_u32 {s(sT0)}, {k}")
        A(f"s_cbranch_scc1 {pfx}{k}_top")
    A(f"s_branch {pfx}0_top")
    for k in range(8):
        chain_loop(A, f"{pfx}{k}", k & 3, k < 4, exit_lbl, P)
```

```python
import math
import struct
from asmlib import *
import layout as L
from chain import S_WS, S_W, sX, sT, sWv, sBud, S_PTR, srd, OOB

S_P2 = 64
S_PX = 72
S_PO = 74
S_OUT, S_X = 92, 96
sWo, sXo, sWinc, sN, sMW, sMX, sOut, sOP, sTy, sRb, sCt, sRes, sQ, sI = range(15, 29)
sLdw, sXP = 30, 31
sT0, sT1, sT2, sT3 = 32, 33, 34, 35
sPk, sWm, sWn, sDb = 36, 37, 38, 39
sRlo, sRhi, sSh, sNmax, sQn, sO2, sCf = 48, 49, 50, 51, 52, 53, 54

vLane, vL16, vSh, vT0, vT1, vT2 = 250, 251, 252, 253, 254, 255
vC0, vC1, vONE, vNL = 240, 242, 244, 246
vWa, vXa, vWd, vXd = 128, 136, 137, 141
RES = 192
RESX = 160
WR, XR = 0, 65536
LDS_MISC = 131072


def f32(x):
    return hex(struct.unpack("<I", struct.pack("<f", x))[0])


class Cfg:
    def __init__(self, name, WM, WN, BK, accb):
        self.name, self.WM, self.WN, self.BK, self.accb = name, WM, WN, BK, accb
        self.TM, self.TN = 32 * WM, 32 * WN
        self.nsub = BK // 32
        self.Wst, self.Xst = BK * self.TM * 2, BK * self.TN * 2
        self.nW, self.nX = self.Wst // 4096, self.Xst // 4096
        self.nd = self.nW + self.nX
        self.pitch = self.TM * 2
        self.fs = 4 * (WM + WN)
        assert self.nW == 4 and 4 * self.Wst <= 65536 and 4 * self.Xst <= 65536

    def acc(self, mt, nt):
        return self.accb + (nt * self.WM + mt) * 4

    def fa(self, p, mt):
        return p * self.fs + 4 * mt

    def fb(self, p, nt):
        return p * self.fs + 4 * self.WM + 4 * nt


CFGS = [Cfg("A", 4, 4, 64, 146 + 0), Cfg("B", 8, 4, 32, 256), Cfg("C", 8, 8, 32, 256)]
CFGS[0].accb = 64


def worker_consts(A):
    A(f"v_lshlrev_b32 {v(vL16)}, 4, {v(vLane)}")
    c0 = -2.0 * math.sqrt(2.0 / math.pi) * math.log2(math.e)
    for rgs, val in ((vC0, c0), (vC1, c0 * 0.044715), (vONE, 1.0), (vNL, -math.log2(math.e))):
        A(f"v_mov_b32 {v(rgs)}, {f32(val)}")
        A(f"v_mov_b32 {v(rgs + 1)}, {f32(val)}")
    A(f"s_lshr_b32 {s(sWm)}, {s(sWv)}, 1")
    A(f"s_and_b32 {s(sWn)}, {s(sWv)}, 1")


def addr_setup(A, c):
    g_, q_, rl, pu = 0, 1, 2, 3
    A(f"v_lshrrev_b32 {v(g_)}, 4, {v(vLane)}")
    A(f"v_bfe_u32 {v(q_)}, {v(vLane)}, 2, 2")
    A(f"v_lshl_add_u32 {v(4)}, {v(g_)}, 2, {v(q_)}")
    A(f"v_and_b32 {v(5)}, 7, {v(4)}")
    A(f"v_mul_u32_u24 {v(4)}, {c.pitch}, {v(4)}")
    A(f"v_and_b32 {v(6)}, 3, {v(vLane)}")
    A(f"v_lshl_add_u32 {v(4)}, {v(6)}, 3, {v(4)}")
    A(f"s_mul_i32 {s(sT0)}, {s(sWm)}, {c.WM}")
    A(f"v_xor_b32 {v(5)}, {s(sT0)}, {v(5)}")
    A(f"v_lshl_add_u32 {v(vWa)}, {v(5)}, 5, {v(4)}")
    for mt in range(1, c.WM):
        A(f"v_xor_b32 {v(vWa + mt)}, {mt * 32}, {v(vWa)}")
    A(f"s_mul_i32 {s(sT0)}, {s(sWn)}, {c.WN * c.nsub * 1024}")
    A(f"s_add_u32 {s(sT0)}, {s(sT0)}, {XR}")
    A(f"v_add_u32 {v(vXa)}, {s(sT0)}, {v(vL16)}")
    rpi = 1024 // c.pitch
    lpr = 64 // rpi
    A(f"v_lshrrev_b32 {v(rl)}, {int(math.log2(lpr))}, {v(vLane)}")
    A(f"v_and_b32 {v(pu)}, {lpr - 1}, {v(vLane)}")
    A(f"s_mul_i32 {s(sT0)}, {s(sWv)}, {4 * rpi}")
    A(f"v_add_u32 {v(4)}, {s(sT0)}, {v(rl)}")
    for d in range(4):
        A(f"v_add_u32 {v(5)}, {d * rpi}, {v(4)}")
        A(f"v_and_b32 {v(6)}, 7, {v(5)}")
        A(f"v_lshlrev_b32 {v(6)}, 1, {v(6)}")
        A(f"v_xor_b32 {v(6)}, {v(6)}, {v(pu)}")
        A(f"v_mul_lo_u32 {v(5)}, {v(5)}, {s(sLdw)}")
        A(f"v_lshl_add_u32 {v(5)}, {v(6)}, 4, {v(5)}")
        A(f"v_subrev_u32 {v(vWd + d)}, {d * 1024}, {v(5)}")
    nrt = c.nX // c.nsub
    A(f"s_mul_i32 {s(sT0)}, {s(sWv)}, {nrt}")
    A(f"s_mul_i32 {s(sT0)}, {s(sT0)}, {s(sXP)}")
    for j in range(nrt):
        A(f"v_add_u32 {v(vXd + j)}, {s(sT0)}, {v(vL16)}")
        if j + 1 < nrt:
            A(f"s_add_u32 {s(sT0)}, {s(sT0)}, {s(sXP)}")
            A(f"s_sub_u32 {s(sT0)}, {s(sT0)}, {c.nsub * 1024}")
    A(f"s_mul_i32 {s(sMW)}, {s(sWv)}, {c.Wst // 4}")
    A(f"s_mul_i32 {s(sMX)}, {s(sWv)}, {c.Xst // 4}")
    A(f"s_add_u32 {s(sMX)}, {s(sMX)}, {XR}")
    A(f"s_mul_i32 {s(sWinc)}, {s(sLdw)}, {c.BK}")
    A(f"s_mov_b32 {s(sWo)}, 0")


def dma_ops(A, c, slot, which):
    ops = []
    if which == "x":
        ops.append(lambda: A(f"s_add_u32 m0, {s(sMX)}, {slot * c.Xst}\ns_nop 0"))
        for d in range(c.nX):
            ops.append(lambda d=d: A(f"buffer_load_dwordx4 {v(vXd + d // c.nsub)}, {s(S_WS, 4)}, {s(sXo)} offen offset:{d * 1024} sc1 lds"))
        ops.append(lambda: A(f"s_add_u32 {s(sXo)}, {s(sXo)}, {c.nsub * 1024}"))
    else:
        ops.append(lambda: A(f"s_add_u32 m0, {s(sMW)}, {slot * c.Wst}\ns_nop 0"))
        for d in range(c.nW):
            ops.append(lambda d=d: A(f"buffer_load_dwordx4 {v(vWd + d)}, {s(S_W, 4)}, {s(sWo)} offen offset:{d * 1024} lds"))
        ops.append(lambda: A(f"s_add_u32 {s(sWo)}, {s(sWo)}, {s(sWinc)}"))
    return ops


def read_ops(A, c, slot, sub, p):
    ops = []
    def ra(mt, i):
        A(f"ds_read_b64_tr_b16 {v(c.fa(p, mt) + 2 * i, 2)}, {v(vWa + mt)} offset:{slot * c.Wst + (32 * sub + 16 * i) * c.pitch}")
    def rb(nt):
        A(f"ds_read_b128 {v(c.fb(p, nt), 4)}, {v(vXa)} offset:{slot * c.Xst + (nt * c.nsub + sub) * 1024}")
    ops.append(lambda: rb(0))
    for mt in range(c.WM):
        for i in range(2):
            ops.append(lambda mt=mt, i=i: ra(mt, i))
    for nt in range(1, c.WN):
        ops.append(lambda nt=nt: rb(nt))
    return ops


def main_loop(A, c, vt, pfx, P, res_hook):
    nsub = c.nsub
    for st in range(4):
        for f in dma_ops(A, c, st, "x"):
            f()
        if st < 3 or nsub == 1:
            for f in dma_ops(A, c, st, "w"):
                f()
    for i in range(c.WM * c.WN * 4):
        x = c.accb + i
        A(f"v_mov_b32 {v(x)}, 0" if x < 256 else f"v_accvgpr_write_b32 {r(x)}, 0")
    A(f"s_waitcnt vmcnt({3 * c.nd - (c.nW if nsub == 2 else 0)})")
    A("s_barrier")
    for f in read_ops(A, c, 0, 0, 0):
        f()
    par = [0]

    def substep(reads, dmas, bar):
        p = par[0]
        par[0] ^= 1
        ms = [(mt, nt) for nt in range(c.WN) for mt in range(c.WM)]
        nm = len(ms)
        A("s_waitcnt lgkmcnt(0)")
        pre = P.get("gpre", 1) if bar is not None else 0
        fill = {}
        rp = P.get("grp", 1)
        for k, f in enumerate(reads):
            fill.setdefault(min(nm, pre + k // rp), []).append(f)
        d0 = pre + P.get("gd0", 0)
        nd_ = len(dmas)
        for k, f in enumerate(dmas):
            fill.setdefault(min(nm, d0 + (k * (nm - d0)) // max(1, nd_)), []).append(f)
        for i in range(nm + 1):
            if i == pre and bar is not None:
                A(f"s_waitcnt vmcnt({bar})")
                A("s_barrier")
            for f in fill.get(i, []):
                f()
            if i < nm:
                mt, nt = ms[i]
                wa, xb = v(c.fa(p, mt), 4), v(c.fb(p, nt), 4)
                d = r(c.acc(mt, nt), 4)
                if vt:
                    A(f"v_mfma_f32_16x16x32_bf16 {d}, {xb}, {wa}, {d}")
                else:
                    A(f"v_mfma_f32_16x16x32_bf16 {d}, {wa}, {xb}, {d}")

    def stage(slot, d1, d2, bar, last):
        nxt = (slot + 1) & 3
        if nsub == 2:
            substep(read_ops(A, c, slot, 1, par[0] ^ 1), dma_ops(A, c, (slot - 1) & 3, "w") if d2 else [], None)
            substep([] if last else read_ops(A, c, nxt, 0, par[0] ^ 1), dma_ops(A, c, slot, "x") if d1 else [], bar)
        else:
            substep([] if last else read_ops(A, c, nxt, 0, par[0] ^ 1),
                    (dma_ops(A, c, slot, "x") + dma_ops(A, c, slot, "w")) if d1 else [], bar)

    A.label(f"{pfx}_loop")
    for st in range(4):
        stage(st, True, True, 2 * c.nd, False)
    A(f"s_sub_u32 {s(sN)}, {s(sN)}, 1")
    A(f"s_cmp_lg_u32 {s(sN)}, 0")
    A(f"s_cbranch_scc1 {pfx}_loop")
    stage(0, False, True, 2 * c.nd, False)
    stage(1, False, False, c.nd, False)
    stage(2, False, False, 0, False)
    res_hook()
    stage(3, False, False, None, True)
    if P.get("diag"):
        A("s_memtime s[82:83]")
    A.nop(8)


def get8(A, c, srcs, tmp):
    out = []
    for k, x in enumerate(srcs):
        if x >= 256:
            for i in range(4):
                A(f"v_accvgpr_read_b32 {v(tmp + 4 * k + i)}, {r(x + i)}")
            out += [tmp + 4 * k + i for i in range(4)]
        else:
            out += [x + i for i in range(4)]
    return out


def act_pairs(A, kind, xs, tmp):
    P_ = [xs[2 * i] for i in range(4)]
    T_ = [tmp + 2 * i for i in range(4)]
    if kind == "gelu":
        for p_, t_ in zip(P_, T_):
            A(f"v_pk_mul_f32 {v(t_, 2)}, {v(p_, 2)}, {v(p_, 2)}")
        for p_, t_ in zip(P_, T_):
            A(f"v_pk_fma_f32 {v(t_, 2)}, {v(t_, 2)}, {v(vC1, 2)}, {v(vC0, 2)}")
        for p_, t_ in zip(P_, T_):
            A(f"v_pk_mul_f32 {v(t_, 2)}, {v(t_, 2)}, {v(p_, 2)}")
    else:
        for p_, t_ in zip(P_, T_):
            A(f"v_pk_mul_f32 {v(t_, 2)}, {v(p_, 2)}, {v(vNL, 2)}")
    for i in range(8):
        A(f"v_exp_f32 {v(tmp + i)}, {v(tmp + i)}")
    for t_ in T_:
        A(f"v_pk_add_f32 {v(t_, 2)}, {v(t_, 2)}, {v(vONE, 2)}")
    for i in range(8):
        A(f"v_rcp_f32 {v(tmp + i)}, {v(tmp + i)}")
    for p_, t_ in zip(P_, T_):
        A(f"v_pk_mul_f32 {v(p_, 2)}, {v(t_, 2)}, {v(p_, 2)}")


class ER:
    out, op, res, sh, pre, none = sOut, sOP, sRes, vSh, False, -1


def res_loads(A, c, grp, xonly=False):
    npm = c.WM // 2
    per = 8 // npm
    for j in range(per):
        nt = grp * per + j
        A(f"s_add_u32 {s(sT0)}, {s(ER.out if xonly else ER.res)}, {nt * 32768}")
        for mp in range(npm):
            if xonly:
                A(f"buffer_load_dwordx4 {v(RESX + 4 * (j * npm + mp), 4)}, {v(ER.sh)}, {s(S_X, 4)}, {s(sT0)} offen offset:{mp * 64}")
            else:
                A(f"buffer_load_dwordx4 {v(RES + 4 * (j * npm + mp), 4)}, {v(vL16)}, {s(S_WS, 4)}, {s(sT0)} offen offset:{mp * 1024} sc1")


def epilogue_fin(A, c):
    npm = c.WM // 2
    per = 8 // npm
    A(f"s_mov_b32 {s(sO2)}, {s(ER.out)}")
    if not ER.pre:
        res_loads(A, c, 0, True)
    k = 0
    nst = 0
    for nt in range(c.WN):
        if nt % per == 0 and nt > 0:
            A("s_nop 1")
            res_loads(A, c, nt // per)
            res_loads(A, c, nt // per, True)
            nst = 0
        for mp in range(npm):
            tb = (k % 2) * 28
            k += 1
            j = (nt % per) * npm + mp
            xs = get8(A, c, (c.acc(2 * mp, nt), c.acc(2 * mp + 1, nt)), tb)
            if nt >= per or not ER.pre:
                A(f"s_waitcnt vmcnt({7 - j + nst})")
            xr = RESX + 4 * j
            for h in range(2):
                A(f"v_permlane16_swap_b32 {v(xr + h)}, {v(xr + 2 + h)}")
            for i in range(4):
                A(f"v_lshlrev_b32 {v(tb + 8 + 2 * i)}, 16, {v(RES + 4 * j + i)}")
                A(f"v_and_b32 {v(tb + 9 + 2 * i)}, 0xffff0000, {v(RES + 4 * j + i)}")
            for h in range(2):
                A(f"v_permlane32_swap_b32 {v(xr + h)}, {v(xr + 2 + h)}")
            for i in range(4):
                A(f"v_lshlrev_b32 {v(tb + 16 + 2 * i)}, 16, {v(xr + i)}")
                A(f"v_and_b32 {v(tb + 17 + 2 * i)}, 0xffff0000, {v(xr + i)}")
            for i in range(4):
                A(f"v_pk_fma_f32 {v(tb + 8 + 2 * i, 2)}, {v(xs[2 * i], 2)}, {v(tb + 8 + 2 * i, 2)}, {v(tb + 16 + 2 * i, 2)}")
            for i in range(4):
                A(f"v_cvt_pk_bf16_f32 {v(tb + 24 + i)}, {v(tb + 8 + 2 * i)}, {v(tb + 9 + 2 * i)}")
            A.nop(1)
            for h in range(2):
                A(f"v_permlane32_swap_b32 {v(tb + 24 + h)}, {v(tb + 26 + h)}")
            A.nop(1)
            for h in range(2):
                A(f"v_permlane16_swap_b32 {v(tb + 24 + h)}, {v(tb + 26 + h)}")
            A(f"buffer_store_dwordx4 {v(tb + 24, 4)}, {v(ER.sh)}, {s(S_OUT, 4)}, {s(sO2)} offen offset:{mp * 64}{L.OSC[0]}")
            nst += 1
        if nt + 1 < c.WN:
            A(f"s_add_u32 {s(sO2)}, {s(sO2)}, 32768")


def epilogue(A, c, kind):
    if kind == "fin":
        return epilogue_fin(A, c)
    npm = c.WM // 2
    A(f"s_mov_b32 {s(sO2)}, {s(ER.out)}")
    k = 0
    if kind == "vt":
        for np_ in range(c.WN // 2):
            for mt in range(c.WM):
                tb = (k & 3) * 16
                k += 1
                xs = get8(A, c, (c.acc(mt, 2 * np_), c.acc(mt, 2 * np_ + 1)), tb)
                for i in range(4):
                    A(f"v_cvt_pk_bf16_f32 {v(tb + 8 + i)}, {v(xs[2 * i])}, {v(xs[2 * i + 1])}")
                A(f"buffer_store_dwordx4 {v(tb + 8, 4)}, {v(vL16)}, {s(S_WS, 4)}, {s(sO2)} offen offset:{(mt & 3) * 1024}{L.ESC[0]}")
                if mt == 3 and c.WM == 8:
                    A(f"s_add_u32 {s(sO2)}, {s(sO2)}, 4096")
            A(f"s_add_u32 {s(sO2)}, {s(sO2)}, {262144 - (4096 if c.WM == 8 else 0)}")
        return
    per = 8 // npm
    nst = 0
    for nt in range(c.WN):
        if kind in ("add", "silu") and nt % per == 0 and nt > 0:
            A("s_nop 1")
            res_loads(A, c, nt // per)
            nst = 0
        for mp in range(npm):
            tb = (k % 3) * 20
            k += 1
            xs = get8(A, c, (c.acc(2 * mp, nt), c.acc(2 * mp + 1, nt)), tb)
            if kind in ("add", "silu"):
                j = (nt % per) * npm + mp
                if nt >= per or not ER.pre:
                    A(f"s_waitcnt vmcnt({7 - j + nst})")
                for i in range(4):
                    A(f"v_lshlrev_b32 {v(tb + 8 + 2 * i)}, 16, {v(RES + 4 * j + i)}")
                    A(f"v_and_b32 {v(tb + 9 + 2 * i)}, 0xffff0000, {v(RES + 4 * j + i)}")
                for i in range(4):
                    A(f"v_pk_add_f32 {v(xs[2 * i], 2)}, {v(xs[2 * i], 2)}, {v(tb + 8 + 2 * i, 2)}")
            if kind == "scl":
                for i in range(8):
                    A(f"v_mul_f32 {v(xs[i])}, {f32((128 ** -0.5) * math.log2(math.e))}, {v(xs[i])}")
            if kind in ("gelu", "gelus"):
                act_pairs(A, "gelu", xs, tb + 8)
            if kind == "silu":
                act_pairs(A, "silu", xs, tb + 8)
            for i in range(4):
                A(f"v_cvt_pk_bf16_f32 {v(tb + 16 + i)}, {v(xs[2 * i])}, {v(xs[2 * i + 1])}")
            A(f"buffer_store_dwordx4 {v(tb + 16, 4)}, {v(ER.sh if kind == 'gelus' else vL16)}, {s(S_WS, 4)}, {s(sO2)} offen offset:{mp * 1024}{L.ESC[0]}")
            nst += 1
        if nt + 1 < c.WN:
            A(f"s_add_u32 {s(sO2)}, {s(sO2)}, {s(ER.op)}")


TYPES = {
    L.T_Q: (S_PTR, 8 << 20, 8192, L.XN, 32, 1024, L.Q, 128, "plain", None),
    L.T_K: (S_PTR + 2, 8 << 20, 8192, L.XN, 32, 1024, L.K, 128, "scl", None),
    L.T_V: (S_PTR + 4, 8 << 20, 8192, L.XN, 32, 1024, L.VT, 0, "vt", None),
    L.T_W1: (S_P2, 2 << 20, 2048, L.XN2, 32, 1024, L.H1G, 32, "gelus", None),
    L.T_W2: (S_P2 + 2, 2 << 20, 2048, L.H1, 32, 1024, L.X1, 32, "add", L.XN),
    L.T_W3: (S_P2 + 4, 7 << 20, 7168, L.X1N, 32, 1024, L.H3, 112, "gelu", None),
    L.T_W4: (S_P2 + 6, 7 << 20, 2048, L.H3, 112, 3584, L.G, 32, "silu", L.X1),
    L.T_WO: (S_PTR + 6, 8 << 20, 2048, L.O, 128, 4096, 0, 32, "fin", L.G),
}


def type_setup(A, c, pfx, types, done_lbl, ex=None):
    A.label(f"{pfx}_task")
    for ty in types:
        A(f"s_cmp_eq_u32 {s(sTy)}, {ty}")
        A(f"s_cbranch_scc1 {pfx}_set{ty}")
    A(f"s_branch {done_lbl}")
    for ty in types:
        ptr, wb, ldw, xb, cki, K, out, cko, epi, res = TYPES[ty]
        A.label(f"{pfx}_set{ty}")
        if ex:
            ex(ty)
        A(f"s_lshl_b32 {s(sT0)}, {s(sCt)}, 8")
        A(f"s_add_u32 {s(S_W)}, {s(ptr)}, {s(sT0)}")
        A(f"s_addc_u32 {s(S_W + 1)}, {s(ptr + 1)}, 0")
        A(f"s_and_b32 {s(S_W + 1)}, {s(S_W + 1)}, 0xffff")
        A(f"s_sub_u32 {s(S_W + 2)}, {hex(wb)}, {s(sT0)}")
        A(f"s_mov_b32 {s(S_W + 3)}, 0x20000")
        A(f"s_mov_b32 {s(sLdw)}, {ldw}")
        A(f"s_mov_b32 {s(sXP)}, {cki * 1024}")
        A(f"s_mul_i32 {s(sXo)}, {s(sRb)}, {8 * cki * 1024}")
        A(f"s_add_u32 {s(sXo)}, {s(sXo)}, {hex(xb)}")
        A(f"s_mov_b32 {s(sN)}, {K // c.BK // 4 - 1}")
        if epi == "vt":
            A(f"s_lshl_b32 {s(sT0)}, {s(sRb)}, 2")
            A(f"s_mul_i32 {s(sT1)}, {s(sWn)}, {c.WN // 2}")
            A(f"s_add_u32 {s(sT0)}, {s(sT0)}, {s(sT1)}")
            A(f"s_lshl_b32 {s(sT0)}, {s(sT0)}, 18")
            A(f"s_lshl_b32 {s(sT1)}, {s(sCt)}, 13")
            A(f"s_add_u32 {s(sT0)}, {s(sT0)}, {s(sT1)}")
            A(f"s_mul_i32 {s(sT1)}, {s(sWm)}, {c.WM * 1024}")
            A(f"s_add_u32 {s(sT0)}, {s(sT0)}, {s(sT1)}")
            A(f"s_add_u32 {s(sOut)}, {s(sT0)}, {hex(out)}")
            A(f"s_branch {pfx}_gov")
            continue
        A(f"s_lshl_b32 {s(sT0)}, {s(sRb)}, 3")
        A(f"s_mul_i32 {s(sT1)}, {s(sWn)}, {c.WN}")
        A(f"s_add_u32 {s(sT0)}, {s(sT0)}, {s(sT1)}")
        A(f"s_mul_i32 {s(sT0)}, {s(sT0)}, {cko * 1024}")
        if epi == "fin":
            A(f"s_lshl_b32 {s(sT1)}, {s(sCt)}, 8")
            A(f"s_add_u32 {s(sT2)}, {s(sT0)}, {s(sT1)}")
            A(f"s_mul_i32 {s(sT1)}, {s(sWm)}, {c.WM * 32}")
            A(f"s_add_u32 {s(sT2)}, {s(sT2)}, {s(sT1)}")
        A(f"s_lshl_b32 {s(sT1)}, {s(sCt)}, 12")
        A(f"s_add_u32 {s(sT0)}, {s(sT0)}, {s(sT1)}")
        A(f"s_mul_i32 {s(sT1)}, {s(sWm)}, {c.WM // 2 * 1024}")
        A(f"s_add_u32 {s(sT0)}, {s(sT0)}, {s(sT1)}")
        A(f"s_add_u32 {s(sOut)}, {s(sT0)}, {hex(out)}")
        A(f"s_mov_b32 {s(sOP)}, {cko * 1024}")
        if res is not None:
            A(f"s_add_u32 {s(sRes)}, {s(sT0)}, {hex(res)}")
        else:
            A(f"s_mov_b32 {s(sRes)}, {ER.none}")
        if epi == "fin":
            A(f"s_mov_b32 {s(sOut)}, {s(sT2)}")
            A(f"v_and_b32 {v(vT0)}, 15, {v(vLane)}")
            A(f"v_and_b32 {v(vT1)}, 48, {v(vLane)}")
            A(f"v_lshl_add_u32 {v(vSh)}, {v(vT0)}, 11, {v(vT1)}")
        if epi == "gelus":
            A(f"s_lshr_b32 {s(sT0)}, {s(sCt)}, 2")
            A(f"s_add_u32 {s(sT0)}, {s(sT0)}, 1")
            A(f"s_sub_u32 {s(sT1)}, 0, {s(sT0)}")
            A(f"s_bitcmp1_b32 {s(sCt)}, 1")
            A(f"s_cselect_b32 {s(sT0)}, {s(sT1)}, {s(sT0)}")
            A(f"s_add_u32 {s(sT0)}, {s(sT0)}, 16")
            A(f"v_and_b32 {v(vT0)}, 15, {v(vLane)}")
            A(f"v_add_u32 {v(vT0)}, {s(sT0)}, {v(vT0)}")
            A(f"v_lshrrev_b32 {v(vT1)}, 4, {v(vT0)}")
            A(f"v_lshlrev_b32 {v(vT1)}, 15, {v(vT1)}")
            A(f"v_and_b32 {v(vT0)}, 15, {v(vT0)}")
            A(f"v_lshl_add_u32 {v(vT1)}, {v(vT0)}, 4, {v(vT1)}")
            A(f"v_and_b32 {v(vT0)}, 0x300, {v(vL16)}")
            A(f"v_add_u32 {v(vSh)}, {v(vT0)}, {v(vT1)}")
        A(f"s_branch {pfx}_go")


def gemm_task(A, c, pfx, P, types, done_lbl):
    type_setup(A, c, pfx, types, done_lbl)
    ntypes = [t for t in types if TYPES[t][8] != "vt"]
    if ntypes:
        A.label(f"{pfx}_go")
        addr_setup(A, c)

        def hook():
            if any(TYPES[t][9] is not None for t in ntypes):
                A(f"s_cmp_eq_u32 {s(sRes)}, -1")
                A(f"s_cbranch_scc1 {pfx}_nores")
                res_loads(A, c, 0)
                A.label(f"{pfx}_nores")
        main_loop(A, c, False, f"{pfx}_n", P, hook)
        kinds = []
        for ty in ntypes:
            if TYPES[ty][8] not in kinds:
                kinds.append(TYPES[ty][8])
        for ty in ntypes:
            if TYPES[ty][8] != kinds[0]:
                A(f"s_cmp_eq_u32 {s(sTy)}, {ty}")
                A(f"s_cbranch_scc1 {pfx}_e{TYPES[ty][8]}")
        for kd in kinds:
            A.label(f"{pfx}_e{kd}")
            epilogue(A, c, kd)
            A(f"s_branch {done_lbl}")
    if L.T_V in types:
        A.label(f"{pfx}_gov")
        addr_setup(A, c)
        main_loop(A, c, True, f"{pfx}_v", P, lambda: None)
        epilogue(A, c, "vt")
        A(f"s_branch {done_lbl}")
```

```python
MB = 1 << 20
XN   = 0 * MB
XN2  = 4 * MB
Q    = 8 * MB
K    = 24 * MB
VT   = 40 * MB
O    = 56 * MB
H1G  = 72 * MB
H1   = H1G + 32768
X1   = 80 * MB
H3   = 84 * MB
G    = 100 * MB
X1N  = 104 * MB
STEP = 108 * MB
STEP_STRIDE = 262144
S_Z    = 0
S_OB   = 131072
S_MEML = 196608
S_MEMR = 229376
VM   = 110 * MB
KM   = 128 * MB
FLAGS = 132 * MB
F_O   = 0
F_T   = 16384
FS, FC = 7, 2
F_TS  = 114688
F_QUE = 122880
F_PRG = 125952
F_FILL = 126976
MR   = 140 * MB
STAMP = 133 * MB
D_OVF = 8
D_NB  = 16
D_A   = 12
WS_BYTES = 268435456
T_Q, T_K, T_V, T_W1, T_W2, T_LN2, T_W3, T_W4, T_WO, T_LN1, T_FILL, T_PREF = range(12)

OSC = ["", ""]
ESC = [" sc1", " sc1"]

THR = [0, 0, 0]
```

```python
from asmlib import *
from gemm import f32


def ln_core(A, src, F, T, vwr, vrd, lds_off, out, hook=None):
    for i in range(32):
        A(f"v_lshlrev_b32 {v(F + 2 * i)}, 16, {v(src + i)}")
        A(f"v_and_b32 {v(F + 2 * i + 1)}, 0xffff0000, {v(src + i)}")

    def allsum(off):
        A(f"v_add_f32 {v(T)}, {v(T)}, {v(T + 1)}")
        A(f"ds_write_b32 {v(vwr)}, {v(T)} offset:{off}")
        A("s_waitcnt lgkmcnt(0)")
        if hook and off != lds_off:
            A("s_waitcnt vmcnt(0)")
        A("s_barrier")
        if hook and off != lds_off:
            hook()
        for j in range(4):
            A(f"ds_read_b128 {v(T + 4 * j, 4)}, {v(vrd)} offset:{off + 16 * j}")
        A("s_waitcnt lgkmcnt(2)")
        A(f"v_pk_add_f32 {v(T, 2)}, {v(T, 2)}, {v(T + 2, 2)}")
        A(f"v_pk_add_f32 {v(T + 4, 2)}, {v(T + 4, 2)}, {v(T + 6, 2)}")
        A("s_waitcnt lgkmcnt(0)")
        A(f"v_pk_add_f32 {v(T + 8, 2)}, {v(T + 8, 2)}, {v(T + 10, 2)}")
        A(f"v_pk_add_f32 {v(T + 12, 2)}, {v(T + 12, 2)}, {v(T + 14, 2)}")
        A(f"v_pk_add_f32 {v(T, 2)}, {v(T, 2)}, {v(T + 4, 2)}")
        A(f"v_pk_add_f32 {v(T + 8, 2)}, {v(T + 8, 2)}, {v(T + 12, 2)}")
        A(f"v_pk_add_f32 {v(T, 2)}, {v(T, 2)}, {v(T + 8, 2)}")
        A(f"v_add_f32 {v(T)}, {v(T)}, {v(T + 1)}")

    for k in range(4):
        A(f"v_pk_add_f32 {v(T + 2 * k, 2)}, {v(F + 2 * k, 2)}, {v(F + 8 + 2 * k, 2)}")
    for i in range(2, 8):
        for k in range(4):
            A(f"v_pk_add_f32 {v(T + 2 * k, 2)}, {v(T + 2 * k, 2)}, {v(F + 8 * i + 2 * k, 2)}")
    A(f"v_pk_add_f32 {v(T, 2)}, {v(T, 2)}, {v(T + 2, 2)}")
    A(f"v_pk_add_f32 {v(T + 4, 2)}, {v(T + 4, 2)}, {v(T + 6, 2)}")
    A(f"v_pk_add_f32 {v(T, 2)}, {v(T, 2)}, {v(T + 4, 2)}")
    allsum(lds_off)
    A(f"v_mul_f32 {v(T)}, {f32(-1.0 / 1024)}, {v(T)}")
    A(f"v_mov_b32 {v(T + 1)}, {v(T)}")
    for i in range(32):
        A(f"v_pk_add_f32 {v(F + 2 * i, 2)}, {v(F + 2 * i, 2)}, {v(T, 2)}")
    for k in range(4):
        A(f"v_pk_mul_f32 {v(T + 2 * k, 2)}, {v(F + 2 * k, 2)}, {v(F + 2 * k, 2)}")
    for i in range(1, 8):
        for k in range(4):
            x = F + 8 * i + 2 * k
            A(f"v_pk_fma_f32 {v(T + 2 * k, 2)}, {v(x, 2)}, {v(x, 2)}, {v(T + 2 * k, 2)}")
    A(f"v_pk_add_f32 {v(T, 2)}, {v(T, 2)}, {v(T + 2, 2)}")
    A(f"v_pk_add_f32 {v(T + 4, 2)}, {v(T + 4, 2)}, {v(T + 6, 2)}")
    A(f"v_pk_add_f32 {v(T, 2)}, {v(T, 2)}, {v(T + 4, 2)}")
    allsum(lds_off + 1024)
    A(f"v_mov_b32 {v(T + 1)}, {f32(1e-5)}")
    A(f"v_fmac_f32 {v(T + 1)}, {f32(1.0 / 1024)}, {v(T)}")
    A(f"v_rsq_f32 {v(T)}, {v(T + 1)}")
    A("s_nop 0")
    A(f"v_mov_b32 {v(T + 1)}, {v(T)}")
    for i in range(32):
        A(f"v_pk_mul_f32 {v(F + 2 * i, 2)}, {v(F + 2 * i, 2)}, {v(T, 2)}")
    for i in range(32):
        A(f"v_cvt_pk_bf16_f32 {v(out + i)}, {v(F + 2 * i)}, {v(F + 2 * i + 1)}")


def ln_addr(A, lane, swv, vwr, vrd, tmp, base):
    A(f"v_and_b32 {v(tmp)}, 15, {v(lane)}")
    A(f"v_lshl_add_u32 {v(vrd)}, {v(tmp)}, 6, {base}" if base <= 64 else f"v_lshlrev_b32 {v(vrd)}, 6, {v(tmp)}\nv_add_u32 {v(vrd)}, {base}, {v(vrd)}")
    A(f"v_lshrrev_b32 {v(tmp)}, 4, {v(lane)}")
    A(f"v_lshl_add_u32 {v(vwr)}, {v(tmp)}, 2, {v(vrd)}")
    A(f"v_lshl_add_u32 {v(vwr)}, {s(swv)}, 4, {v(vwr)}")


def lin2nat(A, src):
    for b in range(8):
        for h in range(2):
            A(f"v_permlane16_swap_b32 {v(src + 4 * b + h)}, {v(src + 4 * b + 2 + h)}")
    for b in range(8):
        for h in range(2):
            A(f"v_permlane32_swap_b32 {v(src + 4 * b + h)}, {v(src + 4 * b + 2 + h)}")
```

```python
from asmlib import *
import layout as L
import chain
from chain import S_WS, S_W, S_DBG, sX, sT, sWv, sBud, S_PTR, srd, t0, t1, t2
import gemm
from gemm import S_P2, S_PX, S_PO, S_X, S_OUT, vLane, vL16, vT0, vT1, vT2, sT0, sT1, sT2, sT3, sQ, sQn, LDS_MISC
import worker
import pipe
import ln
import att
import wo

S_M0 = 76


def touch(A, P, ptr, nbytes, sidx, per, vaddr, vd):
    st = P.get("pfs", 128)
    srd(A, S_W, ptr, nbytes)
    A(f"s_mul_i32 {s(sT3)}, {s(sidx)}, {per}")
    for i in range(per // (256 * st)):
        if P.get("pf2", 1):
            A(f"buffer_load_dwordx2 {v(vd, 2)}, {v(vaddr)}, {s(S_W, 4)}, {s(sT3)} offen offset:60")
        else:
            A(f"buffer_load_dword {v(vd)}, {v(vaddr)}, {s(S_W, 4)}, {s(sT3)} offen")
        A(f"s_add_u32 {s(sT3)}, {s(sT3)}, {256 * st}")
        if P.get("apf", 0) > 1:
            A(f"s_waitcnt vmcnt({P['apf'] - 2})")


def startup(A, pfx, ex, P):
    sTile, sF = 15, 16
    vT16, ZR, SN = 1, 4, 8
    srd(A, S_X, S_PX, 4 << 20)
    srd(A, S_OUT, S_PO, 4 << 20)
    A(f"v_lshlrev_b32 {v(vT16)}, 4, v0")
    A(f"v_lshlrev_b32 {v(vL16)}, 4, {v(vLane)}")
    for i in range(4):
        A(f"v_mov_b32 {v(ZR + i)}, 0")
        A(f"v_mov_b32 {v(SN + i)}, -1")
    vPA, vPD = 12, 14
    A(f"v_mul_u32_u24 {v(vPA)}, {P.get('pfs', 128)}, v0")
    pf = P.get("pf", 0)
    A(f"s_lshl_b32 {s(sTile)}, {s(sX)}, 4")
    A(f"s_and_b32 {s(sT0)}, {s(sX)}, 1")
    A(f"s_lshl_b32 {s(sT0)}, {s(sT0)}, 5")
    A(f"s_cmp_lt_u32 {s(sX)}, 4")
    A(f"s_cselect_b32 {s(sTile)}, {s(sT0)}, {s(sTile)}")
    A(f"s_cselect_b32 {s(sT0)}, 32, 16")
    A(f"s_add_u32 {s(sTile)}, {s(sTile)}, {s(sT)}")
    A(f"s_sub_u32 {s(sF)}, {s(sTile)}, 80")
    A(f"s_sub_u32 {s(sQ)}, {s(sX)}, 2")
    A(f"s_mov_b32 {s(sQn)}, 0")
    A(f"s_cmp_lt_u32 {s(sT)}, {s(sT0)}")
    A(f"s_cbranch_scc1 {pfx}_ln")
    A(f"s_cmp_lg_u32 {s(sT)}, 16")
    A(f"s_cbranch_scc1 {pfx}_fill")
    A(f"s_lshl_b32 {s(sT0)}, {s(sF)}, 11")
    A(f"s_add_u32 {s(sT0)}, {s(sT0)}, {hex(L.FLAGS)}")
    for i in range(8):
        A(f"buffer_store_dwordx4 {v(ZR, 4)}, {v(vT16)}, {s(S_WS, 4)}, {s(sT0)} offen sc1")
        A(f"s_add_u32 {s(sT0)}, {s(sT0)}, 4096")
    A("v_bfe_u32 v2, v0, 2, 1")
    A(f"s_lshr_b32 {s(sT0)}, {s(sWv)}, 1")
    A(f"v_and_b32 v2, {s(sT0)}, v2")
    A(f"s_bitcmp1_b32 {s(sWv)}, 0")
    A(f"s_cselect_b32 {s(sT0)}, 15, 0")
    A(f"s_cselect_b32 {s(sT1)}, {127 * 32768}, 0")
    A(f"v_xor_b32 v2, {s(sT0)}, v2")
    A("v_lshlrev_b32 v2, 4, v2")
    A("v_and_b32 v3, 3, v0")
    A("v_lshl_add_u32 v2, v3, 8, v2")
    A("v_lshrrev_b32 v3, 3, v0")
    A("v_lshl_add_u32 v2, v3, 10, v2")
    A(f"s_add_u32 {s(sT1)}, {s(sT1)}, {hex(L.H1)}")
    A(f"buffer_store_dwordx4 {v(ZR, 4)}, v2, {s(S_WS, 4)}, {s(sT1)} offen sc1")
    A("s_waitcnt vmcnt(0)")
    A("s_barrier")
    A(f"s_cmp_lg_u32 {s(sWv)}, 0")
    A(f"s_cbranch_scc1 {pfx}_fill")
    A("v_mov_b32 v2, 1")
    A("s_mov_b64 exec, 1")
    A(f"buffer_atomic_add v2, {v(ZR)}, {s(S_DBG, 4)}, 0 offen offset:{L.D_A} sc1")
    A("s_mov_b64 exec, -1")
    A(f"s_branch {pfx}_fill")
    A.label(f"{pfx}_ln")
    A(f"v_and_b32 v3, 15, {v(vLane)}")
    A(f"v_and_b32 v2, 48, {v(vLane)}")
    A("v_lshl_add_u32 v3, v3, 11, v2")
    A(f"s_lshl_b32 {s(sT2)}, {s(sTile)}, 15")
    A(f"s_lshl_b32 {s(sT0)}, {s(sWv)}, 9")
    A(f"s_add_u32 {s(sT0)}, {s(sT2)}, {s(sT0)}")
    for b in range(8):
        A(f"buffer_load_dwordx4 {v(32 + 4 * b, 4)}, v3, {s(S_X, 4)}, {s(sT0)} offen offset:{64 * b}")
    ln.ln_addr(A, vLane, sWv, vT0, vT1, vT2, LDS_MISC + 1024)
    A(f"s_lshl_b32 {s(sT0)}, {s(sWv)}, 13")
    A(f"s_add_u32 {s(sT2)}, {s(sT2)}, {s(sT0)}")
    A("s_waitcnt vmcnt(0)")
    if pf & 2:
        touch(A, P, S_PTR + 6, 8 << 20, sTile, 65536, vPA, vPD)
    if pf & 16:
        touch(A, P, S_PTR, 8 << 20, sTile, 65536, vPA, vPD)
    ln.lin2nat(A, 32)
    A(f"s_lshr_b32 {s(sT0)}, {s(sTile)}, 3")
    A(f"s_lshl_b32 {s(sT0)}, {s(sT0)}, 9")
    A(f"s_and_b32 {s(sT1)}, {s(sTile)}, 7")
    A(f"s_lshl_b32 {s(sT1)}, {s(sT1)}, 4")
    A(f"s_add_u32 {s(sT0)}, {s(sT0)}, {s(sT1)}")
    A(f"s_add_u32 {s(sF)}, {s(sT0)}, {hex(L.FLAGS + L.F_T + L.T_LN1 * 8192)}")

    def xn_flag():
        A(f"s_cmp_lg_u32 {s(sWv)}, 0")
        A(f"s_cbranch_scc1 {pfx}_nf")
        A("v_cmp_gt_u32 vcc, 4, v2")
        A(f"s_cbranch_vccz {pfx}_wa1_ok")
        chain.wait_a(A, f"{pfx}_wa1", ex, 2, 3)
        A("s_mov_b64 exec, 1")
        A(f"buffer_store_dword {v(SN)}, {v(ZR)}, {s(S_WS, 4)}, {s(sF)} offen sc1")
        A("s_mov_b64 exec, -1")
        A.label(f"{pfx}_nf")

    for rep, dst in ((0, L.XN), (1, L.XN2)):
        src, out = (32, 128) if rep == 0 else (128, 32)
        ln.ln_core(A, src, 64, 16, vT0, vT1, 0, out, xn_flag if rep else None)
        A(f"s_add_u32 {s(sT0)}, {s(sT2)}, {hex(dst)}")
        A(f"s_add_u32 {s(sT1)}, {s(sT0)}, 4096")
        for b in range(8):
            A(f"buffer_store_dwordx4 {v(out + 4 * b, 4)}, {v(vL16)}, {s(S_WS, 4)}, {s(sT0 + (b >> 2))} offen offset:{(b & 3) * 1024} sc1")
        if not rep:
            A(f"buffer_load_dword v2, {v(ZR)}, {s(S_DBG, 4)}, 0 offen offset:{L.D_A} sc1")
    A(f"s_add_u32 {s(sF)}, {s(sF)}, 4")
    A(f"s_branch {pfx}_wa2_ok")
    A.label(f"{pfx}_fill")
    if pf & 1:
        touch(A, P, S_PTR + 2, 8 << 20, sF, 131072, vPA, vPD)
        touch(A, P, S_PTR + 4, 8 << 20, sF, 131072, vPA, vPD)
    if pf & 32:
        touch(A, P, S_PTR + 4, 8 << 20, sF, 131072, vPA, vPD)
    if pf & 4:
        touch(A, P, S_PTR, 8 << 20, sF, 131072, vPA, vPD)
    if pf & 8:
        touch(A, P, S_PTR + 6, 8 << 20, sF, 131072, vPA, vPD)
    A(f"s_lshl_b32 {s(sT0)}, {s(sF)}, 2")
    for i in range(4):
        A(f"s_sub_u32 {s(sT1)}, {s(sT0)}, {48 - i}")
        A(f"s_lshl_b32 {s(sT2)}, {s(sT0)}, 12")
        A(f"s_add_u32 {s(sT2)}, {s(sT2)}, {hex(L.STEP + 4096 * i)}")
        A(f"s_cmp_lt_u32 {s(sT1)}, 16")
        A(f"s_cselect_b32 {s(sT2)}, {hex(chain.OOB)}, {s(sT2)}")
        A(f"buffer_store_dwordx4 {v(SN, 4)}, {v(vT16)}, {s(S_WS, 4)}, {s(sT2)} offen sc1")
    A(f"s_lshl_b32 {s(sT0)}, {s(sF)}, 12")
    A(f"s_add_u32 {s(sT1)}, {s(sT0)}, {hex(L.MR)}")
    A(f"s_add_u32 {s(sT2)}, {s(sT0)}, {hex(L.VM)}")
    A(f"buffer_store_dwordx4 {v(SN, 4)}, {v(vT16)}, {s(S_WS, 4)}, {s(sT2)} offen sc1")
    A(f"s_add_u32 {s(sT0)}, {s(sT0)}, {hex(L.KM)}")
    A(f"buffer_store_dwordx4 {v(SN, 4)}, {v(vT16)}, {s(S_WS, 4)}, {s(sT0)} offen sc1")
    A(f"buffer_store_dwordx4 {v(SN, 4)}, {v(vT16)}, {s(S_WS, 4)}, {s(sT1)} offen sc1")
    A(f"s_lshl_b32 {s(sF)}, {s(sF)}, 2")
    A(f"s_add_u32 {s(sF)}, {s(sF)}, {hex(L.FLAGS + L.F_FILL)}")
    A(f"s_cmp_lg_u32 {s(sF)}, {hex(L.FLAGS + L.F_FILL + 52)}")
    A(f"s_cbranch_scc1 {pfx}_fd")
    assert L.S_MEML == 48 * 4096 and L.S_MEMR == 56 * 4096
    srd(A, S_W, S_M0, 16384)
    A("v_and_b32 v2, 7, v0")
    A("v_lshlrev_b32 v2, 11, v2")
    A("v_lshrrev_b32 v3, 6, v0")
    A("v_lshl_add_u32 v2, v3, 7, v2")
    A("v_bfe_u32 v3, v0, 4, 2")
    A("v_lshl_add_u32 v2, v3, 5, v2")
    A("v_bfe_u32 v3, v0, 3, 1")
    A("v_lshl_add_u32 v2, v3, 4, v2")
    for q in range(4):
        A(f"buffer_load_dwordx4 {v(16 + 4 * q, 4)}, v2, {s(S_W, 4)}, 0 offen offset:{512 * q}")
    A(f"s_mov_b32 {s(sT0)}, {hex(L.STEP + L.S_MEML)}")
    A("s_waitcnt vmcnt(0)")
    if P.get("pa"):
        A(f"s_cmp_lt_u32 {s(sWv)}, {P['nD']}")
        A(f"s_cbranch_scc1 {pfx}_m0b")
        for i in range(16):
            A(f"v_lshlrev_b32 v2, 16, {v(16 + i)}")
            A(f"v_and_b32 v3, 0xffff0000, {v(16 + i)}")
            A(f"v_cvt_pk_f16_f32 {v(16 + i)}, v2, v3")
        A.label(f"{pfx}_m0b")
    A(f"v_xor_b32 v2, {0x400 if P.get('msw', 0) else 0}, {v(vT16)}")
    for q in range(16):
        A(f"buffer_store_dwordx4 {v(ZR if q & 4 else 16 + 4 * (q & 3), 4)}, {v(2 if q & 1 else vT16)}, {s(S_WS, 4)}, {s(sT0)} offen sc1")
        A(f"s_add_u32 {s(sT0)}, {s(sT0)}, 4096")
    chain.wait_a(A, f"{pfx}_wa3", ex, 2, 3)
    A(f"v_lshlrev_b32 v2, {max(L.FS, L.FC)}, {v(vLane)}")
    A(f"s_mov_b32 {s(sT0)}, {hex(L.FLAGS + L.F_T + L.T_FILL * 8192 + (64 << L.FS))}")
    A("s_mov_b64 exec, 15")
    A(f"buffer_store_dwordx4 {v(SN, 4)}, v2, {s(S_WS, 4)}, {s(sT0)} offen sc1")
    A("s_mov_b64 exec, -1")
    A.label(f"{pfx}_fd")
    A(f"s_cmp_lg_u32 {s(sWv)}, 0")
    A(f"s_cbranch_scc1 {pfx}_wa2_ok")
    chain.wait_a(A, f"{pfx}_wa2", ex, 2, 3)
    A("s_waitcnt vmcnt(0)")
    A("s_barrier")
    A(f"s_cmp_lg_u32 {s(sWv)}, 0")
    A(f"s_cbranch_scc1 {pfx}_end")
    A("s_mov_b64 exec, 1")
    A(f"buffer_store_dword {v(SN)}, {v(ZR)}, {s(S_WS, 4)}, {s(sF)} offen sc1")
    A("s_mov_b64 exec, -1")
    A.label(f"{pfx}_end")


def probe(A, pfx, P):
    sMin = 20
    A(f"s_cmp_gt_u32 {s(sT)}, 1")
    A(f"s_cbranch_scc1 {pfx}_end")
    A(f"s_cmp_lg_u32 {s(sWv)}, 0")
    A(f"s_cbranch_scc1 {pfx}_bar")
    A(f"s_lshl_b32 {s(sT0)}, {s(sT)}, 21")
    A(f"s_add_u32 {s(sT0)}, {s(sT0)}, {hex(L.MR)}")
    A(f"v_lshlrev_b32 v2, 2, {v(vLane)}")
    A("v_mov_b32 v3, -1")
    A(f"s_mov_b64 {s(sMin, 2)}, -1")
    A(f"s_mov_b32 {s(sT2)}, {P.get('npr', 12)}")
    A("s_mov_b32 exec_hi, 0")
    A("s_waitcnt vmcnt(0)")
    A.label(f"{pfx}_lp")
    for h in range(2):
        A("s_memtime s[16:17]")
        A("s_waitcnt lgkmcnt(0)")
        A(f"buffer_store_dword v3, v2, {s(S_WS, 4)}, {s(sT0)} offen sc1")
        A("s_waitcnt vmcnt(0)")
        A("s_memtime s[18:19]")
        A(f"s_xor_b32 {s(sT0)}, {s(sT0)}, 0x2000")
        A("s_waitcnt lgkmcnt(0)")
        A(f"s_sub_u32 {s(sT1)}, s18, s16")
        A(f"s_min_u32 {s(sMin + h)}, {s(sMin + h)}, {s(sT1)}")
    A(f"s_add_u32 {s(sT0)}, {s(sT0)}, 128")
    A(f"s_sub_u32 {s(sT2)}, {s(sT2)}, 1")
    A(f"s_cmp_lg_u32 {s(sT2)}, 0")
    A(f"s_cbranch_scc1 {pfx}_lp")
    A(f"s_cmp_lt_u32 {s(sMin + 1)}, {s(sMin)}")
    A(f"s_cselect_b32 {s(sT0)}, {3 ^ P.get('nbx', 0)}, {2 ^ P.get('nbx', 0)}")
    A(f"s_lshl_b32 {s(sT1)}, {s(sT)}, 2")
    A(f"v_mov_b32 v3, {s(sT0)}")
    A("s_mov_b64 exec, 1")
    A(f"buffer_store_dword v3, off, {s(S_DBG, 4)}, {s(sT1)} offset:{L.D_NB} sc1")
    if P.get("diag"):
        A(f"s_lshl_b32 {s(sT1)}, {s(sT)}, 3")
        A(f"v_mov_b32 v4, {s(sMin)}")
        A(f"v_mov_b32 v5, {s(sMin + 1)}")
        A(f"buffer_store_dwordx2 v[4:5], off, {s(S_DBG, 4)}, {s(sT1)} offset:48 sc1")
    A("s_mov_b64 exec, -1")
    A.label(f"{pfx}_bar")
    A("s_barrier")
    A.label(f"{pfx}_end")


def main_kernel(A, name, P, queues):
    kernel_begin(A, name)
    ex = f"{name}_end"
    A(f"s_load_dwordx4 {s(20, 4)}, s[0:1], 104")
    A(f"s_load_dwordx8 {s(S_PTR, 8)}, s[0:1], 16")
    A(f"s_load_dwordx8 {s(S_P2, 8)}, s[0:1], 64")
    A(f"s_load_dwordx2 {s(S_PX, 2)}, s[0:1], 0")
    A(f"s_load_dwordx2 {s(S_PO, 2)}, s[0:1], 96")
    A(f"s_load_dwordx2 {s(S_M0, 2)}, s[0:1], 8")
    if P.get("diag"):
        A("s_memtime s[56:57]")
        A("s_memrealtime s[100:101]")
    A("s_cmp_ge_u32 s2, 256")
    A(f"s_cbranch_scc1 {ex}")
    A(f"v_lshrrev_b32 {v(t0)}, 6, v0")
    A(f"v_and_b32 {v(t2)}, 63, v0")
    A(f"v_and_b32 {v(vLane)}, 63, v0")
    A(f"v_readfirstlane_b32 {s(sWv)}, {v(t0)}")
    A(f"s_mov_b32 {s(sBud)}, {hex(1 << 19)}")
    A("s_waitcnt lgkmcnt(0)")
    srd(A, S_DBG, 20, 256)
    srd(A, S_WS, 22, L.WS_BYTES)
    chain.slot_assign(A, name, ex)
    A(f"s_cmp_ge_u32 {s(sX)}, 8")
    A(f"s_cbranch_scc1 {ex}")
    if P.get("rot"):
        A(f"s_add_u32 {s(sT)}, {s(sT)}, {P['rot']}")
        A(f"s_and_b32 {s(sT)}, {s(sT)}, 31")
    if P.get("diag"):
        A("s_memrealtime s[58:59]")
        A(f"s_lshl_b32 {s(sT0)}, {s(sX)}, 5")
        A(f"s_add_u32 {s(sT0)}, {s(sT0)}, {s(sT)}")
        A(f"s_lshl_b32 {s(sT0)}, {s(sT0)}, 12")
        A(f"s_add_u32 {s(sT0)}, {s(sT0)}, {hex(L.STAMP + (2 << 20) + 4096 - 32)}")
        A("s_waitcnt lgkmcnt(0)")
        A("v_mov_b32 v2, s100")
        A("v_mov_b32 v3, s58")
        A("v_mov_b32 v4, 0")
        A(f"buffer_store_dwordx2 v[2:3], v4, {s(S_WS, 4)}, {s(sT0)} offen")
    A(f"s_cmp_lt_u32 {s(sX)}, 2")
    A(f"s_cbranch_scc1 {name}_chain")
    startup(A, name + "_s", ex, P)
    A(f"s_lshl_b32 {s(sT0)}, {s(sX)}, 5")
    A(f"s_add_u32 {s(sT0)}, {s(sT0)}, {s(sT)}")
    A(f"s_sub_u32 {s(sT0)}, {s(sT0)}, 96")
    A(f"s_cmp_lt_u32 {s(sT0)}, 16")
    A(f"s_cbranch_scc1 {name}_att")
    if P.get("hold", 0):
        A(f"s_cmp_lt_u32 {s(sX)}, 4")
        A(f"s_cselect_b32 {s(sT0)}, 32, 16")
        A(f"s_cmp_lt_u32 {s(sT)}, {s(sT0)}")
        A(f"s_cbranch_scc0 {name}_nh")
        for _ in range(P["hold"]):
            A("s_sleep 64")
        A.label(f"{name}_nh")
    A(f"s_branch {name}_worker")
    A.label(ex)
    A("s_endpgm")
    A.label(f"{name}_chain")
    chain.chain_body(A, name + "_c", ex, P)
    A.label(f"{name}_att")
    probe(A, name + "_p", P)
    if P.get("apf", 0):
        for k in range(P.get('apn', 4)):
            n = (2 if k < 2 else 7) << 20
            touch(A, P, S_P2 + 2 * k, n, sT, n // 16, 12, 14)
    chain.wait_fill(A, f"{name}_awf", ex, vLane, 0, 2)
    A.label(f"{name}_att2")
    att.attention(A, name + "_a", ex, P)
    A.label(f"{name}_wo")
    wo.wo_stream(A, name + "_o", ex, P)
    A.label(f"{name}_end2")
    A("s_endpgm")
    A.label(f"{name}_worker")
    (pipe if P.get('pipe') else worker).worker(A, name + "_w", f"{name}_end2", P, queues, f"{name}_wo", f"{name}_att2" if P.get("g2", 0) else None)
    kernel_desc(A, name, 512, 256)
```

```python
from asmlib import *
import layout as L
import gemm
from gemm import *
from worker import pack, small_jobs, LN2_TILES

sFm, sOutE, sOPE, sResE = 0, 1, 2, 3
sEv, sEp, sEpN, sGo, sFb = 55, 56, 57, 58, 59
sDq, sNW, sNx, sRs = 60, 61, 62, 63
sW0 = 100
sNn, sCur = 72, 73
vShE, vQa, vRow, vCon = 145, 146, 147, 151
vZq, vDa, vSt, vTb, vPl, vPq, vFa, vTk = 224, 228, 229, 230, 231, 232, 248, 249
NONE = 15
GM = sum(1 << t for t in TYPES)


def flag_ops():
    return [f"s_add_u32 {s(sT0)}, {s(sTy)}, 1\n s_bitcmp0_b32 {s(sT0)}, 2\n s_cselect_b32 {s(sT2)}, 7, 2\n s_cselect_b32 {s(sT3)}, 2, 4",
            f"s_lshl_b32 {s(sFb)}, {s(sTy)}, 13", f"s_add_u32 {s(sFb)}, {s(sFb)}, {hex(L.FLAGS + L.F_T)}",
            f"v_lshrrev_b32 {v(vT0)}, 3, {v(vLane)}", f"v_add_lshl_u32 {v(vT0)}, {s(sRb)}, {v(vT0)}, 9", f"v_and_b32 {v(vT1)}, 3, {v(vLane)}",
            f"v_lshl_add_u32 {v(vT0)}, {v(vT1)}, {s(sT2)}, {v(vT0)}",
            f"v_bfe_u32 {v(vT1)}, {v(vLane)}, 2, 1", f"v_add_u32 {v(vT1)}, {s(sCt)}, {v(vT1)}", f"v_lshl_add_u32 {v(vFa)}, {v(vT1)}, {s(sT3)}, {v(vT0)}",
            f"s_lshl_b32 {s(sFm)}, 4, {s(sCf)}"]


def poll_ld():
    return (f"buffer_load_dword {v(vPl)}, {v(vDa)}, {s(S_WS, 4)}, {s(sDb)} offen sc1\n"
            f"buffer_load_dwordx4 {v(vPq, 4)}, {v(vQa)}, {s(S_WS, 4)}, {s(sDq)} offen sc1")


def decode_ops():
    bfe = lambda d, o, w: f"s_bfe_u32 {s(d)}, {s(sPk)}, {hex(o | (w << 16))}"
    sel = lambda ty, *x: f"s_cmp_eq_u32 {s(sTy)}, {ty}" + "".join(f"\n s_cselect_b32 {s(d)}, {a_}, {b_}" for d, a_, b_ in x)
    return [f"v_readfirstlane_b32 {s(sI)}, {v(vTk)}", "s_nop 1", f"v_cmp_ge_u32 vcc, {s(sI)}, {v(vSt)}", "s_nop 1",
            f"s_bcnt1_i32_b64 {s(sT0)}, vcc", f"s_sub_u32 {s(sT0)}, {s(sT0)}, 1", f"v_readlane_b32 {s(sPk)}, {v(vTb)}, {s(sT0)}", "s_nop 1",
            f"s_and_b32 {s(sT0)}, {s(sPk)}, 0x7ff", f"s_sub_u32 {s(sI)}, {s(sI)}, {s(sT0)}", bfe(sT0, 26, 3),
            f"s_lshr_b32 {s(sCt)}, {s(sI)}, {s(sT0)}", f"s_lshl_b32 {s(sT1)}, {s(sCt)}, {s(sT0)}", f"s_sub_u32 {s(sRb)}, {s(sI)}, {s(sT1)}",
            bfe(sT2, 29, 1), f"s_lshl_b32 {s(sRb)}, {s(sRb)}, {s(sT2)}", bfe(sT3, 30, 1), f"s_lshl_b32 {s(sCt)}, {s(sCt)}, {s(sT3)}",
            bfe(sT0, 17, 4), f"s_add_u32 {s(sRb)}, {s(sRb)}, {s(sT0)}", bfe(sT0, 21, 5), f"s_add_u32 {s(sCt)}, {s(sCt)}, {s(sT0)}",
            bfe(sTy, 11, 4), bfe(sPk, 11, 6), f"s_lshl_b32 {s(sT0)}, {s(sRb)}, 8", f"s_or_b32 {s(sPk)}, {s(sPk)}, {s(sT0)}",
            f"s_lshl_b32 {s(sT0)}, {s(sCt)}, 16", f"s_or_b32 {s(sPk)}, {s(sPk)}, {s(sT0)}",
            sel(L.T_W2, (sT0, 1, 0)), f"s_sub_u32 {s(sRlo)}, {s(sRb)}, {s(sT0)}", f"s_max_i32 {s(sRlo)}, {s(sRlo)}, 0",
            f"s_add_u32 {s(sRhi)}, {s(sRb)}, {s(sT2)}", f"s_add_u32 {s(sRhi)}, {s(sRhi)}, {s(sT0)}", f"s_min_u32 {s(sRhi)}, {s(sRhi)}, 15",
            sel(L.T_W3, (sNmax, 8 // LN2_TILES - 1, 7)), sel(L.T_W4, (sNmax, 27, s(sNmax)), (sSh, 5, 4)),
            f"s_add_u32 {s(sT1)}, {s(sCt)}, {s(sT3)}", f"s_lshl_b32 {s(sT2)}, {s(sRb)}, 9",
            sel(L.T_WO, (sNmax, 0, s(sNmax)), (sRlo, s(sCt), s(sRlo)), (sRhi, s(sT1), s(sRhi))),
            sel(L.T_WO, (sRs, 2, 9), (sNW, 0, hex(OOB)), (sT2, s(sT2), 0)),
            f"v_lshrrev_b32 {v(vDa)}, {s(sSh)}, {v(vLane)}", f"v_lshlrev_b32 {v(vT1)}, {s(sSh)}, {v(vDa)}", f"v_sub_u32 {v(vT1)}, {v(vLane)}, {v(vT1)}",
            f"s_cmp_lt_u32 {s(sTy)}, {L.T_W2}\n s_cselect_b32 {s(sDb)}, {L.T_LN1 + 1}, {s(sTy)}",
            f"v_min_u32 {v(vT1)}, {s(sNmax)}, {v(vT1)}", f"s_lshl_b32 {s(sDb)}, {s(sDb)}, 13", sel(L.T_W1, (sT2, 4, s(sT2))),
            f"v_add_u32 {v(vDa)}, {s(sRlo)}, {v(vDa)}", f"s_add_u32 {s(sDb)}, {s(sDb)}, {s(sT2)}",
            f"s_add_u32 {s(sDb)}, {s(sDb)}, {hex(L.FLAGS + L.F_T - 8192)}", f"v_min_u32 {v(vDa)}, {s(sRhi)}, {v(vDa)}",
            f"s_lshl_b32 {s(sDq)}, {s(sRb)}, 10", f"s_add_u32 {s(sDq)}, {s(sDq)}, {hex(L.FLAGS + L.F_O)}",
            f"v_lshlrev_b32 {v(vDa)}, {s(sRs)}, {v(vDa)}", f"v_lshl_add_u32 {v(vDa)}, {v(vT1)}, 4, {v(vDa)}", f"v_or_b32 {v(vQa)}, {s(sNW)}, {v(vL16)}"]


def eval_ops():
    return [f"v_min3_u32 {v(vT0)}, {v(vPq)}, {v(vPq + 1)}, {v(vPq + 2)}", f"v_min_u32 {v(vT0)}, {v(vT0)}, {v(vPq + 3)}",
            f"v_or_b32 {v(vT0)}, {s(sNW)}, {v(vT0)}", f"v_min_u32 {v(vT0)}, {v(vT0)}, {v(vPl)}", f"v_cmp_eq_u32 vcc, 0, {v(vT0)}"]


def unpack_ops(x):
    return [f"s_and_b32 {s(sTy)}, {s(x)}, 15", f"s_bfe_u32 {s(sCf)}, {s(x)}, {hex(4 | (2 << 16))}",
            f"s_bfe_u32 {s(sRb)}, {s(x)}, {hex(8 | (8 << 16))}", f"s_lshr_b32 {s(sCt)}, {s(x)}, 16"]


def ticket(A):
    A(f"s_lshl_b32 {s(sT0)}, {s(sQ)}, 8")
    A(f"s_add_u32 {s(sT0)}, {s(sT0)}, {hex(L.FLAGS + L.F_QUE)}")
    A("s_mov_b64 exec, 1")
    A(f"v_mov_b32 {v(vTk)}, 1")
    A(f"buffer_atomic_add {v(vTk)}, off, {s(S_WS, 4)}, {s(sT0)} sc0 sc1")
    A("s_mov_b64 exec, -1")


def post(A, diag):
    A(f"s_bfm_b64 exec, {s(sFm)}, 0")
    A(f"buffer_store_dword {v(vONE)}, {v(vFa)}, {s(S_WS, 4)}, {s(sFb)} offen sc1")
    A("s_mov_b64 exec, -1")
    if diag:
        A("s_memtime s[86:87]")
        A("s_memrealtime s[90:91]")
        A("s_waitcnt lgkmcnt(0)")
        A(f"v_mov_b32 {v(vT1)}, 0")
        for i, x in enumerate((89, 76, 77, 90, 83, 82, 84, 86)):
            A(f"v_writelane_b32 {v(vT1)}, s{x}, {i}")
        A(f"v_lshlrev_b32 {v(vT0)}, 2, {v(vLane)}")
        A("s_mov_b64 exec, 0xff")
        A(f"buffer_store_dword {v(vT1)}, {v(vT0)}, {s(S_WS, 4)}, s88 offen")
        A("s_mov_b64 exec, -1")
        A("s_add_u32 s88, s88, 32")
        A("s_mov_b32 s76, s85")


def dsave(A):
    A("s_memtime s[82:83]")
    A("s_waitcnt lgkmcnt(0)")
    A("s_mov_b32 s89, s79\n s_mov_b32 s77, s78\n s_mov_b32 s83, s80")


def addr_cfg(A, c):
    g_, q_, rl, pu = 0, 1, 2, 3
    A(f"v_lshrrev_b32 {v(g_)}, 4, {v(vLane)}")
    A(f"v_bfe_u32 {v(q_)}, {v(vLane)}, 2, 2")
    A(f"v_lshl_add_u32 {v(4)}, {v(g_)}, 2, {v(q_)}")
    A(f"v_and_b32 {v(5)}, 7, {v(4)}")
    A(f"v_mul_u32_u24 {v(4)}, {c.pitch}, {v(4)}")
    A(f"v_and_b32 {v(6)}, 3, {v(vLane)}")
    A(f"v_lshl_add_u32 {v(4)}, {v(6)}, 3, {v(4)}")
    A(f"s_mul_i32 {s(sT0)}, {s(sWm)}, {c.WM}")
    A(f"v_xor_b32 {v(5)}, {s(sT0)}, {v(5)}")
    A(f"v_lshl_add_u32 {v(vWa)}, {v(5)}, 5, {v(4)}")
    for mt in range(1, c.WM):
        A(f"v_xor_b32 {v(vWa + mt)}, {mt * 32}, {v(vWa)}")
    A(f"s_mul_i32 {s(sT0)}, {s(sWn)}, {c.WN * c.nsub * 1024}")
    A(f"s_add_u32 {s(sT0)}, {s(sT0)}, {XR}")
    A(f"v_add_u32 {v(vXa)}, {s(sT0)}, {v(vL16)}")
    rpi = 1024 // c.pitch
    lpr = 64 // rpi
    A(f"v_lshrrev_b32 {v(rl)}, {int(math.log2(lpr))}, {v(vLane)}")
    A(f"v_and_b32 {v(pu)}, {lpr - 1}, {v(vLane)}")
    A(f"s_mul_i32 {s(sT0)}, {s(sWv)}, {4 * rpi}")
    A(f"v_add_u32 {v(vRow)}, {s(sT0)}, {v(rl)}")
    for d in range(4):
        if d:
            A(f"v_add_u32 {v(vRow + d)}, {d * rpi}, {v(vRow)}")
        A(f"v_and_b32 {v(6)}, 7, {v(vRow + d)}")
        A(f"v_lshlrev_b32 {v(6)}, 1, {v(6)}")
        A(f"v_xor_b32 {v(6)}, {v(6)}, {v(pu)}")
        A(f"v_lshlrev_b32 {v(vCon + d)}, 4, {v(6)}")
        if d:
            A(f"v_subrev_u32 {v(vCon + d)}, {d * 1024}, {v(vCon + d)}")
    A(f"s_mul_i32 {s(sMW)}, {s(sWv)}, {c.Wst // 4}")
    A(f"s_mul_i32 {s(sMX)}, {s(sWv)}, {c.Xst // 4}")
    A(f"s_add_u32 {s(sMX)}, {s(sMX)}, {XR}")


def addr_job(A, c):
    nrt = c.nX // c.nsub
    A(f"s_mul_i32 {s(sT0)}, {s(sWv)}, {nrt}")
    A(f"s_mul_i32 {s(sT0)}, {s(sT0)}, {s(sXP)}")
    for d in range(4):
        A(f"v_mad_u32_u24 {v(vWd + d)}, {v(vRow + d)}, {s(sLdw)}, {v(vCon + d)}")
    for j in range(nrt):
        A(f"v_add_u32 {v(vXd + j)}, {s(sT0)}, {v(vL16)}")
        if j + 1 < nrt:
            A(f"s_add_u32 {s(sT0)}, {s(sT0)}, {s(sXP)}")
            A(f"s_sub_u32 {s(sT0)}, {s(sT0)}, {c.nsub * 1024}")
    A(f"s_mul_i32 {s(sWinc)}, {s(sLdw)}, {c.BK}")
    A(f"s_mov_b32 {s(sWo)}, 0")


def main_loop(A, c, cf, vt, pfx, wp, P, gid, has_res, fin_id):
    nsub = c.nsub
    diag = P.get("diag")
    w0 = lambda x: f"s_mov_b64 exec, {s(sW0, 2)}\n {x}\n s_mov_b64 exec, -1"
    A("s_waitcnt vmcnt(0)")
    for st in range(4):
        for f in dma_ops(A, c, st, "x"):
            f()
        if st < 3 or nsub == 1:
            for f in dma_ops(A, c, st, "w"):
                f()
    A(f"s_cmp_lg_u32 {s(sEp)}, 0")
    A(f"s_cbranch_scc1 {wp}_epi")
    A.label(f"{pfx}_ent")
    if diag:
        A("s_memrealtime s[78:79]\n s_memtime s[80:81]\n s_waitcnt lgkmcnt(0)")
        A(f"s_mov_b32 s79, {s(sNx)}")
    zc = [f"v_mfma_f32_32x32x16_bf16 {r(c.accb + 16 * i, 16)}, {v(vZq, 4)}, {v(vZq, 4)}, 0" for i in range(c.WM * c.WN // 4)]
    A(zc.pop(0))
    A(f"s_waitcnt vmcnt({3 * c.nd - (c.nW if nsub == 2 else 0)})")
    A("s_barrier")
    sa = [f"s_sub_u32 {s(sN)}, {s(sNn)}, 1", f"s_sub_u32 {s(sEv)}, {s(sNn)}, 2", f"s_orn2_b32 {s(sEv)}, {s(sEv)}, {s(sW0)}", f"s_mov_b32 {s(sCur)}, -1"]
    for k, f in enumerate(read_ops(A, c, 0, 0, 0)):
        f()
        if k % 3 == 2 and zc:
            A(zc.pop(0))
    for x in zc + sa:
        A(x)
    A.nop(1)
    par = [0]

    def since(stop):
        n = nd = 0
        for ln_ in reversed(A.lines):
            if ln_.startswith("buffer_"):
                if stop(ln_, nd):
                    return n
                nd += ln_.endswith("lds")
                n += f"{v(vDa)}," not in ln_ and f"{v(vQa)}," not in ln_ and f"{s(S_X, 4)}" not in ln_

    def substep(reads, dmas, bar, ex=(), e0=1, e1=99):
        p = par[0]
        par[0] ^= 1
        ms = [(mt, nt) for nt in range(c.WN) for mt in range(c.WM)]
        nm = len(ms)
        A("s_waitcnt lgkmcnt(0)")
        pre = P.get("gpre", 1) if bar is not None else 0
        fill = {}
        rp = P.get("grp", 1)
        for k, f in enumerate(reads):
            fill.setdefault(min(nm, pre + k // rp), []).append(f)
        d0 = pre + P.get("gd0", 0)
        nd_ = len(dmas)
        for k, f in enumerate(dmas):
            fill.setdefault(min(nm, d0 + (k * (nm - d0)) // max(1, nd_)), []).append(f)
        e0 = e0 % nm
        for k, x in enumerate(ex):
            fill.setdefault(e0 + (k * (min(nm, e1) - e0)) // len(ex), []).append((lambda x=x: A(x)) if isinstance(x, str) else x)
        for i in range(nm + 1):
            if i == pre and bar is not None:
                if bar == "n":
                    bar = since(lambda l_, nd: l_.endswith("lds") and nd == 2 * c.nd)
                if bar >= 0:
                    A(f"s_waitcnt vmcnt({bar})")
                A("s_barrier")
            for f in fill.get(i, []):
                f()
            if i < nm:
                mt, nt = ms[i]
                wa, xb = v(c.fa(p, mt), 4), v(c.fb(p, nt), 4)
                d = r(c.acc(mt, nt), 4)
                A(f"v_mfma_f32_16x16x32_bf16 {d}, {xb}, {wa}, {d}" if vt else f"v_mfma_f32_16x16x32_bf16 {d}, {wa}, {xb}, {d}")

    def half(slot, d, ex=()):
        if nsub == 2:
            substep(read_ops(A, c, slot, 1, par[0] ^ 1), dma_ops(A, c, (slot - 1) & 3, "w") if d else [], None, ex)

    def rest(slot, d, bar, last=False, ex=(), e0=1, e1=99):
        substep([] if last else read_ops(A, c, (slot + 1) & 3, 0, par[0] ^ 1),
                dma_ops(A, c, slot, "x") + dma_ops(A, c, slot, "w") * (nsub == 1) if d else [], bar, ex, e0, e1)

    A.label(f"{pfx}_loop")
    for st in range(4):
        half(st, True)
        if st == 0:
            A.label(f"{pfx}_mid")
        rest(st, True, 2 * c.nd)
    A(f"s_sub_u32 {s(sN)}, {s(sN)}, 1")
    A(f"s_cmp_eq_u32 {s(sN)}, {s(sEv)}")
    A(f"s_cbranch_scc1 {pfx}_ev")
    A(f"s_cmp_lg_u32 {s(sN)}, 0")
    A(f"s_cbranch_scc1 {pfx}_loop")
    A(f"s_cmp_lg_u32 {s(sCur)}, -1")
    A(f"s_cbranch_scc1 {wp}_epn")
    ex = flag_ops() + decode_ops() + [w0(poll_ld())]
    h = len(ex) // 2 if nsub == 2 else 0
    half(0, True, ex[:h])
    rest(0, True, 2 * c.nd, False, ex[h:])
    ex = [f"s_mov_b32 {s(sOutE)}, {s(sOut)}", f"s_mov_b32 {s(sOPE)}, {s(sOP)}", f"s_mov_b32 {s(sResE)}, {s(sRes)}",
          f"s_mov_b32 {s(sEp)}, {s(sEpN)}", f"v_mov_b32 {v(vShE)}, {v(vSh)}", f"v_mov_b32 {v(vT2)}, {LDS_MISC}"]
    if has_res:
        B = Asm()
        res_loads(B, c, 0)
        ex += B.lines
    h = len(ex) * 2 // 3 if nsub == 2 else 0
    half(1, True, ex[:h])
    rest(1, True, "n", False, ex[h:])
    if has_res and fin_id:
        A(f"s_cmp_lg_u32 {s(sEp)}, {fin_id}")
        A(f"s_cbranch_scc1 {pfx}_nox")
        res_loads(A, c, 0, True)
        A.label(f"{pfx}_nox")
    half(2, True)
    rest(2, True, "n", False, [lambda: A(f"s_waitcnt vmcnt({since(lambda l_, nd: f'{v(vQa)},' in l_)})")] + eval_ops() + [
        "s_nop 1", f"s_cmp_eq_u64 vcc, 0\n s_cselect_b32 {s(sT0)}, {s(sPk)}, -4", f"s_bitcmp1_b32 {hex(GM)}, {s(sTy)}\n s_cselect_b32 {s(sT0)}, {s(sT0)}, -4",
        f"v_mov_b32 {v(vT1)}, {s(sT0)}", w0(f"ds_write_b32 {v(vT2)}, {v(vT1)}")], -11)
    half(3, True)
    ex = [f"v_readfirstlane_b32 {s(sNx)}, {v(vT1)}", "s_nop 1"] + unpack_ops(sNx)
    rest(3, True, "n", False, [f"ds_read_b32 {v(vT1)}, {v(vT2)}"] + ([""] * 12 + ["s_waitcnt lgkmcnt(8)"] + ex) * (nsub == 1))
    half(0, True, ex)
    if P.get("strm", 1):
        A(f"s_cmp_eq_u32 {s(sCf)}, {cf}")
        A(f"s_cselect_b32 {s(sCur)}, {gid}, -1")
        A(f"s_cbranch_scc1 {wp}_c{cf}_task")
    rest(0, False, 2 * c.nd)
    half(1, False)
    rest(1, False, c.nd)
    half(2, False)
    rest(2, False, 0)
    half(3, False)
    rest(3, False, -1, True)
    if diag:
        dsave(A)
    A(f"s_cmp_lg_u32 {s(sNx)}, -4")
    A(f"s_cbranch_scc1 {wp}_gemm")
    A(f"s_branch {wp}_slow")
    A.label(f"{pfx}_ev")
    A(f"s_mov_b32 {s(sEv)}, 1")
    A(f"s_cmp_eq_u32 {s(sEp)}, 0")
    A(f"s_cbranch_scc1 {pfx}_et")
    post(A, diag)
    A(f"s_mov_b32 {s(sEp)}, 0")
    A.label(f"{pfx}_et")
    A(f"s_cmp_lg_u32 {s(sN)}, 1")
    A(f"s_cbranch_scc1 {pfx}_loop")
    ticket(A)
    A(f"s_branch {pfx}_loop")


def worker(A, pfx, exit_lbl, P, queues, wo_lbl=None, att_lbl=None):
    NQ = len(queues)
    ER.out, ER.op, ER.res, ER.sh, ER.pre, ER.none = sOutE, sOPE, sResE, vShE, True, hex(OOB)
    worker_consts(A)
    A(f"v_mov_b32 {v(vSh)}, 0")
    for x in list(range(vZq, vZq + 12)) + [vTk, vFa] + list(range(vWa, vCon + 4)):
        A(f"v_mov_b32 {v(x)}, 0")
    A(f"s_cmp_eq_u32 {s(sWv)}, 0")
    A(f"s_cselect_b64 {s(sW0, 2)}, -1, 0")
    for x in (sOut, sOP, sRes, sFm, sOutE, sOPE, sResE, sFb, sDq, sDb):
        A(f"s_mov_b32 {s(x)}, 0")
    srd(A, S_W, S_PTR, 0)
    used, enc = {}, []
    small = (L.T_LN2, L.T_FILL, L.T_PREF)
    for q in queues:
        st, ph = 0, []
        for ty, cf, rb0, nrb, ct0, nct in q:
            lg = nrb.bit_length() - 1
            assert 1 << lg == nrb
            c = CFGS[cf]
            rs, cs = (0, 0) if ty in small else (c.TN // 256, c.TM // 256)
            ph.append(pack(st, ty, cf, rb0, ct0, lg, rs, cs))
            st += nrb * nct
            assert not (ty == L.T_WO and rs)
            if ty not in small:
                used.setdefault(cf, set()).add(ty)
        assert st < 1400 and len(ph) < 63
        enc.append(ph + [st | NONE << 11])
    diag = P.get("diag")
    if diag:
        A(f"s_lshl_b32 {s(sT0)}, {s(sX)}, 5")
        A(f"s_add_u32 {s(sT0)}, {s(sT0)}, {s(sT)}")
        A(f"s_lshl_b32 s88, {s(sT0)}, 12")
        A(f"s_add_u32 s88, s88, {hex(L.STAMP + (2 << 20))}")
        A("s_memrealtime s[76:77]\n s_waitcnt lgkmcnt(0)")
    A(f"s_cmp_lg_u32 {s(sWv)}, 0")
    A(f"s_cbranch_scc1 {pfx}_bar")
    A.label(f"{pfx}_selq")
    ticket(A)
    A(f"v_mov_b32 {v(vTb)}, {hex(0x7ff | NONE << 11)}")
    for q in range(NQ):
        if q + 1 < NQ:
            A(f"s_cmp_lg_u32 {s(sQ)}, {q}")
            A(f"s_cbranch_scc1 {pfx}_q{q + 1}")
        for p_, x in enumerate(enc[q]):
            A(f"s_mov_b32 {s(sT0)}, {hex(x)}")
            A(f"v_writelane_b32 {v(vTb)}, {s(sT0)}, {p_}")
        if q + 1 < NQ:
            A(f"s_branch {pfx}_qe")
            A.label(f"{pfx}_q{q + 1}")
    A.label(f"{pfx}_qe")
    A(f"v_and_b32 {v(vSt)}, 0x7ff, {v(vTb)}")
    A.label(f"{pfx}_dec")
    A("s_waitcnt vmcnt(0)")
    for x in decode_ops():
        A(x)
    A.label(f"{pfx}_chk")
    A(f"s_and_b32 {s(sTy)}, {s(sPk)}, 15")
    A(f"s_cmp_lg_u32 {s(sTy)}, {NONE}")
    A(f"s_cbranch_scc1 {pfx}_got")
    A(f"s_add_u32 {s(sQ)}, {s(sQ)}, 1")
    A(f"s_cmp_ge_u32 {s(sQ)}, {NQ}")
    A(f"s_cselect_b32 {s(sQ)}, 0, {s(sQ)}")
    A(f"s_add_u32 {s(sQn)}, {s(sQn)}, 1")
    A(f"s_mov_b32 {s(sPk)}, -1")
    if wo_lbl:
        A(f"s_lshl_b32 {s(sT0)}, 1, {s(sX)}")
        A(f"s_and_b32 {s(sT0)}, {s(sT0)}, {0x74 if att_lbl and P.get('g2s', 0) else 0x14}")
        A(f"s_cselect_b32 {s(sPk)}, -2, -1")
        A(f"s_cbranch_scc1 {pfx}_pub")
    A(f"s_cmp_lt_u32 {s(sQn)}, {NQ}")
    A(f"s_cbranch_scc1 {pfx}_selq")
    if att_lbl:
        A(f"s_lshl_b32 {s(sT0)}, {s(sX)}, 5")
        A(f"s_add_u32 {s(sT0)}, {s(sT0)}, {s(sT)}")
        A(f"s_sub_u32 {s(sT0)}, {s(sT0)}, 160")
        A(f"s_cmp_lt_u32 {s(sT0)}, 80")
        A(f"s_cselect_b32 {s(sPk)}, -3, -1")
        A(f"s_cmp_lt_u32 {s(sT0)}, 64")
        A(f"s_cselect_b32 {s(sPk)}, -2, {s(sPk)}")
    A(f"s_branch {pfx}_pub")
    A.label(f"{pfx}_got")
    A(f"s_cmp_ge_u32 {s(sTy)}, {L.T_FILL}")
    A(f"s_cbranch_scc1 {pfx}_pub")
    A.label(f"{pfx}_poll")
    A(poll_ld())
    A("s_waitcnt vmcnt(0)")
    for x in eval_ops():
        A(x)
    A(f"s_cbranch_vccz {pfx}_pub")
    A("s_sleep 8")
    A(f"s_sub_u32 {s(sBud)}, {s(sBud)}, 1")
    A(f"s_cbranch_scc0 {pfx}_poll")
    A(f"s_mov_b32 {s(sPk)}, -1")
    A.label(f"{pfx}_pub")
    A(f"v_mov_b32 {v(vT0)}, {LDS_MISC}")
    A(f"v_mov_b32 {v(vT1)}, {s(sPk)}")
    A(f"ds_write_b32 {v(vT0)}, {v(vT1)}")
    A("s_waitcnt lgkmcnt(0)")
    A.label(f"{pfx}_bar")
    A("s_barrier")
    A(f"v_mov_b32 {v(vT0)}, {LDS_MISC}")
    A(f"ds_read_b32 {v(vT1)}, {v(vT0)}")
    A(f"s_mov_b32 {s(sEp)}, 0")
    A(f"s_mov_b32 {s(sCur)}, -1")
    A(f"s_mov_b32 {s(sGo)}, -2")
    A("s_waitcnt lgkmcnt(0)")
    A(f"v_readfirstlane_b32 {s(sNx)}, {v(vT1)}")
    A("s_nop 3")
    A(f"s_cmp_eq_u32 {s(sNx)}, -1")
    A(f"s_cbranch_scc1 {exit_lbl}")
    if wo_lbl:
        A(f"s_cmp_eq_u32 {s(sNx)}, -2")
        A(f"s_cbranch_scc1 {wo_lbl}")
    if att_lbl:
        A(f"s_cmp_eq_u32 {s(sNx)}, -3")
        A(f"s_cbranch_scc1 {att_lbl}")
    if diag:
        A("s_memrealtime s[78:79]\n s_memtime s[80:81]\n s_waitcnt lgkmcnt(0)")
        A(f"s_mov_b32 s79, {s(sNx)}")
    for x in unpack_ops(sNx):
        A(x)
    for ty, nm in ((L.T_LN2, "ln2"), (L.T_FILL, "fill"), (L.T_PREF, "pref")):
        A(f"s_cmp_eq_u32 {s(sTy)}, {ty}")
        A(f"s_cbranch_scc1 {pfx}_{nm}")
    A.label(f"{pfx}_gemm")
    cfl = sorted(used)
    for cf in cfl[1:]:
        A(f"s_cmp_eq_u32 {s(sCf)}, {cf}")
        A(f"s_cbranch_scc1 {pfx}_c{cf}_task")
    eps, gos = {}, []
    for cf in cfl:
        for ty in sorted(used[cf]):
            eps.setdefault((cf, TYPES[ty][8]), len(eps) + 1)
    for cf in cfl:
        c, px = CFGS[cf], f"{pfx}_c{cf}"
        types = sorted(used[cf])
        type_setup(A, c, px, types, exit_lbl, lambda ty: A(f"s_mov_b32 {s(sEpN)}, {eps[cf, TYPES[ty][8]]}"))
        nt_ = [t for t in types if t != L.T_V]
        vts = [vt for vt in (0, 1) if (L.T_V in types if vt else nt_)]
        A.label(f"{px}_str")
        addr_job(A, c)
        A(f"s_mov_b32 {s(sN)}, 1")
        A(f"s_cmp_eq_u32 {s(sCur)}, {len(gos)}")
        A(f"s_cbranch_scc1 {px}_{'nv'[vts[0]]}_mid")
        A(f"s_branch {px}_{'nv'[vts[-1]]}_mid")
        for vt in vts:
            A.label(f"{px}_gov" if vt else f"{px}_go")
            A(f"s_mov_b32 {s(sGo)}, {len(gos)}")
            A(f"s_mov_b32 {s(sNn)}, {s(sN)}")
            A(f"s_cmp_lg_u32 {s(sCur)}, -1")
            A(f"s_cbranch_scc1 {px}_str")
            A("s_waitcnt lgkmcnt(0)")
            addr_cfg(A, c)
            addr_job(A, c)
            gos.append(f"{px}_{'nv'[vt]}")
            main_loop(A, c, cf, vt, gos[-1], pfx, P, len(gos) - 1, not vt and any(TYPES[t][9] is not None for t in nt_), eps.get((cf, "fin")))
    A.label(f"{pfx}_epn")
    if diag:
        dsave(A)
    A("s_waitcnt lgkmcnt(0)")
    A(f"s_branch {pfx}_epw")
    A.label(f"{pfx}_slow")
    A(f"s_mov_b32 {s(sGo)}, -1")
    A.label(f"{pfx}_epw")
    A.nop(6)
    A.label(f"{pfx}_epi")
    for k in list(eps.values())[1:]:
        A(f"s_cmp_eq_u32 {s(sEp)}, {k}")
        A(f"s_cbranch_scc1 {pfx}_e{k}")
    for (cf, kd), k in eps.items():
        A.label(f"{pfx}_e{k}")
        epilogue(A, CFGS[cf], kd)
        if k < len(eps):
            A(f"s_branch {pfx}_ee")
    A.label(f"{pfx}_ee")
    if diag:
        A("s_memtime s[84:85]\n s_memrealtime s[86:87]\n s_waitcnt lgkmcnt(0)\n s_mov_b32 s85, s86")
    for k, g in enumerate(gos):
        A(f"s_cmp_eq_u32 {s(sGo)}, {k}")
        A(f"s_cbranch_scc1 {g}_ent")
    A(f"s_branch {pfx}_drain")
    small_jobs(A, pfx, P)
    A.label(f"{pfx}_done")
    if diag:
        dsave(A)
        A("s_memtime s[84:85]\n s_memrealtime s[86:87]\n s_waitcnt lgkmcnt(0)\n s_mov_b32 s85, s86")
    for x in flag_ops():
        A(x)
    A.label(f"{pfx}_drain")
    A("s_waitcnt vmcnt(0)")
    A("s_barrier")
    A(f"s_cmp_lg_u32 {s(sWv)}, 0")
    A(f"s_cbranch_scc1 {pfx}_bar")
    post(A, diag)
    A(f"s_cmp_eq_u32 {s(sGo)}, -1")
    A(f"s_cbranch_scc1 {pfx}_chk")
    ticket(A)
    A(f"s_branch {pfx}_dec")
```

```python
import layout as L
Q, K, V, W1, W2, LN2, W3, W4, WO, LN1, FILL, PREF = range(12)
NCT = {Q: 32, K: 32, V: 32, W1: 8, W2: 8, LN2: 4, W3: 28, W4: 8, WO: 8, FILL: 4}


def expand(q):
    out = []
    for ty, cf, rb0, nrb, ct0, nct in q:
        rs, cs = (1, 1) if ty in (LN2, FILL, PREF) else ((2 if cf == 2 else 1), (2 if cf >= 1 else 1))
        for i in range(nrb * nct):
            rb, ct = rb0 + (i % nrb) * rs, ct0 + (i // nrb) * cs
            out.append((ty, cf, [(rb + a, ct + b) for a in range(rs) for b in range(cs)]))
    return out


RP = [0]


def deps(ty, cells):
    rbs = sorted({c[0] for c in cells})
    if ty == W4 and rbs[0] < RP[0]:
        return [(W3, r, c) for r in rbs for c in range(28)] + [(WO, a, b) for a, b in cells]
    if ty == W2:
        return [(W1, r, c) for r in range(max(0, rbs[0] - 1), min(15, rbs[-1] + 1) + 1) for c in range(8)]
    if ty in (LN2, W3, W4):
        return [(ty - 1, r, c) for r in rbs for c in range(NCT[ty - 1])]
    if ty == WO:
        r = rbs[0]
        return [(W4, a, b) for a, b in cells if r >= RP[0]] + [(t, x, c) for t in (Q, K, V) for x in range(r + 1) for c in range(32)] + \
               [(FILL, x, c) for x in range(1, min(15, r + 1) + 1) for c in range(4)]
    return []


def check(qs, R0):
    ex = [expand(q) for q in qs]
    seen = {}
    for q in ex:
        for ty, cf, cells in q:
            for c in cells:
                assert (ty,) + c not in seen, (ty, c)
                seen[(ty,) + c] = 1
    for ty, n in NCT.items():
        for rb in range(16):
            if (ty == WO and rb >= R0) or (ty == FILL and rb == 0):
                continue
            for c in range(n):
                assert (ty, rb, c) in seen, (ty, rb, c)
    done, pos = set(), [0] * len(ex)
    prog = True
    while prog:
        prog = False
        for i, q in enumerate(ex):
            while pos[i] < len(q) and all(d in done for d in deps(q[pos[i]][0], q[pos[i]][2])) and \
                    (q[pos[i]][0] != WO or len(ex) < 7 or pos[6] == len(ex[6])):
                done |= {(q[pos[i]][0],) + c for c in q[pos[i]][2]}
                pos[i] += 1
                prog = True
    assert all(pos[i] == len(q) for i, q in enumerate(ex)), "queue order can deadlock"


def simulate(qs, R0, T0=20.0, step=3.1, verbose=True):
    import heapq
    ex = [expand(q) for q in qs]
    dur = lambda ty, cf: {LN2: 4, FILL: 6.5, PREF: 16}.get(ty) or [7.5, 13.5, 23][cf] * {W4: 3.3, WO: 3.5}.get(ty, 1)
    fin = {}
    pos = [0] * len(ex)
    W = []
    for x in range(2, 8):
        for t in range(32):
            if x == 3 and t < 16:
                continue
            ln = x < 4 or t < 16
            W.append([8.5 if ln else 6.0, x, x - 2, 0, None])
    INF = 1e9

    def att_done(r):
        t, a = T0, 0
        for s in range(4 * r + 4):
            rb = s // 4
            need = [(ty, rb, c) for ty in (K, V) for c in range(32)] + [(FILL, min(15, rb + 1), c) for c in range(4)]
            if any(n not in fin for n in need) or any((Q, rb, c) not in fin for c in range(32)):
                return INF, INF
            t = max(t, max(fin[n] for n in need) + 1)
            a = max(a, t + 1.6, max(fin[(Q, rb, c)] for c in range(32))) + 0.8
            t += step
        return a, t
    idle = 0.0
    left2 = 0
    pend = list(range(len(W)))
    now = 0
    active = set(range(len(W)))
    while active:
        best = None
        for i in sorted(active, key=lambda i: W[i][0]):
            w = W[i]
            if w[4] is None:
                best = i
                break
            ty, cf, cells = w[4]
            d = deps(ty, cells)
            if all(x in fin for x in d):
                best = i
                break
        assert best is not None
        w = W[best]
        if w[4] is None:
            q = w[2]
            w[0] += 0.7
            if pos[q] < len(ex[q]):
                w[4] = ex[q][pos[q]]
                pos[q] += 1
            else:
                w[3] += 1
                if w[1] in (2, 4) or w[3] >= len(ex):
                    active.discard(best)
                    if w[1] in (2, 4):
                        left2 = max(left2, w[0])
                else:
                    w[2] = (q + 1) % len(ex)
            continue
        ty, cf, cells = w[4]
        rdy = max([fin[x] for x in deps(ty, cells)], default=0)
        if ty == WO:
            rdy = max(rdy, att_done(cells[0][0])[0])
        idle += max(0, rdy - w[0])
        w[0] = max(w[0], rdy) + dur(ty, cf)
        for c in cells:
            fin[(ty,) + c] = w[0]
        w[4] = None
    if verbose:
        for ty, n in NCT.items():
            print(ty, " ".join(f"{max([fin.get((ty, rb, c), 0) for c in range(n)]):5.0f}" for rb in range(16)))
        print("att", " ".join(f"{att_done(r)[0]:5.0f}" for r in range(16)))
        print("blocked CU.us", idle, "xcd2 leaves", left2)


DUR = {Q: (8, 13.5), K: (8, 13.3), V: (8, 13), W1: (8, 13.9), W2: (7.7, 13), LN2: (3.8,), W3: (8, 14.1), W4: (23.3, 42), WO: (24.4, 44),
       FILL: (3.2,), PREF: (17,)}


def auto(P, verbose=False):
    R0 = P["S0"] // 4
    T0, RB = P.get("sT0", 25), P.get("sRB", 103) / 10
    mg = P.get("smg", 12)
    TB, TBs = P.get("sTB", 85), P.get("sTBs", 3)
    leave = P.get("slv", 150)
    units = []

    def unit(dl, ph):
        units.append([dl - DUR[ph[0]][ph[1]], ph])
    dKV = lambda r: T0 - 3 + RB * r - mg
    for ty in (K, V, Q):
        off = 0 if ty != Q else P.get("sQo", 6)
        if ty == Q:
            for j in range(2):
                unit(dKV(0) + off + 12, (ty, 1, 0, 2, 16 * j, 8))
                unit(dKV(2) + off, (ty, 1, 2, 2, 16 * j, 8))
        else:
            for j in range(2):
                unit(dKV(3) + off, (ty, 1, 3, 1, 16 * j, 8))
        for i in range(1, 4):
            for j in range(4):
                unit(dKV(4 * i) + off, (ty, 1, 4 * i, 4, 8 * j, 4))
    for r, n in ((2, 2), (4, 4), (8, 4), (12, 4)):
        unit(dKV(r - 1), (FILL, 0, r, n, 0, 4))
    d4 = lambda r: TB + TBs * r
    for i in range(4):
        r = 4 * i
        for j in range(2):
            unit(d4(r), (W4, 0, r, 4, 4 * j, 4))
        for c0, n in ((0, 4), (8, 4), (16, 3), (22, 3)):
            unit(d4(r) - 25, (W3, 1, r, 4, c0, n))
        unit(d4(r) - 41, (LN2, 0, r, 4, 0, 4))
        for j in range(2):
            unit(d4(r) - 46, (W2, 0, r + 2 * j, 2, 0, 8))
        unit(d4(max(0, r - 4)) - 55, (W1, 1, r, 4, 0, 4))
    if P.get("spf", 1):
        unit(d4(0) - 60, (PREF, 0, 0, 2, 0, 4))
        unit(d4(0) - P.get("sp2", 40), (PREF, 0, 2, 1, 0, 14))
        unit(d4(0) - P.get("sp3", 25), (PREF, 0, 3, 1, 0, 14))
    for r in range(R0):
        unit(T0 + RB * (r + 1) + 3 + 60, (WO, 0, r, 1, 0, 8))
    qs = [[] for _ in range(6)]
    for j in range(4):
        qs[2 + j] += [(ty, 0, 0, 1, 8 * j, 8) for ty in (K, V)] + [(ty, 1, 1, 2, 8 * j, 4) for ty in (K, V)]
    qs[1].append((FILL, 0, 1, 1, 0, 4))
    pend = [expand(q) for q in qs]
    fin = {}
    W = []
    for x in range(2, 8):
        for t in range(32):
            if not (x == 3 and t < 16):
                W.append([7.5 if (x < 4 or t < 16) else 5.0, x - 2])
    INF = 1e9

    def ready(ty, cells):
        d = deps(ty, cells)
        if any(x not in fin for x in d):
            return INF
        t = max([fin[x] for x in d], default=0)
        if ty == WO:
            t = max(t, T0 + RB * (cells[0][0] + 1) + 3)
        if ty in (Q, K, V, W1):
            t = max(t, 7.5)
        return t
    idle = 0
    while W:
        W.sort()
        w = W[0]
        now, q = w
        if not pend[q]:
            if not units:
                W.pop(0)
                continue
            cand = []
            for u in units:
                ex = expand([u[1]])
                rd = max(ready(t[0], t[2]) for t in ex)
                if q in (0, 2) and now + 2 * DUR[u[1][0]][u[1][1]] > leave:
                    continue
                if rd <= now + 1.0:
                    cand.append(u)
            if not cand:
                if q in (0, 2) and now > leave:
                    W.pop(0)
                else:
                    w[0] += 0.5
                    idle += 0.5
                continue
            u = min(cand, key=lambda u: u[0])
            units.remove(u)
            qs[q].append(u[1])
            pend[q] = expand([u[1]])
            if verbose:
                print(f"{now:6.1f} q{q} {u[1]} lst {u[0]:.0f}")
        ty, cf, cells = pend[q].pop(0)
        w[0] = max(now + 0.9, ready(ty, cells)) + DUR[ty][cf] + (3 if now < 10 else 0)
        for c in cells:
            fin[(ty,) + c] = w[0]
    if verbose:
        for ty, n in NCT.items():
            print(ty, " ".join(f"{max([fin.get((ty, rb, c), 0) for c in range(n)]):5.0f}" for rb in range(16)))
        print("dl", " ".join(f"{T0 - 3 + RB * r:5.0f}" for r in range(16)), "idle", idle)
    return qs


def make(P):
    if P.get("sa"):
        import json, os
        d = json.load(open(os.path.join(os.path.dirname(os.path.abspath(__file__)), f"sched_{P['sa']}.json")))
        P["S0"], P["RP"] = d["S0"], d.get("RP", 0)
        RP[0] = P["RP"]
        qs = [[tuple(u[:5]) + (224 // P.get("pn", 16) if u[0] == PREF and u[5] == 14 else u[5],) for u in q] for q in d["q"]]
    else:
        qs = auto(P)
    check(qs, P["S0"] // 4)
    return qs
```

```python
from asmlib import *
import layout as L
from chain import S_WS, S_W, sX, sT, sWv, sBud, S_PTR, srd
from gemm import vLane, S_X, S_OUT
from att import rt_init, rt_stamp

ACC, RD, XG = 128, 144, 160
vL16, vL16b, vF, vFi, vFd, vXo, vRw, vRr, t0, t1 = range(170, 180)
sO, sXo, sG, sS, sLW, sB, sT0, sT1, sQt, sEnd = range(15, 25)
RED = 131072


def wo_stream(A, pfx, exit_lbl, P):
    srd(A, S_W, S_PTR + 6, 8 << 20)
    S0 = P.get("S0", 0)
    A(f"v_lshlrev_b32 {v(vL16)}, 4, {v(vLane)}")
    A(f"s_lshr_b32 {s(sQt)}, {s(sX)}, 2")
    g2 = P.get("g2", 0)
    gw = P.get("gw", g2)
    A(f"s_sub_u32 {s(sT0)}, {s(sX)}, 5")
    A(f"s_cselect_b32 {s(sQt)}, {s(sQt)}, {s(sT0)}")
    A(f"s_cselect_b32 {s(sS)}, {S0}, {gw + 1}")
    vD, vTr = 0, 1
    A(f"v_lshrrev_b32 {v(t0)}, 2, {v(vLane)}")
    A(f"v_and_b32 {v(t1)}, 3, {v(vLane)}")
    A(f"v_lshlrev_b32 {v(vD)}, 11, {v(t0)}")
    A(f"v_lshl_add_u32 {v(vD)}, {v(t1)}, 4, {v(vD)}")
    A(f"s_lshl_b32 {s(sLW)}, {s(sWv)}, 15")
    A(f"v_lshl_add_u32 {v(vTr)}, {v(t0)}, 6, {s(sLW)}")
    A(f"v_lshl_add_u32 {v(vTr)}, {v(t1)}, 3, {v(vTr)}")
    A(f"s_lshl_b32 {s(sB)}, {s(sWv)}, 21")
    A(f"s_lshl_b32 {s(sT0)}, {s(sT)}, 6")
    A(f"s_add_u32 {s(sB)}, {s(sB)}, {s(sT0)}")

    def issue(c):
        for p in range(8):
            A(f"s_add_u32 {s(sT0)}, {s(sB)}, {hex((128 * c + 16 * p) * 2048)}")
            A(f"s_add_u32 m0, {s(sLW)}, {(c & 3) * 8192 + p * 1024}")
            A("s_nop 0")
            A(f"buffer_load_dwordx4 {v(vD)}, {s(S_W, 4)}, {s(sT0)} offen lds")

    for c in range(4):
        issue(c)
    A(f"v_and_b32 {v(t0)}, 15, {v(vLane)}")
    A(f"v_lshrrev_b32 {v(t1)}, 4, {v(vLane)}")
    A(f"v_lshlrev_b32 {v(vXo)}, 11, {v(t0)}")
    A(f"v_lshl_add_u32 {v(vXo)}, {v(t1)}, 3, {v(vXo)}")
    A(f"s_lshl_b32 {s(sT0)}, {s(sWv)}, 11")
    A(f"s_add_u32 {s(sT0)}, {s(sT0)}, {RED}")
    A(f"v_add_u32 {v(vRw)}, {s(sT0)}, {v(vL16)}")
    A(f"s_lshl_b32 {s(sT0)}, {s(sWv)}, 10")
    A(f"s_add_u32 {s(sT0)}, {s(sT0)}, {RED}")
    A(f"v_add_u32 {v(vRr)}, {s(sT0)}, {v(vL16)}")
    A(f"s_lshr_b32 {s(sT0)}, {s(sT)}, 2")
    A(f"s_lshl_b32 {s(sT0)}, {s(sT0)}, {L.FC}")
    A(f"s_add_u32 {s(sT0)}, {s(sT0)}, {hex(L.FLAGS + L.F_T + L.T_W4 * 8192)}")
    A(f"s_lshl_b32 {s(sT1)}, {s(sS)}, {L.FS}")
    A(f"s_add_u32 {s(sT0)}, {s(sT1)}, {s(sT0)}")
    A(f"v_mov_b32 {v(vF)}, {s(sT0)}")
    A(f"v_mov_b32 {v(vFi)}, {1 << L.FS}")
    A(f"s_lshl_b32 {s(sT0)}, {s(sWv)}, 4")
    A(f"s_add_u32 {s(sT0)}, {s(sT0)}, {s(sQt)}")
    A(f"s_lshl_b32 {s(sT0)}, {s(sT0)}, 2")
    A(f"s_add_u32 {s(sT0)}, {s(sT0)}, {hex(L.FLAGS + L.F_O)}")
    A(f"s_lshl_b32 {s(sT1)}, {s(sS)}, 8")
    A(f"s_add_u32 {s(sT0)}, {s(sT0)}, {s(sT1)}")
    A("s_mov_b64 exec, 0xff")
    A(f"v_lshl_add_u32 {v(vF)}, {v(vLane)}, 3, {s(sT0)}")
    A(f"v_mov_b32 {v(vFi)}, 0x100")
    A("s_mov_b64 exec, -1")
    A(f"s_lshl_b32 {s(sO)}, {s(sWv)}, 15")
    A(f"s_lshl_b32 {s(sT0)}, {s(sQt)}, 17")
    A(f"s_add_u32 {s(sO)}, {s(sO)}, {s(sT0)}")
    A(f"s_add_u32 {s(sO)}, {s(sO)}, {hex(L.O)}")
    A(f"s_lshl_b32 {s(sT0)}, {s(sS)}, 18")
    A(f"s_add_u32 {s(sO)}, {s(sO)}, {s(sT0)}")
    A(f"s_lshl_b32 {s(sT0)}, {s(sQt)}, 15")
    A(f"s_lshl_b32 {s(sT1)}, {s(sS)}, 16")
    A(f"s_add_u32 {s(sT0)}, {s(sT0)}, {s(sT1)}")
    A(f"s_and_b32 {s(sT1)}, {s(sWv)}, 1")
    A(f"s_lshl_b32 {s(sXo)}, {s(sT)}, 1")
    A(f"s_add_u32 {s(sXo)}, {s(sXo)}, {s(sT1)}")
    A(f"s_lshl_b32 {s(sXo)}, {s(sXo)}, 5")
    A(f"s_add_u32 {s(sXo)}, {s(sXo)}, {s(sT0)}")
    A(f"s_lshl_b32 {s(sG)}, {s(sT)}, 7")
    A(f"s_add_u32 {s(sG)}, {s(sG)}, {s(sT1)}")
    A(f"s_lshl_b32 {s(sG)}, {s(sG)}, 3")
    A(f"s_add_u32 {s(sG)}, {s(sG)}, {s(sT0)}")
    A(f"s_add_u32 {s(sG)}, {s(sG)}, {hex(L.G)}")
    for c in range(8):
        A(f"s_waitcnt vmcnt({8 * min(3, 7 - c)})")
        for k4 in range(4):
            for mt in range(2):
                for i in range(2):
                    A(f"ds_read_b64_tr_b16 {a((mt * 32 + 4 * c + k4) * 4 + 2 * i, 2)}, {v(vTr)} offset:{(c & 3) * 8192 + (32 * k4 + 16 * i) * 64 + mt * 32}")
        A("s_waitcnt lgkmcnt(0)")
        if c + 4 < 8:
            issue(c + 4)
    if P.get("diag"):
        rt_init(A, 40)
        A(f"v_mov_b32 {v(t1)}, 0")
        rt_stamp(A, 40, t0, t1)
        A(f"s_lshl2_add_u32 s40, {s(sS)}, s40")
    if g2:
        A(f"s_cmp_lt_u32 {s(sX)}, 5")
        A(f"s_cbranch_scc1 {pfx}_top")
        A(f"v_mul_u32_u24 {v(t0)}, {P.get('g2w', 2)}, {v(vFi)}")
        A(f"v_sub_u32 {v(vL16b)}, {v(vF)}, {v(t0)}")
        A.label(f"{pfx}_gp")
        A(f"buffer_load_dword {v(vFd)}, {v(vL16b)}, {s(S_WS, 4)}, 0 offen sc1")
        A("s_waitcnt vmcnt(0)")
        A(f"v_cmp_eq_u32 vcc, 0, {v(vFd)}")
        A(f"s_cbranch_vccz {pfx}_top")
        A("s_sleep 32")
        A(f"s_sub_u32 {s(sBud)}, {s(sBud)}, 1")
        A(f"s_cbranch_scc0 {pfx}_gp")
        A(f"s_branch {exit_lbl}")
    A.label(f"{pfx}_top")
    A(f"buffer_load_dword {v(vFd)}, {v(vF)}, {s(S_WS, 4)}, 0 offen sc1")
    A("s_waitcnt vmcnt(0)")
    A(f"v_cmp_eq_u32 vcc, 0, {v(vFd)}")
    A(f"s_cbranch_vccz {pfx}_go")
    A(f"s_sleep {P.get('wsl', 1)}")
    A(f"s_sub_u32 {s(sBud)}, {s(sBud)}, 1")
    A(f"s_cbranch_scc0 {pfx}_top")
    A(f"s_branch {exit_lbl}")
    A.label(f"{pfx}_go")
    for j in range(32):
        A(f"buffer_load_dwordx4 {v(4 * j, 4)}, {v(vL16)}, {s(S_WS, 4)}, {s(sO)} offen offset:{(j & 3) * 1024} sc1")
        if j & 3 == 3:
            A(f"s_add_u32 {s(sO)}, {s(sO)}, {4096 if j != 31 else 262144 - 32768 + 4096}")
        if j == 15:
            A(f"buffer_load_dwordx2 {v(XG, 2)}, {v(vXo)}, {s(S_X, 4)}, {s(sXo)} offen")
            A(f"buffer_load_dwordx2 {v(XG + 2, 2)}, {v(vL16)}, {s(S_WS, 4)}, {s(sG)} offen sc1")
    A(f"v_add_u32 {v(vF)}, {v(vF)}, {v(vFi)}")
    A(f"s_add_u32 {s(sG)}, {s(sG)}, 65536")
    A(f"s_add_u32 {s(sS)}, {s(sS)}, 1")
    for j in range(32):
        A(f"s_waitcnt vmcnt({31 - j + (2 if j < 16 else 0)})")
        for mt in range(2):
            d = v(ACC + mt * 4, 4)
            A(f"v_mfma_f32_16x16x32_bf16 {d}, {a((mt * 32 + j) * 4, 4)}, {v(4 * j, 4)}, {d if j else 0}")
        if j == 20:
            A(f"v_lshlrev_b32 {v(XG + 4)}, 16, {v(XG)}")
            A(f"v_and_b32 {v(XG + 5)}, 0xffff0000, {v(XG)}")
            A(f"v_lshlrev_b32 {v(XG + 6)}, 16, {v(XG + 1)}")
            A(f"v_and_b32 {v(XG + 7)}, 0xffff0000, {v(XG + 1)}")
            A(f"v_lshlrev_b32 {v(XG)}, 16, {v(XG + 2)}")
            A(f"v_and_b32 {v(XG + 1)}, 0xffff0000, {v(XG + 2)}")
            A(f"v_lshlrev_b32 {v(XG + 2)}, 16, {v(XG + 3)}")
            A(f"v_and_b32 {v(XG + 3)}, 0xffff0000, {v(XG + 3)}")
    A(f"s_cmp_ge_u32 {s(sWv)}, 2")
    A.nop(6)
    for tl in range(2):
        A(f"ds_write_b128 {v(vRw)}, {v(ACC + 4 * tl, 4)} offset:{tl * 1024}")
    A(f"v_xor_b32 {v(vRw)}, 0x4000, {v(vRw)}")
    A("s_waitcnt lgkmcnt(0)")
    A("s_barrier")
    A(f"s_cbranch_scc1 {pfx}_nx")
    for w in range(4):
        A(f"ds_read_b128 {v(RD + 4 * w, 4)}, {v(vRr)} offset:{w * 2048}")
    A(f"v_xor_b32 {v(vRr)}, 0x4000, {v(vRr)}")
    A("s_waitcnt lgkmcnt(2)")
    A(f"v_pk_add_f32 {v(RD, 2)}, {v(RD, 2)}, {v(RD + 4, 2)}")
    A(f"v_pk_add_f32 {v(RD + 2, 2)}, {v(RD + 2, 2)}, {v(RD + 6, 2)}")
    A("s_waitcnt lgkmcnt(0)")
    A(f"v_pk_add_f32 {v(RD + 8, 2)}, {v(RD + 8, 2)}, {v(RD + 12, 2)}")
    A(f"v_pk_add_f32 {v(RD + 10, 2)}, {v(RD + 10, 2)}, {v(RD + 14, 2)}")
    A(f"v_pk_add_f32 {v(RD, 2)}, {v(RD, 2)}, {v(RD + 8, 2)}")
    A(f"v_pk_add_f32 {v(RD + 2, 2)}, {v(RD + 2, 2)}, {v(RD + 10, 2)}")
    A(f"v_pk_fma_f32 {v(RD, 2)}, {v(RD, 2)}, {v(XG, 2)}, {v(XG + 4, 2)}")
    A(f"v_pk_fma_f32 {v(RD + 2, 2)}, {v(RD + 2, 2)}, {v(XG + 2, 2)}, {v(XG + 6, 2)}")
    A(f"v_cvt_pk_bf16_f32 {v(RD + 4)}, {v(RD)}, {v(RD + 1)}")
    A(f"v_cvt_pk_bf16_f32 {v(RD + 5)}, {v(RD + 2)}, {v(RD + 3)}")
    A(f"buffer_store_dwordx2 {v(RD + 4, 2)}, {v(vXo)}, {s(S_OUT, 4)}, {s(sXo)} offen{L.OSC[1]}")
    if P.get("diag"):
        rt_stamp(A, 40, t0, t1)
    A.label(f"{pfx}_nx")
    A(f"s_add_u32 {s(sXo)}, {s(sXo)}, 65536")
    if g2:
        A(f"s_cmp_le_u32 {s(sS)}, {gw}")
        A(f"s_cbranch_scc1 {pfx}_top")
        A(f"v_add_u32 {v(vF)}, {v(vF)}, {v(vFi)}")
        A(f"s_add_u32 {s(sG)}, {s(sG)}, 65536")
        A(f"s_add_u32 {s(sXo)}, {s(sXo)}, 65536")
        A(f"s_add_u32 {s(sO)}, {s(sO)}, 262144")
        A(f"s_add_u32 {s(sS)}, {s(sS)}, 1")
        if P.get("diag"):
            A("s_add_u32 s40, s40, 4")
    A(f"s_cmp_lt_u32 {s(sS)}, 64")
    A(f"s_cbranch_scc1 {pfx}_top")
    A(f"s_branch {exit_lbl}")
```

```python
from asmlib import *
import layout as L
from gemm import *
import ln

LN2_TILES = 2


def pack(start, ty, cf, rb0, ct0, lg, rs, cs):
    assert start < 2048
    return start | (ty << 11) | (cf << 15) | (rb0 << 17) | (ct0 << 21) | (lg << 26) | (rs << 29) | (cs << 30)


def decode_tree(A, phases, pfx, done):
    items = phases + [(None, 0xFFFFFFFF)]

    def rec(lo, hi):
        if hi - lo == 1:
            A(f"s_mov_b32 {s(sPk)}, {hex(items[lo][1])}")
            A(f"s_branch {done}")
            return
        mid = (lo + hi) // 2
        lbl = A.uid(pfx)
        A(f"s_cmp_lt_u32 {s(sI)}, {items[mid - 1][0]}")
        A(f"s_cbranch_scc0 {lbl}")
        rec(lo, mid)
        A.label(lbl)
        rec(mid, hi)
    rec(0, len(items))


def small_jobs(A, pfx, P):
    A.label(f"{pfx}_pref")
    for k in range(4):
        if k < 3:
            A(f"s_cmp_lg_u32 {s(sRb)}, {k}")
            A(f"s_cbranch_scc1 {pfx}_pf{k}")
        srd(A, S_W, S_P2 + 2 * k, (2 if k < 2 else 7) << 20)
        if k < 3:
            A(f"s_branch {pfx}_pfg")
            A.label(f"{pfx}_pf{k}")
    A.label(f"{pfx}_pfg")
    A(f"s_lshl_b32 {s(sT0)}, {s(sCt)}, 19")
    A(f"s_lshl_b32 {s(sT1)}, {s(sWv)}, 17")
    A(f"s_add_u32 {s(sT0)}, {s(sT0)}, {s(sT1)}")
    A(f"v_lshlrev_b32 {v(vT0)}, 7, {v(vLane)}")
    for i in range(16):
        A(f"buffer_load_dword {v(0)}, {v(vT0)}, {s(S_W, 4)}, {s(sT0)} offen")
        A(f"s_add_u32 {s(sT0)}, {s(sT0)}, 8192")
        if P.get("pfw", 16) < 16:
            A(f"s_waitcnt vmcnt({P['pfw'] - 1})")
    A(f"s_branch {pfx}_done")
    A.label(f"{pfx}_fill")
    A(f"s_lshl_b32 {s(sT0)}, {s(sRb)}, 2")
    A(f"s_add_u32 {s(sT0)}, {s(sT0)}, {s(sCt)}")
    A(f"s_lshl_b32 {s(sT1)}, {s(sT0)}, 16")
    A(f"s_add_u32 {s(sT0)}, {s(sT1)}, {hex(L.VM)}")
    A(f"s_add_u32 {s(sT3)}, {s(sT1)}, {hex(L.MR)}")
    A(f"s_add_u32 {s(sT1)}, {s(sT1)}, {hex(L.KM)}")
    A(f"s_lshl_b32 {s(sT2)}, {s(sWv)}, 12")
    A(f"v_add_u32 {v(vT0)}, {s(sT2)}, {v(vL16)}")
    for i in range(4):
        A(f"v_mov_b32 {v(i)}, -1")
    A(f"s_mov_b32 {s(sN)}, 4")
    A.label(f"{pfx}_fl")
    for sb, n in ((sT0, 1), (sT1, 1), (sT3, 1))[2 * P.get('xkv', 0):]:
        for i in range(n):
            for k in range(4):
                A(f"buffer_store_dwordx4 {v(0, 4)}, {v(vT0)}, {s(S_WS, 4)}, {s(sb)} offen offset:{k * 1024} sc1")
            A(f"s_add_u32 {s(sb)}, {s(sb)}, 16384")
    A(f"s_sub_u32 {s(sN)}, {s(sN)}, 1")
    A(f"s_cmp_lg_u32 {s(sN)}, 0")
    A(f"s_cbranch_scc1 {pfx}_fl")
    A(f"s_branch {pfx}_done")
    A.label(f"{pfx}_ln2")
    A(f"s_lshl_b32 {s(sT0)}, {s(sRb)}, 3")
    A(f"s_mul_i32 {s(sT1)}, {s(sCt)}, {LN2_TILES}")
    A(f"s_add_u32 {s(sT0)}, {s(sT0)}, {s(sT1)}")
    A(f"s_lshl_b32 {s(sT0)}, {s(sT0)}, 15")
    A(f"s_lshl_b32 {s(sT1)}, {s(sWv)}, 13")
    A(f"s_add_u32 {s(sT0)}, {s(sT0)}, {s(sT1)}")
    A(f"s_add_u32 {s(sOut)}, {s(sT0)}, {hex(L.X1N)}")
    A(f"s_add_u32 {s(sT0)}, {s(sT0)}, {hex(L.X1)}")
    for t in range(LN2_TILES):
        for b in range(8):
            A(f"buffer_load_dwordx4 {v(32 * t + 4 * b, 4)}, {v(vL16)}, {s(S_WS, 4)}, {s(sT0)} offen offset:{(b & 3) * 1024} sc1")
            if b & 3 == 3:
                A(f"s_add_u32 {s(sT0)}, {s(sT0)}, {4096 if b == 3 else 32768 - 4096}")
    ln.ln_addr(A, vLane, sWv, vT0, vT1, vT2, LDS_MISC + 1024)
    for t in range(LN2_TILES):
        A(f"s_waitcnt vmcnt({8 * (LN2_TILES - 1)})")
        ln.ln_core(A, 32 * t, 128, 192, vT0, vT1, 0, 32 * t)
        for b in range(8):
            A(f"buffer_store_dwordx4 {v(32 * t + 4 * b, 4)}, {v(vL16)}, {s(S_WS, 4)}, {s(sOut)} offen offset:{(b & 3) * 1024} sc1")
            if b & 3 == 3:
                A(f"s_add_u32 {s(sOut)}, {s(sOut)}, {4096 if b == 3 else 32768 - 4096}")
    A(f"s_mov_b32 {s(sCf)}, 0")


def worker(A, pfx, exit_lbl, P, queues, wo_lbl=None, att_lbl=None):
    NQ = len(queues)
    worker_consts(A)
    A(f"v_mov_b32 {v(vSh)}, 0")
    srd(A, S_W, S_PTR, 0)
    used = {}
    enc = []
    for q in queues:
        st = 0
        ph = []
        for ty, cf, rb0, nrb, ct0, nct in q:
            lg = nrb.bit_length() - 1
            assert 1 << lg == nrb
            c = CFGS[cf]
            rs, cs = (0, 0) if ty in (L.T_LN2, L.T_FILL, L.T_PREF) else (c.TN // 256, c.TM // 256)
            ph.append((st + nrb * nct, pack(st, ty, cf, rb0, ct0, lg, rs, cs)))
            st += nrb * nct
            assert not (ty == L.T_WO and rs)
            if ty not in (L.T_LN2, L.T_FILL, L.T_PREF):
                used.setdefault(cf, set()).add(ty)
        enc.append(ph)
    diag = P.get("diag")
    if diag:
        A(f"s_lshl_b32 {s(sT0)}, {s(sX)}, 5")
        A(f"s_add_u32 {s(sT0)}, {s(sT0)}, {s(sT)}")
        A(f"s_lshl_b32 s88, {s(sT0)}, 12")
        A(f"s_add_u32 s88, s88, {hex(L.STAMP + (2 << 20))}")
        A("s_memrealtime s[76:77]")
    A.label(f"{pfx}_next")
    A(f"s_cmp_lg_u32 {s(sWv)}, 0")
    A(f"s_cbranch_scc1 {pfx}_bar")
    A.label(f"{pfx}_try")
    A(f"s_lshl_b32 {s(sT0)}, {s(sQ)}, 8")
    A(f"s_add_u32 {s(sT0)}, {s(sT0)}, {hex(L.FLAGS + L.F_QUE)}")
    A(f"v_mov_b32 {v(vT0)}, 0")
    A(f"v_mov_b32 {v(vT1)}, 1")
    A("s_mov_b64 exec, 1")
    A(f"buffer_atomic_add {v(vT1)}, {v(vT0)}, {s(S_WS, 4)}, {s(sT0)} offen sc0 sc1")
    A("s_waitcnt vmcnt(0)")
    A("s_mov_b64 exec, -1")
    A(f"v_readfirstlane_b32 {s(sI)}, {v(vT1)}")
    A("s_nop 3")
    for q in range(NQ):
        if q + 1 < NQ:
            A(f"s_cmp_lg_u32 {s(sQ)}, {q}")
            A(f"s_cbranch_scc1 {pfx}_q{q + 1}")
        decode_tree(A, enc[q], f"{pfx}_d", f"{pfx}_dec")
        if q + 1 < NQ:
            A.label(f"{pfx}_q{q + 1}")
    A.label(f"{pfx}_dec")
    A(f"s_cmp_lg_u32 {s(sPk)}, -1")
    A(f"s_cbranch_scc1 {pfx}_got")
    A(f"s_add_u32 {s(sQ)}, {s(sQ)}, 1")
    A(f"s_cmp_ge_u32 {s(sQ)}, {NQ}")
    A(f"s_cselect_b32 {s(sQ)}, 0, {s(sQ)}")
    A(f"s_add_u32 {s(sQn)}, {s(sQn)}, 1")
    if wo_lbl:
        A(f"s_lshl_b32 {s(sT0)}, 1, {s(sX)}")
        A(f"s_and_b32 {s(sT0)}, {s(sT0)}, {0x74 if att_lbl and P.get('g2s', 0) else 0x14}")
        A(f"s_cselect_b32 {s(sPk)}, -2, -1")
        A(f"s_cbranch_scc1 {pfx}_pub")
    A(f"s_cmp_lt_u32 {s(sQn)}, {NQ}")
    A(f"s_cbranch_scc1 {pfx}_try")
    if att_lbl:
        A(f"s_lshl_b32 {s(sT0)}, {s(sX)}, 5")
        A(f"s_add_u32 {s(sT0)}, {s(sT0)}, {s(sT)}")
        A(f"s_sub_u32 {s(sT0)}, {s(sT0)}, 160")
        A(f"s_cmp_lt_u32 {s(sT0)}, 80")
        A(f"s_cselect_b32 {s(sPk)}, -3, -1")
        A(f"s_cmp_lt_u32 {s(sT0)}, 64")
        A(f"s_cselect_b32 {s(sPk)}, -2, {s(sPk)}")
    A(f"s_branch {pfx}_pub")
    A.label(f"{pfx}_got")
    A(f"s_and_b32 {s(sT0)}, {s(sPk)}, 0x7ff")
    A(f"s_sub_u32 {s(sI)}, {s(sI)}, {s(sT0)}")
    A(f"s_bfe_u32 {s(sT0)}, {s(sPk)}, {hex(26 | (3 << 16))}")
    A(f"s_lshr_b32 {s(sCt)}, {s(sI)}, {s(sT0)}")
    A(f"s_lshl_b32 {s(sT1)}, {s(sCt)}, {s(sT0)}")
    A(f"s_sub_u32 {s(sRb)}, {s(sI)}, {s(sT1)}")
    A(f"s_bfe_u32 {s(sT2)}, {s(sPk)}, {hex(29 | (1 << 16))}")
    A(f"s_lshl_b32 {s(sRb)}, {s(sRb)}, {s(sT2)}")
    A(f"s_bfe_u32 {s(sT3)}, {s(sPk)}, {hex(30 | (1 << 16))}")
    A(f"s_lshl_b32 {s(sCt)}, {s(sCt)}, {s(sT3)}")
    A(f"s_bfe_u32 {s(sT0)}, {s(sPk)}, {hex(17 | (4 << 16))}")
    A(f"s_add_u32 {s(sRb)}, {s(sRb)}, {s(sT0)}")
    A(f"s_bfe_u32 {s(sT0)}, {s(sPk)}, {hex(21 | (5 << 16))}")
    A(f"s_add_u32 {s(sCt)}, {s(sCt)}, {s(sT0)}")
    A(f"s_bfe_u32 {s(sTy)}, {s(sPk)}, {hex(11 | (4 << 16))}")
    A(f"s_bfe_u32 {s(sPk)}, {s(sPk)}, {hex(11 | (6 << 16))}")
    A(f"s_lshl_b32 {s(sT0)}, {s(sRb)}, 8")
    A(f"s_or_b32 {s(sPk)}, {s(sPk)}, {s(sT0)}")
    A(f"s_lshl_b32 {s(sT0)}, {s(sCt)}, 16")
    A(f"s_or_b32 {s(sPk)}, {s(sPk)}, {s(sT0)}")
    A(f"s_cmp_eq_u32 {s(sTy)}, {L.T_WO}")
    A(f"s_cbranch_scc1 {pfx}_dwo")
    A(f"s_cmp_ge_u32 {s(sTy)}, {L.T_FILL}")
    A(f"s_cbranch_scc1 {pfx}_pub")
    A(f"s_mov_b32 {s(sRlo)}, {s(sRb)}")
    A(f"s_add_u32 {s(sRhi)}, {s(sRb)}, {s(sT2)}")
    A(f"s_mov_b32 {s(sSh)}, 4")
    A(f"s_mov_b32 {s(sNmax)}, 7")
    A(f"s_cmp_lg_u32 {s(sTy)}, {L.T_W2}")
    A(f"s_cbranch_scc1 {pfx}_dp1")
    A(f"s_sub_u32 {s(sRlo)}, {s(sRlo)}, 1")
    A(f"s_max_i32 {s(sRlo)}, {s(sRlo)}, 0")
    A(f"s_add_u32 {s(sRhi)}, {s(sRhi)}, 1")
    A(f"s_min_u32 {s(sRhi)}, {s(sRhi)}, 15")
    A.label(f"{pfx}_dp1")
    A(f"s_cmp_eq_u32 {s(sTy)}, {L.T_W3}")
    A(f"s_cselect_b32 {s(sNmax)}, {8 // LN2_TILES - 1}, {s(sNmax)}")
    A(f"s_cmp_eq_u32 {s(sTy)}, {L.T_W4}")
    A(f"s_cselect_b32 {s(sNmax)}, 27, {s(sNmax)}")
    A(f"s_cselect_b32 {s(sSh)}, 5, {s(sSh)}")
    A(f"v_lshrrev_b32 {v(vT0)}, {s(sSh)}, {v(vLane)}")
    A(f"v_lshlrev_b32 {v(vT1)}, {s(sSh)}, {v(vT0)}")
    A(f"v_sub_u32 {v(vT1)}, {v(vLane)}, {v(vT1)}")
    A(f"v_min_u32 {v(vT1)}, {s(sNmax)}, {v(vT1)}")
    A(f"v_add_u32 {v(vT0)}, {s(sRlo)}, {v(vT0)}")
    A(f"v_min_u32 {v(vT0)}, {s(sRhi)}, {v(vT0)}")
    A(f"v_lshlrev_b32 {v(vT0)}, 9, {v(vT0)}")
    A(f"v_lshl_add_u32 {v(vT0)}, {v(vT1)}, 4, {v(vT0)}")
    A(f"s_cmp_lt_u32 {s(sTy)}, {L.T_W2}")
    A(f"s_cselect_b32 {s(sDb)}, {L.T_LN1 + 1}, {s(sTy)}")
    A(f"s_lshl_b32 {s(sDb)}, {s(sDb)}, 13")
    A(f"s_cmp_eq_u32 {s(sTy)}, {L.T_W1}")
    A(f"s_cselect_b32 {s(sT0)}, 4, 0")
    A(f"s_add_u32 {s(sDb)}, {s(sDb)}, {s(sT0)}")
    A(f"s_add_u32 {s(sDb)}, {s(sDb)}, {hex(L.FLAGS + L.F_T - 8192)}")
    A.label(f"{pfx}_poll")
    A(f"buffer_load_dword {v(vT1)}, {v(vT0)}, {s(S_WS, 4)}, {s(sDb)} offen sc1")
    A("s_waitcnt vmcnt(0)")
    A(f"v_cmp_eq_u32 vcc, 0, {v(vT1)}")
    A(f"s_cbranch_vccz {pfx}_pub")
    A("s_sleep 8")
    A(f"s_sub_u32 {s(sBud)}, {s(sBud)}, 1")
    A(f"s_cbranch_scc0 {pfx}_poll")
    A(f"s_mov_b32 {s(sPk)}, -1")
    A(f"s_branch {pfx}_pub")
    A.label(f"{pfx}_dwo")
    A(f"s_lshl_b32 {s(sDb)}, {s(sRb)}, 10")
    A(f"s_add_u32 {s(sDb)}, {s(sDb)}, {hex(L.FLAGS + L.F_O)}")
    A.label(f"{pfx}_pollo")
    A(f"buffer_load_dwordx4 {v(0, 4)}, {v(vL16)}, {s(S_WS, 4)}, {s(sDb)} offen sc1")
    A("s_waitcnt vmcnt(0)")
    A(f"v_min3_u32 {v(0)}, {v(0)}, {v(1)}, {v(2)}")
    A(f"v_min_u32 {v(0)}, {v(0)}, {v(3)}")
    A(f"v_cmp_eq_u32 vcc, 0, {v(0)}")
    A(f"s_cbranch_vccz {pfx}_oko")
    A("s_sleep 16")
    A(f"s_sub_u32 {s(sBud)}, {s(sBud)}, 1")
    A(f"s_cbranch_scc0 {pfx}_pollo")
    A(f"s_mov_b32 {s(sPk)}, -1")
    A(f"s_branch {pfx}_pub")
    A.label(f"{pfx}_oko")
    A(f"v_min_u32 {v(vT0)}, {s(sT3)}, {v(vLane)}")
    A(f"v_add_u32 {v(vT0)}, {s(sCt)}, {v(vT0)}")
    A(f"v_lshlrev_b32 {v(vT0)}, 8, {v(vT0)}")
    A(f"s_lshl_b32 {s(sDb)}, {s(sRb)}, 4")
    A(f"s_add_u32 {s(sDb)}, {s(sDb)}, {hex(L.FLAGS + L.F_T + L.T_W4 * 8192)}")
    A(f"s_branch {pfx}_poll")
    A.label(f"{pfx}_pub")
    A(f"v_mov_b32 {v(vT0)}, {LDS_MISC}")
    A(f"v_mov_b32 {v(vT1)}, {s(sPk)}")
    A(f"ds_write_b32 {v(vT0)}, {v(vT1)}")
    A("s_waitcnt lgkmcnt(0)")
    A.label(f"{pfx}_bar")
    A("s_barrier")
    A(f"v_mov_b32 {v(vT0)}, {LDS_MISC}")
    A(f"ds_read_b32 {v(vT1)}, {v(vT0)}")
    A("s_waitcnt lgkmcnt(0)")
    A(f"v_readfirstlane_b32 {s(sPk)}, {v(vT1)}")
    A("s_nop 3")
    A(f"s_cmp_eq_u32 {s(sPk)}, -1")
    A(f"s_cbranch_scc1 {exit_lbl}")
    if wo_lbl:
        A(f"s_cmp_eq_u32 {s(sPk)}, -2")
        A(f"s_cbranch_scc1 {wo_lbl}")
    if att_lbl:
        A(f"s_cmp_eq_u32 {s(sPk)}, -3")
        A(f"s_cbranch_scc1 {att_lbl}")
    if diag:
        A("s_memrealtime s[78:79]")
        A("s_memtime s[80:81]")
    A(f"s_and_b32 {s(sTy)}, {s(sPk)}, 15")
    A(f"s_bfe_u32 {s(sCf)}, {s(sPk)}, {hex(4 | (2 << 16))}")
    A(f"s_bfe_u32 {s(sRb)}, {s(sPk)}, {hex(8 | (8 << 16))}")
    A(f"s_lshr_b32 {s(sCt)}, {s(sPk)}, 16")
    A(f"s_cmp_eq_u32 {s(sTy)}, {L.T_LN2}")
    A(f"s_cbranch_scc1 {pfx}_ln2")
    A(f"s_cmp_eq_u32 {s(sTy)}, {L.T_FILL}")
    A(f"s_cbranch_scc1 {pfx}_fill")
    A(f"s_cmp_eq_u32 {s(sTy)}, {L.T_PREF}")
    A(f"s_cbranch_scc1 {pfx}_pref")
    cfl = sorted(used)
    for cf in cfl[1:]:
        A(f"s_cmp_eq_u32 {s(sCf)}, {cf}")
        A(f"s_cbranch_scc1 {pfx}_c{cf}_task")
    for cf in cfl:
        gemm_task(A, CFGS[cf], f"{pfx}_c{cf}", P, sorted(used[cf]), f"{pfx}_done")
    small_jobs(A, pfx, P)
    A.label(f"{pfx}_done")
    if diag:
        A("s_memtime s[84:85]")
    A("s_waitcnt vmcnt(0)")
    A("s_barrier")
    A(f"s_cmp_lg_u32 {s(sWv)}, 0")
    A(f"s_cbranch_scc1 {pfx}_bar")
    A(f"s_add_u32 {s(sT0)}, {s(sTy)}, 1")
    A(f"s_bitcmp0_b32 {s(sT0)}, 2")
    A(f"s_cselect_b32 {s(sT2)}, 4, 9")
    A(f"s_cselect_b32 {s(sT3)}, 8, 4")
    A(f"s_lshl_b32 {s(sT0)}, {s(sTy)}, 13")
    A(f"s_add_u32 {s(sT0)}, {s(sT0)}, {hex(L.FLAGS + L.F_T)}")
    A(f"v_lshrrev_b32 {v(vT0)}, 1, {v(vLane)}")
    A(f"v_add_u32 {v(vT0)}, {s(sRb)}, {v(vT0)}")
    A(f"v_lshlrev_b32 {v(vT0)}, {s(sT2)}, {v(vT0)}")
    A(f"v_and_b32 {v(vT1)}, 1, {v(vLane)}")
    A(f"v_add_u32 {v(vT1)}, {s(sCt)}, {v(vT1)}")
    A(f"v_lshlrev_b32 {v(vT1)}, {s(sT3)}, {v(vT1)}")
    A(f"v_add_u32 {v(vT0)}, {v(vT1)}, {v(vT0)}")
    for i in range(4):
        A(f"v_mov_b32 {v(i)}, 1")
    A(f"s_lshl_b32 {s(sT1)}, 1, {s(sCf)}")
    A(f"s_bfm_b64 exec, {s(sT1)}, 0")
    A(f"buffer_store_dwordx4 {v(0, 4)}, {v(vT0)}, {s(S_WS, 4)}, {s(sT0)} offen sc1")
    A("s_mov_b64 exec, -1")
    if diag:
        A("s_memtime s[86:87]")
        A("s_memrealtime s[90:91]")
        A("s_waitcnt lgkmcnt(0)")
        A(f"v_mov_b32 {v(vT1)}, 0")
        for i, x in enumerate((sPk, 76, 78, 90, 80, 82, 84, 86)):
            A(f"v_writelane_b32 {v(vT1)}, s{x}, {i}")
        A(f"v_lshlrev_b32 {v(vT0)}, 2, {v(vLane)}")
        A("s_mov_b64 exec, 0xff")
        A(f"buffer_store_dword {v(vT1)}, {v(vT0)}, {s(S_WS, 4)}, s88 offen")
        A("s_mov_b64 exec, -1")
        A("s_add_u32 s88, s88, 32")
        A("s_mov_b32 s76, s90")
    A(f"s_branch {pfx}_try")
```

```python
import math
from asmlib import *
import layout as L
from chain import S_WS, sX, sT, sWv, sBud, OOB
from gemm import f32, vLane

QF, KF, VF, KMF, VMF = 0, 16, 48, 80, 96
S0, S1, SM = 112, 116, 120
B0, B1, BM = 124, 128, 132
PT, PM, DEN, OA, ONES, OP = 136, 140, 144, 148, 180, 184
t0, t1, t2 = 200, 201, 202
vL16, vKMa, vVMa, vFl, vOne, vZ, vPg, vPd, vFd = range(204, 213)
sQ, sK0, sK1, sV0, sV1, sKM, sVM, sO, sFQ, sFO, sS, sCc, sNc, sH = range(15, 29)
sQt, sT0, sT1, sPg = 30, 31, 32, 33
sR1, sFp, sCr, sPa = 44, 45, 46, 47
sI = {18: 34, 16: 35, 8: 36, 2: 37, 0: 38, 7: 39}


def rt_init(A, sr):
    A(f"s_lshl_b32 s{sr}, {s(sX)}, 5")
    A(f"s_add_u32 s{sr}, s{sr}, {s(sT)}")
    A(f"s_lshl_b32 s{sr}, s{sr}, 2")
    A(f"s_add_u32 s{sr}, s{sr}, {s(sWv)}")
    A(f"s_lshl_b32 s{sr}, s{sr}, 10")
    A(f"s_add_u32 s{sr}, s{sr}, {hex(L.STAMP + (3 << 20))}")


def rt_stamp(A, sr, vt, vz):
    A(f"s_memrealtime s[{sr + 2}:{sr + 3}]")
    A("s_waitcnt lgkmcnt(0)")
    A(f"v_mov_b32 {v(vt)}, s{sr + 2}")
    A("s_mov_b64 exec, 1")
    A(f"buffer_store_dword {v(vt)}, {v(vz)}, {s(S_WS, 4)}, s{sr} offen")
    A("s_mov_b64 exec, -1")
    A(f"s_add_u32 s{sr}, s{sr}, 4")


def attention(A, pfx, exit_lbl, P):
    def mf(d, a_, b_, c_):
        A(f"v_mfma_f32_16x16x32_bf16 {v(d, 4)}, {v(a_, 4)}, {v(b_, 4)}, {v(c_, 4) if c_ is not None else 0}")

    def ld(dst, va, so, off):
        A(f"buffer_load_dwordx4 {v(dst, 4)}, {v(va)}, {s(S_WS, 4)}, {s(so)} offen offset:{off}" + ("" if P.get("al1") and KF <= dst < KMF else " sc1"))

    A(f"s_lshl_b32 {s(sH)}, {s(sT)}, 1")
    A(f"s_lshr_b32 {s(sT0)}, {s(sWv)}, 1")
    A(f"s_add_u32 {s(sH)}, {s(sH)}, {s(sT0)}")
    A(f"s_and_b32 {s(sQt)}, {s(sWv)}, 1")
    A(f"v_lshlrev_b32 {v(vL16)}, 4, {v(vLane)}")
    A(f"v_and_b32 {v(t0)}, 15, {v(vLane)}")
    A(f"v_lshrrev_b32 {v(t1)}, 4, {v(vLane)}")
    A(f"v_and_b32 {v(t2)}, 7, {v(vLane)}")
    A(f"v_lshl_add_u32 {v(t2)}, {v(t1)}, 3, {v(t2)}")
    A(f"v_lshlrev_b32 {v(vKMa)}, 4, {v(t2)}")
    A(f"v_bfe_u32 {v(vVMa)}, {v(vL16)}, 1, 8")
    A(f"v_min_u32 {v(vFl)}, 2, {v(vLane)}")
    A(f"v_lshlrev_b32 {v(vFl)}, 13, {v(vFl)}")
    A(f"s_lshl_b32 {s(sT0)}, {s(sH)}, {L.FC}")
    A(f"s_sub_u32 {s(sT0)}, {L.T_FILL * 8192 + (4 << L.FS) - (4 << L.FC)}, {s(sT0)}")
    g2 = P.get("g2", 0)
    inc = lambda k: s(sI[k]) if g2 else 1 << k
    if g2:
        A(f"s_cmp_eq_u32 {s(sX)}, 7")
        A(f"s_cselect_b32 {s(sS)}, {g2 + 1}, 0")
        A(f"s_cselect_b32 {s(sT1)}, {4 << L.FS}, 0")
        A(f"s_sub_u32 {s(sT0)}, {s(sT0)}, {s(sT1)}")
    A("s_mov_b64 exec, 0xf0")
    A(f"v_lshl_add_u32 {v(vFl)}, {v(vLane)}, {L.FC}, {s(sT0)}")
    A("s_mov_b64 exec, -1")
    A(f"v_mov_b32 {v(vOne)}, 1")
    A(f"v_mov_b32 {v(vZ)}, 0")
    A(f"s_lshl_b32 {s(sT0)}, {s(sQt)}, 4")
    A(f"v_add_u32 {v(t0)}, {s(sT0)}, {v(t0)}")
    A(f"v_lshlrev_b32 {v(t2)}, 2, {v(t1)}")
    A(f"v_sub_u32 {v(t0)}, {v(t0)}, {v(t2)}")
    A(f"v_mov_b32 {v(t2)}, 0xf149f2ca")
    for kt in range(2):
        for r_ in range(4):
            A(f"v_cmp_le_i32 vcc, {16 * kt + r_}, {v(t0)}")
            A("s_nop 1")
            A(f"v_cndmask_b32 {v(B0 + 4 * kt + r_)}, {v(t2)}, 0, vcc")
    A(f"v_cmp_le_u32 vcc, 2, {v(t1)}")
    A("s_nop 1")
    for r_ in range(4):
        A(f"v_cndmask_b32 {v(BM + r_)}, {v(t2)}, 0, vcc")
        A(f"v_mov_b32 {v(ONES + r_)}, 0x3f803f80")
    cval = (128 ** -0.5) * math.log2(math.e)
    A(f"s_mov_b32 {s(sCc)}, {f32(cval)}")
    A(f"s_mov_b32 {s(sNc)}, {f32(-cval)}")
    A(f"s_lshl_b32 {s(sT0)}, {s(sH)}, 12")
    A(f"s_add_u32 {s(sK0)}, {s(sT0)}, {hex(L.K)}")
    A(f"s_add_u32 {s(sK1)}, {s(sK0)}, 131072")
    if P.get("ak1", 1):
        A(f"s_cmp_eq_u32 {s(sQt)}, 0")
        A(f"s_cselect_b32 {s(sK1)}, {hex(OOB)}, {s(sK1)}")
    A(f"s_lshl_b32 {s(sT1)}, {s(sQt)}, 17")
    A(f"s_add_u32 {s(sT0)}, {s(sT0)}, {s(sT1)}")
    A(f"s_add_u32 {s(sQ)}, {s(sT0)}, {hex(L.Q)}")
    A(f"s_add_u32 {s(sO)}, {s(sT0)}, {hex(L.O)}")
    A(f"s_lshl_b32 {s(sT0)}, {s(sH)}, 13")
    A(f"s_add_u32 {s(sV0)}, {s(sT0)}, {hex(L.VT)}")
    A(f"s_add_u32 {s(sV1)}, {s(sV0)}, 4096")
    A(f"s_lshl_b32 {s(sT0)}, {s(sH)}, 11")
    A(f"s_add_u32 {s(sKM)}, {s(sT0)}, {hex(L.KM)}")
    A(f"s_add_u32 {s(sVM)}, {s(sT0)}, {hex(L.VM)}")
    A(f"s_lshl_b32 {s(sT0)}, {s(sH)}, {L.FC}")
    A(f"s_add_u32 {s(sFQ)}, {s(sT0)}, {hex(L.FLAGS + L.F_T)}")
    A(f"s_lshl_b32 {s(sT0)}, {s(sH)}, 3")
    A(f"s_lshl_b32 {s(sT1)}, {s(sQt)}, 2")
    A(f"s_add_u32 {s(sT0)}, {s(sT0)}, {s(sT1)}")
    A(f"s_add_u32 {s(sFO)}, {s(sT0)}, {hex(L.FLAGS + L.F_O)}")
    if not g2:
        A(f"s_mov_b32 {s(sS)}, 0")
    if P.get("diag"):
        rt_init(A, 40)
        A(f"s_lshl3_add_u32 s40, {s(sS)}, s40")
    apl = P.get("apl", 0)
    if apl:
        A(f"s_lshl_b32 {s(sT0)}, {s(sQt)}, 7")
        A(f"v_and_b32 {v(vPg)}, 7, {v(vLane)}")
        A(f"v_lshl_add_u32 {v(vPg)}, {v(vPg)}, 8, {s(sT0)}")
        A("s_mov_b64 exec, 0xff00")
        A(f"v_add_u32 {v(vPg)}, 0x10000, {v(vPg)}")
        A("s_mov_b64 exec, 0x10000")
        A(f"v_add_u32 {v(vPg)}, 0x40000, {v(vPg)}")
        A("s_mov_b64 exec, -1")
    else:
        A(f"v_and_b32 {v(vPg)}, 1, {v(vLane)}")
        A(f"v_lshlrev_b32 {v(vPg)}, 2, {v(vPg)}")
    A(f"s_mov_b32 {s(sPg)}, {hex(L.FLAGS + L.F_PRG)}")
    if g2:
        for sh, regs in ((18, (sQ, sK0, sK1, sV0, sV1, sO)), (16, (sKM, sVM)), (8, (sFO,)), (2, (sPg,)), (L.FS, (sFQ,))):
            A(f"s_lshl_b32 {s(sT0)}, {s(sS)}, {sh}")
            for x in regs:
                A(f"s_add_u32 {s(x)}, {s(x)}, {s(sT0)}")

    def poll(lbl, ok, va, so, mask, slp):
        A.label(lbl)
        A(f"buffer_load_dword {v(t0)}, {v(va)}, {s(S_WS, 4)}, {s(so)} offen sc1")
        A("s_waitcnt vmcnt(0)")
        A(f"v_cmp_eq_u32 vcc, 0, {v(t0)}")
        A(f"s_and_b32 {s(sT0)}, vcc_lo, {mask}")
        A(f"s_cbranch_scc0 {ok}")
        A(f"s_sleep {slp}")
        A(f"s_sub_u32 {s(sBud)}, {s(sBud)}, 1")
        A(f"s_cbranch_scc0 {lbl}")
        A(f"s_branch {exit_lbl}")

    ast = P.get("ast", 1) and apl == 8 and g2

    def peek(m=None, so=sVM):
        A(f"v_mov_b32 {v(vPd)}, 0")
        A(f"s_mov_b64 exec, {m or (1 << apl) - 1 << 8 - apl}")
        A(f"buffer_atomic_add {v(vPd)}, {v(vPg)}, {s(S_WS, 4)}, {s(so)} offen sc0 sc1")
        A("s_mov_b64 exec, -1")

    def tok():
        for kk in range(4):
            ld(QF + 4 * kk, vL16, sQ, kk * 1024)
            ld(KF + 4 * kk, vL16, sK0, kk * 1024)
            ld(KF + 16 + 4 * kk, vL16, sK1, kk * 1024)
        if apl:
            peek(0xffff if ast else None)
        else:
            A(f"buffer_load_dword {v(vPd)}, {v(vPg)}, {s(S_WS, 4)}, {s(sPg)} offen sc1")
        for et in range(8):
            ld(VF + 4 * et, vL16, sV0 if et < 4 else sV1, (et & 3) * 1024)

    def flag(n):
        A(f"s_waitcnt vmcnt({n})")
        A("s_mov_b64 exec, 1")
        A(f"buffer_store_dword {v(vOne)}, {v(vZ)}, {s(S_WS, 4)}, {s(sFO)} offen sc1")
        A("s_mov_b64 exec, -1")
        A(f"s_add_u32 {s(sFO)}, {s(sFO)}, {inc(8)}")
        if P.get("diag"):
            rt_stamp(A, 40, t0, vZ)
            if g2:
                A(f"s_and_b32 {s(sT0)}, {inc(2)}, 8")
                A(f"s_add_u32 s40, s40, {s(sT0)}")

    if g2:
        A(f"s_cmp_eq_u32 {s(sS)}, 0")
        A(f"s_cbranch_scc1 {pfx}_fp")
        A(f"s_sub_u32 {s(sT1)}, {s(sFO)}, {256 * P.get('g2a', 5)}")
        poll(f"{pfx}_gp", f"{pfx}_fp", vZ, sT1, 1, 32)
    poll(f"{pfx}_fp", f"{pfx}_fok", vFl, sFQ, -1, 8)
    A.label(f"{pfx}_fok")
    tok()
    A("s_waitcnt vmcnt(0)")
    A.label(f"{pfx}_top")
    ex = 2 if P.get("diag") else 1
    if g2:
        A(f"s_cmp_ge_u32 {s(sS)}, {g2}")
        A(f"s_cselect_b32 {inc(0)}, 2, 1")
        for k in (18, 16, 8, 2, 7):
            A(f"s_lshl_b32 {inc(k)}, {inc(0)}, {k}")
    for kk in range(4):
        A(f"s_waitcnt vmcnt({9 + 3 * (3 - kk) + ex})")
        mf(S0, KF + 4 * kk, QF + 4 * kk, S0 if kk else B0)
        mf(S1, KF + 16 + 4 * kk, QF + 4 * kk, S1 if kk else B1)
    for x in (sQ, sK0, sK1, sV0, sV1):
        A(f"s_add_u32 {s(x)}, {s(x)}, {inc(18)}")
    A(f"s_add_u32 {s(sFQ)}, {s(sFQ)}, {inc(L.FS)}")
    A(f"s_waitcnt vmcnt({8 + ex})")
    A(f"v_cmp_eq_u32 vcc, {-1 if apl else 0}, {v(vPd)}")
    A.nop(1)
    A(f"v_max3_f32 {v(t2)}, {v(S0)}, {v(S0 + 1)}, {v(S0 + 2)}")
    A.nop(2)
    A(f"v_max3_f32 {v(t2)}, {v(t2)}, {v(S0 + 3)}, {v(S1)}")
    A(f"v_max3_f32 {v(t2)}, {v(t2)}, {v(S1 + 1)}, {v(S1 + 2)}")
    A(f"v_max_f32 {v(t2)}, {v(t2)}, {v(S1 + 3)}")
    if ast:
        A(f"s_lshr_b32 {s(sR1)}, vcc_lo, 8")
        A(f"s_and_b32 {s(sT0)}, vcc_lo, 0xff")
        A(f"s_cbranch_scc0 {pfx}_mp")
    elif apl:
        A(f"s_cbranch_vccz {pfx}_mp")
    if apl:
        A(f"s_cmp_eq_u32 {s(sS)}, {63 if P.get('apz', 0) else 99}")
        A(f"s_cbranch_scc1 {pfx}_mp")
        A.label(f"{pfx}_pp")
        peek()
        A(f"s_sub_u32 {s(sBud)}, {s(sBud)}, 1")
        A(f"s_cbranch_scc1 {exit_lbl}")
        A("s_waitcnt vmcnt(0)")
        A(f"v_cmp_eq_u32 vcc, -1, {v(vPd)}")
        A(f"s_cbranch_vccnz {pfx}_pp")
    else:
        A(f"s_cmp_ge_u32 {s(sS)}, {P.get('alead', 56)}")
        A(f"s_cselect_b32 {s(sT1)}, 1, 2")
        A(f"s_and_b32 {s(sT0)}, vcc_lo, {s(sT1)}")
        A(f"s_cbranch_scc0 {pfx}_mp")
        poll(f"{pfx}_pp", f"{pfx}_pok", vPg, sPg, s(sT1), P.get('aps', 2))
        A.label(f"{pfx}_pok")
        A(f"s_cmp_eq_u32 {s(sT1)}, 2")
        A(f"s_cbranch_scc1 {pfx}_mp")
        A(f"s_sleep {P.get('apd3', 8)}")
        A(f"s_cmp_eq_u32 {s(sS)}, 63")
        A(f"s_cbranch_scc1 {pfx}_mp")
        A(f"s_sleep {P.get('apd', 40)}")
    A.label(f"{pfx}_mp")
    for kk in range(4):
        ld(KMF + 4 * kk, vKMa, sKM, kk * 512)
    for k in range(8):
        A(f"buffer_load_dwordx2 {v(VMF + 2 * k, 2)}, {v(vVMa)}, {s(S_WS, 4)}, {s(sVM)} offen offset:{k * 256} sc1")
    A(f"buffer_load_dword {v(vPd)}, {v(vFl)}, {s(S_WS, 4)}, {s(sFQ)} offen sc1")
    for kk in range(4):
        A(f"s_waitcnt vmcnt({12 - kk})")
        mf(SM, KMF + 4 * kk, QF + 4 * kk, SM if kk else BM)
        b = KMF + 4 * kk
        if kk == 0:
            A(f"v_max3_u32 {v(t0)}, {v(b)}, {v(b + 1)}, {v(b + 2)}")
            A(f"v_max_u32 {v(t0)}, {v(t0)}, {v(b + 3)}")
        else:
            A(f"v_max3_u32 {v(t0)}, {v(t0)}, {v(b)}, {v(b + 1)}")
            A(f"v_max3_u32 {v(t0)}, {v(t0)}, {v(b + 2)}, {v(b + 3)}")
    for k in range(4):
        b = VMF + 4 * k
        A(f"s_waitcnt vmcnt({7 - 2 * k})")
        A(f"v_max3_u32 {v(t0)}, {v(t0)}, {v(b)}, {v(b + 1)}")
        A(f"v_max3_u32 {v(t0)}, {v(t0)}, {v(b + 2)}, {v(b + 3)}")
    A(f"v_cmp_eq_u32 vcc, -1, {v(t0)}")
    A(f"s_cbranch_vccz {pfx}_mok")
    if P.get("asl", 1):
        A(f"s_sleep {P.get('asl', 1)}")
    A(f"s_sub_u32 {s(sBud)}, {s(sBud)}, 1")
    A(f"s_cbranch_scc0 {pfx}_mp")
    A(f"s_branch {exit_lbl}")
    A.label(f"{pfx}_mok")
    if P.get("diag"):
        rt_stamp(A, 40, t0, vZ)

    def soft(main):
        for i in range(4):
            A(f"v_mul_f32 {v(SM + i)}, {s(sCc)}, {v(SM + i)}")
        A(f"v_max3_f32 {v(t0)}, {v(t2)}, {v(SM)}, {v(SM + 1)}")
        A(f"v_max3_f32 {v(t0)}, {v(t0)}, {v(SM + 2)}, {v(SM + 3)}")
        A(f"v_mov_b32 {v(t1)}, {v(t0)}")
        if main:
            A(f"s_add_u32 {s(sKM)}, {s(sKM)}, {inc(16)}")
            A(f"s_add_u32 {s(sVM)}, {s(sVM)}, {inc(16)}")
        else:
            A.nop(2)
        A(f"v_permlane32_swap_b32 {v(t0)}, {v(t1)}")
        A(f"v_max_f32 {v(t0)}, {v(t0)}, {v(t1)}")
        A(f"v_mov_b32 {v(t1)}, {v(t0)}")
        A.nop(2)
        A(f"v_permlane16_swap_b32 {v(t0)}, {v(t1)}")
        A(f"v_max_f32 {v(t0)}, {v(t0)}, {v(t1)}")
        for i in range(12):
            A(f"v_sub_f32 {v(S0 + i)}, {v(S0 + i)}, {v(t0)}")
        for i in range(12):
            A(f"v_exp_f32 {v(S0 + i)}, {v(S0 + i)}")
            if i >= 2 and i % 2 == 0:
                A(f"v_cvt_pk_bf16_f32 {v(PT + i // 2 - 1)}, {v(S0 + i - 2)}, {v(S0 + i - 1)}")
        A.nop(1)
        A(f"v_cvt_pk_bf16_f32 {v(PT + 5)}, {v(S0 + 10)}, {v(S0 + 11)}")

    def pv():
        mf(DEN, ONES, PT, None)
        mf(OA, VF, PT, None)
        A(f"v_mfma_f32_16x16x16_bf16 {v(DEN, 4)}, {v(ONES, 2)}, {v(PM, 2)}, {v(DEN, 4)}")
        for et in range(1, 8):
            mf(OA + 4 * et, VF + 4 * et, PT, None)
        A(f"v_rcp_f32 {v(t0)}, {v(DEN)}")
        for et in range(8):
            A(f"v_mfma_f32_16x16x16_bf16 {v(OA + 4 * et, 4)}, {v(VMF + 2 * et, 2)}, {v(PM, 2)}, {v(OA + 4 * et, 4)}")
        A(f"v_mov_b32 {v(t1)}, {v(t0)}")

    def ost():
        for ks in range(4):
            b = OA + 8 * ks
            if ks == 3:
                A.nop(1)
            for i in range(4):
                A(f"v_pk_mul_f32 {v(b + 2 * i, 2)}, {v(b + 2 * i, 2)}, {v(t0, 2)}")
            for i in range(4):
                A(f"v_cvt_pk_bf16_f32 {v(OP + 4 * ks + i)}, {v(b + 2 * i)}, {v(b + 2 * i + 1)}")
            A(f"buffer_store_dwordx4 {v(OP + 4 * ks, 4)}, {v(vL16)}, {s(S_WS, 4)}, {s(sO)} offen offset:{ks * 1024}{L.ESC[1]}")
        A(f"s_add_u32 {s(sO)}, {s(sO)}, {inc(18)}")

    if ast:
        A(f"s_cmp_eq_u32 {s(sR1)}, 0")
        A(f"s_cbranch_scc1 {pfx}_se")
        A.label(f"{pfx}_sn")
    soft(True)
    pv()
    A(f"s_waitcnt vmcnt({ex - 1})")
    A(f"v_cmp_eq_u32 vcc, 0, {v(vPd)}")
    ost()
    A(f"s_add_u32 {s(sPg)}, {s(sPg)}, {inc(2)}")
    A(f"s_add_u32 {s(sS)}, {s(sS)}, {inc(0)}")
    A(f"s_cmp_ge_u32 {s(sS)}, 64")
    A(f"s_cbranch_scc1 {pfx}_last")
    A(f"s_cbranch_vccnz {pfx}_slow")
    if g2 and P.get("g2f", 1):
        A(f"s_cmp_gt_u32 {s(sS)}, {g2}")
        A(f"s_cbranch_scc1 {pfx}_slow")
    tok()
    flag(21)
    A(f"s_branch {pfx}_top")
    A.label(f"{pfx}_slow")
    flag(0)
    A(f"s_branch {pfx}_fp")
    A.label(f"{pfx}_last")
    flag(0)
    A(f"s_branch {exit_lbl}")
    if not ast:
        return
    vml = lambda k, o: A(f"buffer_load_dwordx2 {v(VMF + 2 * k, 2)}, {v(vVMa)}, {s(S_WS, 4)}, {s(o)} offen offset:{k * 256} sc1")

    def vmchk(lbl):
        A(f"v_max_u32 {v(t0)}, {v(VMF)}, {v(VMF + 1)}")
        for i in range(2, 16, 2):
            A(f"v_max3_u32 {v(t0)}, {v(t0)}, {v(VMF + i)}, {v(VMF + i + 1)}")
        A(f"v_cmp_eq_u32 vcc, -1, {v(t0)}")
        A(f"s_cbranch_vccnz {lbl}")

    def post():
        A("s_mov_b64 exec, 1")
        A(f"buffer_store_dword {v(vOne)}, {v(vZ)}, {s(S_WS, 4)}, {s(sFp)} offen sc1")
        A("s_mov_b64 exec, -1")
    A.label(f"{pfx}_se")
    A(f"s_waitcnt vmcnt({ex - 1})")
    A(f"v_cmp_eq_u32 vcc, 0, {v(vPd)}")
    A(f"s_cmp_ge_u32 {s(sS)}, {g2 - 2}")
    A(f"s_cbranch_scc1 {pfx}_sn")
    A(f"s_cbranch_vccnz {pfx}_sn")
    A(f"s_mov_b32 {s(sFp)}, {hex(OOB)}")
    A(f"s_mov_b32 {s(sCr)}, 0")
    A.label(f"{pfx}_E")
    A(f"s_add_u32 {s(sKM)}, {s(sKM)}, 0x10000")
    A(f"s_add_u32 {s(sVM)}, {s(sVM)}, 0x10000")
    A(f"s_add_u32 {s(sFQ)}, {s(sFQ)}, {1 << L.FS}")
    for kk in range(4):
        ld(QF + 4 * kk, vL16, sQ, kk * 1024)
        ld(KF + 4 * kk, vL16, sK0, kk * 1024)
        ld(KF + 16 + 4 * kk, vL16, sK1, kk * 1024)
        ld(KMF + 4 * kk, vKMa, sKM, kk * 512)
    A(f"s_cmp_eq_u32 {s(sCr)}, 0")
    A(f"s_cselect_b32 {s(sPa)}, {s(sVM)}, {hex(OOB)}")
    A(f"s_cselect_b32 {s(sCr)}, 4, {s(sCr)}")
    A(f"s_sub_u32 {s(sCr)}, {s(sCr)}, 1")
    peek(0x1ff00, sPa)
    A(f"buffer_load_dword {v(vFd)}, {v(vFl)}, {s(S_WS, 4)}, {s(sFQ)} offen sc1")
    soft(False)
    aso = P.get("aso", 1)
    A(f"s_waitcnt vmcnt({19 if aso else 23})")
    vmchk(f"{pfx}_vf")
    A.label(f"{pfx}_vo")
    pv()
    if aso:
        A.nop(2)
        ost()
    for et in range(8):
        ld(VF + 4 * et, vL16, sV0 if et < 4 else sV1, (et & 3) * 1024)
    for k in range(8):
        vml(k, sVM)
    if not aso:
        ost()
    if P.get("diag"):
        rt_stamp(A, 40, t0, vZ)
        rt_stamp(A, 40, t0, vZ)
    A(f"s_add_u32 {s(sS)}, {s(sS)}, 1")
    for x in (sQ, sK0, sK1, sV0, sV1):
        A(f"s_add_u32 {s(x)}, {s(x)}, {1 << 18}")
    for kk in range(4):
        A(f"s_waitcnt vmcnt({22 + 4 * (3 - kk) + (kk > 0)})")
        mf(S0, KF + 4 * kk, QF + 4 * kk, S0 if kk else B0)
        mf(S1, KF + 16 + 4 * kk, QF + 4 * kk, S1 if kk else B1)
        mf(SM, KMF + 4 * kk, QF + 4 * kk, SM if kk else BM)
        b = KMF + 4 * kk
        if kk == 0:
            post()
            A(f"s_mov_b32 {s(sFp)}, {s(sFO)}")
            A(f"s_add_u32 {s(sFO)}, {s(sFO)}, 256")
            A(f"v_max3_u32 {v(t0)}, {v(b)}, {v(b + 1)}, {v(b + 2)}")
            A(f"v_max_u32 {v(t0)}, {v(t0)}, {v(b + 3)}")
        else:
            A(f"v_max3_u32 {v(t0)}, {v(t0)}, {v(b)}, {v(b + 1)}")
            A(f"v_max3_u32 {v(t0)}, {v(t0)}, {v(b + 2)}, {v(b + 3)}")
    A("s_waitcnt vmcnt(21)")
    A(f"v_readlane_b32 {s(sT0)}, {v(vPd)}, 16")
    A(f"v_writelane_b32 {v(vPd)}, 0, 16")
    A(f"s_cmp_eq_u32 {s(sT0)}, -1")
    A(f"s_cselect_b32 {s(sCr)}, 0, {s(sCr)}")
    A(f"v_max_u32 {v(t0)}, {v(t0)}, {v(vPd)}")
    A(f"v_add_u32 {v(t0)}, 1, {v(t0)}")
    A(f"v_min_u32 {v(t0)}, {v(t0)}, {v(vFd)}")
    A(f"v_cmp_eq_u32 vcc, 0, {v(t0)}")
    A(f"v_max3_f32 {v(t2)}, {v(S0)}, {v(S0 + 1)}, {v(S0 + 2)}")
    A(f"s_cmp_lt_u32 {s(sS)}, {g2 - 2}")
    A.nop(2)
    A(f"v_max3_f32 {v(t2)}, {v(t2)}, {v(S0 + 3)}, {v(S1)}")
    A(f"v_max3_f32 {v(t2)}, {v(t2)}, {v(S1 + 1)}, {v(S1 + 2)}")
    A(f"v_max_f32 {v(t2)}, {v(t2)}, {v(S1 + 3)}")
    A(f"s_cbranch_vccnz {pfx}_X")
    A(f"s_cbranch_scc1 {pfx}_E")
    A.label(f"{pfx}_X")
    A("s_waitcnt vmcnt(0)")
    post()
    A(f"s_mov_b32 {s(sR1)}, 1")
    if P.get("diag"):
        A("s_sub_u32 s40, s40, 4")
    A(f"s_branch {pfx}_mp")
    A.label(f"{pfx}_vf")
    A(f"s_sub_u32 {s(sT0)}, {s(sVM)}, 0x10000")
    for k in range(8):
        vml(k, sT0)
    A(f"s_sub_u32 {s(sBud)}, {s(sBud)}, 1")
    A(f"s_cbranch_scc1 {exit_lbl}")
    A("s_waitcnt vmcnt(0)")
    vmchk(f"{pfx}_vf")
    A(f"s_branch {pfx}_vo")
```

```python
import math
from asmlib import *
import layout as L
from chain import S_WS, sX, sT, sWv, sBud, OOB
from gemm import f32, vLane
from att import rt_init, rt_stamp

QF, KF, VF, KMF, VMF = 0, 32, 64, 96, 112
SA, SB = 128, 140
BD, BM = 152, 156
PA, PB, DA, DB, ONES = 160, 168, 176, 180, 184
tA, tB, mA, mB, t0 = 188, 190, 192, 193, 194
vL16, vKMa, vVMa, vFl, vOne, vZ, vPg, vPd, vFd = 196, 197, 198, 199, 200, 202, 203, 204, 205
OA, OB = 0, 32
OP = 208
sQ, sK, sV, sKM, sVM, sO, sFQ, sFO, sS, sCc, sH, sE = range(15, 27)
sT0, sT1 = 31, 32


def attention(A, pfx, exit_lbl, P):
    diag = P.get("diag")

    def mf(d, a_, b_, c_):
        A(f"v_mfma_f32_16x16x32_bf16 {v(d, 4)}, {v(a_, 4)}, {v(b_, 4)}, {v(c_, 4) if c_ is not None else 0}")

    def m16(d, a_, b_):
        A(f"v_mfma_f32_16x16x16_bf16 {v(d, 4)}, {v(a_, 2)}, {v(b_, 2)}, {v(d, 4)}")

    def ld(dst, va, so, off):
        A(f"buffer_load_dwordx4 {v(dst, 4)}, {v(va)}, {s(S_WS, 4)}, {s(so)} offen offset:{off} sc1")

    def bud(lbl):
        A(f"s_sub_u32 {s(sBud)}, {s(sBud)}, 1")
        A(f"s_cbranch_scc0 {lbl}")
        A(f"s_branch {exit_lbl}")

    A(f"s_lshl_b32 {s(sH)}, {s(sT)}, 1")
    A(f"s_lshr_b32 {s(sT0)}, {s(sWv)}, 1")
    A(f"s_add_u32 {s(sH)}, {s(sH)}, {s(sT0)}")
    A(f"s_and_b32 {s(sS)}, {s(sWv)}, 1")
    A(f"v_lshlrev_b32 {v(vL16)}, 4, {v(vLane)}")
    A(f"v_and_b32 {v(tA)}, 15, {v(vLane)}")
    A(f"v_lshrrev_b32 {v(tB)}, 4, {v(vLane)}")
    A(f"v_and_b32 {v(vPg)}, 7, {v(vLane)}")
    A(f"v_lshl_add_u32 {v(t0)}, {v(tB)}, 3, {v(vPg)}")
    A(f"v_lshlrev_b32 {v(vKMa)}, 4, {v(t0)}")
    A(f"v_lshlrev_b32 {v(vPg)}, 8, {v(vPg)}")
    A(f"v_bfe_u32 {v(vVMa)}, {v(vL16)}, 1, 8")
    A(f"v_min_u32 {v(vFl)}, 2, {v(vLane)}")
    A(f"v_lshlrev_b32 {v(vFl)}, 13, {v(vFl)}")
    A(f"s_lshl_b32 {s(sT0)}, {s(sH)}, {L.FC}")
    A(f"s_sub_u32 {s(sT0)}, {L.T_FILL * 8192 + (4 << L.FS) - (4 << L.FC)}, {s(sT0)}")
    A("s_mov_b64 exec, 0xf0")
    A(f"v_lshl_add_u32 {v(vFl)}, {v(vLane)}, {L.FC}, {s(sT0)}")
    A("s_mov_b64 exec, -1")
    A(f"v_mov_b32 {v(vOne)}, 1")
    A(f"v_mov_b32 {v(vOne + 1)}, 1")
    A(f"v_mov_b32 {v(vZ)}, 0")
    A(f"v_lshlrev_b32 {v(t0)}, 2, {v(tB)}")
    A(f"v_sub_u32 {v(tA)}, {v(tA)}, {v(t0)}")
    A(f"v_mov_b32 {v(t0)}, 0xf149f2ca")
    for r_ in range(4):
        A(f"v_cmp_le_i32 vcc, {r_}, {v(tA)}")
        A("s_nop 1")
        A(f"v_cndmask_b32 {v(BD + r_)}, {v(t0)}, 0, vcc")
    A(f"v_cmp_le_u32 vcc, 2, {v(tB)}")
    A("s_nop 1")
    for r_ in range(4):
        A(f"v_cndmask_b32 {v(BM + r_)}, {v(t0)}, 0, vcc")
        A(f"v_mov_b32 {v(ONES + r_)}, 0x3f803f80")
    A(f"v_mov_b32 {v(PA + 2)}, 0")
    A(f"v_mov_b32 {v(PA + 3)}, 0")
    A(f"s_mov_b32 {s(sCc)}, {f32((128 ** -0.5) * math.log2(math.e))}")
    for sh, hs, regs in ((18, 12, ((sQ, L.Q), (sK, L.K), (sO, L.O))), (18, 13, ((sV, L.VT),)), (16, 11, ((sKM, L.KM), (sVM, L.VM))),
                         (L.FS, L.FC, ((sFQ, L.FLAGS + L.F_T),)), (8, 3, ((sFO, L.FLAGS + L.F_O),))):
        A(f"s_lshl_b32 {s(sT0)}, {s(sS)}, {sh}")
        A(f"s_lshl_b32 {s(sT1)}, {s(sH)}, {hs}")
        A(f"s_add_u32 {s(sT0)}, {s(sT0)}, {s(sT1)}")
        for x, b in regs:
            A(f"s_add_u32 {s(x)}, {s(sT0)}, {hex(b)}")
    if diag:
        rt_init(A, 40)
        A(f"s_lshl3_add_u32 s40, {s(sS)}, s40")

    def peek(so):
        A(f"v_mov_b32 {v(vPd)}, 0")
        A("s_mov_b64 exec, 0xff")
        A(f"buffer_atomic_add {v(vPd)}, {v(vPg)}, {s(S_WS, 4)}, {s(so)} offen sc0 sc1")
        A("s_mov_b64 exec, -1")

    def tok():
        for x, b in ((sK, KF), (sQ, QF)):
            for t in range(2):
                for kk in range(4):
                    ld(b + 16 * t + 4 * kk, vL16, x, kk * 1024)
                A(f"s_add_u32 {s(x)}, {s(x)}, {(1 << 19) - 131072 if t else 131072}")
        for et in range(8):
            ld(VF + 4 * et, vL16, sV, (et & 3) * 1024)
            if et & 3 == 3:
                A(f"s_add_u32 {s(sV)}, {s(sV)}, {(1 << 19) - 4096 if et == 7 else 4096}")

    def mem():
        for kk in range(4):
            ld(KMF + 4 * kk, vKMa, sKM, kk * 512)
        for k in range(8):
            A(f"buffer_load_dwordx2 {v(VMF + 2 * k, 2)}, {v(vVMa)}, {s(S_WS, 4)}, {s(sVM)} offen offset:{k * 256} sc1")

    def flag(n):
        A(f"s_waitcnt vmcnt({n})")
        A("s_mov_b64 exec, 1")
        A(f"buffer_store_dwordx2 {v(vOne, 2)}, {v(vZ)}, {s(S_WS, 4)}, {s(sFO)} offen sc1")
        A("s_mov_b64 exec, -1")
        A(f"s_add_u32 {s(sFO)}, {s(sFO)}, 512")
        if diag:
            rt_stamp(A, 40, t0, vZ)
            A("s_add_u32 s40, s40, 8")

    A.label(f"{pfx}_fp")
    A(f"buffer_load_dword {v(t0)}, {v(vFl)}, {s(S_WS, 4)}, {s(sFQ)} offen sc1")
    A("s_waitcnt vmcnt(0)")
    A(f"v_cmp_eq_u32 vcc, 0, {v(t0)}")
    A(f"s_cbranch_vccz {pfx}_fok")
    A("s_sleep 8")
    bud(f"{pfx}_fp")
    A.label(f"{pfx}_fok")
    tok()
    A(f"s_mov_b32 {s(sE)}, 0")
    A.label(f"{pfx}_top")
    A(f"s_add_u32 {s(sFQ)}, {s(sFQ)}, {2 << L.FS}")
    for kk in range(4):
        A(f"s_waitcnt vmcnt({15 - kk})")
        mf(SA, KF + 4 * kk, QF + 4 * kk, SA if kk else BD)
    for kk in range(4):
        A(f"s_waitcnt vmcnt({11 - kk})")
        mf(SB, KF + 4 * kk, QF + 16 + 4 * kk, SB if kk else None)
        mf(SB + 4, KF + 16 + 4 * kk, QF + 16 + 4 * kk, SB + 4 if kk else BD)
    A(f"v_max3_f32 {v(mA)}, {v(SA)}, {v(SA + 1)}, {v(SA + 2)}")
    A(f"v_max_f32 {v(mA)}, {v(mA)}, {v(SA + 3)}")
    A(f"s_cmp_lg_u32 {s(sE)}, 0")
    A.nop(3)
    A(f"v_max3_f32 {v(mB)}, {v(SB)}, {v(SB + 1)}, {v(SB + 2)}")
    A.nop(2)
    A(f"v_max3_f32 {v(mB)}, {v(mB)}, {v(SB + 3)}, {v(SB + 4)}")
    A(f"v_max3_f32 {v(mB)}, {v(mB)}, {v(SB + 5)}, {v(SB + 6)}")
    A(f"v_max_f32 {v(mB)}, {v(mB)}, {v(SB + 7)}")
    A(f"s_cbranch_scc1 {pfx}_me")
    A.label(f"{pfx}_pp")
    peek(sVM)
    A(f"s_sub_u32 {s(sBud)}, {s(sBud)}, 1")
    A(f"s_cbranch_scc1 {exit_lbl}")
    A("s_waitcnt vmcnt(0)")
    A(f"v_cmp_eq_u32 vcc, -1, {v(vPd)}")
    A(f"s_cbranch_vccnz {pfx}_pp")
    A.label(f"{pfx}_mp")
    mem()
    A.label(f"{pfx}_me")
    A(f"buffer_load_dword {v(vFd)}, {v(vFl)}, {s(S_WS, 4)}, {s(sFQ)} offen sc1")
    A(f"s_add_u32 {s(sT0)}, {s(sVM)}, 0x20000")
    A(f"s_cmp_ge_u32 {s(sS)}, {P.get('a2e', 54)}")
    A(f"s_cselect_b32 {s(sT0)}, {hex(OOB)}, {s(sT0)}")
    A(f"s_cselect_b32 {s(sE)}, 0, 1")
    peek(sT0)
    for kk in range(4):
        A(f"s_waitcnt vmcnt({13 - kk})")
        mf(SA + 4, KMF + 4 * kk, QF + 4 * kk, SA + 4 if kk else BM)
        mf(SB + 8, KMF + 4 * kk, QF + 16 + 4 * kk, SB + 8 if kk else BM)
        b = KMF + 4 * kk
        A(f"v_max3_u32 {v(t0)}, {v(t0 if kk else b)}, {v(b)}, {v(b + 1)}")
        A(f"v_max3_u32 {v(t0)}, {v(t0)}, {v(b + 2)}, {v(b + 3)}")
    for k in range(4):
        b = VMF + 4 * k
        A(f"s_waitcnt vmcnt({8 - 2 * k})")
        A(f"v_max3_u32 {v(t0)}, {v(t0)}, {v(b)}, {v(b + 1)}")
        A(f"v_max3_u32 {v(t0)}, {v(t0)}, {v(b + 2)}, {v(b + 3)}")
    A(f"v_cmp_eq_u32 vcc, -1, {v(t0)}")
    A(f"s_cbranch_vccz {pfx}_mok")
    A("s_waitcnt vmcnt(0)")
    bud(f"{pfx}_mp")
    A.label(f"{pfx}_mok")
    if diag:
        rt_stamp(A, 40, t0, vZ)
    TL = ((SB, 12, mB, tB, PB, DB, OB), (SA, 8, mA, tA, PA, DA, OA))
    for S, n, m, t, *_ in TL:
        for i in range(4):
            A(f"v_mul_f32 {v(S + n - 4 + i)}, {s(sCc)}, {v(S + n - 4 + i)}")
        A(f"v_max3_f32 {v(t)}, {v(m)}, {v(S + n - 4)}, {v(S + n - 3)}")
        A(f"v_max3_f32 {v(t)}, {v(t)}, {v(S + n - 2)}, {v(S + n - 1)}")
        A(f"v_mov_b32 {v(t + 1)}, {v(t)}")
    A(f"s_add_u32 {s(sKM)}, {s(sKM)}, 0x20000")
    A(f"s_add_u32 {s(sVM)}, {s(sVM)}, 0x20000")
    for op in ("v_permlane32_swap_b32", "v_permlane16_swap_b32"):
        for S, n, m, t, *_ in TL:
            A(f"{op} {v(t)}, {v(t + 1)}")
            A(f"v_max_f32 {v(t)}, {v(t)}, {v(t + 1)}")
            if "32" in op[:12]:
                A(f"v_mov_b32 {v(t + 1)}, {v(t)}")

    def prob(S, n, m, t, PT):
        o = [f"v_sub_f32 {v(S + i)}, {v(S + i)}, {v(t)}" for i in range(n)]
        for i in range(n + 2):
            if i < n:
                o.append(f"v_exp_f32 {v(S + i)}, {v(S + i)}")
            if i >= 3 and i % 2:
                k = (i - 3) // 2
                o.append(f"v_cvt_pk_bf16_f32 {v(PT + (k if 2 * k < n - 4 else k + 4 - (n - 4) // 2))}, {v(S + 2 * k)}, {v(S + 2 * k + 1)}")
            if i == n:
                o.append("s_nop 0")
        return o

    def pv(PT, D, O):
        o = [lambda: mf(D, ONES, PT, None), lambda: mf(O, VF, PT, None), lambda: m16(D, ONES, PT + 4)]
        o += [lambda et=et: mf(O + 4 * et, VF + 4 * et, PT, None) for et in range(1, 8)]
        return o + [lambda et=et: m16(O + 4 * et, VMF + 2 * et, PT + 4) for et in range(8)]

    def out(t, D, O, op, so):
        o = [f"v_rcp_f32 {v(t)}, {v(D)}", "s_nop 0", f"v_mov_b32 {v(t + 1)}, {v(t)}"]
        for ks in range(4):
            b = O + 8 * ks
            o += [f"v_pk_mul_f32 {v(b + 2 * i, 2)}, {v(b + 2 * i, 2)}, {v(t, 2)}" for i in range(4)]
            o += [f"v_cvt_pk_bf16_f32 {v(op + 4 * ks + i)}, {v(b + 2 * i)}, {v(b + 2 * i + 1)}" for i in range(4)]
            o.append(f"buffer_store_dwordx4 {v(op + 4 * ks, 4)}, {v(vL16)}, {s(S_WS, 4)}, {s(so)} offen offset:{ks * 1024} sc1")
        return o

    def mix(ms, vs):
        for i, f in enumerate(ms):
            f()
            for _ in range(3 if i < 10 else 1):
                if vs:
                    A(vs.pop(0))
        for x in vs:
            A(x)
    for x in prob(*TL[0][:5]):
        A(x)
    A(f"s_add_u32 {s(sT0)}, {s(sO)}, 131072")
    A.nop(1)
    mix(pv(PB, DB, OB), prob(*TL[1][:5]))
    mix(pv(PA, DA, OA), out(tB, DB, OB, OP, sT0))
    A(f"s_add_u32 {s(sS)}, {s(sS)}, 2")
    for x in out(tA, DA, OA, OP + 16, sO):
        A(x)
    A(f"s_add_u32 {s(sO)}, {s(sO)}, {1 << 19}")
    A(f"s_cmp_ge_u32 {s(sS)}, {P.get('a2f', 60)}")
    A(f"s_cbranch_scc1 {pfx}_slow")
    A("s_waitcnt vmcnt(8)")
    A(f"v_cmp_eq_u32 vcc, 0, {v(vFd)}")
    A(f"s_cbranch_vccnz {pfx}_slow")
    A(f"v_cmp_eq_u32 vcc, -1, {v(vPd)}")
    tok()
    A("s_cmp_eq_u64 vcc, 0")
    A(f"s_cselect_b32 {s(sE)}, {s(sE)}, 0")
    A(f"s_cmp_eq_u32 {s(sE)}, 0")
    A(f"s_cbranch_scc1 {pfx}_nm")
    mem()
    flag(36)
    A(f"s_branch {pfx}_top")
    A.label(f"{pfx}_nm")
    flag(24)
    A(f"s_branch {pfx}_top")
    A.label(f"{pfx}_slow")
    flag(0)
    A(f"s_cmp_lt_u32 {s(sS)}, 64")
    A(f"s_cbranch_scc1 {pfx}_fp")
    A(f"s_branch {exit_lbl}")
```

```python
from asmlib import *
import layout as L

S_WS = 4
S_W = 8
sX, sT, sWv, sH, sC = 12, 13, 14, 15, 16
sStep = 17
sAL, sAR, sZld, sZst, sOst, sOld0, sOld1, sMst, sVMst, sKT, sVT = range(18, 29)
sBud = 29
sCc, sNegC = 30, 31
sT0, sT1, sT2, sT3 = 32, 33, 34, 35
sM0a, sKM = 36, 37
sMK = 38
sPRG = 39
S_PTR = 40
S_CNT = 48
S_ST = 60
S_DBG = 60
sSTO = 58
sDM = 3
sD, sFw = 0, 1
vRW = 77

ACC = 0
AL, AR = 32, 48
VACC = 64
VT_, ONES = 96, 100
FW, FK = 104, 108
IDX = 112
vWO, vXrd, vXwr, vG16, vZst, vOst, vMst, vVMst, vPF, vPFi, vPFd, vBias, vZrd = range(113, 126)
t0, t1 = 126, 127
t2, t3 = 94, 95
WV = 128

X1 = 0
X2 = 16384
KT = 24576
WVB = 32768
OOB = 0x7F000000


def mpos(A, dst, tmp, P):
    A(f"s_lshl_b32 {s(dst)}, {s(sT)}, 9")
    if P.get("msw", 0):
        A(f"s_and_b32 {s(tmp)}, {s(sT)}, 8")
        A(f"s_lshl_b32 {s(tmp)}, {s(tmp)}, 7")
        A(f"s_xor_b32 {s(dst)}, {s(dst)}, {s(tmp)}")


def quart(A, dst, shift, rot):
    if rot:
        A(f"s_lshr_b32 {s(dst)}, {s(sT)}, {rot - 1}")
        A(f"s_add_u32 {s(dst)}, {s(dst)}, {s(sWv)}")
        A(f"s_and_b32 {s(dst)}, {s(dst)}, 3")
        A(f"s_lshl_b32 {s(dst)}, {s(dst)}, {shift}")
    else:
        A(f"s_lshl_b32 {s(dst)}, {s(sWv)}, {shift}")


def rotx(A, dst, mode, mask, shift, cu):
    if mode == 2:
        A(f"s_xor_b32 {s(dst)}, {s(sWv)}, {s(cu)}")
    else:
        A(f"s_mov_b32 {s(dst)}, {s(sWv) if mode == 1 else s(cu) if mode else 0}")
    A(f"s_and_b32 {s(dst)}, {s(dst)}, {mask}")
    A(f"s_lshl_b32 {s(dst)}, {s(dst)}, {shift}")


def srd(A, dst, ptr, nbytes):
    A(f"s_mov_b32 {s(dst)}, {s(ptr)}")
    A(f"s_and_b32 {s(dst + 1)}, {s(ptr + 1)}, 0xffff")
    A(f"s_mov_b32 {s(dst + 2)}, {hex(nbytes)}")
    A(f"s_mov_b32 {s(dst + 3)}, 0x20000")


def read_counts(A, lbl, exit_lbl):
    A(f"v_and_b32 {v(t0)}, 7, {v(t2)}")
    A(f"v_lshlrev_b32 {v(t0)}, 5, {v(t0)}")
    A.label(lbl)
    A(f"buffer_load_dword {v(t1)}, {v(t0)}, {s(S_DBG, 4)}, 0 offen sc1")
    A("s_waitcnt vmcnt(0)")
    for i in range(8):
        A(f"v_readlane_b32 {s(S_CNT + i)}, {v(t1)}, {i}")
    A("s_nop 3")
    A(f"s_add_u32 {s(sT1)}, {s(S_CNT)}, {s(S_CNT + 1)}")
    for i in range(2, 8):
        A(f"s_add_u32 {s(sT1)}, {s(sT1)}, {s(S_CNT + i)}")
    A(f"s_cmp_ge_u32 {s(sT1)}, 256")
    A(f"s_cbranch_scc1 {lbl}_ok")
    A(f"s_sub_u32 {s(sBud)}, {s(sBud)}, 1")
    A(f"s_cbranch_scc1 {exit_lbl}")
    A("s_sleep 4")
    A(f"s_branch {lbl}")
    A.label(f"{lbl}_ok")


def wait_a(A, lbl, exit_lbl, va, vd):
    A(f"v_mov_b32 {v(va)}, 0")
    A.label(lbl)
    A(f"buffer_load_dword {v(vd)}, {v(va)}, {s(S_DBG, 4)}, 0 offen offset:{L.D_A} sc1")
    A("s_waitcnt vmcnt(0)")
    A(f"v_cmp_gt_u32 vcc, 4, {v(vd)}")
    A(f"s_cbranch_vccz {lbl}_ok")
    A("s_sleep 4")
    A(f"s_sub_u32 {s(sBud)}, {s(sBud)}, 1")
    A(f"s_cbranch_scc0 {lbl}")
    A(f"s_branch {exit_lbl}")
    A.label(f"{lbl}_ok")


def wait_fill(A, lbl, exit_lbl, lane, va, vd):
    A(f"v_lshlrev_b32 {v(va)}, 2, {v(lane)}")
    A(f"s_mov_b32 {s(sT0)}, {hex(L.FLAGS + L.F_FILL)}")
    A.label(lbl)
    A(f"buffer_load_dword {v(vd)}, {v(va)}, {s(S_WS, 4)}, {s(sT0)} offen sc1")
    A("s_waitcnt vmcnt(0)")
    A(f"v_cmp_eq_u32 vcc, 0, {v(vd)}")
    A(f"s_cbranch_vccz {lbl}_ok")
    A("s_sleep 4")
    A(f"s_sub_u32 {s(sBud)}, {s(sBud)}, 1")
    A(f"s_cbranch_scc0 {lbl}")
    A(f"s_branch {exit_lbl}")
    A.label(f"{lbl}_ok")


def slot_assign(A, pfx, exit_lbl):
    A(f"s_cmp_lg_u32 {s(sWv)}, 0")
    A(f"s_cbranch_scc1 {pfx}_slot_wait")
    A(f"s_getreg_b32 {s(sX)}, hwreg(HW_REG_XCC_ID, 0, 4)")
    A(f"s_and_b32 {s(sX)}, {s(sX)}, 7")
    A(f"s_lshl_b32 {s(sT0)}, {s(sX)}, 5")
    A(f"v_mov_b32 {v(t0)}, 0")
    A(f"v_mov_b32 {v(t1)}, 1")
    A("s_mov_b64 exec, 1")
    A(f"buffer_atomic_add {v(t1)}, {v(t0)}, {s(S_DBG, 4)}, {s(sT0)} offen sc0 sc1")
    A("s_waitcnt vmcnt(0)")
    A("s_mov_b64 exec, -1")
    A(f"v_readfirstlane_b32 {s(sT)}, {v(t1)}")
    A("s_nop 3")
    A(f"s_cmp_lt_u32 {s(sT)}, 32")
    A(f"s_cbranch_scc1 {pfx}_slot_pub")
    read_counts(A, f"{pfx}_ovf_cnt", exit_lbl)
    A(f"v_mov_b32 {v(t0)}, 0")
    A(f"v_mov_b32 {v(t1)}, 1")
    A("s_mov_b64 exec, 1")
    A(f"buffer_atomic_add {v(t1)}, {v(t0)}, {s(S_DBG, 4)}, 0 offen offset:{L.D_OVF} sc0 sc1")
    A("s_waitcnt vmcnt(0)")
    A("s_mov_b64 exec, -1")
    A(f"v_readfirstlane_b32 {s(sT1)}, {v(t1)}")
    A("s_nop 3")
    for i in range(8):
        A(f"s_min_u32 {s(sT2)}, {s(S_CNT + i)}, 32")
        A(f"s_sub_u32 {s(sT3)}, 32, {s(sT2)}")
        A(f"s_mov_b32 {s(sX)}, {i}")
        A(f"s_add_u32 {s(sT)}, {s(sT2)}, {s(sT1)}")
        A(f"s_cmp_lt_u32 {s(sT1)}, {s(sT3)}")
        A(f"s_cbranch_scc1 {pfx}_slot_pub")
        A(f"s_sub_u32 {s(sT1)}, {s(sT1)}, {s(sT3)}")
    A(f"s_mov_b32 {s(sX)}, 8")
    A(f"s_mov_b32 {s(sT)}, 0")
    A.label(f"{pfx}_slot_pub")
    A(f"v_mov_b32 {v(t0)}, 0")
    A(f"v_mov_b32 {v(t1)}, {s(sX)}")
    A(f"v_mov_b32 {v(t3)}, {s(sT)}")
    A(f"ds_write_b32 {v(t0)}, {v(t1)}")
    A(f"ds_write_b32 {v(t0)}, {v(t3)} offset:4")
    A("s_waitcnt lgkmcnt(0)")
    A.label(f"{pfx}_slot_wait")
    A("s_barrier")
    A(f"v_mov_b32 {v(t0)}, 0")
    A(f"ds_read_b32 {v(t1)}, {v(t0)}")
    A(f"ds_read_b32 {v(t3)}, {v(t0)} offset:4")
    A("s_waitcnt lgkmcnt(0)")
    A(f"v_readfirstlane_b32 {s(sX)}, {v(t1)}")
    A(f"v_readfirstlane_b32 {s(sT)}, {v(t3)}")
    A("s_nop 3")
    A("s_barrier")


def chain_prologue(A, pfx, P, mid, last):
    lane = t2
    A(f"s_lshr_b32 {s(sH)}, {s(sT)}, 1")
    A(f"s_lshl_b32 {s(sT0)}, {s(sX)}, 4")
    A(f"s_add_u32 {s(sH)}, {s(sH)}, {s(sT0)}")
    A(f"s_and_b32 {s(sC)}, {s(sT)}, 1")
    vW1, vW2, vT1, vT1v, vT2, rowl, cc = 64, 65, 66, 67, 68, 69, 70
    sLW = sM0a
    A(f"s_lshl_b32 {s(sLW)}, {s(sWv)}, 15")
    A(f"s_add_u32 {s(sLW)}, {s(sLW)}, {WVB}")
    A(f"v_lshrrev_b32 {v(t0)}, 3, {v(lane)}")
    A(f"v_and_b32 {v(t1)}, 7, {v(lane)}")
    A(f"v_lshlrev_b32 {v(t0)}, 13, {v(t0)}")
    A(f"v_lshl_add_u32 {v(vW1)}, {v(t1)}, 4, {v(t0)}")
    A(f"v_lshrrev_b32 {v(t0)}, 2, {v(lane)}")
    A(f"v_and_b32 {v(cc)}, 3, {v(lane)}")
    A(f"v_lshlrev_b32 {v(t0)}, 11, {v(t0)}")
    A(f"v_lshl_add_u32 {v(vW2)}, {v(cc)}, 4, {v(t0)}")
    A(f"v_lshrrev_b32 {v(t0)}, 5, {v(lane)}")
    A(f"v_lshlrev_b32 {v(rowl)}, 4, {v(t0)}")
    A(f"v_bfe_u32 {v(t0)}, {v(lane)}, 4, 1")
    A(f"v_lshl_add_u32 {v(rowl)}, {v(t0)}, 2, {v(rowl)}")
    A(f"v_bfe_u32 {v(t0)}, {v(lane)}, 2, 1")
    A(f"v_add_u32 {v(rowl)}, {v(rowl)}, {v(t0)}")
    A(f"v_bfe_u32 {v(t0)}, {v(lane)}, 3, 1")
    A(f"v_lshl_add_u32 {v(rowl)}, {v(t0)}, 3, {v(rowl)}")
    A(f"v_lshl_add_u32 {v(t0)}, {v(rowl)}, 7, {s(sLW)}")
    A(f"v_lshl_add_u32 {v(vT1v)}, {v(cc)}, 3, {v(t0)}")
    A(f"v_lshl_add_u32 {v(t0)}, {v(rowl)}, 6, {s(sLW)}")
    v3 = P.get("v3", 0)
    A(f"v_lshl_add_u32 {v(vT2)}, {v(cc)}, {3 if v3 else 4}, {v(t0)}")
    A(f"v_lshlrev_b32 {v(vG16)}, 4, {v(lane)}")
    A(f"v_add_u32 {v(vWO)}, {s(sLW)}, {v(vG16)}")
    vTq, vTv = 32, 36
    f16 = v3 and P.get("f16", 0)
    if v3:
        A(f"v_lshlrev_b32 {v(t0)}, 7, {v(rowl)}")
        A(f"v_lshl_add_u32 {v(41)}, {v(cc)}, 3, {v(t0)}")
        A(f"v_lshl_add_u32 {v(41)}, {s(sWv)}, 5, {v(41)}")
        A(f"v_and_b32 {v(t1)}, 1, {v(cc)}")
        A(f"v_lshl_add_u32 {v(40)}, {v(t1)}, 3, {v(t0)}")
        A(f"v_lshrrev_b32 {v(t1)}, 1, {v(cc)}")
        A(f"v_lshl_add_u32 {v(40)}, {v(t1)}, 5, {v(40)}")
        A(f"s_lshr_b32 {s(sT0)}, {s(sWv)}, 1")
        A(f"s_and_b32 {s(sT1)}, {s(sWv)}, 1")
        A(f"v_lshl_add_u32 {v(40)}, {s(sT0)}, 6, {v(40)}")
        A(f"v_lshl_add_u32 {v(40)}, {s(sT1)}, 4, {v(40)}")
        for dq in range(4):
            A(f"s_xor_b32 {s(sT0)}, {s(sWv)}, {dq}")
            A(f"s_lshl_b32 {s(sT0)}, {s(sT0)}, 15")
            A(f"s_add_u32 {s(sT0)}, {s(sT0)}, {WVB}")
            A(f"v_add_u32 {v(vTq + dq)}, {s(sT0)}, {v(40)}")
            A(f"v_add_u32 {v(vTv + dq)}, {s(sT0)}, {v(41)}")
    sB1, sB2 = sT2, sT3
    quart(A, sB1, 21, P.get("rM", 0))
    A(f"s_lshl_b32 {s(sT0)}, {s(sH)}, 8")
    A(f"s_add_u32 {s(sB1)}, {s(sB1)}, {s(sT0)}")
    A(f"s_lshl_b32 {s(sT0)}, {s(sC)}, 7")
    A(f"s_add_u32 {s(sB1)}, {s(sB1)}, {s(sT0)}")
    A(f"s_lshl_b32 {s(sB2)}, {s(sX)}, 22")
    quart(A, sT0, 20, P.get("rO", 0))
    A(f"s_add_u32 {s(sB2)}, {s(sB2)}, {s(sT0)}")
    A(f"s_lshl_b32 {s(sT0)}, {s(sT)}, 6")
    A(f"s_add_u32 {s(sB2)}, {s(sB2)}, {s(sT0)}")
    if v3:
        rotx(A, sT0, P["xM"], 3, 19, sT)
        A(f"s_add_u32 {s(sB1)}, {s(sB1)}, {s(sT0)}")
        rotx(A, sT0, P["xO"], 7, 17, sT)
        A(f"s_add_u32 {s(sB2)}, {s(sB2)}, {s(sT0)}")

    mats = [["q", "k", "v", "o"], ["k", "v", "q", "o"], ["v", "k", "q", "o"]][P.get("mo", 0)]
    nt = {m: " nt" if (P.get("nt", 0) >> i) & 1 else "" for i, m in enumerate("qkvo")}
    ptr = {"q": S_PTR, "k": S_PTR + 2, "v": S_PTR + 4, "o": S_PTR + 6}

    c3 = P.get("c3", 1)
    vC3a, vC3b, vC3d, sO3 = 80, 81, 82, sMK + 1
    if c3 == 1:
        A(f"v_bfe_u32 {v(t0)}, {v(lane)}, 2, 1")
        A(f"v_lshl_add_u32 {v(t0)}, {s(sT)}, 1, {v(t0)}")
        A(f"v_lshlrev_b32 {v(t0)}, 13, {v(t0)}")
        A(f"v_lshl_add_u32 {v(vC3a)}, {v(cc)}, 10, {v(t0)}")
        A(f"v_and_b32 {v(t0)}, 7, {v(lane)}")
        A(f"v_lshl_add_u32 {v(t0)}, {s(sT)}, 3, {v(t0)}")
        A(f"v_lshlrev_b32 {v(vC3b)}, 10, {v(t0)}")
    elif c3:
        A(f"v_lshrrev_b32 {v(t0)}, 5, {v(lane)}")
        A(f"v_lshl_add_u32 {v(t0)}, {s(sT)}, 1, {v(t0)}")
        A(f"v_lshlrev_b32 {v(t0)}, 13, {v(t0)}")
        A(f"v_and_b32 {v(t1)}, 31, {v(lane)}")
        A(f"v_lshl_add_u32 {v(vC3a)}, {v(t1)}, 7, {v(t0)}")
        A(f"v_lshl_add_u32 {v(t0)}, {s(sT)}, 6, {v(lane)}")
        A(f"v_lshlrev_b32 {v(vC3b)}, 7, {v(t0)}")

    def issue(m, j):
        if j == 0:
            srd(A, S_W, ptr[m], 8 * 1024 * 1024)
            if c3 == 1:
                A(f"s_sub_u32 {s(sO3)}, {3 * 128 + 127}, {s(ptr[m])}")
                A(f"s_and_b32 {s(sO3)}, {s(sO3)}, 0x380")
                if v3:
                    A(f"s_lshr_b32 {s(sT1)}, {s(sO3)}, {6 if m == 'o' else 7}")
                    if m == "o":
                        rotx(A, sT1, P["xO"], 6, 17, sT1)
                    else:
                        rotx(A, sT1, P["xM"], 3, 19, sT1)
                    A(f"s_add_u32 {s(sO3)}, {s(sO3)}, {s(sT1)}")
                A(f"s_andn2_b32 {s(sT0)}, {s(sB2 if m == 'o' else sB1)}, {hex(0xe0fff if m == 'o' else 0x180fff)}")
                A(f"s_add_u32 {s(sO3)}, {s(sO3)}, {s(sT0)}")
            elif c3:
                A(f"s_andn2_b32 {s(sO3)}, {s(sB2 if m == 'o' else sB1)}, 0xfff")
        if c3:
            A(f"s_xor_b32 {s(sT0)}, {s(sO3)}, {hex(128 * j * 2048 if m == 'o' else 64 * j * 8192)}")
            if P.get("c3w", 0):
                A(f"buffer_load_dwordx2 {v(vC3d, 2)}, {v(vC3b if m == 'o' else vC3a)}, {s(S_W, 4)}, {s(sT0)} offen offset:60")
            else:
                A(f"buffer_load_dword {v(vC3d)}, {v(vC3b if m == 'o' else vC3a)}, {s(S_W, 4)}, {s(sT0)} offen")
        for p in range(8):
            if m == "o":
                A(f"s_xor_b32 {s(sT0)}, {s(sB2)}, {hex((128 * j + 16 * p) * 2048)}")
            else:
                A(f"s_xor_b32 {s(sT0)}, {s(sB1)}, {hex((64 * j + 8 * p) * 8192)}")
            A(f"s_add_u32 m0, {s(sLW)}, {j * 8192 + p * 1024}")
            A("s_nop 0")
            A(f"buffer_load_dwordx4 {v(vW2 if m == 'o' else vW1)}, {s(S_W, 4)}, {s(sT0)} offen{nt[m]} lds")

    def consume(m, j):
        if m == "o":
            for jj in range(2):
                for t in range(2):
                    for p in range(0, 8, 2):
                        off = j * 8192 + (64 * jj + 32 * (p >> 2) + 2 * ((p >> 1) & 1)) * 64 + (32 if v3 else 8) * t
                        A(f"ds_read_b64_tr_b16 {v((jj * 2 + t) * 8 + p, 2)}, {v(vT2)} offset:{off}")
        else:
            if v3:
                A("s_barrier")
            for t in range(4):
                for p in range(0, 8, 2):
                    off = j * 8192 + (32 * (p >> 2) + 2 * ((p >> 1) & 1)) * 128
                    ad = f"{v((vTv if m == 'v' else vTq) + t)} offset:{off}" if v3 else f"{v(vT1v)} offset:{off + 32 * t}"
                    if m == "v":
                        A(f"ds_read_b64_tr_b16 {v(WV + (j * 4 + t) * 8 + p, 2)}, {ad}")
                    else:
                        d = (0 if m == "q" else 128) + (t * 4 + j) * 8 + p
                        A(f"ds_read_b64_tr_b16 {v(t * 8 + p, 2) if f16 else a(d, 2)}, {ad}")
        A("s_waitcnt lgkmcnt(0)")
        if v3 and m != "o":
            A("s_barrier")
        if m == "o":
            for t in range(4):
                for hf in range(2):
                    A(f"ds_write_b128 {v(vWO)}, {v(t * 8 + 4 * hf, 4)} offset:{(j * 4 + t) * 2048 + hf * 1024}")
            A("s_waitcnt lgkmcnt(0)")

    def convert(m, j):
        if not f16 or m == "o":
            return
        for t in range(4):
            for p in range(8):
                x = WV + (j * 4 + t) * 8 + p if m == "v" else t * 8 + p
                u = 42 + 2 * (p & 1)
                A(f"v_lshlrev_b32 {v(u)}, 16, {v(x)}")
                A(f"v_and_b32 {v(u + 1)}, 0xffff0000, {v(x)}")
                A(f"v_cvt_pk_f16_f32 {v(x)}, {v(u)}, {v(u + 1)}")
            if m != "v":
                for p in range(8):
                    A(f"v_accvgpr_write_b32 {a((0 if m == 'q' else 128) + (t * 4 + j) * 8 + p)}, {v(t * 8 + p)}")

    seq = [(m, j) for m in mats for j in range(4)]
    A(f"v_min_u32 {v(73)}, 8, {v(lane)}")
    A(f"v_lshlrev_b32 {v(73)}, 5, {v(73)}")
    A(f"v_mov_b32 {v(t0)}, {L.D_A}")
    A(f"v_cmp_gt_u32 vcc, 8, {v(lane)}")
    A(f"v_lshlrev_b32 {v(74)}, 2, {v(lane)}")
    A(f"v_add_u32 {v(74)}, {hex(L.FLAGS + L.F_FILL)}, {v(74)}")
    A(f"v_cndmask_b32 {v(73)}, {v(t0)}, {v(73)}, vcc")
    A(f"v_and_b32 {v(75)}, 1, {v(lane)}")
    A(f"s_lshl_b32 {s(sT0)}, {s(sH)}, {L.FC}")
    A(f"s_add_u32 {s(sT0)}, {s(sT0)}, {hex(L.FLAGS + L.F_T + L.T_K * 8192)}")
    A(f"v_lshl_add_u32 {v(75)}, {v(75)}, 13, {s(sT0)}")
    ops = []
    D = 4
    ot = P.get("ot", 0)
    if ot:
        vOT, S_O = 71, 96
        srd(A, S_O, ptr["o"], 8 * 1024 * 1024)
        A(f"v_lshlrev_b32 {v(vOT)}, 12, {v(lane)}")
        A(f"v_lshl_add_u32 {v(vOT)}, {s(sC)}, 11, {v(vOT)}")

    def otouch(i):
        j = i + ot - 12
        if ot and 0 <= j < 4:
            A(f"s_andn2_b32 {s(sT0)}, {s(sB2)}, 0x7f")
            A(f"s_add_u32 {s(sT0)}, {s(sT0)}, {hex(128 * j * 2048)}")
            A(f"buffer_load_dwordx2 {v(86, 2)}, {v(vOT)}, {s(S_O, 4)}, {s(sT0)} offen offset:60")
            ops.append(-1)
    for i in range(D):
        issue(*seq[i])
        ops += [i] * (8 + (c3 > 0))
    e1, e2 = P.get("e1", 6), P.get("e2", 14)
    for i in range(16):
        A(f"s_waitcnt vmcnt({len(ops) - 1 - max(k for k, x in enumerate(ops) if x == i)})")
        if P.get("diag"):
            A(f"s_memrealtime s[{64 + 2 * i}:{65 + 2 * i}]")
        if i == e1 + 4:
            for k in range(8):
                A(f"v_readlane_b32 {s(S_CNT + k)}, {v(72)}, {k}")
            A(f"v_readlane_b32 {s(sMK)}, {v(72)}, 8")
            A("s_nop 3")
            A(f"s_add_u32 {s(sT1)}, {s(S_CNT)}, {s(S_CNT + 1)}")
            for k in range(2, 8):
                A(f"s_add_u32 {s(sT1)}, {s(sT1)}, {s(S_CNT + k)}")
            A(f"s_cmp_ge_u32 {s(sMK)}, 4")
            A(f"s_cselect_b32 {s(sT1)}, {s(sT1)}, 0")
            A(f"s_cmp_ge_u32 {s(sT1)}, 256")
            A(f"s_cselect_b32 {s(sMK)}, 0, 1")
        if i == e2:
            A(f"buffer_load_dword {v(76)}, {v(74)}, {s(S_WS, 4)}, 0 offen sc1")
            A(f"buffer_load_dword {v(79)}, {v(75)}, {s(S_WS, 4)}, 0 offen sc1")
            ops += [-1, -1]
        if i == 15:
            last()
        if D < 4 and i + D < 16:
            issue(*seq[i + D])
            ops += [i + D] * (8 + (c3 > 0))
        consume(*seq[i])
        if i == e1:
            A(f"buffer_load_dword {v(72)}, {v(73)}, {s(S_DBG, 4)}, 0 offen sc1")
            A(f"buffer_load_dwordx2 {v(84, 2)}, off, {s(S_DBG, 4)}, 0 offset:{L.D_NB} sc1")
            ops += [-1, -1]
        if D == 4 and i + 4 < 16:
            issue(*seq[i + 4])
            ops += [i + 4] * (8 + (c3 > 0))
            otouch(i + 4)
        convert(*seq[i])
        if i == 11:
            mid()

    if P.get("diag"):
        A("s_memrealtime s[96:97]")


def chain_consts(A, P):
    lane = t2
    n_, g_ = 64, 65
    A(f"v_and_b32 {v(n_)}, 15, {v(lane)}")
    A(f"v_lshrrev_b32 {v(g_)}, 4, {v(lane)}")
    A(f"v_bfe_u32 {v(t0)}, {v(lane)}, 4, 1")
    A(f"v_lshlrev_b32 {v(t0)}, 2, {v(t0)}")
    A(f"v_sub_u32 {v(t0)}, {v(n_)}, {v(t0)}")
    A(f"v_mov_b32 {v(66)}, 0x3f80")
    A(f"v_mov_b32 {v(67)}, 0x3f800000")
    A(f"s_and_b32 {s(sT1)}, {s(sWv)}, 1")
    A(f"s_lshl_b32 {s(sT0)}, {s(sT1)}, 3")
    A(f"v_subrev_u32 {v(71)}, {s(sT0)}, {v(t0)}")
    v3 = P.get("v3", 0)
    ix = 69
    if v3:
        A(f"v_lshrrev_b32 {v(70)}, 3, {v(n_)}")
        A(f"v_and_b32 {v(ix)}, 5, {v(n_)}")
        A(f"v_lshl_add_u32 {v(ix)}, {v(70)}, 1, {v(ix)}")
        A(f"v_sub_u32 {v(t0)}, {v(t0)}, {v(n_)}")
        A(f"v_add_u32 {v(t0)}, {v(t0)}, {v(ix)}")
        A(f"v_and_b32 {v(70)}, 2, {v(n_)}")
        A(f"v_lshl_add_u32 {v(t0)}, {v(70)}, 4, {v(t0)}")
    for base, dd, src in ((FW, 32, t0), (FK, 0, t0)) if v3 else ((FW, 0, 71), (FK, 8, t0)):
        for rg in range(2):
            A(f"v_cmp_eq_u32 vcc, {dd + 2 * rg}, {v(src)}")
            A("s_nop 1")
            A(f"v_cndmask_b32 {v(t1)}, 0, {v(66)}, vcc")
            A(f"v_cmp_eq_u32 vcc, {dd + 2 * rg + 1}, {v(src)}")
            A("s_nop 1")
            A(f"v_cndmask_b32 {v(base + rg)}, {v(t1)}, {v(67)}, vcc")
            A(f"v_mov_b32 {v(base + rg + 2)}, {v(base + rg)}")
            if v3 and base == FK:
                A(f"v_mov_b32 {v(FW + rg + 2)}, {v(base + rg)}")
    A(f"v_mov_b32 {v(t1)}, 0x4444")
    A(f"v_mov_b32 {v(t3)}, 0xeeee")
    A(f"v_cmp_gt_u32 vcc, 8, {v(n_)}")
    A("s_nop 1")
    A(f"v_cndmask_b32 {v(IDX)}, {v(t3)}, {v(t1)}, vcc")
    A(f"v_lshrrev_b32 {v(t0)}, 1, {v(g_)}")
    A(f"v_lshlrev_b32 {v(t0)}, 7, {v(t0)}")
    A(f"v_lshl_add_u32 {v(t0)}, {v(n_)}, 4, {v(t0)}")
    A(f"v_and_b32 {v(t1)}, 1, {v(g_)}")
    A(f"v_lshl_add_u32 {v(t0)}, {v(t1)}, 3, {v(t0)}")
    A(f"v_mov_b32 {v(t3)}, {hex(OOB)}")
    A(f"v_cndmask_b32 {v(vOst)}, {v(t3)}, {v(t0)}, vcc")
    A(f"v_lshlrev_b32 {v(t0)}, 3, {v(n_)}")
    A(f"v_lshl_add_u32 {v(t0)}, {v(t1)}, 7, {v(t0)}")
    A(f"v_cmp_le_u32 vcc, 2, {v(g_)}")
    A("s_nop 1")
    A(f"v_cndmask_b32 {v(vVMst)}, {v(t3)}, {v(t0)}, vcc")
    A(f"v_mov_b32 {v(t0)}, 0xf149f2ca")
    A(f"v_cndmask_b32 {v(vBias)}, {v(t0)}, 0, vcc")
    A(f"v_lshrrev_b32 {v(t0)}, 3, {v(n_)}")
    A(f"v_cmp_eq_u32 vcc, {s(sT1)}, {v(t0)}")
    A(f"v_and_b32 {v(t0)}, 7, {v(n_)}")
    A(f"v_lshlrev_b32 {v(t0)}, 4, {v(t0)}")
    A(f"v_lshl_add_u32 {v(t0)}, {v(g_)}, 7, {v(t0)}")
    A(f"v_cndmask_b32 {v(vZst)}, {v(t3)}, {v(vG16)}, vcc")
    A(f"v_cndmask_b32 {v(vMst)}, {v(t3)}, {v(t0)}, vcc")
    A(f"s_lshl_b32 {s(sT0)}, {s(sWv)}, 11")
    A(f"v_add_u32 {v(vXrd)}, {s(sT0)}, {v(vG16)}")
    A(f"s_lshr_b32 {s(sT0)}, {s(sWv)}, 1")
    A(f"s_lshl_b32 {s(sT0)}, {s(sT0)}, 10")
    A(f"s_lshl_b32 {s(sT1)}, {s(sT1)}, 3")
    A(f"s_add_u32 {s(sT0)}, {s(sT0)}, {s(sT1)}")
    A(f"v_add_u32 {v(vXwr)}, {s(sT0)}, {v(vG16)}")
    A(f"v_lshrrev_b32 {v(t0)}, 3, {v(n_)}")
    A(f"v_lshl_add_u32 {v(vZrd)}, {v(t0)}, 11, {v(vG16)}")
    if v3:
        A(f"v_lshrrev_b32 {v(71)}, 1, {v(g_)}")
        A(f"v_cmp_ne_u32 vcc, 0, {v(70)}")
        A(f"v_lshlrev_b32 {v(t0)}, 4, {v(n_)}")
        A(f"v_lshl_add_u32 {v(t0)}, {v(t1)}, 8, {v(t0)}")
        A(f"v_lshl_add_u32 {v(vZst)}, {v(71)}, 3, {v(t0)}")
        A(f"v_lshrrev_b32 {v(vVMst)}, 1, {v(vZst)}")
        A(f"v_lshlrev_b32 {v(ix)}, 4, {v(ix)}")
        A(f"v_lshl_add_u32 {v(t0)}, {v(t1)}, 7, {v(ix)}")
        A(f"v_lshl_add_u32 {v(t0)}, {v(71)}, 3, {v(t0)}")
        A(f"v_cndmask_b32 {v(vMst)}, {v(t0)}, {v(t3)}, vcc")
        A(f"v_lshl_add_u32 {v(t0)}, {v(71)}, 7, {v(ix)}")
        A(f"v_lshl_add_u32 {v(t0)}, {v(t1)}, 3, {v(t0)}")
        A(f"v_cndmask_b32 {v(vZrd)}, {v(t0)}, {v(t3)}, vcc")
        A(f"v_cndmask_b32 {v(vOst)}, {v(t3)}, {v(t0)}, vcc")
    A(f"s_mov_b32 {s(sStep)}, 0")
    A(f"s_lshl_b32 {s(sT0)}, {s(sX)}, 14")
    quart(A, sT1, 12, P.get("rM", 0))
    A(f"s_add_u32 {s(sAL)}, {s(sT0)}, {s(sT1)}")
    if v3:
        rotx(A, sT1, P["xM"], 3, 10, sT)
        A(f"s_add_u32 {s(sAL)}, {s(sAL)}, {s(sT1)}")
    A(f"s_xor_b32 {s(sAR)}, {s(sAL)}, 0x4000")
    A(f"s_add_u32 {s(sAL)}, {s(sAL)}, {hex(L.STEP + L.S_MEML)}")
    A(f"s_add_u32 {s(sAR)}, {s(sAR)}, {hex(L.STEP + L.S_MEMR)}")
    if P.get("swp"):
        A(f"s_mov_b32 {s(sT0)}, {s(sAL)}")
        A(f"s_mov_b32 {s(sAL)}, {s(sAR)}")
        A(f"s_mov_b32 {s(sAR)}, {s(sT0)}")
    A(f"s_lshl_b32 {s(sZld)}, {s(sH)}, 12")
    A(f"s_add_u32 {s(sZld)}, {s(sZld)}, {hex(L.STEP + L.S_Z)}")
    A(f"s_lshl_b32 {s(sT0)}, {s(sC)}, 11")
    if v3:
        A(f"s_lshl_b32 {s(sT1)}, {s(sWv)}, 9")
    else:
        A(f"s_lshr_b32 {s(sT1)}, {s(sWv)}, 1")
        A(f"s_lshl_b32 {s(sT1)}, {s(sT1)}, 10")
    A(f"s_add_u32 {s(sT0)}, {s(sT0)}, {s(sT1)}")
    A(f"s_add_u32 {s(sZst)}, {s(sZld)}, {s(sT0)}")
    if P.get("pa"):
        A(f"s_lshl_b32 {s(sT0)}, {s(sC)}, 11")
        A(f"s_xor_b32 {s(sT0)}, {s(sT0)}, 2048")
        A(f"s_add_u32 {s(sZld)}, {s(sZld)}, {s(sT0)}")
    A(f"s_lshl_b32 {s(sT0)}, {s(sX)}, 15")
    A(f"s_add_u32 {s(sT0)}, {s(sT0)}, {hex(L.STEP + L.S_OB)}")
    A(f"s_lshl_b32 {s(sT1)}, {s(sT)}, 10")
    A(f"s_add_u32 {s(sOst)}, {s(sT0)}, {s(sT1)}")
    A(f"s_lshl_b32 {s(sT1)}, {s(sWv)}, 8")
    A(f"s_add_u32 {s(sOst)}, {s(sOst)}, {s(sT1)}")
    quart(A, sT1, 13, P.get("rO", 0))
    A(f"s_add_u32 {s(sOld0)}, {s(sT0)}, {s(sT1)}")
    A(f"s_add_u32 {s(sOld1)}, {s(sOld0)}, 4096")
    if v3:
        rotx(A, sT1, P["xO"], 7, 10, sT)
        A(f"s_add_u32 {s(sOld0)}, {s(sOld0)}, {s(sT1)}")
    A(f"s_lshl_b32 {s(sT0)}, {s(sX)}, 14")
    mpos(A, sT1, sT2, P)
    A(f"s_add_u32 {s(sT0)}, {s(sT0)}, {s(sT1)}")
    if v3:
        A(f"s_bitcmp1_b32 {s(sWv)}, 0")
        A(f"s_cselect_b32 {s(sT1)}, 256, 0")
    else:
        A(f"s_cmp_eq_u32 {s(sWv)}, 0")
        A(f"s_cselect_b32 {s(sT1)}, {hex(L.S_MEMR - L.S_MEML)}, 0")
    A(f"s_add_u32 {s(sT0)}, {s(sT0)}, {s(sT1)}")
    A(f"s_add_u32 {s(sMst)}, {s(sT0)}, {hex(L.STEP + (0 if P.get('pa') else L.STEP_STRIDE) + L.S_MEML)}")
    if not v3:
        A(f"s_cmp_lt_u32 {s(sWv)}, 2")
        A(f"s_cselect_b32 {s(sMst)}, {s(sMst)}, {hex(OOB)}")
    A(f"s_lshl_b32 {s(sT0)}, {s(sC)}, 6")
    A(f"s_lshl_b32 {s(sT1)}, {s(sWv)}, 4")
    A(f"s_add_u32 {s(sT0)}, {s(sT0)}, {s(sT1)}")
    A(f"s_lshl_b32 {s(sT1)}, {s(sH)}, 7")
    A(f"s_add_u32 {s(sT0)}, {s(sT0)}, {s(sT1)}")
    A(f"s_lshl_b32 {s(sVMst)}, {s(sT0)}, 4")
    A(f"s_add_u32 {s(sVMst)}, {s(sVMst)}, {hex(L.VM)}")
    A(f"s_lshl_b32 {s(sKM)}, {s(sH)}, 2")
    A(f"s_lshl_b32 {s(sT1)}, {s(sC)}, 1")
    A(f"s_add_u32 {s(sKM)}, {s(sKM)}, {s(sT1)}")
    A(f"s_lshr_b32 {s(sT1)}, {s(sWv)}, 1")
    A(f"s_add_u32 {s(sKM)}, {s(sKM)}, {s(sT1)}")
    A(f"s_lshl_b32 {s(sKM)}, {s(sKM)}, 9")
    A(f"s_add_u32 {s(sKM)}, {s(sKM)}, {hex(L.KM)}")
    A(f"s_bitcmp1_b32 {s(sWv)}, 0")
    if v3:
        A(f"s_cselect_b32 {s(sT1)}, 256, 0")
        A(f"s_add_u32 {s(sKM)}, {s(sKM)}, {s(sT1)}")
    else:
        A(f"s_cselect_b32 {s(sKM)}, {s(sKM)}, {hex(OOB)}")
    A(f"s_lshl_b32 {s(sVT)}, {s(sT0)}, 6")
    A(f"s_add_u32 {s(sVT)}, {s(sVT)}, {hex(L.VT)}")
    A(f"s_lshl_b32 {s(sKT)}, {s(sH)}, 12")
    A(f"s_lshl_b32 {s(sM0a)}, {s(sWv)}, 11")
    A(f"s_and_b32 {s(sT1)}, {s(sM0a)}, 2048")
    if P.get("pa"):
        A(f"s_lshl_b32 {s(sT0)}, {s(sC)}, 11")
        A(f"s_xor_b32 {s(sT1)}, {s(sT1)}, {s(sT0)}")
    A(f"s_add_u32 {s(sKT)}, {s(sKT)}, {s(sT1)}")
    A(f"s_lshr_b32 {s(sT1)}, {s(sWv)}, 1")
    A(f"s_lshl_b32 {s(sT1)}, {s(sT1)}, 17")
    A(f"s_add_u32 {s(sKT)}, {s(sKT)}, {s(sT1)}")
    A(f"s_add_u32 {s(sKT)}, {s(sKT)}, {hex(L.K)}")
    A(f"s_add_u32 {s(sM0a)}, {s(sM0a)}, {KT}")
    import math
    import struct
    cval = (128 ** -0.5) * math.log2(math.e)
    cb = struct.unpack("<I", struct.pack("<f", cval))[0]
    A(f"s_mov_b32 {s(sCc)}, {hex(cb)}")
    A(f"s_mov_b32 {s(sNegC)}, {hex(cb | 0x80000000)}")
    for i in range(4):
        A(f"v_mov_b32 {v(ONES + i)}, 0x3f803f80")
    A(f"v_mov_b32 {v(vPF)}, {hex(OOB)}")
    A(f"v_mov_b32 {v(vPFi)}, 0")
    A(f"v_and_b32 {v(t1)}, 1, {v(lane)}")
    A(f"v_mov_b32 {v(vRW)}, {hex(OOB)}")
    p64 = P.get("p64", 0)
    if p64 & 1:
        A("s_mov_b64 exec, 0xffff")
        A(f"s_lshl_b32 {s(sT0)}, {s(sC)}, 10")
        A(f"s_add_u32 {s(sT0)}, {s(sT0)}, {s(sKT)}")
    elif P.get("kdd", 1):
        A(f"s_lshl_b32 {s(sT0)}, {s(sC)}, 3")
        A(f"s_lshl_b64 exec, 0xff, {s(sT0)}")
    else:
        A("s_mov_b64 exec, 0xffff")
    A(f"s_add_u32 {s(sT0)}, {s(sT0 if p64 & 1 else sKT)}, {hex(32 * 8192)}")
    A(f"v_lshl_add_u32 {v(vPF)}, {v(n_)}, {7 - (p64 & 1)}, {s(sT0)}")
    A(f"v_mov_b32 {v(vPFi)}, {hex(32 * 8192)}")
    A("s_mov_b32 exec_lo, " + ("0xffff0000" if p64 & 2 else "0xff0000"))
    A(f"s_add_u32 {s(sT0)}, {s(sVT)}, {hex(32 * 8192)}")
    A(f"v_lshl_add_u32 {v(vPF)}, {v(n_)}, {7 - (p64 >> 1)}, {s(sT0)}")
    A(f"v_mov_b32 {v(vPFi)}, {hex(32 * 8192)}")
    A("s_mov_b32 exec_lo, 0x000f000f")
    A("s_mov_b32 exec_hi, 0x000f000f")
    A(f"s_and_b32 {s(sT1)}, {s(sWv)}, 1")
    A(f"s_lshl_b32 {s(sT1)}, {s(sT1)}, 7")
    A(f"s_add_u32 {s(sT0)}, {s(sZst)}, {s(sT1)}")
    A(f"v_lshl_add_u32 {v(vRW)}, {v(n_)}, 7, {s(sZst)}" if v3 else f"v_lshl_add_u32 {v(vRW)}, {v(n_)}, 8, {s(sT0)}")
    A("s_mov_b32 exec_lo, 0x00300030")
    A("s_mov_b32 exec_hi, 0x00300030")
    A(f"v_lshl_add_u32 {v(vRW)}, {v(t1)}, 7, {s(sOst)}")
    A("s_mov_b32 exec_lo, 0x00400040")
    A("s_mov_b32 exec_hi, 0x00400040")
    A(f"s_lshl_b32 {s(sT0)}, {s(sX)}, 14")
    mpos(A, sT1, sT2, P)
    A(f"s_add_u32 {s(sT1)}, {s(sT0)}, {s(sT1)}")
    A(f"s_add_u32 {s(sT1)}, {s(sT1)}, {hex(L.STEP + L.S_MEML)}")
    A(f"s_andn2_b32 {s(sDM)}, {s(sT1)}, 0x3ff")
    A(f"s_andn2_b32 {s(sT2)}, {s(sOst)}, 0x3ff")
    A(f"s_cmp_eq_u32 {s(sWv)}, 1")
    A(f"s_cselect_b32 {s(sDM)}, {s(sT2)}, {s(sDM)}")
    A(f"s_bitcmp0_b32 {s(sWv)}, 0")
    A(f"s_cselect_b32 {s(sDM)}, {s(sZst)}, {s(sDM)}")
    A(f"s_add_u32 {s(sDM)}, {s(sDM)}, {hex(2 * L.STEP_STRIDE)}")
    A(f"s_lshl_b32 {s(sT2)}, {s(sWv)}, 7")
    A(f"s_add_u32 {s(sT1)}, {s(sT1)}, {s(sT2)}")
    A(f"v_mov_b32 {v(vRW)}, {s(sT1)}")
    A("s_mov_b32 exec_lo, 0x00800080")
    A("s_mov_b32 exec_hi, 0x00800080")
    A(f"s_add_u32 {s(sT0)}, {s(sT0)}, {s(sT2)}")
    A(f"s_add_u32 {s(sT0)}, {s(sT0)}, {hex(L.STEP + L.S_MEMR)}")
    A(f"v_mov_b32 {v(vRW)}, {s(sT0)}")
    A("s_mov_b64 exec, -1")
    A(f"v_lshl_add_u32 {v(vRW)}, {v(g_)}, 18, {v(vRW)}")
    A("s_mov_b32 exec_lo, 0")
    A("s_mov_b32 exec_hi, 0x300")
    A(f"s_lshl_b32 {s(sT0)}, {s(sH)}, {L.FC}")
    A(f"s_add_u32 {s(sT0)}, {s(sT0)}, {hex(L.FLAGS + L.F_T + L.T_K * 8192)}")
    A(f"v_lshl_add_u32 {v(vPF)}, {v(t1)}, 13, {s(sT0)}")
    A("s_mov_b32 exec_hi, 0x3c00")
    A(f"s_mov_b32 {s(sT0)}, {hex(L.FLAGS + L.F_T + L.T_FILL * 8192 + (3 << L.FS) - (10 << L.FC))}")
    A(f"v_lshl_add_u32 {v(vPF)}, {v(n_)}, {L.FC}, {s(sT0)}")
    A("s_mov_b32 exec_hi, 0x3f00")
    A(f"v_mov_b32 {v(vPFi)}, {1 << L.FS}")
    A("s_mov_b64 exec, -1")


def kv_wait(A, lbl, exit_lbl, back):
    A("s_mov_b32 exec_lo, 0")
    A(f"s_mov_b32 exec_hi, {hex(0x3f00 if back else 0x300)}")
    A(f"v_subrev_u32 {v(t1)}, {back // 4 << L.FS}, {v(vPF)}")
    A.label(lbl)
    A(f"buffer_load_dword {v(t0)}, {v(t1)}, {s(S_WS, 4)}, 0 offen sc1")
    A("s_waitcnt vmcnt(0)")
    A(f"v_cmp_eq_u32 vcc, 0, {v(t0)}")
    A(f"s_cbranch_vccz {lbl}_ok")
    A("s_sleep 2")
    A(f"s_sub_u32 {s(sBud)}, {s(sBud)}, 1")
    A(f"s_cbranch_scc0 {lbl}")
    A(f"s_branch {exit_lbl}")
    A.label(f"{lbl}_ok")


def kt_issue(A, vt=True):
    A(f"s_mov_b32 m0, {s(sM0a)}")
    A(f"buffer_load_dwordx4 {v(VT_, 4)}, {v(vG16)}, {s(S_WS, 4)}, {s(sVT)} offen sc1")
    A(f"buffer_load_dwordx4 {v(vG16)}, {s(S_WS, 4)}, {s(sKT)} offen sc1 lds")
    A(f"buffer_load_dwordx4 {v(vG16)}, {s(S_WS, 4)}, {s(sKT)} offen offset:1024 sc1 lds")
    A(f"s_add_u32 {s(sKT)}, {s(sKT)}, {hex(32 * 8192)}")
    if vt:
        A(f"s_add_u32 {s(sVT)}, {s(sVT)}, {hex(32 * 8192)}")


STAMP_NAMES = []


def chain_loop(A, pfx, fast, exit_lbl, P):
    diag = P.get("diag", False)
    loc = "" if fast else " sc1"
    tails = []
    names = []
    FC = {"al": S_CNT, "ar": S_CNT + 1, "z": S_CNT + 2, "o": S_CNT + 3}

    def stamp(name):
        if diag and len(names) < 18 and name not in ("al3", "o3", "al1", "al2", "ar1", "ar2", "z1", "z2", "o1", "o2", "o4", "o5", "o6"):
            A(f"s_memtime {s(S_ST + 2 * len(names), 2)}")
            names.append(name)

    vmn = [0]
    vidx = {}

    def ld(dst, so, j, track=True):
        A(f"buffer_load_dwordx4 {v(dst, 4)}, {v(vG16)}, {s(S_WS, 4)}, {s(so)} offen offset:{j * 1024} sc1")
        if track:
            vidx[dst] = vmn[0]
            vmn[0] += 1

    def chk_parts(name, j, n, base, reissue):
        lbl = f"{pfx}_{name}{j}"
        b = base + 4 * j

        def p0():
            A(f"s_waitcnt vmcnt({vmn[0] - 1 - vidx[b]})")
            A(f"v_max3_u32 {v(t0)}, {v(b)}, {v(b + 1)}, {v(b + 2)}")

        def p1():
            A(f"v_max_u32 {v(t0)}, {v(t0)}, {v(b + 3)}")
            A(f"v_cmp_eq_u32 vcc, -1, {v(t0)}")

        def p2():
            A(f"s_cbranch_vccnz {lbl}_f")
            A.label(lbl)
            stamp(f"{name}{j}")
            nn = j + 1
            while nn < n and vidx.get(base + 4 * nn, -1) > vidx[b]:
                nn += 1
            younger = vmn[0] - 1 - vidx[base + 4 * (nn - 1)]
            tails.append((name, lbl, j, nn, b, reissue, younger))
        return [p0, p1, p2]

    def chk(*a_, **k_):
        for p in chk_parts(*a_, **k_):
            p()

    def smf(d, a_, b_):
        A(f"v_smfmac_f32_16x16x64_bf16 {v(d, 4)}, {v(a_, 4)}, {r(b_, 8)}, {v(IDX)}")

    def qk(T, j, ab):
        smf(ACC + 4 * T, ab + 4 * j, 256 + (T * 4 + j) * 8)

    def cvtwr(b, off, part=3):
        if part & 1:
            A(f"v_cvt_pk_bf16_f32 {v(b)}, {v(b)}, {v(b + 1)}")
            A(f"v_cvt_pk_bf16_f32 {v(b + 1)}, {v(b + 2)}, {v(b + 3)}")
        if part & 2:
            A(f"ds_write_b64 {v(vXwr)}, {v(b, 2)} offset:{off}")

    def x1wr(T, part=3):
        slot = 2 * ((T & 3) >> 1) + (T >> 2) + 4 * (T & 1)
        cvtwr(ACC + 4 * T, X1 + slot * 2048, part)

    def vsm(j, t, which):
        smf(VACC + 4 * t, (AL if which == 0 else AR) + 4 * j, WV + (j * 4 + t) * 8)

    def mf(d, a_, b_, c_):
        A(f"v_mfma_f32_16x16x32_bf16 {v(d, 4)}, {v(a_, 4)}, {v(b_, 4)}, {v(c_, 4) if c_ is not None else 0}")

    def run(ms, fill):
        for i in range(len(ms) + 1):
            for f in fill.get(i, []):
                f()
            if i < len(ms):
                ms[i]()

    def add(fill, i, f):
        fill.setdefault(i, []).append(f)

    zero = [ACC + i for i in range(32)] + [VACC + i for i in range(16)]
    A.label(f"{pfx}_top")
    A("s_barrier")
    for x in zero[:P["dM"]]:
        A(f"v_mov_b32 {v(x)}, 0")
    if P["dM"] > 48:
        A.nop(P["dM"] - 48)
    stamp("top")
    for j in range(4):
        ld(AL + 4 * j, sAL, j)
    for x in zero[P["dM"]:]:
        A(f"v_mov_b32 {v(x)}, 0")
    re_al = lambda j: ld(AL + 4 * j, sAL, j, False)
    re_ar = lambda j: ld(AR + 4 * j, sAR, j, False)
    seq = [(T, j) for j in range(4) for T in range(8)]
    vall = [(j, t, w) for j in range(4) for t in range(4) for w in range(2)]
    v1 = [(j, t, 0) for j in range(4) for t in range(4)][:P["nV1"]]
    vrest = [x for x in vall if x not in v1]
    ms = [(lambda T=T, j=j: qk(T, j, AL)) for T, j in seq] + [(lambda x=x: vsm(*x)) for x in v1]
    fill = {}
    cA = P["cA"]
    for j in range(4):
        parts = chk_parts("al", j, 4, AL, re_al)
        for k, p in enumerate(parts):
            add(fill, max(0, cA * j - 2 + k), p)
    for jj in range(4):
        pos = min(len(ms), P["pAR"] + P["sp"] * jj)
        if pos < 0:
            ld(AR + 4 * jj, sAR, jj)
        else:
            add(fill, pos, lambda jj=jj: ld(AR + 4 * jj, sAR, jj))

    def pf():
        vmn[0] += 1
        if P.get("xp"):
            A(f"buffer_load_dword {v(vPFd)}, {v(vG16)}, {s(S_WS, 4)}, {s(sAL)} offen sc1")
            return
        A(f"buffer_load_dword {v(vPFd)}, {v(vPF)}, {s(S_WS, 4)}, 0 offen sc1")
        A(f"v_add_u32 {v(vPF)}, {v(vPF)}, {v(vPFi)}")
    add(fill, min(len(ms), max(P["pAR"] + P["sp"] * 4, P["pPF"])), pf)
    run(ms, fill)
    stamp("ALe")
    tm = P["tm"]
    seq2 = [(T, j) for j in range(4 - tm) for T in range(8)] + [(T, j) for T in range(8) for j in range(4 - tm, 4)]
    ms = [(lambda T=T, j=j: qk(T, j, AR)) for T, j in seq2]
    fill = {}
    for j in range(4):
        parts = chk_parts("ar", j, 4, AR, re_ar)
        assert P["cR"] * j <= min(i for i, x in enumerate(seq2) if x[1] == j)
        for k, p in enumerate(parts):
            add(fill, max(0, P["cR"] * j - 2 + k), p)
    for _ in range(3):
        x = vrest.pop(0)
        ms.append(lambda x=x: vsm(*x))
    add(fill, 32, lambda: stamp("i32"))

    def prg():
        A("s_mov_b64 exec, 1")
        A(f"buffer_store_dword {v(ONES)}, off, {s(S_WS, 4)}, {s(sPRG)} sc1")
        A("s_mov_b64 exec, -1")
        A(f"s_add_u32 {s(sPRG)}, {s(sPRG)}, 4")
    add(fill, 3 * P["cR"] + 1, prg)
    for T in range(8):
        add(fill, seq2.index((T, 3)) + 4, lambda T=T: x1wr(T, 1))
        add(fill, min(len(ms), seq2.index((T, 3)) + 5), lambda T=T: x1wr(T, 2))
    run(ms, fill)
    A("s_waitcnt lgkmcnt(0)")
    stamp("B1w")
    A("s_barrier")
    stamp("B1")
    A(f"ds_read_b128 {v(0, 4)}, {v(vXrd)} offset:{X1}")
    A(f"ds_read_b128 {v(8, 4)}, {v(vXrd)} offset:{X1 + 8192}")
    A(f"ds_read_b128 {v(4, 4)}, {v(vXrd)} offset:{X1 + 1024}")
    A(f"ds_read_b128 {v(12, 4)}, {v(vXrd)} offset:{X1 + 9216}")

    def ktrd(j):
        A(f"ds_read_b128 {v(AL + 4 * j, 4)}, {v(vG16)} offset:{KT + j * 1024}")
        A(f"ds_read_b128 {v(AR + 4 * j, 4)}, {v(vG16)} offset:{KT + 4096 + j * 1024}")

    for _ in range(P["nV2"]):
        vsm(*vrest.pop(0))
    A("s_waitcnt lgkmcnt(3)")
    mf(16, 0, FW, None)
    A("s_waitcnt lgkmcnt(2)")
    mf(20, 8, FW, None)
    A("s_waitcnt lgkmcnt(1)")
    mf(16, 4, FW, 16)
    A("s_waitcnt lgkmcnt(0)")
    mf(20, 12, FW, 20)
    for _ in range(2):
        vsm(*vrest.pop(0))
    A(f"v_cvt_pk_bf16_f32 {v(28)}, {v(16)}, {v(17)}")
    A(f"v_cvt_pk_bf16_f32 {v(29)}, {v(18)}, {v(19)}")
    A(f"v_cvt_pk_bf16_f32 {v(30)}, {v(20)}, {v(21)}")
    A(f"v_cvt_pk_bf16_f32 {v(31)}, {v(22)}, {v(23)}")
    A(f"buffer_store_dwordx4 {v(28, 4)}, {v(vZst)}, {s(S_WS, 4)}, {s(sZst)} offen{loc}")
    stamp("Zst")
    re_z = lambda j: ld(4 * j, sZld, j, False)
    ms = [(lambda x=x: vsm(*x)) for x in vrest]
    nv = len(ms)
    fill = {}
    for j in range(4):
        lastuse = max([i for i, x in enumerate(vrest) if x[0] == j], default=-1)
        add(fill, max(lastuse + 1, j), lambda j=j: ktrd(j))
    for jj in range(4):
        add(fill, min(nv, max(0, nv - P["pZ"]) + P["sp"] * jj), lambda jj=jj: ld(4 * jj, sZld, jj))
    for i in range(4):
        add(fill, 4 + i, lambda i=i: A(f"v_mov_b32 {v(16 + i)}, {v(vBias)}"))
    for tt in range(4):
        lastuse = max(i for i, x in enumerate(vrest) if x[1] == tt)
        if tt == 3:
            add(fill, nv, lambda: A.nop(3))
        add(fill, min(nv, lastuse + 4), lambda tt=tt: cvtwr(VACC + 4 * tt, X2 + tt * 2048, 1))
        add(fill, min(nv, lastuse + 5), lambda tt=tt: cvtwr(VACC + 4 * tt, X2 + tt * 2048, 2))
    run(ms, fill)
    A("s_waitcnt lgkmcnt(0)")
    A("s_barrier")
    stamp("B2")
    A(f"ds_read_b128 {v(80, 4)}, {v(vXrd)} offset:{X2}")
    A(f"ds_read_b128 {v(84, 4)}, {v(vXrd)} offset:{X2 + 1024}")
    wbuf = [72, 32, 40, 48, 56, 80, 88]
    wq = [(f, hf) for f in range(16) for hf in range(2)]

    def wrd(n=1):
        for _ in range(n):
            f, hf = wq.pop(0)
            A(f"ds_read_b128 {v(wbuf[f % 7] + 4 * hf, 4)}, {v(vWO)} offset:{f * 2048 + hf * 1024}")

    wrd(2)
    SM, S0, S1 = 16, 20, 24
    ms = []
    fill = {}
    for kk in range(4):
        ms.append(lambda kk=kk: mf(SM, 4 * kk, 4 * kk, SM))
        ms.append(lambda kk=kk: mf(S0, AL + 4 * kk, 4 * kk, S0 if kk else None))
        ms.append(lambda kk=kk: mf(S1, AR + 4 * kk, 4 * kk, S1 if kk else None))
        for k, p in enumerate(chk_parts("z", kk, 4, 0, re_z)):
            add(fill, max(0, 3 * kk - 2 + k), p)
    add(fill, 12, lambda: A("s_waitcnt lgkmcnt(2)"))
    xs = "" if P.get("xs", 0) & 1 else " sc1"
    xk = "" if P.get("xs", 0) & 2 else " sc1"
    add(fill, 12, lambda: A(f"buffer_store_dwordx4 {v(28, 4)}, {v(vMst)}, {s(S_WS, 4)}, {s(sKM)} offen{xk}"))
    ms.append(lambda: mf(88, FK, 80, None))
    ms.append(lambda: mf(88, FK, 84, 88))
    add(fill, 10, lambda: [A(f"v_mov_b32 {v(VACC + i)}, 0") for i in range(2)])
    add(fill, 11, lambda: [A(f"v_mov_b32 {v(VACC + i)}, 0") for i in range(2, 4)])
    add(fill, 13, lambda: A(f"v_max3_f32 {v(t0)}, {v(SM)}, {v(SM + 1)}, {v(SM + 2)}"))
    run(ms, fill)
    A(f"v_max3_f32 {v(t0)}, {v(t0)}, {v(SM + 3)}, {v(S0)}")
    A(f"v_max3_f32 {v(t0)}, {v(t0)}, {v(S0 + 1)}, {v(S0 + 2)}")
    A(f"v_max3_f32 {v(t1)}, {v(S1)}, {v(S1 + 1)}, {v(S1 + 2)}")
    A(f"v_max3_f32 {v(t0)}, {v(t0)}, {v(S0 + 3)}, {v(S1 + 3)}")
    A(f"v_max_f32 {v(t0)}, {v(t0)}, {v(t1)}")
    A(f"v_max_f32 {v(t1)}, {v(t0)}, {v(t1)}")
    wrd(2)
    A(f"v_permlane32_swap_b32 {v(t0)}, {v(t1)}")
    A(f"v_max_f32 {v(28)}, {v(t0)}, {v(t1)}")
    A(f"v_max_f32 {v(t1)}, {v(t0)}, {v(t1)}")
    A(f"v_cvt_pk_bf16_f32 {v(92)}, {v(88)}, {v(89)}")
    A(f"v_cvt_pk_bf16_f32 {v(93)}, {v(90)}, {v(91)}")
    A(f"v_permlane16_swap_b32 {v(28)}, {v(t1)}")
    A(f"v_max_f32 {v(t0)}, {v(28)}, {v(t1)}")
    A(f"v_mul_f32 {v(t0)}, {s(sNegC)}, {v(t0)}")
    A(f"buffer_store_dwordx2 {v(92, 2)}, {v(vVMst)}, {s(S_WS, 4)}, {s(sVMst)} offen{xs}")
    order = list(range(S0, S0 + 8)) + list(range(SM, SM + 4))
    for i, x in enumerate(order):
        A(f"v_fma_f32 {v(x)}, {v(x)}, {s(sCc)}, {v(t0)}")
        if i >= 1:
            A(f"v_exp_f32 {v(order[i - 1])}, {v(order[i - 1])}")
        if i in (3, 5, 7, 9):
            k = (i - 3) // 2
            A(f"v_cvt_pk_bf16_f32 {v(80 + k)}, {v(order[i - 3])}, {v(order[i - 2])}")
        if i == 11:
            mf(28, ONES, 80, None)
    A(f"v_exp_f32 {v(order[11])}, {v(order[11])}")
    A(f"v_cvt_pk_bf16_f32 {v(84)}, {v(SM)}, {v(SM + 1)}")
    mf(88, VT_, 80, None)
    A(f"v_cvt_pk_bf16_f32 {v(85)}, {v(SM + 2)}, {v(SM + 3)}")
    wrd(2)
    A(f"v_mfma_f32_16x16x16_bf16 {v(28, 4)}, {v(ONES, 2)}, {v(84, 2)}, {v(28, 4)}")
    A(f"v_mfma_f32_16x16x16_bf16 {v(88, 4)}, {v(92, 2)}, {v(84, 2)}, {v(88, 4)}")
    wrd(4)
    A(f"s_cmp_eq_u32 {s(sStep)}, 63")
    A(f"v_rcp_f32 {v(t0)}, {v(28)}")
    A(f"v_mov_b32 {v(VACC + 4)}, 0")
    A(f"v_mov_b32 {v(VACC + 5)}, 0")
    for i in range(4):
        A(f"v_mul_f32 {v(88 + i)}, {v(88 + i)}, {v(t0)}")
    A(f"v_cvt_pk_bf16_f32 {v(t0)}, {v(88)}, {v(89)}")
    A(f"v_cvt_pk_bf16_f32 {v(t1)}, {v(90)}, {v(91)}")
    A(f"buffer_store_dwordx2 {v(t0, 2)}, {v(vOst)}, {s(S_WS, 4)}, {s(sOst)} offen{loc}")
    stamp("Ost")
    A(f"s_cbranch_scc1 {exit_lbl}")
    A(f"v_cmp_eq_u32 vcc, 0, {v(vPFd)}")
    A(f"s_add_u32 {s(sKM)}, {s(sKM)}, 65536")
    A(f"s_and_b32 {s(sT0)}, vcc_hi, 0x3f00")
    A(f"s_cbranch_scc1 {pfx}_kvw")
    A.label(f"{pfx}_kvok")
    if not P.get("ktp"):
        kt_issue(A)
    assert len(wq) == 22
    wrd(4)
    A(f"v_mov_b32 {v(VACC + 6)}, 0")
    A(f"v_mov_b32 {v(VACC + 7)}, 0")
    re_o = lambda j, tr=False: ld(4 * j, sOld0 if j < 4 else sOld1, j & 3, tr)
    for x in (sAL, sAR, sZld, sZst, sOst, sVMst):
        A(f"s_add_u32 {s(x)}, {s(x)}, {hex(L.STEP_STRIDE)}")
    A(f"s_add_u32 {s(sStep)}, {s(sStep)}, 1")
    if P.get("dO", 0):
        A.nop(P["dO"])
    stamp("Old")
    ms = []
    fill = {}
    for j in range(8):
        if j < P["nO"]:
            re_o(j, True)
        else:
            add(fill, 2 * (j - P["nO"]) + 1, lambda j=j: re_o(j, True))
    issued = [14]
    for f in range(16):
        j, tt = f >> 1, f & 1
        ms.append(lambda f=f, j=j, tt=tt: smf(VACC + 4 * tt, 4 * j, wbuf[f % 7]))
        if tt == 0:
            parts = chk_parts("o", j, 8, 0, re_o)
            add(fill, max(0, f - 1), parts[0])
            add(fill, max(0, f - 1), parts[1])
            add(fill, f, parts[2])
            add(fill, f, lambda f=f: A(f"s_waitcnt lgkmcnt({min(15, issued[0] - 2 * (f + 2))})"))

        def more():
            if wq:
                wrd(2)
                issued[0] += 2
        add(fill, f + 1, more)
    if P.get("ktp"):
        add(fill, 15, lambda: kt_issue(A))
    run(ms, fill)
    A.nop(5)
    cvtwr(VACC, X1)
    cvtwr(VACC + 4, X1 + 2048)
    A("s_waitcnt lgkmcnt(0)")
    A("s_barrier")
    stamp("B3")
    A(f"ds_read_b128 {v(80, 4)}, {v(vG16)} offset:{X1}")
    A(f"ds_read_b128 {v(32, 4)}, {v(vG16)} offset:{X1 + 2048}")
    A(f"ds_read_b128 {v(84, 4)}, {v(vG16)} offset:{X1 + 1024}")
    A(f"ds_read_b128 {v(36, 4)}, {v(vG16)} offset:{X1 + 3072}")
    A(f"s_add_u32 {s(sOld0)}, {s(sOld0)}, {hex(L.STEP_STRIDE)}")
    A(f"s_add_u32 {s(sOld1)}, {s(sOld1)}, {hex(L.STEP_STRIDE)}")
    A("s_waitcnt lgkmcnt(3)")
    mf(88, 80, FW, None)
    A("s_waitcnt lgkmcnt(2)")
    mf(92, 32, FW, None)
    A("s_waitcnt lgkmcnt(1)")
    mf(88, 84, FW, 88)
    A("s_waitcnt lgkmcnt(0)")
    mf(92, 36, FW, 92)
    A(f"s_cmp_eq_u32 {s(sWv)}, 0")
    A.nop(4)
    A(f"v_cvt_pk_bf16_f32 {v(80)}, {v(88)}, {v(89)}")
    A(f"v_cvt_pk_bf16_f32 {v(81)}, {v(90)}, {v(91)}")
    A.nop(1)
    A(f"v_cvt_pk_bf16_f32 {v(82)}, {v(92)}, {v(93)}")
    A(f"v_cvt_pk_bf16_f32 {v(83)}, {v(94)}, {v(95)}")
    A(f"s_cbranch_scc1 {pfx}_mst_r")
    A(f"s_cmp_eq_u32 {s(sWv)}, 1")
    A(f"s_cbranch_scc0 {pfx}_mst_d")
    A(f"buffer_store_dwordx4 {v(80, 4)}, {v(vMst)}, {s(S_WS, 4)}, {s(sMst)} offen{loc}")
    A(f"s_branch {pfx}_mst_d")
    A.label(f"{pfx}_mst_r")
    A(f"buffer_store_dwordx4 {v(80, 4)}, {v(vMst)}, {s(S_WS, 4)}, {s(sMst)} offen sc1")
    A.label(f"{pfx}_mst_d")
    stamp("Mst")
    A(f"s_add_u32 {s(sMst)}, {s(sMst)}, {hex(L.STEP_STRIDE)}")
    if diag:
        A(f"s_and_b32 {s(sT0)}, {s(sStep)}, 7")
        A(f"s_cbranch_scc1 {pfx}_top")
        A("s_memrealtime s[100:101]")
        A("s_waitcnt lgkmcnt(0)")
        A(f"v_mov_b32 {v(t0)}, 0")
        A(f"v_writelane_b32 {v(t0)}, s100, 31")
        for i in range(len(names)):
            A(f"v_writelane_b32 {v(t0)}, {s(S_ST + 2 * i)}, {i}")
        for i in range(4):
            A(f"v_writelane_b32 {v(t0)}, {s(S_CNT + i)}, {24 + i}")
        A(f"v_writelane_b32 {v(t0)}, s56, 30")
        A(f"v_writelane_b32 {v(t0)}, s96, 28")
        A(f"v_writelane_b32 {v(t0)}, s98, 29")
        A(f"v_lshrrev_b32 {v(t1)}, 2, {v(vG16)}")
        A("s_mov_b32 exec_hi, 0")
        A(f"buffer_store_dword {v(t0)}, {v(t1)}, {s(S_WS, 4)}, {s(sSTO)} offen")
        A("s_mov_b64 exec, -1")
        A(f"s_add_u32 {s(sSTO)}, {s(sSTO)}, 128")
        STAMP_NAMES[:] = names
    A(f"s_branch {pfx}_top")
    A.label(f"{pfx}_kvw")
    kv_wait(A, f"{pfx}_kvp", exit_lbl, 4)
    A("s_mov_b64 exec, -1")
    A(f"s_branch {pfx}_kvok")

    def test(b):
        A(f"v_max3_u32 {v(t0)}, {v(b)}, {v(b + 1)}, {v(b + 2)}")
        A(f"v_max_u32 {v(t0)}, {v(t0)}, {v(b + 3)}")
        A(f"v_cmp_eq_u32 vcc, -1, {v(t0)}")

    for name, lbl, j, n, b, reissue, younger in tails:
        A.label(f"{lbl}_f")
        for jj in range(j, n):
            reissue(jj)
        A(f"s_sub_u32 {s(sBud)}, {s(sBud)}, 1")
        A(f"s_cbranch_scc1 {exit_lbl}")
        if diag:
            A(f"s_add_u32 {s(FC[name])}, {s(FC[name])}, 1")
        A(f"s_waitcnt vmcnt({0 if younger else n - 1 - j})")
        test(b)
        A(f"s_cbranch_vccnz {lbl}_f")
        A(f"s_branch {lbl}")


def chain_body(A, pfx, exit_lbl, P):
    import chain2

    def mid():
        chain_consts(A, P)
        A(f"s_lshl_b32 {s(sT0)}, {s(sH)}, 3")
        A(f"s_lshl_b32 {s(sT1)}, {s(sC)}, 2")
        A(f"s_add_u32 {s(sT0)}, {s(sT0)}, {s(sT1)}")
        A(f"s_add_u32 {s(sT0)}, {s(sT0)}, {s(sWv)}")
        A(f"s_mov_b32 {s(sPRG)}, {hex(OOB)}")
        A(f"s_cmp_eq_u32 {s(sT0)}, {2 if P.get('v3') else 3}")
        A(f"s_cselect_b32 {s(sPRG)}, {hex(L.FLAGS + L.F_PRG)}, {s(sPRG)}")

    def last():
        A("s_waitcnt vmcnt(0)")
        A(f"v_min_u32 {v(76)}, {v(76)}, {v(79)}")
        A(f"v_cmp_eq_u32 vcc, 0, {v(76)}")
        A(f"s_cmp_eq_u32 {s(sMK)}, 0")
        A(f"s_cbranch_scc0 {pfx}_sl0")
        A(f"s_cbranch_vccnz {pfx}_sl1")
        A(f"s_branch {pfx}_kv0_ok")
        A.label(f"{pfx}_sl0")
        read_counts(A, f"{pfx}_mode_cnt", exit_lbl)
        wait_a(A, f"{pfx}_wa", exit_lbl, t0, t1)
        A.label(f"{pfx}_sl1")
        wait_fill(A, f"{pfx}_wf", exit_lbl, t2, t0, 0)
        kv_wait(A, f"{pfx}_kv0", exit_lbl, 0)
        A("s_mov_b32 exec_lo, 0")
        A("s_mov_b32 exec_hi, 0x3f00")
        A(f"v_add_u32 {v(vPF)}, {1 << L.FS}, {v(vPF)}")
        A("s_mov_b64 exec, -1")
        kt_issue(A, not P.get("v3"))
        A(f"buffer_load_dword {v(vPFd)}, {v(vRW)}, {s(S_WS, 4)}, 0 offen sc1")
    chain_prologue(A, pfx, P, mid, last)
    if P.get("diag"):
        A(f"s_lshl_b32 {s(sT0)}, {s(sX)}, 5")
        A(f"s_add_u32 {s(sT0)}, {s(sT0)}, {s(sT)}")
        A(f"s_lshl_b32 {s(sT0)}, {s(sT0)}, 2")
        A(f"s_add_u32 {s(sT0)}, {s(sT0)}, {s(sWv)}")
        A(f"s_lshl_b32 {s(sSTO)}, {s(sT0)}, 13")
        A(f"s_add_u32 {s(sSTO)}, {s(sSTO)}, {hex(L.STAMP)}")
        A(f"s_lshl_b32 {s(sT0)}, {s(sT0)}, 10")
        A(f"s_add_u32 {s(sT0)}, {s(sT0)}, {hex(L.STAMP + (3 << 20))}")
        A(f"v_mov_b32 {v(t0)}, 0")
        for i in range(16):
            A(f"v_writelane_b32 {v(t0)}, s{64 + 2 * i}, {i}")
        A(f"v_lshrrev_b32 {v(t1)}, 2, {v(vG16)}")
        A(f"buffer_store_dword {v(t0)}, {v(t1)}, {s(S_WS, 4)}, {s(sT0)} offen")
    import chain3
    (chain3 if P.get("v3") else chain2).mr_init(A, pfx, exit_lbl, P)
    if P.get("diag"):
        A("s_mov_b32 s9, 0")
    if P.get("diag"):
        A("s_memrealtime s[98:99]")
        if P.get("v3"):
            A("s_waitcnt lgkmcnt(0)")
            A("s_mov_b32 s38, s98")
    A(f"s_min_u32 {s(sT0)}, {s(S_CNT)}, {s(S_CNT + 1)}")
    A(f"s_cmp_ge_u32 {s(sT0)}, 32")
    if P.get("pa"):
        A("s_waitcnt vmcnt(0)")
    if P.get("v3"):
        chain3.loops(A, pfx, exit_lbl, P)
        return
    if P.get("force_slow"):
        A(f"s_branch {pfx}s_top")
    A(f"s_cbranch_scc0 {pfx}s_top")
    if P.get("pa"):
        import chain2
        chain2.chain_loop(A, pfx + "f", True, exit_lbl, P)
        chain2.chain_loop(A, pfx + "s", False, exit_lbl, P)
        return
    chain_loop(A, pfx + "f", True, exit_lbl, P)
    chain_loop(A, pfx + "s", False, exit_lbl, P)
```

```python
import math
import struct
from asmlib import *
import layout as L
import chain
from chain import *

LIM = 2000
sBase, sOff, sKV, sNan = 2, 11, 10, 0
sClk, sNo, sTM, sRSw, sRSr, sLSw, sRem = 40, 42, 43, 44, 45, 46, 47
sMRb, sIncB, sARo, sPFa, sMso = 52, 53, 54, 55, 59
sOld, sInc, sOwn, sML = sOld0, sOld1, sNegC, sM0a
sStp = sKV
sDr, sM, sM0, sMp = sPRG, sH, sC, sKT
OFFL = X2 + 2048
sRT = 80
TW = 3
SH, ZO, X3 = X1, X2, X2 + 4096
RR, QA, KA, VA, TM = 64, 80, 84, 88, 92
ZP, VMq, vMs, vRS = vXrd, vBias, vZrd, vPFd
FR = lambda j, dq: 16 * j + 4 * dq
ORD = ["L0 L1 R0 R1 L2 R2 L3 R3", "L0 R0 L1 R1 L2 R2 L3 R3", "L0 L1 R0 L2 R1 R2 L3 R3", "L0 L1 L2 R0 R1 R2 L3 R3", "L0 L1 L2 L3 R0 R1 R2 R3",
       "L0 L1 R0 L2 R1 L3 R2 R3", "L0 L1 R0 R1 R2 R3 L2 L3", "R0 L0 R1 L1 R2 L2 R3 L3", "L0 R0 R1 L1 R2 L2 R3 L3"]
MP = [
    "p a a a a c w b o o v B r r r p a a a a c w b o o m m B r p m a r m a r m a m a c w b o L o p m a F m a B r m a r m a r c w b m m o o B r m r m r m "
    "m m m m k m k q k q k m m",
    "p a a a a c w b o o p a a a a c w b o o v B2 r r r r r r p a a a a c w b o o m L m F m p a m a m a m a c w b m m o o B2 r m r m r m r m r r "
    "m m m m m m m k m k q k q k m m",
    "p a a a a c w b o F o p a a a a c w b o o v v B2 r p a r a a a c w b o r o r p m a r m a r m a L m a c w b m m m m m B2 r m r m r m r o r o r "
    "m m m m m m m k m k q k q k m m",
    "p a a a a c w b o F o p a a a a c B r w b r o r o m m p B r m a r m a r m a m a c w b o L o p m a m a B r m a r m a r c w b m m o o m B r m r m r m "
    "m m m k m k q k q k m m",
    "p a a a a c w b o F o p a a a a c w b B r o r o r v m p m a B r m a r m a r m a c m w b o L o p m a m a m a B r m a r c m r w b m o o m m B r m r m r m "
    "m m k m k q k q k m m",
    "p a a a a c w b o F o p a a a a c B r r r w b o o m m m p a m B r a m r a m r a v w c m b o L o p a m a m a m B r a m w c m r b o r o m m B r m r m r "
    "m m q q q m k m k k C m k n1 C",
    "p a a a a c w b o F o p a a a a c B r w3 b o wc o r v r m m v m B p a m r a m r a m r a v w3 c m wc b o L o p a m a m a m a m B c m r b o w3 o wc "
    "v r m r m m m B m r m r v r q q q k m k m k n1 C m k n1 C",
    "p a a h a a c h b o F o p a a a a c B r w3 b o wc o r v r m m v B m p r a m r a m r a m a m w3 c m wc b o L o m p a m B r a m r a m r a v w3 c "
    "m wc b o o m m B r m r m r m q q q k m k m k n1 C m k n1 C",
    "p a a a a c b o w o F p a a a a c B r w3 b o wc o r v r m m v B m p r a m r a m r a m a m w3 c m wc b o L o m p a m B r a m r a m r a v w3 c "
    "m wc b o o m m B r m r m r m q q q k m k m k n1 C m k n1 C",
    "p a a a a c b o w o F v p a a a a c B r w3 b o wc o r v r m m v B m p r a m r a m r a m a m w3 c m wc b o L o m p a m B a m r a m r a v r c "
    "v w3 b o wc o m m m m B r m r m r v q q q k m k m k n1 C m k n1 C",
    "p a a a a c b o w o F v p a a a a c B r w3 b o wc o r v r m m v B m p r a m r a m r a m a m w3 c m wc b o L o m p a m B r a m r a m r a v w3 c "
    "m wc b o o m m B r m r m r m q q q k m k m k n1 C m k n1 C",
]


def mr_init(A, pfx, exit_lbl, P):
    A.label(f"{pfx}_nb")
    A(f"v_readfirstlane_b32 {s(sT1)}, {v(84)}")
    A(f"v_readfirstlane_b32 {s(sT0)}, {v(85)}")
    A.nop(4)
    A(f"s_and_b32 {s(sT2)}, {s(sT0)}, {s(sT1)}")
    A(f"s_cbranch_scc1 {pfx}_nb_ok")
    A(f"buffer_load_dwordx2 {v(84, 2)}, off, {s(S_DBG, 4)}, 0 offset:{L.D_NB} sc1")
    A(f"s_sub_u32 {s(sBud)}, {s(sBud)}, 1")
    A(f"s_cbranch_scc1 {exit_lbl}")
    A("s_waitcnt vmcnt(0)")
    A(f"s_branch {pfx}_nb")
    A.label(f"{pfx}_nb_ok")
    A(f"s_and_b32 {s(sT1)}, {s(sT1)}, 1")
    A(f"s_lshl_b32 {s(sT1)}, {s(sT1)}, 13")
    A(f"s_add_u32 {s(sMRb)}, {s(sT1)}, {hex(L.MR + 65536)}")
    A(f"s_and_b32 {s(sT0)}, {s(sT0)}, 1")
    A(f"s_lshl_b32 {s(sT0)}, {s(sT0)}, 13")
    A(f"s_sub_u32 {s(sIncB)}, {s(sT0)}, {s(sT1)}")
    A(f"s_add_u32 {s(sIncB)}, {s(sIncB)}, 65536")

    def spread(dst, src):
        A(f"s_and_b32 {s(sT1)}, {s(src)}, 0x6000")
        A(f"s_add_u32 {s(dst)}, {s(src)}, {s(sT1)}")
    A(f"s_and_b32 {s(sMso)}, {s(sMst)}, 0x7fff")
    spread(sMso, sMso)
    A(f"s_and_b32 {s(sARo)}, {s(sAR)}, 0x7fff")
    spread(sARo, sARo)
    if P.get("mx") == 2:
        for x in (sMso, sARo):
            A(f"s_xor_b32 {s(x)}, {s(x)}, 0x800")
    A(f"s_xor_b32 {s(sT2)}, {s(sMRb)}, 0x2000")
    A(f"s_lshl_b32 {s(sT0)}, {s(sWv)}, 14")
    A(f"s_lshl_b32 {s(sT1)}, {s(sT)}, 8")
    A(f"s_add_u32 {s(sT1)}, {s(sT1)}, {s(sT2)}")
    A(f"s_add_u32 {s(sPFa)}, {s(sT0)}, {s(sT1)}")
    A(f"v_writelane_b32 {v(vPF)}, {s(sPFa)}, 39")
    A(f"s_lshl_b32 {s(sT0)}, {s(sX)}, 15")
    A(f"s_add_u32 {s(sRSw)}, {s(sT0)}, {s(sT1)}")
    A(f"s_xor_b32 {s(sT0)}, {s(sT0)}, 0x8000")
    A(f"s_add_u32 {s(sRSr)}, {s(sT0)}, {s(sT2)}")
    A(f"s_lshl_b32 {s(sT0)}, {s(sX)}, 14")
    A(f"s_add_u32 {s(sT0)}, {s(sT0)}, {hex(L.STEP + L.STEP_STRIDE + L.S_MEMR)}")
    A(f"s_lshl_b32 {s(sT1)}, {s(sT)}, 3")
    A(f"s_add_u32 {s(sLSw)}, {s(sT0)}, {s(sT1)}")
    A(f"s_andn2_b32 {s(sT0)}, {s(sMst)}, 0x3ff")
    A(f"s_add_u32 {s(sT0)}, {s(sT0)}, {hex(2 * L.STEP_STRIDE)}")
    A(f"s_cmp_eq_u32 {s(sWv)}, 1")
    A(f"s_cselect_b32 {s(sLSw)}, {s(sT0)}, {s(sLSw)}")
    for x in (sZld, sZst, sOst, sOld):
        A(f"s_add_u32 {s(x)}, {s(x)}, {hex(3 * L.STEP_STRIDE)}")
    A(f"s_sub_u32 {s(sDM)}, {s(sDM)}, {hex(L.STEP_STRIDE)}")
    if P["on"]:
        A(f"s_andn2_b32 {s(sT0)}, {s(sRSw)}, 0x1f00")
        A(f"s_add_u32 {s(sT0)}, {s(sT0)}, 0x4000")
        A(f"s_cmp_eq_u32 {s(sWv)}, {TW}")
        A(f"s_cselect_b32 {s(sDM)}, {s(sT0)}, {s(sDM)}")
        A(f"s_lshl_b32 {s(sT0)}, {s(sX)}, 14")
        A(f"s_add_u32 {s(sT0)}, {s(sT0)}, {s(sMRb)}")
        A(f"s_sub_u32 {s(sRSw)}, {s(sT0)}, {65536 + 128}")
        A(f"s_cmp_eq_u32 {s(sT)}, 0")
        A(f"s_cselect_b32 {s(sRSr)}, {s(sRSw)}, {hex(OOB)}")
    for x, k in ((sKM, "pk"), (sVMst, "pv")):
        if P[k] < 19:
            A(f"s_sub_u32 {s(x)}, {s(x)}, 65536")
    A(f"s_cmp_eq_u32 {s(sWv)}, {TW}")
    A(f"s_cselect_b32 {s(sDr)}, 0, {s(sDr)}")
    for x in (sM, sM0):
        A(f"s_mov_b32 {s(x)}, 0")
    A(f"s_cselect_b32 {s(sMp)}, 0, {s(sMp)}")
    A(f"s_mov_b32 {s(sStep)}, -1")
    A(f"s_memrealtime {s(sT0, 2)}")
    A(f"s_memtime {s(sClk, 2)}")
    A("s_waitcnt lgkmcnt(0)")
    A(f"s_mul_i32 {s(sT0)}, {s(sT0)}, 22")
    A(f"s_sub_u32 {s(sOff)}, {s(sClk)}, {s(sT0)}")
    A(f"s_sub_u32 {s(sOwn)}, {s(sT0)}, {hex(1 << 17)}")
    A(f"s_sub_u32 {s(sTM)}, {s(sOwn)}, {hex(1 << 17)}")
    if P.get("diag"):
        A("s_mov_b32 s57, s96")


def zredo(A, pfx, P, tim, loc, zld, budget, exact, prods):
    a_, b_, sL = 69, 70, sRT + 4
    st = lambda d, so, o, f: A(f"buffer_store_dword {v(d)}, off, {s(S_WS, 4)}, {s(so)} offset:{o}{f}")
    A(f"s_sub_u32 {s(sT2)}, {s(sAR)}, {s(sARo)}")
    A(f"s_lshl_b32 {s(sT3)}, {s(sX)}, 15")
    A(f"s_xor_b32 {s(sT2)}, {s(sT2)}, 0x6000")
    A(f"v_mov_b32 {v(a_ + 3)}, 0")
    A(f"s_add_u32 {s(sT2)}, {s(sT2)}, {s(sT3)}")
    A(f"v_mov_b32 {v(b_)}, -1")
    st(a_ + 3, sT2, 0, loc)
    zld(False)
    A(f"s_memtime {s(sT0, 2)}")
    A(f"s_andn2_b32 {s(sL)}, {s(sAL)}, 0x3fff")
    A(f"s_lshl3_add_u32 {s(sL)}, {s(sT)}, {s(sL)}")
    A(f"s_add_u32 {s(sL)}, {s(sL)}, {L.S_MEMR - L.S_MEML}")
    A(f"ds_read_b32 {v(a_)}, {v(vG16)} offset:{OFFL}")
    st(b_, sL, 4, loc)
    A(f"s_lshl_b32 {s(sT3)}, {s(sT)}, 8")
    A(f"s_add_u32 {s(sT3)}, {s(sT3)}, {s(sT2)}")
    A(f"s_sub_u32 {s(sT3)}, {s(sT3)}, 0x4000")
    A("s_waitcnt lgkmcnt(0)")
    if not tim:
        A(f"s_sub_u32 {s(sT0)}, {s(sT0)}, {P['zl']}")
        A(f"v_sub_u32 {v(a_ + 2)}, {s(sT0)}, {v(a_)}")
        st(a_ + 2, sT3, 136, " sc1")
    budget("z")
    A(f"s_waitcnt vmcnt({1 if tim else 2})")
    A.label(f"{pfx}_zx_g")
    exact([8, 10, 12, 14], f"{pfx}_zx_h")
    A(f"s_memtime {s(sT0, 2)}")
    prods()
    A("s_waitcnt lgkmcnt(0)")
    A(f"s_sub_u32 {s(sT0)}, {s(sT0)}, {P['zk']}")
    A(f"v_sub_u32 {v(b_)}, {s(sT0)}, {v(a_)}")
    if tim:
        A(f"v_mov_b32 {v(t0)}, {s(sRT)}")
        A(f"v_max_u32 {v(t1)}, {v(t1)}, {v(b_)}")
    st(t1 if tim else b_, sL, 4, loc)
    if not tim:
        st(b_, sT3, 136, " sc1")
    A("s_mov_b32 vcc_lo, 0xcccccccc")
    A("s_mov_b32 vcc_hi, 0xcccccccc")
    A(f"s_branch {pfx}_z")
    A.label(f"{pfx}_zx_h")
    zld(False)
    st(b_, sL, 4, loc)
    budget("z")
    A("s_waitcnt vmcnt(1)")
    A(f"s_branch {pfx}_zx_g")


def chain_loop(A, pfx, w, fast, exit_lbl, P):
    diag = P.get("diag", False)
    loc = "" if fast else " sc1"
    tim = w == TW
    names = []
    FC = {"m": S_CNT, "oi": S_CNT + 1, "z": S_CNT + 2, "o": S_CNT + 3}
    fine = P.get("fine", 0)

    def stamp(name, grp=0):
        if fine and name != "top" and not (grp & fine):
            return
        if not fine and name[0] == "_":
            return
        if diag and len(names) < 10:
            if not P.get("dl") or w == 0:
                A(f"s_memtime {s(S_ST + 2 * len(names), 2)}")
            names.append(name)

    vmn = [0]
    vidx = {}

    def vm(txt, dst=None):
        A(txt)
        if dst is not None:
            vidx[dst] = vmn[0]
        vmn[0] += 1

    def ldx(dst, so, j, track=True):
        if j:
            A(f"s_xor_b32 {s(sT0)}, {s(so)}, {j << 10}")
        (vm if track else lambda t, d: A(t))(f"buffer_load_dwordx4 {v(dst, 4)}, {v(vG16)}, {s(S_WS, 4)}, {s(sT0 if j else so)} offen sc1", dst)

    def wt(*bs):
        A(f"s_waitcnt vmcnt({vmn[0] - 1 - max(vidx[b] for b in bs)})")

    lq = []

    def ds(txt, tag=None):
        A(txt)
        lq.append(tag)

    def lw(*tags):
        ix = [i for i, x in enumerate(lq) if x in tags]
        if ix:
            n = min(15, len(lq) - 1 - max(ix))
            A(f"s_waitcnt lgkmcnt({n})")
            del lq[:len(lq) - n]

    def lw0():
        A("s_waitcnt lgkmcnt(0)")
        lq.clear()

    def budget(name):
        A(f"s_sub_u32 {s(sBud)}, {s(sBud)}, 1")
        A(f"s_cbranch_scc1 {exit_lbl}")
        if diag and name:
            A(f"s_add_u32 {s(FC[name])}, {s(FC[name])}, 1")

    def exact(regs, lbl):
        A(f"v_max_u32 {v(t0)}, {v(regs[0])}, {v(regs[1])}")
        for i in range(2, len(regs), 2):
            A(f"v_max3_u32 {v(t0)}, {v(t0)}, {v(regs[i])}, {v(regs[i + 1])}")
        A(f"v_cmp_eq_u32 vcc, -1, {v(t0)}")
        A(f"s_cbranch_vccnz {lbl}")

    f16 = P.get("f16", 0)

    def smf(d, a_, b_, fmt="bf16"):
        A(f"v_smfmac_f32_16x16x64_{fmt} {v(d, 4)}, {v(a_, 4)}, {r(b_, 8)}, {v(IDX)}")

    def mf(d, a_, b_, c_):
        A(f"v_mfma_f32_16x16x32_bf16 {v(d, 4)}, {v(a_, 4)}, {v(b_, 4)}, {v(c_, 4) if c_ is not None else 0}")

    def cvt(d, a_, fmt="bf16"):
        return f"v_cvt_pk_{fmt}_f32 {v(d)}, {v(a_)}, {v(a_ + 1)}"

    def do(f):
        A(f) if isinstance(f, str) else f()

    def ring(x):
        return [f"s_add_u32 {s(x)}, {s(x)}, {hex(L.STEP_STRIDE)}", f"s_bitset0_b32 {s(x)}, 20"]

    def addops(j):
        if f16:
            return [f"v_pk_add_f16 {v(FR(j, 0) + i)}, {v(FR(j, 0) + i)}, {v(RR + 4 * j + i)}" for i in range(4)]
        o = []
        for i in range(4):
            a_, b_ = RR + 4 * j + i, FR(j, 0) + i
            o.append(f"v_fma_mix_f32 {v(TM + (i & 1))}, {v(a_)}, 1.0, {v(b_)} op_sel_hi:[1,0,1]")
            o.append(f"v_fma_mix_f32 {v(a_)}, {v(a_)}, 1.0, {v(b_)} op_sel:[1,0,1] op_sel_hi:[1,0,1]")
            o.append(f"v_cvt_pk_bf16_f32 {v(b_)}, {v(TM + (i & 1))}, {v(a_)}")
        return [o[0], o[1], o[3], o[4], o[2], o[6], o[5], o[7], o[9], o[10], o[8], o[11]]

    shw = lambda j: f"ds_write_b128 {v(vG16)}, {v(FR(j, 0), 4)} offset:{SH + j * 4096 + w * 1024}"
    kreg = [RR + 4 * j for j in range(4)] + [16 + 4 * j for j in range(4)]
    KQ = lambda tile, kk: kreg[2 * kk + tile]

    def kt(i):
        ds(f"ds_read_b128 {v(kreg[i], 4)}, {v(vG16)} offset:{KT + (i & 1) * 4096 + (i >> 1) * 1024}", f"k{i}")

    sal = []

    def fil(n):
        while n and sal:
            A(sal.pop(0))
            n -= 1
        A.nop(n)

    qk, vl, nk = [], [], [0]

    def mm(n, vonly=False):
        for _ in range(n):
            if qk and not vonly:
                j, dq, m = qk.pop(0)
                lw((j, dq))
                smf(KA if m else QA, FR(j, dq), 256 + 128 * m + (dq * 4 + j) * 8, "f16" if f16 else "bf16")
            elif vl:
                j, dq = vl.pop(0)
                lw((j, dq))
                smf(VA, FR(j, dq), WV + (j * 4 + dq) * 8, "f16" if f16 else "bf16")
            else:
                continue
            for _ in range(2):
                if sal:
                    do(sal.pop(0))

    rsw = f"buffer_store_dword {v(t1)}, off, {s(S_WS, 4)}, {s(sRSw)} offset:132 sc1"
    on = P["on"]
    zx = P.get("zx", 0)
    late_post = lambda d, x: f"v_and_b32 {v(d)}, 0x7fffffff, {v(x)}\n s_mov_b64 exec, 1\n buffer_atomic_smax {v(d)}, off, {s(S_WS, 4)}, {s(sRSw)} offset:4 sc1\n s_mov_b64 exec, -1"

    def kvst(f):
        if f == P["pk"]:
            vm(f"buffer_store_dwordx2 {v(ZP, 2)}, {v(vMst)}, {s(S_WS, 4)}, {s(sKM)} offen sc1")
        if f == P["pv"]:
            vm(f"buffer_store_dword {v(VMq)}, {v(vVMst)}, {s(S_WS, 4)}, {s(sVMst)} offen sc1")

    pfl = f"buffer_load_dword {v(vPFd)}, {v(vPF)}, {s(S_WS, 4)}, 0 offen sc1"

    def pause(nm):
        A(".p2align 3")
        A.label(f"{pfx}_{nm}1")
        A(f"s_sub_u32 {s(sRem)}, {s(sRem)}, 28")
        A(f"s_cbranch_scc0 {pfx}_{nm}1")

    A(".p2align 6")
    A.label(f"{pfx}_top")
    A("s_barrier")
    stamp("top")
    sal += ring(sZld) + ring(sZst) + ring(sOst) + ring(sOld) + ring(sDM) * (not (tim and on)) + [f"s_add_u32 {s(sStep)}, {s(sStep)}, 1"]
    if on:
        sal += [f"s_add_u32 {s(x)}, {s(x)}, 128" for x in (sRSw, sRSr)[:1 + tim]]
    if P.get("mx"):
        sal += [f"s_bitcmp1_b32 0x77777777, {s(sStep)}\n s_cselect_b32 {s(sT1)}, 0x800, 0", f"s_xor_b32 {s(sARo)}, {s(sARo)}, {s(sT1)}"]
        sal += [f"s_xor_b32 {s(sMso)}, {s(sMso)}, {s(sT1)}"] * (w < 2)
    sal += [f"s_add_u32 {s(sMst)}, {s(sMRb)}, {s(sMso)}"] if w < 2 else ring(sMst)
    zl = [f"v_mov_b32 {v(QA + i)}, 0" for i in range(12)]
    for k, x in enumerate(ORD[P["od"]].split()):
        j = int(x[1])
        ldx(FR(j, 0) if x[0] == "L" else RR + 4 * j, sAL if x[0] == "L" else sAR, j)
        if k < 7:
            n = P["sp"]
            if k >= 2 and len(zl) > P["zn"]:
                A(zl.pop(0))
                A(zl.pop(0))
                n -= 4
            fil(max(0, n))
    stamp("_iss", 48)
    if P["pF"] < 0:
        A.nop(-P["pF"] - 1)
        vm(pfl, vPFd)
    while sal:
        A(sal.pop(0))
    if tim:
        A(f"s_memtime {s(sClk, 2)}")
        for i in range(11):
            A(f"s_memrealtime {s(sRT + 2 * i, 2)}")
        A(f"s_sub_u32 {s(sT0)}, {s(sM)}, {s(sM0)}")
        A(f"s_lshr_b32 {s(sT1)}, {s(sStep)}, 1")
        A(f"s_min_u32 {s(sT1)}, {s(sT1)}, {P['kof']}")
        A(f"s_ashr_i32 {s(sT0)}, {s(sT0)}, {s(sT1)}")
        A(f"s_add_u32 {s(sOff)}, {s(sOff)}, {s(sT0)}")
        A(f"s_sub_u32 {s(sT0)}, {s(sM0)}, {s(sMp)}")
        A(f"s_sub_u32 {s(sT0)}, {s(sT0)}, {s(sDr)}")
        A(f"s_ashr_i32 {s(sT0)}, {s(sT0)}, {P['ema']}")
        A(f"s_add_u32 {s(sDr)}, {s(sDr)}, {s(sT0)}")
        A(f"s_mov_b32 {s(sMp)}, {s(sM0)}")
        A(f"s_mov_b32 {s(sBase)}, {s(sOwn)}")
        A(f"v_mov_b32 {v(t0)}, {s(sOff)}")
        A(f"s_add_u32 {s(sT0)}, {s(sTM)}, {P['nom']}")
        if on:
            A(f"s_bitset0_b32 {s(sT0)}, 31")
        A(f"v_mov_b32 {v(t1)}, {s(sT0)}")
        A("s_waitcnt lgkmcnt(0)")
        ds(f"ds_write_b32 {v(vG16)}, {v(t0)} offset:{OFFL}")
        for i in range(1, 11):
            A(f"s_add_u32 {s(sRT)}, {s(sRT)}, {s(sRT + 2 * i)}")
            if len(zl) > P["zt"]:
                A(zl.pop(0))
        A(f"s_lshl1_add_u32 {s(sRT)}, {s(sRT)}, {s(sOff)}")
        A(f"s_sub_u32 {s(sM)}, {s(sClk)}, {s(sRT)}")
        if P.get("lp", 0) >= 2:
            A(f"s_add_u32 {s(sRT)}, {s(sM)}, {s(sDr)}")
        else:
            A(f"s_add_u32 {s(sT0)}, {s(sM)}, {s(sDr)}")
            A(f"v_mov_b32 {v(t0)}, {s(sT0)}")
            vm(f"buffer_store_dwordx2 {v(t0, 2)}, off, {s(S_WS, 4)}, " + (f"{s(sRSr)} sc1" if on else f"{s(sRSw)} offset:128 sc1"))
    else:
        A.nop(P["zs"])
    kvst(-1)
    for x in zl:
        A(x)
    stamp("_wm", 48)
    if fine & 128:
        for k in range(8):
            A(f"s_waitcnt vmcnt({7 - k})")
            stamp(f"_a{k}", 128)
    prog = MP[P["mp"]].split()
    prog.append("G")
    for x, k in (("F", P["pF"]), ("L", P["pL"]), ("G", P["pG"] if w == 2 and not P.get("apl") else 99)):
        if k:
            prog.remove(x)
            if 0 < k < 40:
                prog.insert([i for i, y in enumerate(prog) if y in "omqv"][k - 1] + 1, x)
    prog = [x[0] if x[0] == "w" else x for x in prog if x[0] != "w" or int(x[1:] or "f", 16) >> w & 1]
    own, rdq, wrt, wdone, chk = [], [], [], [], []
    j, nb = -1, 0
    fm = "f16" if f16 else "bf16"
    def nxt(x, pop):
        q_ = vl if x == "v" else own if x == "o" else qk
        i = [y[2] for y in q_].index(0) if x == "q" else 0
        return q_.pop(i) if pop else q_[i] if q_ else None

    cq = [cvt(TM, QA), cvt(TM + 1, QA + 2)]
    for k, x in enumerate(prog):
        if x in "acC" and k + 1 < len(prog) and prog[k + 1] in "mqv":
            lw(nxt(prog[k + 1], False)[:2])
        if x == "C":
            A(cq.pop(0))
        elif x == "p":
            j += 1
            wt(FR(j, 0), RR + 4 * j)
            stamp(f"_p{j}", 32)
            ao = addops(j)
        elif x == "a":
            for _ in range(1 if f16 else 3):
                A(ao.pop(0))
        elif x == "c":
            assert not ao
            A(f"v_cmp_u_f16 vcc, {v(FR(j, 0))}, {v(FR(j, 0) + 2)}" if f16 else f"v_cmp_u_f32 vcc, {v(RR + 4 * j)}, {v(RR + 4 * j + 2)}")
        elif x == "w":
            nw = len(wdone)
            assert nw < j or not ao
            ds(shw(nw), ("w", nw))
            wdone.append(nw in chk)
            wrt.append(nw)
        elif x == "h":
            hf = int(not ao)
            ds(f"ds_write_b64 {v(vG16)}, {v(FR(j, 0) + 2 * hf, 2)} offset:{SH + j * 4096 + w * 1024 + 8 * hf}", ("w", j))
            if hf:
                wdone.append(False)
                wrt.append(j)
        elif x == "b":
            A(f"s_cbranch_vccnz {pfx}_m{j}_f")
            A.label(f"{pfx}_m{j}")
            own += [(j, 0, 0), (j, 0, 1)]
            vl.append((j, 0))
            vl.sort()
            chk.append(j)
        elif x[0] == "B":
            js = wrt[:int(x[1:] or 1)]
            del wrt[:len(js)]
            assert js[-1] in chk
            lw(("w", js[-1]))
            stamp(f"_w{js[-1]}", 2)
            A("s_barrier")
            stamp(f"_R{js[-1]}", 2)
            rdq += [(jj, dq) for jj in js for dq in range(1, 4)]
            if js[-1] == 3:
                assert not sal
                sal += [f"s_memtime {s(sClk, 2)}"] * tim + [f"s_add_u32 {s(sAR)}, {s(sMRb)}, {s(sARo)}"] + ring(sAL)
                sal += [f"s_cmp_eq_u32 {s(sStep)}, 30\n s_cselect_b32 {s(sT0)}, {s(sIncB)}, 0x10000", f"s_add_u32 {s(sMRb)}, {s(sMRb)}, {s(sT0)}",
                        f"s_sub_u32 {s(sInc)}, 0x20000, {s(sT0)}", f"s_add_u32 {s(sPFa)}, {s(sPFa)}, {s(sInc)}"]
        elif x == "r":
            jj, dq = rdq.pop(0)
            ds(f"ds_read_b128 {v(FR(jj, dq), 4)}, {v(vG16)} offset:{SH + jj * 4096 + (w ^ dq) * 1024}", (jj, dq))
            qk += [(jj, dq, 0), (jj, dq, 1)]
            vl.append((jj, dq))
            vl.sort()
        elif x == "L":
            vm(f"buffer_load_dwordx4 {v(VT_, 4)}, {v(vG16)}, {s(S_WS, 4)}, {s(sVT)} offen sc1", VT_)
            sal.insert(0, f"s_add_u32 {s(sVT)}, {s(sVT)}, {hex(32 * 8192)}")
        elif x == "F":
            vm(pfl, vPFd)
        elif x == "G":
            vm(f"buffer_store_dword {v(ONES)}, off, {s(S_WS, 4)}, {s(sPRG)} sc1")
            sal.insert(0, f"s_add_u32 {s(sPRG)}, {s(sPRG)}, 4")
        elif x == "k":
            kt(nk[0])
            nk[0] += 1
        elif x[0] == "n":
            fil(int(x[1:]))
        else:
            jj, dq, *m = nxt(x, True)
            lw((jj, dq))
            if x == "v":
                smf(VA, FR(jj, dq), WV + (jj * 4 + dq) * 8, fm)
            else:
                smf(KA if m[0] else QA, FR(jj, dq), 256 + 128 * m[0] + (dq * 4 + jj) * 8, fm)
            n = 2
            for y in prog[k + 1:]:
                if y in "omqv":
                    n -= y != "o" and (nxt(y, False) or (0, 0))[:2] in lq
                    break
                n -= 2 if y[0] == "B" else y not in "acC"
            for _ in range(n):
                if sal:
                    do(sal.pop(0))
    assert j == 3 and not (own or qk or rdq or wrt or sal)
    stamp("_qk", 2)
    mm(1)
    n = P["tn"]
    while nk[0] < 4:
        kt(nk[0])
        nk[0] += 1
        n -= 1
    A.nop(n - len(cq))
    for x in cq:
        A(x)
    A(cvt(TM + 2, KA))
    A(cvt(TM + 3, KA + 2))
    A("s_mov_b32 vcc_lo, 0xcccccccc")
    A("s_mov_b32 vcc_hi, 0xcccccccc")
    mf(KA, TM, FW, None)
    A(f"v_add_u32 {v(vPF)}, {v(vPF)}, {v(vPFi)}")
    if tim:
        lw0()
        A(f"s_sub_u32 {s(sOwn)}, {s(sClk)}, {s(sOff)}")
        mm(1)
        A(f"s_sub_u32 {s(sT0)}, {s(sOwn)}, {s(sTM)}")
        A(f"s_sub_u32 {s(sRem)}, {P['nom']}, {s(sT0)}")
        A(f"s_max_i32 {s(sRem)}, {s(sRem)}, 0")
    else:
        A(f"v_writelane_b32 {v(vPF)}, {s(sPFa)}, 39")
        A.nop(1)
        mm(1)
        A.nop(3)
    A(f"s_cmp_eq_u32 {s(sStep)}, 63")
    A(cvt(ZP, KA))
    A(cvt(ZP + 1, KA + 2))
    vm(f"buffer_store_dwordx2 {v(ZP, 2)}, {v(vZst)}, {s(S_WS, 4)}, {s(sZst)} offen{loc}")
    stamp("Zst", 3)
    A(f"s_cbranch_scc1 {pfx}_last")
    vlast = list(vl)
    ds(f"ds_write_b64 {v(vZst)}, {v(ZP, 2)} offset:{ZO + w * 512}")
    if tim:
        sal += [f"s_mov_b32 s82, {s(sT0)}"] * diag + [f"s_cmp_gt_u32 {s(sT0)}, {P['nom'] + P['tol']}", f"s_cselect_b32 {s(sT1)}, {P['pen']}, {s(sRem)}",
                f"s_add_u32 {s(sStp)}, {s(sT1)}, {s(sOwn)}", f"s_andn2_b32 {s(sNo)}, {s(sRSw)}, 0x1f00\n" * (not on) + f" v_mov_b32 {v(t0)}, {s(sM)}",
                f"s_add_u32 {s(sNo)}, {s(sNo)}, 0x4000\n" * (not on) + f" v_mov_b32 {v(t1)}, {s(sStp)}"]
    mm(P["nA"] - tim * P["nAt"])
    if tim:
        assert not sal
        pause("b2")
        mm(P["nAt"])
    assert all(x[0] for x in vl)
    lw0()
    A("s_barrier")
    stamp("_B2", 1)
    S0, S1, SM = 0, 4, VA
    SP = [(QA, KA, TM), (S0, S1, SM)]
    PB, PM, DEN, OA = TM, 64, 16, 8
    OC = 80

    def zld(track=True, js=(0, 1)):
        for j in js:
            (vm if track else lambda t, d: A(t))(f"buffer_load_dwordx4 {v(8 + 4 * j, 4)}, {v(vG16)}, {s(S_WS, 4)}, {s(sZld)} offen offset:{j * 1024} sc1", 8 + 4 * j)

    def zown(js=(0, 1)):
        for j in js:
            ds(f"ds_read_b128 {v(4 * j, 4)}, {v(vG16)} offset:{ZO + 1024 * j}", f"z{j}")

    def sc(kk):
        d, c = SP[kk >> 1], SP[kk == 3] if kk else (None,) * 3
        return [lambda: [lw(f"z{kk}", f"k{2 * kk}"), mf(d[0], KQ(0, kk), 4 * kk, c[0])],
                lambda: [lw(f"k{2 * kk + 1}"), mf(d[1], KQ(1, kk), 4 * kk, c[1])],
                lambda: mf(d[2], 4 * kk, 4 * kk, c[2])]
    vfold = [f"v_permlane32_swap_b32 {v(VA)}, {v(VA + 2)}", f"v_permlane32_swap_b32 {v(VA + 1)}, {v(VA + 3)}",
             f"v_pk_add_f32 {v(VA, 2)}, {v(VA, 2)}, {v(VA + 2, 2)}", cvt(VMq, VA)]
    wbuf = [32, 40, 48, 56, 64, 72, 88]
    wq = [(f, hf) for f in range(16) for hf in range(2)]

    def wline(f, hf):
        return f"ds_read_b128 {v(wbuf[f % 7] + 4 * hf, 4)}, {v(vWO)} offset:{f * 2048 + hf * 1024}"

    def wrd(n=1):
        for _ in range(n):
            f, hf = wq.pop(0)
            ds(wline(f, hf), f)

    def lpost(k):
        if tim and P.get("lp", 0) >= 2:
            if k and k != P["lp"] - 1:
                pass
            elif k:
                vm(f"buffer_store_dwordx2 {v(t0, 2)}, off, {s(S_WS, 4)}, {s(sRSw)} offset:128 sc1")
            else:
                A(f"v_mov_b32 {v(t0)}, {s(sRT)}")
                if diag:
                    A(f"s_cmp_gt_u32 {s(sT0)}, {P['nom'] + P['tol']}")
                    A(f"s_addc_u32 {s(FC['o'])}, {s(FC['o'])}, 0")
        elif k > 1:
            pass
        elif tim and P.get("lp", 0):
            if k:
                vm(f"buffer_store_dword {v(t1)}, off, {s(S_WS, 4)}, {s(sRT)} offset:132 sc1")
            else:
                A(f"s_cmp_gt_u32 {s(sT0)}, {P['nom'] + P.get('tp', P['tol'])}")
                A(f"s_cselect_b32 {s(sRT)}, {s(sRSw)}, {hex(OOB)}")
                if diag:
                    A(f"s_addc_u32 {s(FC['o'])}, {s(FC['o'])}, 0")
        elif tim and not k:
            A(f"s_cmp_gt_u32 {s(sT0)}, {P['nom'] + P['tol']}")
            A(f"s_cbranch_scc1 {pfx}_rp")
            A.label(f"{pfx}_rq")

    pw = P.get("pw", 0)
    LS, LA = 66, 68 if pw else vRS
    lsa = f"s_andn2_b32 {s(sT3)}, {s(sLSw)}, 0xff\n v_bfe_u32 {v(LA)}, {v(vG16)}, 1, 8"
    lsl = f"buffer_load_dwordx2 {v(LS, 2)}, {v(LA)}, {s(S_WS, 4)}, {s(sT3)} offen sc1"
    if tim:
        vx = [lambda: vm(f"buffer_store_dwordx2 {v(t0, 2)}, off, {s(S_WS, 4)}, {s(sLSw)}{loc}"),
              lambda: lpost(0),
              f"v_writelane_b32 {v(vPF)}, {s(sPFa)}, 39", lambda: [wt(vPFd), A(lsa)]][:4 - pw]
    else:
        vx = [lambda: [wt(vPFd), A(f"v_cmp_eq_u32 {s(sNan, 2)}, 0, {v(vPFd)}")], f"s_and_b32 {s(sKV)}, {s(sNan + 1)}, 0x3f00"] * (not pw)
    zown((0,))
    nv = len(vl)
    s01 = sc(0) + sc(1)
    vf = list(vfold)
    for i in range(nv + 6):
        mm(1) if i < nv else s01[i - nv]()
        if i - P["pZ"] in (0, 1):
            zld(True, (i - P["pZ"],))
            stamp("_zl", 1 if i == P["pZ"] else 0)
        elif i == 0:
            zown((1,))
        elif nk[0] < 8 and (1, nk[0] - 4) not in vl:
            kt(nk[0])
            nk[0] += 1
        if i >= nv + 2:
            A(vf.pop(0))
        elif vx:
            do(vx.pop(0))
    assert nk[0] == 8 and not vx and not vf
    if P["pZ"] >= nv + 6:
        A.nop(4 * (P["pZ"] - nv - 6))
        zld()
        stamp("_zl", 1)
    assert P["nw0"] <= 8
    wrd(P["nw0"])
    if tim and pw:
        A(lsa)
    A(f"v_mov_b32 {v(PM + 1)}, 0")
    if tim:
        vm(lsl, LS)
    lpost(1)
    lw("k7")
    if P.get("st", 0) and w == 0:
        A(f"s_xor_b32 {s(sT2)}, {s(sRSw)}, 0x8080")
        A(f"s_buffer_load_dword {s(sRT)}, {s(S_WS, 4)}, {s(sT2)}")
    stamp("_own", 1)
    so = [2, 0, 1] if P["smf"] else [0, 1, 2]
    wt(8)
    stamp("z0", 5)
    f = sc(2)
    f[so[0]]()
    f[so[1]]()
    A(f"v_cmp_u_f32 {s(sNan, 2)}, {v(8)}, {v(10)}")
    f[so[2]]()
    kvst(19)
    wt(12)
    stamp("_z1", 5)
    f = sc(3)
    f[so[0]]()
    f[so[1]]()
    A(f"v_cmp_u_f32 {s(sT0, 2)}, {v(12)}, {v(14)}")
    f[so[2]]()
    A(f"s_or_b64 {s(sNan, 2)}, {s(sNan, 2)}, {s(sT0, 2)}")
    A(f"s_cbranch_scc1 {pfx}_z_f")
    A.label(f"{pfx}_z")

    def soft(main):
        qp = "row_mask:0xf bank_mask:0xf"

        def ls(k):
            if main:
                kvst(20 + k)
                lpost(2 + k)
            if tim and main and k == P["pl"]:
                A(f"s_buffer_load_dword {s(sNo)}, {s(S_WS, 4)}, {s(sDM if on else sNo)}")
        cnd = lambda b: f"v_cndmask_b32_dpp {v(b)}, {v(b + 2)}, {v(b)}, vcc quad_perm:[2,3,2,3] {qp}"
        ex = lambda b: f"v_exp_f32 {v(b)}, {v(b)}"
        mul = lambda b: f"v_mul_f32 {v(b)}, {s(sCc)}, {v(b)}"
        dup = lambda b: f"v_mov_b32_dpp {v(b + 1)}, {v(b)} quad_perm:[0,1,0,1] {qp}"
        m16 = lambda d, a_, c: f"v_mfma_f32_16x16x16_bf16 {v(d, 4)}, {v(a_, 2)}, {v(PM, 2)}, {v(d, 4) if c else 0}"
        zo = lambda i: f"v_mov_b32 {v(OC + i)}, 0"
        if P["smf"]:
            for x in [mul(SM), mul(SM + 1), ex(SM), ex(SM + 1), cnd(S0), cvt(PM, SM), cnd(S0 + 1), ex(S0), m16(DEN, ONES, 0), lambda: ls(0), ex(S0 + 1),
                      cnd(S1), m16(OA, VMq, 0), lambda: ls(1), cnd(S1 + 1), ex(S1), ex(S1 + 1), cvt(PB, S0), cvt(PB + 2, S1), zo(0), dup(PB), dup(PB + 2), zo(1), zo(2),
                      lambda: mf(DEN, ONES, PB, DEN), lambda: ls(2), zo(3), zo(4), lambda: mf(OA, VT_, PB, OA), lambda: ls(3), "s_nop 1", zo(5), zo(6), zo(7)]:
                do(x)
        else:
            for x in [cnd(S0), cnd(S0 + 1), ex(S0), ex(S0 + 1), cnd(S1), cnd(S1 + 1), ex(S1), ex(S1 + 1), cvt(PB, S0), cvt(PB + 2, S1), mul(SM), dup(PB), dup(PB + 2),
                      mul(SM + 1), ex(SM), lambda: mf(DEN, ONES, PB, None), lambda: ls(0), ex(SM + 1), lambda: mf(OA, VT_, PB, None), lambda: ls(1), cvt(PM, SM),
                      zo(0), zo(1), m16(DEN, ONES, 1), lambda: ls(2), zo(2), zo(3), m16(OA, VMq, 1), lambda: ls(3), "s_nop 0", zo(4), zo(5), zo(6), zo(7)]:
                do(x)
        A(f"v_rcp_f32 {v(t0)}, {v(DEN)}")
        A(f"v_subrev_u32 {v(t1)}, 0x21800000, {v(DEN)}")
        A(f"v_cmp_lt_u32 vcc, 0x3c000000, {v(t1)}")
        A(f"v_pk_mul_f32 {v(OA, 2)}, {v(OA, 2)}, {v(t0, 2)} op_sel_hi:[1,0]")
        A(f"v_pk_mul_f32 {v(OA + 2, 2)}, {v(OA + 2, 2)}, {v(t0, 2)} op_sel_hi:[1,0]")
        A(f"s_and_b32 {s(sT0)}, vcc_lo, 0xcccc")
        ls(4)
        A(cvt(t0, OA))
        A(cvt(t1, OA + 2))

    soft(True)
    A(f"s_cbranch_scc1 {pfx}_sm_f")
    A.label(f"{pfx}_ost")
    vm(f"buffer_store_dwordx2 {v(t0, 2)}, {v(vOst)}, {s(S_WS, 4)}, {s(sOst)} offen{loc}")
    stamp("Ost", 12)

    def timer(nm, reg, fin, ex):
        A.label(f"{pfx}_{nm}0")
        A(f"s_memtime {s(sClk, 2)}")
        on = nm == "tm" and P["on"]
        if on:
            A(f"v_readlane_b32 {s(sRT)}, {v(reg - 1)}, 32")
            A(f"v_readlane_b32 {s(sRT + 1)}, {v(reg)}, 32")
            A(f"v_readlane_b32 {s(sRT + 5)}, {v(reg)}, 0")
            A.label(f"{pfx}_{nm}5")
            A(f"s_add_u32 {s(sT2)}, {s(sOff)}, {s(sBase)}")
            A(f"s_sub_u32 {s(sT0)}, {s(sRT + 1)}, {s(sRT)}")
            A(f"s_sub_u32 {s(sT1)}, {s(sRT + 5)}, {s(sBase)}")
            A(f"s_sub_u32 {s(sT0)}, {s(sT0)}, {s(sNan)}")
            A(f"s_bitset0_b32 {s(sT1)}, 31")
            A(f"s_bitset0_b32 {s(sT0)}, 31")
            A("s_waitcnt lgkmcnt(0)")
        else:
            if nm == "tm":
                if zx:
                    A(f"v_add_u32 {v(reg + 1)}, 1, {v(reg + 1)}")
                    A(f"v_max_u32 {v(reg)}, {v(reg)}, {v(reg + 1)}")
                A(f"v_sub_u32 {v(reg)}, {v(reg)}, {v(reg - 1)}")
            else:
                A(f"v_readlane_b32 {s(sM0)}, {v(reg - 1)}, 0")
            A(f"v_subrev_u32 {v(reg)}, {s(sNan if nm == 'tm' else sBase)}, {v(reg)}")
            A(f"s_add_u32 {s(sT2)}, {s(sOff)}, {s(sBase)}")
            for k in (8, 4, 2, 1):
                ex(1 if k == 8 else 2)
                A(f"v_max_u32_dpp {v(reg)}, {v(reg)}, {v(reg)} row_ror:{k} row_mask:0xf bank_mask:0xf")
            A("s_waitcnt lgkmcnt(0)")
            A(f"v_readlane_b32 {s(sT0)}, {v(reg)}, 0")
            A(f"v_readlane_b32 {s(sT1)}, {v(reg)}, 16")
        A(f"s_sub_u32 {s(sT2)}, {s(sClk)}, {s(sT2)}")
        A(f"s_max_u32 {s(sT0)}, {s(sT0)}, {s(sT1)}")
        A(f"s_add_u32 {s(sT3)}, {s(sT2)}, 1536")
        A(f"s_cmp_gt_u32 {s(sT0)}, {s(sT3)}")
        A(f"s_cbranch_scc1 {pfx}_{nm}2")
        if zx and nm == "to":
            A(f"s_cmp_eq_u32 {s(sNo)}, 0")
            A(f"s_cbranch_scc1 {pfx}_{nm}2")
        A.label(f"{pfx}_{nm}3")
        fin()
        A(f"s_sub_u32 {s(sRem)}, {s(sT0)}, {s(sT2)}")
        if diag:
            A(f"s_mov_b32 s{8 if nm == 'tm' else 10}, {s(sRem)}")
        if on:
            A(f"s_max_i32 {s(sRem)}, {s(sRem)}, {s(sNo)}")
            A(f"s_add_u32 {s(sT1)}, {s(sRem)}, {P['tl']}")
            A(f"s_cmp_gt_u32 {s(sT1)}, {P['tl'] + P['th']}")
            A(f"s_cbranch_scc1 {pfx}_{nm}4")
        A(f"s_max_i32 {s(sRem)}, {s(sRem)}, 0")
        pause(nm)

    def repoll(nm, adr, ldi):
        A.label(f"{pfx}_{nm}2")
        A(f"s_mov_b32 {s(sT0)}, {s(sT2)}")
        if nm == "to":
            A(f"s_mov_b32 {s(sM0)}, {s(sM)}")
            if zx:
                A(f"s_mov_b32 {s(sNo)}, -1")
        elif P["on"]:
            A(f"s_add_u32 {s(sTM)}, {s(sT2)}, {s(sBase)}")
            A(f"s_mov_b32 {s(sRem)}, 0")
        A(f"s_cmp_gt_u32 {s(sT2)}, {hex(1 << 18)}")
        A(f"s_cbranch_scc1 {pfx}_{nm}{1 if nm == 'tm' and P['on'] else 3}")
        if nm == "tm" and P["on"]:
            A.label(f"{pfx}_{nm}4")
            A(f"s_cmp_eq_u32 {s(sNo)}, 0")
            A(f"s_cbranch_scc1 {pfx}_{nm}6")
            A(f"s_mov_b32 {s(sNo)}, 0")
            A(f"s_xor_b32 {s(sT0)}, {s(sRSw)}, 0x4000")
            A(f"s_buffer_load_dwordx2 {s(sRT, 2)}, {s(S_WS, 4)}, {s(sT0)}")
            A(f"s_buffer_load_dwordx2 {s(sRT + 4, 2)}, {s(S_WS, 4)}, {s(sRSw)}")
            if diag:
                A("s_add_u32 s9, s9, 1")
            A("s_waitcnt lgkmcnt(0)")
            A(f"s_memtime {s(sClk, 2)}")
            A(f"s_branch {pfx}_{nm}5")
            A.label(f"{pfx}_{nm}6")
        A(adr)
        A(ldi)
        budget(None)
        if diag:
            A(f"s_add_u32 s9, s9, {1 if nm == 'tm' else 65536}")
        A("s_waitcnt vmcnt(0)")
        A(f"s_branch {pfx}_{nm}0")

    SN = 24
    sn = [f"v_mov_b32 {v(SN + i)}, -1" for i in range(4)]
    rst = lambda: vm(f"buffer_store_dwordx4 {v(SN, 4)}, {v(vG16)}, {s(S_WS, 4)}, {s(sDM)} offen{loc}")
    if tim:
        wt(LS)
        lq.clear()
        if P["pl"] == 5:
            A(f"s_buffer_load_dword {s(sNo)}, {s(S_WS, 4)}, {s(sNo)}")
        timer("to", LS + 1, lambda: [zx or [A(f"s_sub_u32 {s(sT1)}, {s(sNo)}, {s(sBase)}"), A(f"s_cmp_le_u32 {s(sT1)}, {s(sT3)}"),
                                            A(f"s_cselect_b32 {s(sT1)}, {s(sT1)}, 0"), A(f"s_max_u32 {s(sT0)}, {s(sT0)}, {s(sT1)}")],
                                      A(f"s_add_u32 {s(sML)}, {s(sT0)}, {P['cL']}"), A(f"s_add_u32 {s(sT0)}, {s(sT0)}, {P['cO']}")], A.nop)
    else:
        if pw:
            A(f"v_cmp_eq_u32 {s(sNan, 2)}, 0, {v(vPFd)}")
        for x in sn:
            A(x)
        wrd(P["nw1"])
        if pw:
            A(f"s_and_b32 {s(sKV)}, {s(sNan + 1)}, 0x3f00")
        A.nop(P["dr"])
        rst()
        if w == 1:
            vm(f"buffer_store_dwordx4 {v(SN, 4)}, {v(vG16)}, {s(S_WS, 4)}, {s(sLSw)} offen{loc}")
    stamp("_BOw", 8)
    A("s_barrier")
    stamp("Old", 8)
    rsa = f"v_and_b32 {v(t1)}, 0x1f0, {v(vG16)}\n v_lshlrev_b32 {v(t1)}, 4, {v(t1)}"
    if P["on"]:
        rsa = f"v_and_b32 {v(t1)}, 0x200, {v(vG16)}\n v_lshlrev_b32 {v(t1)}, 5, {v(t1)}\n v_xor_b32 {v(t1)}, {s(sRSw)}, {v(t1)}"
    rsl = f"buffer_load_dwordx{2 + zx} {v(VT_, 2 + zx)}, {v(t1)}, {s(S_WS, 4)}, " + ("0 offen sc1" if on else f"{s(sRSr)} offen offset:128 sc1")
    if tim or w == 1:
        sal += ring(sLSw)
    sal += [f"s_add_u32 {s(x)}, {s(x)}, 65536" for x in (sKM, sVMst)]
    if tim or P.get("st", 0) and w == 0:
        sal.append(f"s_add_u32 {s(sDM if on else sRSw)}, {s(sDM if on else sRSw)}, {s(sInc)}")
    for j in range(8):
        ldx(4 * j, sOld, j)
        if j < 7:
            n = min(2, len(wq) - 18)
            wrd(n)
            fil(max(0, P["spo"] - P["spr"] * n))
    while sal:
        A(sal.pop(0))
    kvst(-2)
    if P["on"]:
        vm(f"buffer_load_dword {v(VT_ + 2)}, off, {s(S_WS, 4)}, {s(sOld)} sc1")
    if tim:
        A(rsa)
        if P["pr"] < 0:
            vm(rsl, "rs")
    stamp("_oi", 8)
    def oprod(f):
        lw(f)
        smf(OC + 4 * (f & 1), 4 * (f >> 1), wbuf[f % 7])
        if f < 9:
            wrd(2)
        if tim and f == P["pr"]:
            vm(rsl, "rs")
        kvst(f)

    late = lambda j: 0 < j < P["nC"] and j < P["nL"]
    for j in range(8):
        lw(2 * j - 1 if late(j) else 2 * j)
        wt(4 * j)
        stamp(f"o{j}" if j == 7 else f"_o{j}", 8 if j in (0, 7) else 64)
        if j < P["nC"]:
            A(f"v_cmp_u_f32 vcc, {v(4 * j)}, {v(4 * j + 2)}")
            if late(j):
                oprod(2 * j - 1)
            A(f"s_cbranch_vccnz {pfx}_o{j}_f")
            A.label(f"{pfx}_o{j}")
        oprod(2 * j)
        if not late(j + 1):
            oprod(2 * j + 1)
    A.nop(P.get("x3n", 5))
    x3o = X3 + (w >> 1) * 1024 + (w & 1) * 8
    A(cvt(OC, OC) + "\n" + cvt(OC + 1, OC + 2))
    A(f"ds_write_b64 {v(vG16)}, {v(OC, 2)} offset:{x3o}")
    A(cvt(OC + 2, OC + 4) + "\n" + cvt(OC + 3, OC + 6))
    A(f"ds_write_b64 {v(vG16)}, {v(OC + 2, 2)} offset:{x3o + 2048}")
    if P["nC"] < 8:
        A(f"v_cmp_u_f32 vcc, {v(OC + 4)}, {v(OC + 5)}")
        A(f"v_cmp_u_f32 {s(sNan, 2)}, {v(OC + 6)}, {v(OC + 7)}")
        A(f"s_or_b64 vcc, vcc, {s(sNan, 2)}")
        A(f"s_cbranch_scc1 {pfx}_o_f")
        A.label(f"{pfx}_o_ok")
    kvst(17)
    lw0()
    stamp("_B3w", 8)
    A("s_barrier")
    stamp("_B3", 24)
    A(f"ds_read_b128 {v(72, 4)}, {v(vG16)} offset:{X3 + (w & 1) * 2048}")
    A(f"ds_read_b128 {v(76, 4)}, {v(vG16)} offset:{X3 + (w & 1) * 2048 + 1024}")
    if not tim:
        A(f"s_mov_b32 m0, {KT + w * 2048}")
        A(f"s_cmp_lg_u32 {s(sKV)}, 0")
    A("s_waitcnt lgkmcnt(1)")
    mf(64, 72, FK, None)
    A("s_waitcnt lgkmcnt(0)")
    mf(64, 76, FK, 64)
    A.nop(8)
    A(cvt(68, 64, "f16"))
    A(cvt(69, 66, "f16"))
    if w < 2:
        A.nop(P.get("mo2", 0))
    vm(f"buffer_store_dwordx2 {v(68, 2)}, {v(vMs)}, {s(S_WS, 4)}, {s(sMst)} offen{' sc1' if w < 2 else loc}")
    stamp("Mst", 24)
    kvst(16)
    if tim:
        A(f"s_sub_u32 {s(sNan)}, {s(sBase)}, {s(sM0)}")
        A(f"s_sub_u32 {s(sNan)}, {s(sNan)}, {s(sDr)}")
        if P["on"]:
            A(f"s_brev_b32 {s(sNo)}, 1")
        wt("rs")
        timer("tm", VT_ + 1, lambda: [A(f"s_add_u32 {s(sT0)}, {s(sT0)}, {P['cR']}"), A(f"s_max_u32 {s(sT0)}, {s(sT0)}, {s(sML)}"),
                                       A(f"s_add_u32 {s(sTM)}, {s(sT0)}, {s(sBase)}")], A.nop)
        if not on:
            A(f"s_add_u32 {s(sRSr)}, {s(sRSr)}, {s(sInc)}")
    else:
        A(f"s_cbranch_scc1 {pfx}_kvw")
        A.label(f"{pfx}_kvok")
        A.nop(P.get("dk", 4))
        A(f"buffer_load_dwordx4 {v(vG16)}, {s(S_WS, 4)}, {s(sKT)} offen sc1 lds")
        A(f"buffer_load_dwordx4 {v(vG16)}, {s(S_WS, 4)}, {s(sKT)} offen offset:1024 sc1 lds")
        if w:
            A(f"s_mov_b32 m0, {KT + 3 * 2048}")
            A(f"s_xor_b32 {s(sT0)}, {s(sKT)}, {131072 if w == 1 else 2048}")
            A(f"buffer_load_dwordx4 {v(vG16)}, {s(S_WS, 4)}, {s(sT0)} offen offset:{(w - 1) * 1024} sc1 lds")
        A(f"s_add_u32 {s(sKT)}, {s(sKT)}, {hex(32 * 8192)}")
    stamp("_end", 16)
    if diag and not (tim and P.get("dl")):
        A(f"s_add_u32 {s(sT0)}, {s(sStep)}, 1")
        A(f"s_and_b32 {s(sT0)}, {s(sT0)}, {P.get('dm', 7)}")
        A(f"s_cbranch_scc1 {pfx}_top")
        A("s_memrealtime s[100:101]")
        A("s_memtime s[34:35]")
        A("s_waitcnt lgkmcnt(0)")
        A(f"v_mov_b32 {v(t0)}, 0")
        A(f"v_writelane_b32 {v(t0)}, s100, 31")
        A(f"v_writelane_b32 {v(t0)}, s34, 23")
        A(f"s_add_u32 {s(sT0)}, {s(sOff)}, {s(sM0)}")
        A(f"v_writelane_b32 {v(t0)}, {s(sT0)}, 19")
        A(f"v_writelane_b32 {v(t0)}, s82, 18")
        for i in range(3):
            A(f"v_writelane_b32 {v(t0)}, s{8 + i}, {20 + i}")
        for i in range(len(names)):
            A(f"v_writelane_b32 {v(t0)}, {s(S_ST + 2 * i)}, {i}")
        for i in range(4):
            A(f"v_writelane_b32 {v(t0)}, {s(S_CNT + i)}, {24 + i}")
        A(f"v_writelane_b32 {v(t0)}, s56, 30")
        A(f"v_writelane_b32 {v(t0)}, s57, 28")
        A(f"v_writelane_b32 {v(t0)}, s38, 29")
        A(f"v_lshrrev_b32 {v(t1)}, 2, {v(vG16)}")
        A("s_mov_b32 exec_hi, 0")
        A(f"buffer_store_dword {v(t0)}, {v(t1)}, {s(S_WS, 4)}, {s(sSTO)} offen")
        A("s_mov_b64 exec, -1")
        A(f"s_add_u32 {s(sSTO)}, {s(sSTO)}, 128")
        if tim:
            A("s_memtime s[32:33]")
            A(f"s_sub_u32 {s(sTM)}, {s(sTM)}, s34")
            A("s_waitcnt lgkmcnt(0)")
            A(f"s_add_u32 {s(sTM)}, {s(sTM)}, s32")
            A(f"s_add_u32 {s(sTM)}, {s(sTM)}, 60")
        chain.STAMP_NAMES[:] = names
    A(f"s_branch {pfx}_top")
    if tim:
        repoll("to", lsa, lsl)
        repoll("tm", rsa, rsl)
        if not P.get("lp", 0):
            A.label(f"{pfx}_rp")
            A("s_nop 0\n" + late_post(t0, t1) if on else rsw)
            if diag:
                A(f"s_add_u32 {s(FC['o'])}, {s(FC['o'])}, 1")
            A(f"s_branch {pfx}_rq")
    else:
        A.label(f"{pfx}_kvw")
        kv_wait(A, f"{pfx}_kvp", exit_lbl, 4)
        A("s_mov_b64 exec, -1")
        A(f"s_branch {pfx}_kvok")
    A.label(f"{pfx}_last")
    for x, k in ((sKM, "pk"), (sVMst, "pv")):
        if P[k] < 19:
            A(f"s_add_u32 {s(x)}, {s(x)}, 65536")
    A(f"buffer_store_dwordx2 {v(ZP, 2)}, {v(vMst)}, {s(S_WS, 4)}, {s(sKM)} offen sc1")
    vl[:] = vlast
    mm(len(vl))
    A.nop(8)
    for x in vfold:
        A(x)
        A.nop(2)
    A(f"buffer_store_dword {v(VMq)}, {v(vVMst)}, {s(S_WS, 4)}, {s(sVMst)} offen sc1")
    A(f"s_branch {exit_lbl}")
    for j in range(4):
        A.label(f"{pfx}_m{j}_f")
        if diag and P.get("dR2"):
            A(f"v_max_u32 {v(t0)}, {v(RR + 4 * j)}, {v(RR + 4 * j + 2)}")
            A(f"v_cmp_eq_u32 vcc, -1, {v(t0)}")
            A("s_cmp_lg_u64 vcc, 0")
            A(f"s_addc_u32 {s(FC['oi'])}, {s(FC['oi'])}, 0")
        A("s_waitcnt lgkmcnt(0)")
        for k in range(j, 4):
            ldx(FR(k, 0), sAL, k, False)
            ldx(RR + 4 * k, sAR, k, False)
        budget("m")
        A("s_waitcnt vmcnt(0)")
        exact([FR(j, 0), FR(j, 0) + 2, RR + 4 * j, RR + 4 * j + 2], f"{pfx}_m{j}_f")
        for x in addops(j):
            A(x)
        A("s_nop 0" if wdone[j] else shw(j))
        A(f"s_branch {pfx}_m{j}")
    A.label(f"{pfx}_z_f")
    if zx:
        zredo(A, pfx, P, tim, loc, zld, budget, exact, lambda: [sc(kk)[i]() for kk in (2, 3) for i in so])
    else:
        zld(False)
        A(f"s_memtime {s(sT0, 2)}")
        A(f"ds_read_b32 {v(t0)}, {v(vG16)} offset:{OFFL}")
        A(f"s_sub_u32 {s(sT2)}, {s(sAR)}, {s(sARo)}")
        A(f"s_xor_b32 {s(sT2)}, {s(sT2)}, 0x2000")
        A(f"s_lshl_b32 {s(sT3)}, {s(sX)}, 15")
        A(f"s_add_u32 {s(sT2)}, {s(sT2)}, {s(sT3)}")
        A(f"s_lshl_b32 {s(sT3)}, {s(sT)}, 8")
        A(f"s_add_u32 {s(sT3)}, {s(sT3)}, {s(sT2)}")
        A(f"s_add_u32 {s(sT2)}, {s(sT2)}, 0x4000")
        A("s_waitcnt lgkmcnt(0)")
        A(f"s_sub_u32 {s(sT0)}, {s(sT0)}, {P['zl']}")
        A(f"v_sub_u32 {v(t0 if tim else t1)}, {s(sT0)}, {v(t0)}")
        if tim:
            A(f"v_max_u32 {v(t1)}, {v(t0)}, {v(t1)}")
        A(f"buffer_store_dword {v(t1)}, off, {s(S_WS, 4)}, {s(sT2)}{loc}")
        budget("z")
        A("s_waitcnt vmcnt(1)")
        A.label(f"{pfx}_z_g")
        exact([8, 10, 12, 14], f"{pfx}_z_h")
        for kk in (2, 3):
            for i in so:
                sc(kk)[i]()
        A(late_post(t1, t1) if on else f"buffer_store_dword {v(t1)}, off, {s(S_WS, 4)}, {s(sT3)} offset:132 sc1")
        A("s_mov_b32 vcc_lo, 0xcccccccc")
        A("s_mov_b32 vcc_hi, 0xcccccccc")
        A(f"s_branch {pfx}_z")
        A.label(f"{pfx}_z_h")
        zld(False)
        budget("z")
        A(f"v_add_u32 {v(t1)}, 300, {v(t1)}")
        A("s_waitcnt vmcnt(0)")
        A(f"s_branch {pfx}_z_g")
    A.label(f"{pfx}_sm_f")
    A("s_waitcnt vmcnt(0) lgkmcnt(0)")
    zld(False)
    zown()
    for i in range(8):
        kt(i)
    A("s_waitcnt vmcnt(0)")
    lw0()
    for kk in range(4):
        for f in sc(kk):
            f()
    A.nop(8)
    A(f"v_mov_b32 {v(PM + 1)}, 0")
    A(f"v_max_f32 {v(t0)}, {v(SM)}, {v(SM + 1)}")
    A(f"v_mul_f32 {v(t0)}, {s(sCc)}, {v(t0)}")
    for i in range(0, 8, 2):
        A(f"v_max3_f32 {v(t0)}, {v(t0)}, {v(S0 + i)}, {v(S0 + i + 1)}")
    for op in ("v_permlane32_swap_b32", "v_permlane16_swap_b32"):
        A(f"v_mov_b32 {v(t1)}, {v(t0)}")
        A.nop(2)
        A(f"{op} {v(t0)}, {v(t1)}")
        A(f"v_max_f32 {v(t0)}, {v(t0)}, {v(t1)}")
    ic = struct.unpack("<I", struct.pack("<f", 1.0 / ((128 ** -0.5) * math.log2(math.e))))[0]
    A(f"v_mul_f32 {v(t1)}, {hex(ic)}, {v(t0)}")
    A("s_mov_b32 vcc_lo, 0xcccccccc")
    A("s_mov_b32 vcc_hi, 0xcccccccc")
    for i in range(8):
        A(f"v_sub_f32 {v(S0 + i)}, {v(S0 + i)}, {v(t0)}")
    for i in range(2):
        A(f"v_sub_f32 {v(SM + i)}, {v(SM + i)}, {v(t1)}")
    A("s_waitcnt lgkmcnt(0)")
    A.nop(1)
    soft(False)
    if tim:
        A(lsa)
        A(lsl)
        A("s_waitcnt vmcnt(0)")
    A(f"s_branch {pfx}_ost")
    for j in range(P["nC"]):
        A.label(f"{pfx}_o{j}_f")
        A.nop(1)
        ks = range(j, min(8, j + P["nR"]))
        for k in ks:
            ldx(4 * k, sOld, k, False)
        if P["on"]:
            A(f"s_memtime {s(sT0, 2)}")
            A(f"ds_read_b32 {v(VT_ + 3)}, {v(vG16)} offset:{OFFL}")
            A("s_waitcnt lgkmcnt(0)")
            A(f"s_sub_u32 {s(sT0)}, {s(sT0)}, {P['zo'] + 60 * j}")
            A(f"v_sub_u32 {v(VT_ + 3)}, {s(sT0)}, {v(VT_ + 3)}")
            A(late_post(VT_ + 3, VT_ + 3))
        budget("oi")
        A(f"s_waitcnt vmcnt({int(P['on'])})")
        exact([4 * j, 4 * j + 2], f"{pfx}_o{j}_f")
        A(f"s_branch {pfx}_o{j}")
    if P["nC"] == 8:
        return
    A.label(f"{pfx}_o_f")
    A("s_waitcnt lgkmcnt(0)")
    for j in range(8):
        ldx(4 * j, sOld, j, False)
    budget("o")
    for i in range(8):
        A(f"v_mov_b32 {v(OC + i)}, 0")
    A("s_waitcnt vmcnt(0)")
    exact(list(range(0, 32, 2)), f"{pfx}_o_f")
    for f0 in range(0, 16, 4):
        for f in range(f0, f0 + 4):
            for hf in range(2):
                A(f"ds_read_b128 {v(32 + 8 * (f & 3) + 4 * hf, 4)}, {v(vWO)} offset:{f * 2048 + hf * 1024}")
        A("s_waitcnt lgkmcnt(0)")
        for f in range(f0, f0 + 4):
            smf(OC + 4 * (f & 1), 4 * (f >> 1), 32 + 8 * (f & 3))
    A.nop(8)
    for i in range(4):
        A(cvt(OC + i, OC + 2 * i))
    A(f"ds_write_b64 {v(vG16)}, {v(OC, 2)} offset:{x3o}")
    A(f"ds_write_b64 {v(vG16)}, {v(OC + 2, 2)} offset:{x3o + 2048}")
    A(f"s_branch {pfx}_o_ok")


def loops(A, pfx, exit_lbl, P):
    A(f"s_cselect_b32 {s(sT0)}, 0, 4")
    if P.get("force_slow"):
        A(f"s_mov_b32 {s(sT0)}, 4")
    A(f"s_add_u32 {s(sT0)}, {s(sT0)}, {s(sWv)}")
    for k in range(1, 8):
        A(f"s_cmp_eq_u32 {s(sT0)}, {k}")
        A(f"s_cbranch_scc1 {pfx}{k}_top")
    A(f"s_branch {pfx}0_top")
    for k in range(8):
        chain_loop(A, f"{pfx}{k}", k & 3, k < 4, exit_lbl, P)
```

```python
from asmlib import *
import layout as L
import chain
from chain import S_WS, S_W, S_DBG, sX, sT, sWv, sBud, S_PTR, srd, t0, t1, t2
import gemm
from gemm import S_P2, S_PX, S_PO, S_X, S_OUT, vLane, vL16, vT0, vT1, vT2, sT0, sT1, sT2, sT3, sQ, sQn, LDS_MISC
import worker
import pipe
import ln
import att
import att2
import wo

S_M0 = 76


def touch(A, P, ptr, nbytes, sidx, per, vaddr, vd):
    st = P.get("pfs", 128)
    srd(A, S_W, ptr, nbytes)
    A(f"s_mul_i32 {s(sT3)}, {s(sidx)}, {per}")
    for i in range(per // (256 * st)):
        if P.get("pf2", 1):
            A(f"buffer_load_dwordx2 {v(vd, 2)}, {v(vaddr)}, {s(S_W, 4)}, {s(sT3)} offen offset:60")
        else:
            A(f"buffer_load_dword {v(vd)}, {v(vaddr)}, {s(S_W, 4)}, {s(sT3)} offen")
        A(f"s_add_u32 {s(sT3)}, {s(sT3)}, {256 * st}")
        if P.get("apf", 0) > 1:
            A(f"s_waitcnt vmcnt({P['apf'] - 2})")


def startup(A, pfx, ex, P):
    sTile, sF = 15, 16
    vT16, ZR, SN = 1, 4, 8
    srd(A, S_X, S_PX, 4 << 20)
    srd(A, S_OUT, S_PO, 4 << 20)
    A(f"v_lshlrev_b32 {v(vT16)}, 4, v0")
    A(f"v_lshlrev_b32 {v(vL16)}, 4, {v(vLane)}")
    for i in range(4):
        A(f"v_mov_b32 {v(ZR + i)}, 0")
        A(f"v_mov_b32 {v(SN + i)}, -1")
    vPA, vPD = 12, 14
    A(f"v_mul_u32_u24 {v(vPA)}, {P.get('pfs', 128)}, v0")
    pf = P.get("pf", 0)
    A(f"s_lshl_b32 {s(sTile)}, {s(sX)}, 4")
    A(f"s_and_b32 {s(sT0)}, {s(sX)}, 1")
    A(f"s_lshl_b32 {s(sT0)}, {s(sT0)}, 5")
    A(f"s_cmp_lt_u32 {s(sX)}, 4")
    A(f"s_cselect_b32 {s(sTile)}, {s(sT0)}, {s(sTile)}")
    A(f"s_cselect_b32 {s(sT0)}, 32, 16")
    A(f"s_add_u32 {s(sTile)}, {s(sTile)}, {s(sT)}")
    A(f"s_sub_u32 {s(sF)}, {s(sTile)}, 80")
    A(f"s_sub_u32 {s(sQ)}, {s(sX)}, 2")
    if P.get("asp", 0):
        A(f"s_lshl_b32 {s(sQn)}, {s(sX)}, 5")
        A(f"s_add_u32 {s(sQn)}, {s(sQn)}, {s(sT)}")
        A(f"s_cmp_ge_u32 {s(sQn)}, 248")
        A(f"s_cselect_b32 {s(sQ)}, 1, {s(sQ)}")
    A(f"s_mov_b32 {s(sQn)}, 0")
    A(f"s_cmp_lt_u32 {s(sT)}, {s(sT0)}")
    A(f"s_cbranch_scc1 {pfx}_ln")
    A(f"s_cmp_lg_u32 {s(sT)}, 16")
    A(f"s_cbranch_scc1 {pfx}_fill")
    A(f"s_lshl_b32 {s(sT0)}, {s(sF)}, 11")
    A(f"s_add_u32 {s(sT0)}, {s(sT0)}, {hex(L.FLAGS)}")
    for i in range(8):
        A(f"buffer_store_dwordx4 {v(ZR, 4)}, {v(vT16)}, {s(S_WS, 4)}, {s(sT0)} offen sc1")
        A(f"s_add_u32 {s(sT0)}, {s(sT0)}, 4096")
    A("v_bfe_u32 v2, v0, 2, 1")
    A(f"s_lshr_b32 {s(sT0)}, {s(sWv)}, 1")
    A(f"v_and_b32 v2, {s(sT0)}, v2")
    A(f"s_bitcmp1_b32 {s(sWv)}, 0")
    A(f"s_cselect_b32 {s(sT0)}, 15, 0")
    A(f"s_cselect_b32 {s(sT1)}, {127 * 32768}, 0")
    A(f"v_xor_b32 v2, {s(sT0)}, v2")
    A("v_lshlrev_b32 v2, 4, v2")
    A("v_and_b32 v3, 3, v0")
    A("v_lshl_add_u32 v2, v3, 8, v2")
    A("v_lshrrev_b32 v3, 3, v0")
    A("v_lshl_add_u32 v2, v3, 10, v2")
    A(f"s_add_u32 {s(sT1)}, {s(sT1)}, {hex(L.H1)}")
    A(f"buffer_store_dwordx4 {v(ZR, 4)}, v2, {s(S_WS, 4)}, {s(sT1)} offen sc1")
    A("s_waitcnt vmcnt(0)")
    A("s_barrier")
    A(f"s_cmp_lg_u32 {s(sWv)}, 0")
    A(f"s_cbranch_scc1 {pfx}_fill")
    A("v_mov_b32 v2, 1")
    A("s_mov_b64 exec, 1")
    A(f"buffer_atomic_add v2, {v(ZR)}, {s(S_DBG, 4)}, 0 offen offset:{L.D_A} sc1")
    A("s_mov_b64 exec, -1")
    A(f"s_branch {pfx}_fill")
    A.label(f"{pfx}_ln")
    A(f"v_and_b32 v3, 15, {v(vLane)}")
    A(f"v_and_b32 v2, 48, {v(vLane)}")
    A("v_lshl_add_u32 v3, v3, 11, v2")
    A(f"s_lshl_b32 {s(sT2)}, {s(sTile)}, 15")
    A(f"s_lshl_b32 {s(sT0)}, {s(sWv)}, 9")
    A(f"s_add_u32 {s(sT0)}, {s(sT2)}, {s(sT0)}")
    for b in range(8):
        A(f"buffer_load_dwordx4 {v(32 + 4 * b, 4)}, v3, {s(S_X, 4)}, {s(sT0)} offen offset:{64 * b}")
    ln.ln_addr(A, vLane, sWv, vT0, vT1, vT2, LDS_MISC + 1024)
    A(f"s_lshl_b32 {s(sT0)}, {s(sWv)}, 13")
    A(f"s_add_u32 {s(sT2)}, {s(sT2)}, {s(sT0)}")
    A("s_waitcnt vmcnt(0)")
    if pf & 2:
        touch(A, P, S_PTR + 6, 8 << 20, sTile, 65536, vPA, vPD)
    if pf & 16:
        touch(A, P, S_PTR, 8 << 20, sTile, 65536, vPA, vPD)
    ln.lin2nat(A, 32)
    A(f"s_lshr_b32 {s(sT0)}, {s(sTile)}, 3")
    A(f"s_lshl_b32 {s(sT0)}, {s(sT0)}, 9")
    A(f"s_and_b32 {s(sT1)}, {s(sTile)}, 7")
    A(f"s_lshl_b32 {s(sT1)}, {s(sT1)}, 4")
    A(f"s_add_u32 {s(sT0)}, {s(sT0)}, {s(sT1)}")
    A(f"s_add_u32 {s(sF)}, {s(sT0)}, {hex(L.FLAGS + L.F_T + L.T_LN1 * 8192)}")

    def xn_flag():
        A(f"s_cmp_lg_u32 {s(sWv)}, 0")
        A(f"s_cbranch_scc1 {pfx}_nf")
        A("v_cmp_gt_u32 vcc, 4, v2")
        A(f"s_cbranch_vccz {pfx}_wa1_ok")
        chain.wait_a(A, f"{pfx}_wa1", ex, 2, 3)
        A("s_mov_b64 exec, 1")
        A(f"buffer_store_dword {v(SN)}, {v(ZR)}, {s(S_WS, 4)}, {s(sF)} offen sc1")
        A("s_mov_b64 exec, -1")
        A.label(f"{pfx}_nf")

    for rep, dst in ((0, L.XN), (1, L.XN2)):
        src, out = (32, 128) if rep == 0 else (128, 32)
        ln.ln_core(A, src, 64, 16, vT0, vT1, 0, out, xn_flag if rep else None)
        A(f"s_add_u32 {s(sT0)}, {s(sT2)}, {hex(dst)}")
        A(f"s_add_u32 {s(sT1)}, {s(sT0)}, 4096")
        for b in range(8):
            A(f"buffer_store_dwordx4 {v(out + 4 * b, 4)}, {v(vL16)}, {s(S_WS, 4)}, {s(sT0 + (b >> 2))} offen offset:{(b & 3) * 1024} sc1")
        if not rep:
            A(f"buffer_load_dword v2, {v(ZR)}, {s(S_DBG, 4)}, 0 offen offset:{L.D_A} sc1")
    A(f"s_add_u32 {s(sF)}, {s(sF)}, 4")
    A(f"s_branch {pfx}_wa2_ok")
    A.label(f"{pfx}_fill")
    if pf & 1:
        touch(A, P, S_PTR + 2, 8 << 20, sF, 131072, vPA, vPD)
        touch(A, P, S_PTR + 4, 8 << 20, sF, 131072, vPA, vPD)
    if pf & 32:
        touch(A, P, S_PTR + 4, 8 << 20, sF, 131072, vPA, vPD)
    if pf & 4:
        touch(A, P, S_PTR, 8 << 20, sF, 131072, vPA, vPD)
    if pf & 8:
        touch(A, P, S_PTR + 6, 8 << 20, sF, 131072, vPA, vPD)
    A(f"s_lshl_b32 {s(sT0)}, {s(sF)}, 2")
    for i in range(4):
        A(f"s_sub_u32 {s(sT1)}, {s(sT0)}, {48 - i}")
        A(f"s_lshl_b32 {s(sT2)}, {s(sT0)}, 12")
        A(f"s_add_u32 {s(sT2)}, {s(sT2)}, {hex(L.STEP + 4096 * i)}")
        A(f"s_cmp_lt_u32 {s(sT1)}, 16")
        A(f"s_cselect_b32 {s(sT2)}, {hex(chain.OOB)}, {s(sT2)}")
        A(f"buffer_store_dwordx4 {v(SN, 4)}, {v(vT16)}, {s(S_WS, 4)}, {s(sT2)} offen sc1")
    A(f"s_lshl_b32 {s(sT0)}, {s(sF)}, 12")
    A(f"s_add_u32 {s(sT1)}, {s(sT0)}, {hex(L.MR)}")
    A(f"s_add_u32 {s(sT2)}, {s(sT0)}, {hex(L.MR if P.get('xkv') else L.VM)}")
    A(f"buffer_store_dwordx4 {v(SN, 4)}, {v(vT16)}, {s(S_WS, 4)}, {s(sT2)} offen sc1")
    A(f"s_add_u32 {s(sT0)}, {s(sT0)}, {hex(L.MR if P.get('xkv') else L.KM)}")
    A(f"buffer_store_dwordx4 {v(SN, 4)}, {v(vT16)}, {s(S_WS, 4)}, {s(sT0)} offen sc1")
    A(f"buffer_store_dwordx4 {v(SN, 4)}, {v(vT16)}, {s(S_WS, 4)}, {s(sT1)} offen sc1")
    A(f"s_lshl_b32 {s(sF)}, {s(sF)}, 2")
    A(f"s_add_u32 {s(sF)}, {s(sF)}, {hex(L.FLAGS + L.F_FILL)}")
    A(f"s_cmp_lg_u32 {s(sF)}, {hex(L.FLAGS + L.F_FILL + 52)}")
    A(f"s_cbranch_scc1 {pfx}_fd")
    assert L.S_MEML == 48 * 4096 and L.S_MEMR == 56 * 4096
    srd(A, S_W, S_M0, 16384)
    A("v_and_b32 v2, 7, v0")
    A("v_lshlrev_b32 v2, 11, v2")
    A("v_lshrrev_b32 v3, 6, v0")
    A("v_lshl_add_u32 v2, v3, 7, v2")
    A("v_bfe_u32 v3, v0, 4, 2")
    A("v_lshl_add_u32 v2, v3, 5, v2")
    A("v_bfe_u32 v3, v0, 3, 1")
    A("v_lshl_add_u32 v2, v3, 4, v2")
    for q in range(4):
        A(f"buffer_load_dwordx4 {v(16 + 4 * q, 4)}, v2, {s(S_W, 4)}, 0 offen offset:{512 * q}")
    A(f"s_mov_b32 {s(sT0)}, {hex(L.STEP + L.S_MEML)}")
    A("s_waitcnt vmcnt(0)")
    if P.get("pa"):
        A(f"s_cmp_lt_u32 {s(sWv)}, {P['nD']}")
        A(f"s_cbranch_scc1 {pfx}_m0b")
        for i in range(16):
            A(f"v_lshlrev_b32 v2, 16, {v(16 + i)}")
            A(f"v_and_b32 v3, 0xffff0000, {v(16 + i)}")
            A(f"v_cvt_pk_f16_f32 {v(16 + i)}, v2, v3")
        A.label(f"{pfx}_m0b")
    A(f"v_xor_b32 v2, {0x400 if P.get('msw', 0) else 0}, {v(vT16)}")
    for q in range(16):
        A(f"buffer_store_dwordx4 {v(ZR if q & 4 else 16 + 4 * (q & 3), 4)}, {v(2 if q & 1 else vT16)}, {s(S_WS, 4)}, {s(sT0)} offen sc1")
        A(f"s_add_u32 {s(sT0)}, {s(sT0)}, 4096")
    chain.wait_a(A, f"{pfx}_wa3", ex, 2, 3)
    A(f"v_lshlrev_b32 v2, {max(L.FS, L.FC)}, {v(vLane)}")
    A(f"s_mov_b32 {s(sT0)}, {hex(L.FLAGS + L.F_T + L.T_FILL * 8192 + (64 << L.FS))}")
    A("s_mov_b64 exec, 15")
    A(f"buffer_store_dwordx4 {v(SN, 4)}, v2, {s(S_WS, 4)}, {s(sT0)} offen sc1")
    A("s_mov_b64 exec, -1")
    A.label(f"{pfx}_fd")
    A(f"s_cmp_lg_u32 {s(sWv)}, 0")
    A(f"s_cbranch_scc1 {pfx}_wa2_ok")
    chain.wait_a(A, f"{pfx}_wa2", ex, 2, 3)
    A("s_waitcnt vmcnt(0)")
    A("s_barrier")
    A(f"s_cmp_lg_u32 {s(sWv)}, 0")
    A(f"s_cbranch_scc1 {pfx}_end")
    A("s_mov_b64 exec, 1")
    A(f"buffer_store_dword {v(SN)}, {v(ZR)}, {s(S_WS, 4)}, {s(sF)} offen sc1")
    A("s_mov_b64 exec, -1")
    A.label(f"{pfx}_end")


def probe(A, pfx, P):
    sMin = 20
    A(f"s_cmp_gt_u32 {s(sT)}, 1")
    A(f"s_cbranch_scc1 {pfx}_end")
    A(f"s_cmp_lg_u32 {s(sWv)}, 0")
    A(f"s_cbranch_scc1 {pfx}_bar")
    A(f"s_lshl_b32 {s(sT0)}, {s(sT)}, 21")
    A(f"s_add_u32 {s(sT0)}, {s(sT0)}, {hex(L.MR)}")
    A(f"v_lshlrev_b32 v2, 2, {v(vLane)}")
    A("v_mov_b32 v3, -1")
    A(f"s_mov_b64 {s(sMin, 2)}, -1")
    A(f"s_mov_b32 {s(sT2)}, {P.get('npr', 12)}")
    A("s_mov_b32 exec_hi, 0")
    A("s_waitcnt vmcnt(0)")
    A.label(f"{pfx}_lp")
    for h in range(2):
        A("s_memtime s[16:17]")
        A("s_waitcnt lgkmcnt(0)")
        A(f"buffer_store_dword v3, v2, {s(S_WS, 4)}, {s(sT0)} offen sc1")
        A("s_waitcnt vmcnt(0)")
        A("s_memtime s[18:19]")
        A(f"s_xor_b32 {s(sT0)}, {s(sT0)}, 0x2000")
        A("s_waitcnt lgkmcnt(0)")
        A(f"s_sub_u32 {s(sT1)}, s18, s16")
        A(f"s_min_u32 {s(sMin + h)}, {s(sMin + h)}, {s(sT1)}")
    A(f"s_add_u32 {s(sT0)}, {s(sT0)}, 128")
    A(f"s_sub_u32 {s(sT2)}, {s(sT2)}, 1")
    A(f"s_cmp_lg_u32 {s(sT2)}, 0")
    A(f"s_cbranch_scc1 {pfx}_lp")
    A(f"s_cmp_lt_u32 {s(sMin + 1)}, {s(sMin)}")
    A(f"s_cselect_b32 {s(sT0)}, {3 ^ P.get('nbx', 0)}, {2 ^ P.get('nbx', 0)}")
    A(f"s_lshl_b32 {s(sT1)}, {s(sT)}, 2")
    A(f"v_mov_b32 v3, {s(sT0)}")
    A("s_mov_b64 exec, 1")
    A(f"buffer_store_dword v3, off, {s(S_DBG, 4)}, {s(sT1)} offset:{L.D_NB} sc1")
    if P.get("diag"):
        A(f"s_lshl_b32 {s(sT1)}, {s(sT)}, 3")
        A(f"v_mov_b32 v4, {s(sMin)}")
        A(f"v_mov_b32 v5, {s(sMin + 1)}")
        A(f"buffer_store_dwordx2 v[4:5], off, {s(S_DBG, 4)}, {s(sT1)} offset:48 sc1")
    A("s_mov_b64 exec, -1")
    A.label(f"{pfx}_bar")
    A("s_barrier")
    A.label(f"{pfx}_end")


def main_kernel(A, name, P, queues):
    kernel_begin(A, name)
    ex = f"{name}_end"
    A(f"s_load_dwordx4 {s(20, 4)}, s[0:1], 104")
    A(f"s_load_dwordx8 {s(S_PTR, 8)}, s[0:1], 16")
    A(f"s_load_dwordx8 {s(S_P2, 8)}, s[0:1], 64")
    A(f"s_load_dwordx2 {s(S_PX, 2)}, s[0:1], 0")
    A(f"s_load_dwordx2 {s(S_PO, 2)}, s[0:1], 96")
    A(f"s_load_dwordx2 {s(S_M0, 2)}, s[0:1], 8")
    if P.get("diag"):
        A("s_memtime s[56:57]")
        A("s_memrealtime s[100:101]")
    A("s_cmp_ge_u32 s2, 256")
    A(f"s_cbranch_scc1 {ex}")
    A(f"v_lshrrev_b32 {v(t0)}, 6, v0")
    A(f"v_and_b32 {v(t2)}, 63, v0")
    A(f"v_and_b32 {v(vLane)}, 63, v0")
    A(f"v_readfirstlane_b32 {s(sWv)}, {v(t0)}")
    A(f"s_mov_b32 {s(sBud)}, {hex(1 << 19)}")
    A("s_waitcnt lgkmcnt(0)")
    srd(A, S_DBG, 20, 256)
    srd(A, S_WS, 22, L.WS_BYTES)
    chain.slot_assign(A, name, ex)
    A(f"s_cmp_ge_u32 {s(sX)}, 8")
    A(f"s_cbranch_scc1 {ex}")
    if P.get("asp", 0):
        A(f"s_lshl_b32 {s(sT0)}, {s(sX)}, 2")
        A(f"s_lshr_b32 {s(sT1)}, {s(sT)}, 3")
        A(f"s_add_u32 {s(sT0)}, {s(sT0)}, {s(sT1)}")
        A(f"s_bitcmp1_b32 {hex(1 << 13 | 1 << 31)}, {s(sT0)}")
        A(f"s_cselect_b32 {s(sT0)}, 4, 0")
        A(f"s_cselect_b32 {s(sT1)}, 16, 0")
        A(f"s_xor_b32 {s(sX)}, {s(sX)}, {s(sT0)}")
        A(f"s_xor_b32 {s(sT)}, {s(sT)}, {s(sT1)}")
    if P.get("rot"):
        A(f"s_add_u32 {s(sT)}, {s(sT)}, {P['rot']}")
        A(f"s_and_b32 {s(sT)}, {s(sT)}, 31")
    if P.get("diag"):
        A("s_memrealtime s[58:59]")
        A(f"s_lshl_b32 {s(sT0)}, {s(sX)}, 5")
        A(f"s_add_u32 {s(sT0)}, {s(sT0)}, {s(sT)}")
        A(f"s_lshl_b32 {s(sT0)}, {s(sT0)}, 12")
        A(f"s_add_u32 {s(sT0)}, {s(sT0)}, {hex(L.STAMP + (2 << 20) + 4096 - 32)}")
        A("s_waitcnt lgkmcnt(0)")
        A("v_mov_b32 v2, s100")
        A("v_mov_b32 v3, s58")
        A("v_mov_b32 v4, 0")
        A(f"buffer_store_dwordx2 v[2:3], v4, {s(S_WS, 4)}, {s(sT0)} offen")
    A(f"s_cmp_lt_u32 {s(sX)}, 2")
    A(f"s_cbranch_scc1 {name}_chain")
    startup(A, name + "_s", ex, P)
    A(f"s_lshl_b32 {s(sT0)}, {s(sX)}, 5")
    A(f"s_add_u32 {s(sT0)}, {s(sT0)}, {s(sT)}")
    A(f"s_sub_u32 {s(sT0)}, {s(sT0)}, 96")
    A(f"s_cmp_lt_u32 {s(sT0)}, 16")
    A(f"s_cbranch_scc1 {name}_att")
    if P.get("hold", 0):
        A(f"s_cmp_lt_u32 {s(sX)}, 4")
        A(f"s_cselect_b32 {s(sT0)}, 32, 16")
        A(f"s_cmp_lt_u32 {s(sT)}, {s(sT0)}")
        A(f"s_cbranch_scc0 {name}_nh")
        for _ in range(P["hold"]):
            A("s_sleep 64")
        A.label(f"{name}_nh")
    A(f"s_branch {name}_worker")
    A.label(ex)
    A("s_endpgm")
    A.label(f"{name}_chain")
    chain.chain_body(A, name + "_c", ex, P)
    A.label(f"{name}_att")
    probe(A, name + "_p", P)
    if P.get("apf", 0):
        for k in range(P.get('apn', 4)):
            n = (2 if k < 2 else 7) << 20
            touch(A, P, S_P2 + 2 * k, n, sT, n // 16, 12, 14)
    chain.wait_fill(A, f"{name}_awf", ex, vLane, 0, 2)
    if len(queues) == 7:
        A(f"s_mov_b32 {s(sQ)}, 6")
        A(f"s_branch {name}_worker")
    A.label(f"{name}_att2")
    (att2 if P.get("a2") else att).attention(A, name + "_a", ex, P)
    A.label(f"{name}_wo")
    wo.wo_stream(A, name + "_o", ex, P)
    A.label(f"{name}_end2")
    A("s_endpgm")
    A.label(f"{name}_worker")
    (pipe if P.get('pipe') else worker).worker(A, name + "_w", f"{name}_end2", P, queues, f"{name}_wo", f"{name}_att2" if P.get("g2", 0) else None)
    kernel_desc(A, name, 512, 256)
```

```python
from asmlib import *
import layout as L
import gemm
from gemm import *
from worker import pack, small_jobs, LN2_TILES

sFm, sOutE, sOPE, sResE = 0, 1, 2, 3
sEv, sEp, sEpN, sGo, sFb = 55, 56, 57, 58, 59
sDq, sNW, sNx, sRs = 60, 61, 62, 63
sW0 = 100
sNn, sCur = 72, 73
vShE, vQa, vRow, vCon = 145, 146, 147, 151
vZq, vDa, vSt, vTb, vPl, vPq, vFa, vTk = 224, 228, 229, 230, 231, 232, 248, 249
NONE = 15
GM = sum(1 << t for t in TYPES)


def flag_ops():
    return [f"s_add_u32 {s(sT0)}, {s(sTy)}, 1\n s_bitcmp0_b32 {s(sT0)}, 2\n s_cselect_b32 {s(sT2)}, 7, 2\n s_cselect_b32 {s(sT3)}, 2, 4",
            f"s_lshl_b32 {s(sFb)}, {s(sTy)}, 13", f"s_add_u32 {s(sFb)}, {s(sFb)}, {hex(L.FLAGS + L.F_T)}",
            f"v_lshrrev_b32 {v(vT0)}, 3, {v(vLane)}", f"v_add_lshl_u32 {v(vT0)}, {s(sRb)}, {v(vT0)}, 9", f"v_and_b32 {v(vT1)}, 3, {v(vLane)}",
            f"v_lshl_add_u32 {v(vT0)}, {v(vT1)}, {s(sT2)}, {v(vT0)}",
            f"v_bfe_u32 {v(vT1)}, {v(vLane)}, 2, 1", f"v_add_u32 {v(vT1)}, {s(sCt)}, {v(vT1)}", f"v_lshl_add_u32 {v(vFa)}, {v(vT1)}, {s(sT3)}, {v(vT0)}",
            f"s_lshl_b32 {s(sFm)}, 4, {s(sCf)}"]


def poll_ld():
    return (f"buffer_load_dword {v(vPl)}, {v(vDa)}, {s(S_WS, 4)}, {s(sDb)} offen sc1\n"
            f"buffer_load_dwordx4 {v(vPq, 4)}, {v(vQa)}, {s(S_WS, 4)}, {s(sDq)} offen sc1")


def decode_ops():
    bfe = lambda d, o, w: f"s_bfe_u32 {s(d)}, {s(sPk)}, {hex(o | (w << 16))}"
    sel = lambda ty, *x: f"s_cmp_eq_u32 {s(sTy)}, {ty}" + "".join(f"\n s_cselect_b32 {s(d)}, {a_}, {b_}" for d, a_, b_ in x)
    return [f"v_readfirstlane_b32 {s(sI)}, {v(vTk)}", "s_nop 1", f"v_cmp_ge_u32 vcc, {s(sI)}, {v(vSt)}", "s_nop 1",
            f"s_bcnt1_i32_b64 {s(sT0)}, vcc", f"s_sub_u32 {s(sT0)}, {s(sT0)}, 1", f"v_readlane_b32 {s(sPk)}, {v(vTb)}, {s(sT0)}", "s_nop 1",
            f"s_and_b32 {s(sT0)}, {s(sPk)}, 0x7ff", f"s_sub_u32 {s(sI)}, {s(sI)}, {s(sT0)}", bfe(sT0, 26, 3),
            f"s_lshr_b32 {s(sCt)}, {s(sI)}, {s(sT0)}", f"s_lshl_b32 {s(sT1)}, {s(sCt)}, {s(sT0)}", f"s_sub_u32 {s(sRb)}, {s(sI)}, {s(sT1)}",
            bfe(sT2, 29, 1), f"s_lshl_b32 {s(sRb)}, {s(sRb)}, {s(sT2)}", bfe(sT3, 30, 1), f"s_lshl_b32 {s(sCt)}, {s(sCt)}, {s(sT3)}",
            bfe(sT0, 17, 4), f"s_add_u32 {s(sRb)}, {s(sRb)}, {s(sT0)}", bfe(sT0, 21, 5), f"s_add_u32 {s(sCt)}, {s(sCt)}, {s(sT0)}",
            bfe(sTy, 11, 4), bfe(sPk, 11, 6), f"s_lshl_b32 {s(sT0)}, {s(sRb)}, 8", f"s_or_b32 {s(sPk)}, {s(sPk)}, {s(sT0)}",
            f"s_lshl_b32 {s(sT0)}, {s(sCt)}, 16", f"s_or_b32 {s(sPk)}, {s(sPk)}, {s(sT0)}",
            sel(L.T_W2, (sT0, 1, 0)), f"s_sub_u32 {s(sRlo)}, {s(sRb)}, {s(sT0)}", f"s_max_i32 {s(sRlo)}, {s(sRlo)}, 0",
            f"s_add_u32 {s(sRhi)}, {s(sRb)}, {s(sT2)}", f"s_add_u32 {s(sRhi)}, {s(sRhi)}, {s(sT0)}", f"s_min_u32 {s(sRhi)}, {s(sRhi)}, 15",
            sel(L.T_W3, (sNmax, 8 // LN2_TILES - 1, 7)), sel(L.T_W4, (sNmax, 27, s(sNmax)), (sSh, 5, 4)),
            f"s_add_u32 {s(sT1)}, {s(sCt)}, {s(sT3)}", f"s_lshl_b32 {s(sT2)}, {s(sRb)}, 9",
            sel(L.T_WO, (sNmax, 0, s(sNmax)), (sRlo, s(sCt), s(sRlo)), (sRhi, s(sT1), s(sRhi))),
            sel(L.T_WO, (sRs, 2, 9), (sNW, 0, hex(OOB)), (sT2, s(sT2), 0)),
            f"v_lshrrev_b32 {v(vDa)}, {s(sSh)}, {v(vLane)}", f"v_lshlrev_b32 {v(vT1)}, {s(sSh)}, {v(vDa)}", f"v_sub_u32 {v(vT1)}, {v(vLane)}, {v(vT1)}",
            f"s_cmp_lt_u32 {s(sTy)}, {L.T_W2}\n s_cselect_b32 {s(sDb)}, {L.T_LN1 + 1}, {s(sTy)}",
            f"v_min_u32 {v(vT1)}, {s(sNmax)}, {v(vT1)}", f"s_lshl_b32 {s(sDb)}, {s(sDb)}, 13", sel(L.T_W1, (sT2, 4, s(sT2))),
            f"v_add_u32 {v(vDa)}, {s(sRlo)}, {v(vDa)}", f"s_add_u32 {s(sDb)}, {s(sDb)}, {s(sT2)}",
            f"s_add_u32 {s(sDb)}, {s(sDb)}, {hex(L.FLAGS + L.F_T - 8192)}", f"v_min_u32 {v(vDa)}, {s(sRhi)}, {v(vDa)}",
            f"s_lshl_b32 {s(sDq)}, {s(sRb)}, 10", f"s_add_u32 {s(sDq)}, {s(sDq)}, {hex(L.FLAGS + L.F_O)}",
            f"v_lshlrev_b32 {v(vDa)}, {s(sRs)}, {v(vDa)}", f"v_lshl_add_u32 {v(vDa)}, {v(vT1)}, 4, {v(vDa)}", f"v_or_b32 {v(vQa)}, {s(sNW)}, {v(vL16)}"]


def eval_ops():
    return [f"v_min3_u32 {v(vT0)}, {v(vPq)}, {v(vPq + 1)}, {v(vPq + 2)}", f"v_min_u32 {v(vT0)}, {v(vT0)}, {v(vPq + 3)}",
            f"v_or_b32 {v(vT0)}, {s(sNW)}, {v(vT0)}", f"v_min_u32 {v(vT0)}, {v(vT0)}, {v(vPl)}", f"v_cmp_eq_u32 vcc, 0, {v(vT0)}"]


def unpack_ops(x):
    return [f"s_and_b32 {s(sTy)}, {s(x)}, 15", f"s_bfe_u32 {s(sCf)}, {s(x)}, {hex(4 | (2 << 16))}",
            f"s_bfe_u32 {s(sRb)}, {s(x)}, {hex(8 | (8 << 16))}", f"s_lshr_b32 {s(sCt)}, {s(x)}, 16"]


def ticket(A):
    A(f"s_lshl_b32 {s(sT0)}, {s(sQ)}, 8")
    A(f"s_add_u32 {s(sT0)}, {s(sT0)}, {hex(L.FLAGS + L.F_QUE)}")
    A("s_mov_b64 exec, 1")
    A(f"v_mov_b32 {v(vTk)}, 1")
    A(f"buffer_atomic_add {v(vTk)}, off, {s(S_WS, 4)}, {s(sT0)} sc0 sc1")
    A("s_mov_b64 exec, -1")


def post(A, diag):
    A(f"s_bfm_b64 exec, {s(sFm)}, 0")
    A(f"buffer_store_dword {v(vONE)}, {v(vFa)}, {s(S_WS, 4)}, {s(sFb)} offen sc1")
    A("s_mov_b64 exec, -1")
    if diag:
        A("s_memtime s[86:87]")
        A("s_memrealtime s[90:91]")
        A("s_waitcnt lgkmcnt(0)")
        A(f"v_mov_b32 {v(vT1)}, 0")
        for i, x in enumerate((89, 76, 77, 90, 83, 82, 84, 86)):
            A(f"v_writelane_b32 {v(vT1)}, s{x}, {i}")
        A(f"v_lshlrev_b32 {v(vT0)}, 2, {v(vLane)}")
        A("s_mov_b64 exec, 0xff")
        A(f"buffer_store_dword {v(vT1)}, {v(vT0)}, {s(S_WS, 4)}, s88 offen")
        A("s_mov_b64 exec, -1")
        A("s_add_u32 s88, s88, 32")
        A("s_mov_b32 s76, s85")


def dsave(A):
    A("s_memtime s[82:83]")
    A("s_waitcnt lgkmcnt(0)")
    A("s_mov_b32 s89, s79\n s_mov_b32 s77, s78\n s_mov_b32 s83, s80")


def addr_cfg(A, c):
    g_, q_, rl, pu = 0, 1, 2, 3
    A(f"v_lshrrev_b32 {v(g_)}, 4, {v(vLane)}")
    A(f"v_bfe_u32 {v(q_)}, {v(vLane)}, 2, 2")
    A(f"v_lshl_add_u32 {v(4)}, {v(g_)}, 2, {v(q_)}")
    A(f"v_and_b32 {v(5)}, 7, {v(4)}")
    A(f"v_mul_u32_u24 {v(4)}, {c.pitch}, {v(4)}")
    A(f"v_and_b32 {v(6)}, 3, {v(vLane)}")
    A(f"v_lshl_add_u32 {v(4)}, {v(6)}, 3, {v(4)}")
    A(f"s_mul_i32 {s(sT0)}, {s(sWm)}, {c.WM}")
    A(f"v_xor_b32 {v(5)}, {s(sT0)}, {v(5)}")
    A(f"v_lshl_add_u32 {v(vWa)}, {v(5)}, 5, {v(4)}")
    for mt in range(1, c.WM):
        A(f"v_xor_b32 {v(vWa + mt)}, {mt * 32}, {v(vWa)}")
    A(f"s_mul_i32 {s(sT0)}, {s(sWn)}, {c.WN * c.nsub * 1024}")
    A(f"s_add_u32 {s(sT0)}, {s(sT0)}, {XR}")
    A(f"v_add_u32 {v(vXa)}, {s(sT0)}, {v(vL16)}")
    rpi = 1024 // c.pitch
    lpr = 64 // rpi
    A(f"v_lshrrev_b32 {v(rl)}, {int(math.log2(lpr))}, {v(vLane)}")
    A(f"v_and_b32 {v(pu)}, {lpr - 1}, {v(vLane)}")
    A(f"s_mul_i32 {s(sT0)}, {s(sWv)}, {4 * rpi}")
    A(f"v_add_u32 {v(vRow)}, {s(sT0)}, {v(rl)}")
    for d in range(4):
        if d:
            A(f"v_add_u32 {v(vRow + d)}, {d * rpi}, {v(vRow)}")
        A(f"v_and_b32 {v(6)}, 7, {v(vRow + d)}")
        A(f"v_lshlrev_b32 {v(6)}, 1, {v(6)}")
        A(f"v_xor_b32 {v(6)}, {v(6)}, {v(pu)}")
        A(f"v_lshlrev_b32 {v(vCon + d)}, 4, {v(6)}")
        if d:
            A(f"v_subrev_u32 {v(vCon + d)}, {d * 1024}, {v(vCon + d)}")
    A(f"s_mul_i32 {s(sMW)}, {s(sWv)}, {c.Wst // 4}")
    A(f"s_mul_i32 {s(sMX)}, {s(sWv)}, {c.Xst // 4}")
    A(f"s_add_u32 {s(sMX)}, {s(sMX)}, {XR}")


def addr_job(A, c):
    nrt = c.nX // c.nsub
    A(f"s_mul_i32 {s(sT0)}, {s(sWv)}, {nrt}")
    A(f"s_mul_i32 {s(sT0)}, {s(sT0)}, {s(sXP)}")
    for d in range(4):
        A(f"v_mad_u32_u24 {v(vWd + d)}, {v(vRow + d)}, {s(sLdw)}, {v(vCon + d)}")
    for j in range(nrt):
        A(f"v_add_u32 {v(vXd + j)}, {s(sT0)}, {v(vL16)}")
        if j + 1 < nrt:
            A(f"s_add_u32 {s(sT0)}, {s(sT0)}, {s(sXP)}")
            A(f"s_sub_u32 {s(sT0)}, {s(sT0)}, {c.nsub * 1024}")
    A(f"s_mul_i32 {s(sWinc)}, {s(sLdw)}, {c.BK}")
    A(f"s_mov_b32 {s(sWo)}, 0")


def main_loop(A, c, cf, vt, pfx, wp, P, gid, has_res, fin_id):
    nsub = c.nsub
    diag = P.get("diag")
    w0 = lambda x: f"s_mov_b64 exec, {s(sW0, 2)}\n {x}\n s_mov_b64 exec, -1"
    A("s_waitcnt vmcnt(0)")
    for st in range(4):
        for f in dma_ops(A, c, st, "x"):
            f()
        if st < 3 or nsub == 1:
            for f in dma_ops(A, c, st, "w"):
                f()
    A(f"s_cmp_lg_u32 {s(sEp)}, 0")
    A(f"s_cbranch_scc1 {wp}_epi")
    A.label(f"{pfx}_ent")
    if diag:
        A("s_memrealtime s[78:79]\n s_memtime s[80:81]\n s_waitcnt lgkmcnt(0)")
        A(f"s_mov_b32 s79, {s(sNx)}")
    zc = [f"v_mfma_f32_32x32x16_bf16 {r(c.accb + 16 * i, 16)}, {v(vZq, 4)}, {v(vZq, 4)}, 0" for i in range(c.WM * c.WN // 4)]
    A(zc.pop(0))
    A(f"s_waitcnt vmcnt({3 * c.nd - (c.nW if nsub == 2 else 0)})")
    A("s_barrier")
    sa = [f"s_sub_u32 {s(sN)}, {s(sNn)}, 1", f"s_sub_u32 {s(sEv)}, {s(sNn)}, 2", f"s_orn2_b32 {s(sEv)}, {s(sEv)}, {s(sW0)}", f"s_mov_b32 {s(sCur)}, -1"]
    for k, f in enumerate(read_ops(A, c, 0, 0, 0)):
        f()
        if k % 3 == 2 and zc:
            A(zc.pop(0))
    for x in zc + sa:
        A(x)
    A.nop(1)
    par = [0]

    def since(stop):
        n = nd = 0
        for ln_ in reversed(A.lines):
            if ln_.startswith("buffer_"):
                if stop(ln_, nd):
                    return n
                nd += ln_.endswith("lds")
                n += f"{v(vDa)}," not in ln_ and f"{v(vQa)}," not in ln_ and f"{s(S_X, 4)}" not in ln_

    def substep(reads, dmas, bar, ex=(), e0=1, e1=99):
        p = par[0]
        par[0] ^= 1
        ms = [(mt, nt) for nt in range(c.WN) for mt in range(c.WM)]
        nm = len(ms)
        A("s_waitcnt lgkmcnt(0)")
        pre = P.get("gpre", 1) if bar is not None else 0
        fill = {}
        rp = P.get("grp", 1)
        for k, f in enumerate(reads):
            fill.setdefault(min(nm, pre + k // rp), []).append(f)
        d0 = pre + P.get("gd0", 0)
        nd_ = len(dmas)
        for k, f in enumerate(dmas):
            fill.setdefault(min(nm, d0 + (k * (nm - d0)) // max(1, nd_)), []).append(f)
        e0 = e0 % nm
        for k, x in enumerate(ex):
            fill.setdefault(e0 + (k * (min(nm, e1) - e0)) // len(ex), []).append((lambda x=x: A(x)) if isinstance(x, str) else x)
        for i in range(nm + 1):
            if i == pre and bar is not None:
                if bar == "n":
                    bar = since(lambda l_, nd: l_.endswith("lds") and nd == 2 * c.nd)
                if bar >= 0:
                    A(f"s_waitcnt vmcnt({bar})")
                A("s_barrier")
            for f in fill.get(i, []):
                f()
            if i < nm:
                mt, nt = ms[i]
                wa, xb = v(c.fa(p, mt), 4), v(c.fb(p, nt), 4)
                d = r(c.acc(mt, nt), 4)
                A(f"v_mfma_f32_16x16x32_bf16 {d}, {xb}, {wa}, {d}" if vt else f"v_mfma_f32_16x16x32_bf16 {d}, {wa}, {xb}, {d}")

    def half(slot, d, ex=()):
        if nsub == 2:
            substep(read_ops(A, c, slot, 1, par[0] ^ 1), dma_ops(A, c, (slot - 1) & 3, "w") if d else [], None, ex)

    def rest(slot, d, bar, last=False, ex=(), e0=1, e1=99):
        substep([] if last else read_ops(A, c, (slot + 1) & 3, 0, par[0] ^ 1),
                dma_ops(A, c, slot, "x") + dma_ops(A, c, slot, "w") * (nsub == 1) if d else [], bar, ex, e0, e1)

    A.label(f"{pfx}_loop")
    for st in range(4):
        half(st, True)
        if st == 0:
            A.label(f"{pfx}_mid")
        rest(st, True, 2 * c.nd)
    A(f"s_sub_u32 {s(sN)}, {s(sN)}, 1")
    A(f"s_cmp_eq_u32 {s(sN)}, {s(sEv)}")
    A(f"s_cbranch_scc1 {pfx}_ev")
    A(f"s_cmp_lg_u32 {s(sN)}, 0")
    A(f"s_cbranch_scc1 {pfx}_loop")
    A(f"s_cmp_lg_u32 {s(sCur)}, -1")
    A(f"s_cbranch_scc1 {wp}_epn")
    ex = flag_ops() + decode_ops() + [w0(poll_ld())]
    h = len(ex) // 2 if nsub == 2 else 0
    half(0, True, ex[:h])
    rest(0, True, 2 * c.nd, False, ex[h:])
    ex = [f"s_mov_b32 {s(sOutE)}, {s(sOut)}", f"s_mov_b32 {s(sOPE)}, {s(sOP)}", f"s_mov_b32 {s(sResE)}, {s(sRes)}",
          f"s_mov_b32 {s(sEp)}, {s(sEpN)}", f"v_mov_b32 {v(vShE)}, {v(vSh)}", f"v_mov_b32 {v(vT2)}, {LDS_MISC}"]
    if has_res:
        B = Asm()
        res_loads(B, c, 0)
        ex += B.lines
    h = len(ex) * 2 // 3 if nsub == 2 else 0
    half(1, True, ex[:h])
    rest(1, True, "n", False, ex[h:])
    if has_res and fin_id:
        A(f"s_cmp_lg_u32 {s(sEp)}, {fin_id}")
        A(f"s_cbranch_scc1 {pfx}_nox")
        res_loads(A, c, 0, True)
        A.label(f"{pfx}_nox")
    half(2, True)
    rest(2, True, "n", False, [lambda: A(f"s_waitcnt vmcnt({since(lambda l_, nd: f'{v(vQa)},' in l_)})")] + eval_ops() + [
        "s_nop 1", f"s_cmp_eq_u64 vcc, 0\n s_cselect_b32 {s(sT0)}, {s(sPk)}, -4", f"s_bitcmp1_b32 {hex(GM)}, {s(sTy)}\n s_cselect_b32 {s(sT0)}, {s(sT0)}, -4",
        f"v_mov_b32 {v(vT1)}, {s(sT0)}", w0(f"ds_write_b32 {v(vT2)}, {v(vT1)}")], -11)
    half(3, True)
    ex = [f"v_readfirstlane_b32 {s(sNx)}, {v(vT1)}", "s_nop 1"] + unpack_ops(sNx)
    rest(3, True, "n", False, [f"ds_read_b32 {v(vT1)}, {v(vT2)}"] + ([""] * 12 + ["s_waitcnt lgkmcnt(8)"] + ex) * (nsub == 1))
    half(0, True, ex)
    if P.get("strm", 1):
        A(f"s_cmp_eq_u32 {s(sCf)}, {cf}")
        A(f"s_cselect_b32 {s(sCur)}, {gid}, -1")
        A(f"s_cbranch_scc1 {wp}_c{cf}_task")
    rest(0, False, 2 * c.nd)
    half(1, False)
    rest(1, False, c.nd)
    half(2, False)
    rest(2, False, 0)
    half(3, False)
    rest(3, False, -1, True)
    if diag:
        dsave(A)
    A(f"s_cmp_lg_u32 {s(sNx)}, -4")
    A(f"s_cbranch_scc1 {wp}_gemm")
    A(f"s_branch {wp}_slow")
    A.label(f"{pfx}_ev")
    A(f"s_mov_b32 {s(sEv)}, 1")
    A(f"s_cmp_eq_u32 {s(sEp)}, 0")
    A(f"s_cbranch_scc1 {pfx}_et")
    post(A, diag)
    A(f"s_mov_b32 {s(sEp)}, 0")
    A.label(f"{pfx}_et")
    A(f"s_cmp_lg_u32 {s(sN)}, 1")
    A(f"s_cbranch_scc1 {pfx}_loop")
    ticket(A)
    A(f"s_branch {pfx}_loop")


def warm(A, P, ty):
    tk = P.get("tk", 0)
    for m, rb0, n in {L.T_K: [(0, 1, 2), (2, P.get("tk3", 3), 3)], L.T_V: [(3, P.get("tk4", 4), 2)], L.T_W1: [(1, 0, 1)]}.get(ty, []):
        if not tk >> m & 1:
            continue
        srd(A, S_W, S_P2 + 2 * m, (2 if m < 2 else 7) << 20)
        A(f"s_sub_u32 {s(sT0)}, {s(sRb)}, {rb0}")
        A(f"s_lshl_b32 {s(sT0)}, {s(sT0)}, {4 if ty == L.T_W1 else 6}")
        A(f"s_lshl1_add_u32 {s(sT0)}, {s(sCt)}, {s(sT0)}")
        A(f"s_add_u32 {s(sT0)}, {s(sT0)}, {s(sWv)}")
        A(f"s_mul_i32 {s(sT0)}, {s(sT0)}, {n * 8192}")
        A(f"s_min_u32 {s(sT0)}, {s(sT0)}, {hex(OOB)}")
        A(f"v_lshlrev_b32 {v(vT0)}, 7, {v(vLane)}")
        for i in range(n):
            A(f"buffer_load_dword {v(155)}, {v(vT0)}, {s(S_W, 4)}, {s(sT0)} offen")
            if i + 1 < n:
                A(f"s_add_u32 {s(sT0)}, {s(sT0)}, 8192")


def worker(A, pfx, exit_lbl, P, queues, wo_lbl=None, att_lbl=None):
    NQ = len(queues)
    ER.out, ER.op, ER.res, ER.sh, ER.pre, ER.none = sOutE, sOPE, sResE, vShE, True, hex(OOB)
    worker_consts(A)
    A(f"v_mov_b32 {v(vSh)}, 0")
    for x in list(range(vZq, vZq + 12)) + [vTk, vFa] + list(range(vWa, vCon + 4)):
        A(f"v_mov_b32 {v(x)}, 0")
    A(f"s_cmp_eq_u32 {s(sWv)}, 0")
    A(f"s_cselect_b64 {s(sW0, 2)}, -1, 0")
    for x in (sOut, sOP, sRes, sFm, sOutE, sOPE, sResE, sFb, sDq, sDb):
        A(f"s_mov_b32 {s(x)}, 0")
    srd(A, S_W, S_PTR, 0)
    used, enc = {}, []
    small = (L.T_LN2, L.T_FILL, L.T_PREF)
    for q in queues:
        st, ph = 0, []
        for ty, cf, rb0, nrb, ct0, nct in q:
            lg = nrb.bit_length() - 1
            assert 1 << lg == nrb
            c = CFGS[cf]
            rs, cs = (0, 0) if ty in small else (c.TN // 256, c.TM // 256)
            ph.append(pack(st, ty, cf, rb0, ct0, lg, rs, cs))
            st += nrb * nct
            assert not (ty == L.T_WO and rs)
            if ty not in small:
                used.setdefault(cf, set()).add(ty)
        assert st < 1400 and len(ph) < 63
        enc.append(ph + [st | NONE << 11])
    diag = P.get("diag")
    if diag:
        A(f"s_lshl_b32 {s(sT0)}, {s(sX)}, 5")
        A(f"s_add_u32 {s(sT0)}, {s(sT0)}, {s(sT)}")
        A(f"s_lshl_b32 s88, {s(sT0)}, 12")
        A(f"s_add_u32 s88, s88, {hex(L.STAMP + (2 << 20))}")
        A("s_memrealtime s[76:77]\n s_waitcnt lgkmcnt(0)")
    A(f"s_cmp_lg_u32 {s(sWv)}, 0")
    A(f"s_cbranch_scc1 {pfx}_bar")
    A.label(f"{pfx}_selq")
    ticket(A)
    A(f"v_mov_b32 {v(vTb)}, {hex(0x7ff | NONE << 11)}")
    for q in range(NQ):
        if q + 1 < NQ:
            A(f"s_cmp_lg_u32 {s(sQ)}, {q}")
            A(f"s_cbranch_scc1 {pfx}_q{q + 1}")
        for p_, x in enumerate(enc[q]):
            A(f"s_mov_b32 {s(sT0)}, {hex(x)}")
            A(f"v_writelane_b32 {v(vTb)}, {s(sT0)}, {p_}")
        if q + 1 < NQ:
            A(f"s_branch {pfx}_qe")
            A.label(f"{pfx}_q{q + 1}")
    A.label(f"{pfx}_qe")
    A(f"v_and_b32 {v(vSt)}, 0x7ff, {v(vTb)}")
    A.label(f"{pfx}_dec")
    A("s_waitcnt vmcnt(0)")
    for x in decode_ops():
        A(x)
    A.label(f"{pfx}_chk")
    A(f"s_and_b32 {s(sTy)}, {s(sPk)}, 15")
    A(f"s_cmp_lg_u32 {s(sTy)}, {NONE}")
    A(f"s_cbranch_scc1 {pfx}_got")
    if NQ == 7:
        NQ = 6
        A(f"s_mov_b32 {s(sPk)}, -3")
        A(f"s_cmp_eq_u32 {s(sQ)}, 6")
        A(f"s_cbranch_scc1 {pfx}_pub")
    A(f"s_add_u32 {s(sQ)}, {s(sQ)}, 1")
    A(f"s_cmp_ge_u32 {s(sQ)}, {NQ}")
    A(f"s_cselect_b32 {s(sQ)}, 0, {s(sQ)}")
    A(f"s_add_u32 {s(sQn)}, {s(sQn)}, 1")
    A(f"s_mov_b32 {s(sPk)}, -1")
    if wo_lbl:
        A(f"s_lshl_b32 {s(sT0)}, 1, {s(sX)}")
        A(f"s_and_b32 {s(sT0)}, {s(sT0)}, {0x74 if att_lbl and P.get('g2s', 0) else 0x14}")
        A(f"s_cselect_b32 {s(sPk)}, -2, -1")
        A(f"s_cbranch_scc1 {pfx}_pub")
    A(f"s_cmp_lt_u32 {s(sQn)}, {NQ}")
    A(f"s_cbranch_scc1 {pfx}_selq")
    if att_lbl:
        A(f"s_lshl_b32 {s(sT0)}, {s(sX)}, 5")
        A(f"s_add_u32 {s(sT0)}, {s(sT0)}, {s(sT)}")
        A(f"s_sub_u32 {s(sT0)}, {s(sT0)}, 160")
        A(f"s_cmp_lt_u32 {s(sT0)}, {0 if P.get('a2') else 80}")
        A(f"s_cselect_b32 {s(sPk)}, -3, -1")
        A(f"s_cmp_lt_u32 {s(sT0)}, 64")
        A(f"s_cselect_b32 {s(sPk)}, -2, {s(sPk)}")
    A(f"s_branch {pfx}_pub")
    A.label(f"{pfx}_got")
    A(f"s_cmp_ge_u32 {s(sTy)}, {L.T_FILL}")
    A(f"s_cbranch_scc1 {pfx}_pub")
    A.label(f"{pfx}_poll")
    A(poll_ld())
    A("s_waitcnt vmcnt(0)")
    for x in eval_ops():
        A(x)
    A(f"s_cbranch_vccz {pfx}_pub")
    A("s_sleep 8")
    A(f"s_sub_u32 {s(sBud)}, {s(sBud)}, 1")
    A(f"s_cbranch_scc0 {pfx}_poll")
    A(f"s_mov_b32 {s(sPk)}, -1")
    A.label(f"{pfx}_pub")
    A(f"v_mov_b32 {v(vT0)}, {LDS_MISC}")
    A(f"v_mov_b32 {v(vT1)}, {s(sPk)}")
    A(f"ds_write_b32 {v(vT0)}, {v(vT1)}")
    A("s_waitcnt lgkmcnt(0)")
    A.label(f"{pfx}_bar")
    A("s_barrier")
    A(f"v_mov_b32 {v(vT0)}, {LDS_MISC}")
    A(f"ds_read_b32 {v(vT1)}, {v(vT0)}")
    A(f"s_mov_b32 {s(sEp)}, 0")
    A(f"s_mov_b32 {s(sCur)}, -1")
    A(f"s_mov_b32 {s(sGo)}, -2")
    A("s_waitcnt lgkmcnt(0)")
    A(f"v_readfirstlane_b32 {s(sNx)}, {v(vT1)}")
    A("s_nop 3")
    A(f"s_cmp_eq_u32 {s(sNx)}, -1")
    A(f"s_cbranch_scc1 {exit_lbl}")
    if wo_lbl:
        A(f"s_cmp_eq_u32 {s(sNx)}, -2")
        A(f"s_cbranch_scc1 {wo_lbl}")
    if att_lbl:
        A(f"s_cmp_eq_u32 {s(sNx)}, -3")
        A(f"s_cbranch_scc1 {att_lbl}")
    if diag:
        A("s_memrealtime s[78:79]\n s_memtime s[80:81]\n s_waitcnt lgkmcnt(0)")
        A(f"s_mov_b32 s79, {s(sNx)}")
    for x in unpack_ops(sNx):
        A(x)
    for ty, nm in ((L.T_LN2, "ln2"), (L.T_FILL, "fill"), (L.T_PREF, "pref")):
        A(f"s_cmp_eq_u32 {s(sTy)}, {ty}")
        A(f"s_cbranch_scc1 {pfx}_{nm}")
    A.label(f"{pfx}_gemm")
    cfl = sorted(used)
    for cf in cfl[1:]:
        A(f"s_cmp_eq_u32 {s(sCf)}, {cf}")
        A(f"s_cbranch_scc1 {pfx}_c{cf}_task")
    eps, gos = {}, []
    for cf in cfl:
        for ty in sorted(used[cf]):
            eps.setdefault((cf, TYPES[ty][8]), len(eps) + 1)
    for cf in cfl:
        c, px = CFGS[cf], f"{pfx}_c{cf}"
        types = sorted(used[cf])
        type_setup(A, c, px, types, exit_lbl, lambda ty: [A(f"s_mov_b32 {s(sEpN)}, {eps[cf, TYPES[ty][8]]}"), cf == 1 and warm(A, P, ty)])
        nt_ = [t for t in types if t != L.T_V]
        vts = [vt for vt in (0, 1) if (L.T_V in types if vt else nt_)]
        A.label(f"{px}_str")
        addr_job(A, c)
        A(f"s_mov_b32 {s(sN)}, 1")
        A(f"s_cmp_eq_u32 {s(sCur)}, {len(gos)}")
        A(f"s_cbranch_scc1 {px}_{'nv'[vts[0]]}_mid")
        A(f"s_branch {px}_{'nv'[vts[-1]]}_mid")
        for vt in vts:
            A.label(f"{px}_gov" if vt else f"{px}_go")
            A(f"s_mov_b32 {s(sGo)}, {len(gos)}")
            A(f"s_mov_b32 {s(sNn)}, {s(sN)}")
            A(f"s_cmp_lg_u32 {s(sCur)}, -1")
            A(f"s_cbranch_scc1 {px}_str")
            A("s_waitcnt lgkmcnt(0)")
            addr_cfg(A, c)
            addr_job(A, c)
            gos.append(f"{px}_{'nv'[vt]}")
            main_loop(A, c, cf, vt, gos[-1], pfx, P, len(gos) - 1, not vt and any(TYPES[t][9] is not None for t in nt_), eps.get((cf, "fin")))
    A.label(f"{pfx}_epn")
    if diag:
        dsave(A)
    A("s_waitcnt lgkmcnt(0)")
    A(f"s_branch {pfx}_epw")
    A.label(f"{pfx}_slow")
    A(f"s_mov_b32 {s(sGo)}, -1")
    A.label(f"{pfx}_epw")
    A.nop(6)
    A.label(f"{pfx}_epi")
    for k in list(eps.values())[1:]:
        A(f"s_cmp_eq_u32 {s(sEp)}, {k}")
        A(f"s_cbranch_scc1 {pfx}_e{k}")
    for (cf, kd), k in eps.items():
        A.label(f"{pfx}_e{k}")
        epilogue(A, CFGS[cf], kd)
        if k < len(eps):
            A(f"s_branch {pfx}_ee")
    A.label(f"{pfx}_ee")
    if diag:
        A("s_memtime s[84:85]\n s_memrealtime s[86:87]\n s_waitcnt lgkmcnt(0)\n s_mov_b32 s85, s86")
    for k, g in enumerate(gos):
        A(f"s_cmp_eq_u32 {s(sGo)}, {k}")
        A(f"s_cbranch_scc1 {g}_ent")
    A(f"s_branch {pfx}_drain")
    small_jobs(A, pfx, P)
    A.label(f"{pfx}_done")
    if diag:
        dsave(A)
        A("s_memtime s[84:85]\n s_memrealtime s[86:87]\n s_waitcnt lgkmcnt(0)\n s_mov_b32 s85, s86")
    for x in flag_ops():
        A(x)
    A.label(f"{pfx}_drain")
    A("s_waitcnt vmcnt(0)")
    A("s_barrier")
    A(f"s_cmp_lg_u32 {s(sWv)}, 0")
    A(f"s_cbranch_scc1 {pfx}_bar")
    post(A, diag)
    A(f"s_cmp_eq_u32 {s(sGo)}, -1")
    A(f"s_cbranch_scc1 {pfx}_chk")
    ticket(A)
    A(f"s_branch {pfx}_dec")
```

```python
from asmlib import *
import layout as L
from chain import S_WS, S_W, sX, sT, sWv, sBud, S_PTR, srd
from gemm import vLane, S_X, S_OUT
from att import rt_init, rt_stamp

ACC, RD, XG = 128, 144, 160
vL16, vL16b, vF, vFi, vFd, vXo, vRw, vRr, t0, t1 = range(170, 180)
sO, sXo, sG, sS, sLW, sB, sT0, sT1, sQt, sEnd = range(15, 25)
RED = 131072


def wo_stream(A, pfx, exit_lbl, P):
    srd(A, S_W, S_PTR + 6, 8 << 20)
    S0 = P.get("S0", 0)
    A(f"v_lshlrev_b32 {v(vL16)}, 4, {v(vLane)}")
    A(f"s_lshr_b32 {s(sQt)}, {s(sX)}, 2")
    g2 = P.get("g2", 0)
    gw = P.get("gw", g2)
    A(f"s_sub_u32 {s(sT0)}, {s(sX)}, 5")
    A(f"s_cselect_b32 {s(sQt)}, {s(sQt)}, {s(sT0)}")
    A(f"s_cselect_b32 {s(sS)}, {S0}, {gw + 1}")
    vD, vTr = 0, 1
    A(f"v_lshrrev_b32 {v(t0)}, 2, {v(vLane)}")
    A(f"v_and_b32 {v(t1)}, 3, {v(vLane)}")
    A(f"v_lshlrev_b32 {v(vD)}, 11, {v(t0)}")
    A(f"v_lshl_add_u32 {v(vD)}, {v(t1)}, 4, {v(vD)}")
    A(f"s_lshl_b32 {s(sLW)}, {s(sWv)}, 15")
    A(f"v_lshl_add_u32 {v(vTr)}, {v(t0)}, 6, {s(sLW)}")
    A(f"v_lshl_add_u32 {v(vTr)}, {v(t1)}, 3, {v(vTr)}")
    A(f"s_lshl_b32 {s(sB)}, {s(sWv)}, 21")
    A(f"s_lshl_b32 {s(sT0)}, {s(sT)}, 6")
    A(f"s_add_u32 {s(sB)}, {s(sB)}, {s(sT0)}")

    def issue(c):
        for p in range(8):
            A(f"s_add_u32 {s(sT0)}, {s(sB)}, {hex((128 * c + 16 * p) * 2048)}")
            A(f"s_add_u32 m0, {s(sLW)}, {(c & 3) * 8192 + p * 1024}")
            A("s_nop 0")
            A(f"buffer_load_dwordx4 {v(vD)}, {s(S_W, 4)}, {s(sT0)} offen lds")

    for c in range(4):
        issue(c)
    A(f"v_and_b32 {v(t0)}, 15, {v(vLane)}")
    A(f"v_lshrrev_b32 {v(t1)}, 4, {v(vLane)}")
    A(f"v_lshlrev_b32 {v(vXo)}, 11, {v(t0)}")
    A(f"v_lshl_add_u32 {v(vXo)}, {v(t1)}, 3, {v(vXo)}")
    A(f"s_lshl_b32 {s(sT0)}, {s(sWv)}, 11")
    A(f"s_add_u32 {s(sT0)}, {s(sT0)}, {RED}")
    A(f"v_add_u32 {v(vRw)}, {s(sT0)}, {v(vL16)}")
    A(f"s_lshl_b32 {s(sT0)}, {s(sWv)}, 10")
    A(f"s_add_u32 {s(sT0)}, {s(sT0)}, {RED}")
    A(f"v_add_u32 {v(vRr)}, {s(sT0)}, {v(vL16)}")
    A(f"s_lshr_b32 {s(sT0)}, {s(sT)}, 2")
    A(f"s_lshl_b32 {s(sT0)}, {s(sT0)}, {L.FC}")
    A(f"s_add_u32 {s(sT0)}, {s(sT0)}, {hex(L.FLAGS + L.F_T + L.T_W4 * 8192)}")
    A(f"s_lshl_b32 {s(sT1)}, {s(sS)}, {L.FS}")
    A(f"s_add_u32 {s(sT0)}, {s(sT1)}, {s(sT0)}")
    A(f"v_mov_b32 {v(vF)}, {s(sT0)}")
    A(f"v_mov_b32 {v(vFi)}, {1 << L.FS}")
    A(f"s_lshl_b32 {s(sT0)}, {s(sWv)}, 4")
    A(f"s_add_u32 {s(sT0)}, {s(sT0)}, {s(sQt)}")
    A(f"s_lshl_b32 {s(sT0)}, {s(sT0)}, 2")
    A(f"s_add_u32 {s(sT0)}, {s(sT0)}, {hex(L.FLAGS + L.F_O)}")
    A(f"s_lshl_b32 {s(sT1)}, {s(sS)}, 8")
    A(f"s_add_u32 {s(sT0)}, {s(sT0)}, {s(sT1)}")
    A("s_mov_b64 exec, 0xff")
    A(f"v_lshl_add_u32 {v(vF)}, {v(vLane)}, 3, {s(sT0)}")
    A(f"v_mov_b32 {v(vFi)}, 0x100")
    A("s_mov_b64 exec, -1")
    A(f"s_lshl_b32 {s(sO)}, {s(sWv)}, 15")
    A(f"s_lshl_b32 {s(sT0)}, {s(sQt)}, 17")
    A(f"s_add_u32 {s(sO)}, {s(sO)}, {s(sT0)}")
    A(f"s_add_u32 {s(sO)}, {s(sO)}, {hex(L.O)}")
    A(f"s_lshl_b32 {s(sT0)}, {s(sS)}, 18")
    A(f"s_add_u32 {s(sO)}, {s(sO)}, {s(sT0)}")
    A(f"s_lshl_b32 {s(sT0)}, {s(sQt)}, 15")
    A(f"s_lshl_b32 {s(sT1)}, {s(sS)}, 16")
    A(f"s_add_u32 {s(sT0)}, {s(sT0)}, {s(sT1)}")
    A(f"s_and_b32 {s(sT1)}, {s(sWv)}, 1")
    A(f"s_lshl_b32 {s(sXo)}, {s(sT)}, 1")
    A(f"s_add_u32 {s(sXo)}, {s(sXo)}, {s(sT1)}")
    A(f"s_lshl_b32 {s(sXo)}, {s(sXo)}, 5")
    A(f"s_add_u32 {s(sXo)}, {s(sXo)}, {s(sT0)}")
    A(f"s_lshl_b32 {s(sG)}, {s(sT)}, 7")
    A(f"s_add_u32 {s(sG)}, {s(sG)}, {s(sT1)}")
    A(f"s_lshl_b32 {s(sG)}, {s(sG)}, 3")
    A(f"s_add_u32 {s(sG)}, {s(sG)}, {s(sT0)}")
    A(f"s_add_u32 {s(sG)}, {s(sG)}, {hex(L.G)}")
    for c in range(8):
        A(f"s_waitcnt vmcnt({8 * min(3, 7 - c)})")
        for k4 in range(4):
            for mt in range(2):
                for i in range(2):
                    A(f"ds_read_b64_tr_b16 {a((mt * 32 + 4 * c + k4) * 4 + 2 * i, 2)}, {v(vTr)} offset:{(c & 3) * 8192 + (32 * k4 + 16 * i) * 64 + mt * 32}")
        A("s_waitcnt lgkmcnt(0)")
        if c + 4 < 8:
            issue(c + 4)
    if P.get("diag"):
        rt_init(A, 40)
        A(f"v_mov_b32 {v(t1)}, 0")
        rt_stamp(A, 40, t0, t1)
        A(f"s_lshl2_add_u32 s40, {s(sS)}, s40")
    if g2:
        A(f"s_cmp_lt_u32 {s(sX)}, 5")
        A(f"s_cbranch_scc1 {pfx}_top")
        A(f"v_mul_u32_u24 {v(t0)}, {P.get('g2w', 2)}, {v(vFi)}")
        A(f"v_sub_u32 {v(vL16b)}, {v(vF)}, {v(t0)}")
        A.label(f"{pfx}_gp")
        A(f"buffer_load_dword {v(vFd)}, {v(vL16b)}, {s(S_WS, 4)}, 0 offen sc1")
        A("s_waitcnt vmcnt(0)")
        A(f"v_cmp_eq_u32 vcc, 0, {v(vFd)}")
        A(f"s_cbranch_vccz {pfx}_top")
        A("s_sleep 32")
        A(f"s_sub_u32 {s(sBud)}, {s(sBud)}, 1")
        A(f"s_cbranch_scc0 {pfx}_gp")
        A(f"s_branch {exit_lbl}")
    A.label(f"{pfx}_top")
    A(f"buffer_load_dword {v(vFd)}, {v(vF)}, {s(S_WS, 4)}, 0 offen sc1")
    A("s_waitcnt vmcnt(0)")
    A(f"v_cmp_eq_u32 vcc, 0, {v(vFd)}")
    A(f"s_cbranch_vccz {pfx}_go")
    A(f"s_sleep {P.get('wsl', 1)}")
    A(f"s_sub_u32 {s(sBud)}, {s(sBud)}, 1")
    A(f"s_cbranch_scc0 {pfx}_top")
    A(f"s_branch {exit_lbl}")
    A.label(f"{pfx}_go")
    XR = 180

    def ldo(j):
        A(f"buffer_load_dwordx4 {v(4 * j, 4)}, {v(vL16)}, {s(S_WS, 4)}, {s(sO)} offen offset:{(j & 3) * 1024} sc1")
        if j & 3 == 3:
            A(f"s_add_u32 {s(sO)}, {s(sO)}, {4096 if j != 31 else 262144 - 32768 + 4096}")

    def ldf():
        A(f"v_add_u32 {v(vF)}, {v(vF)}, {v(vFi)}")
        A(f"buffer_load_dword {v(vFd)}, {v(vF)}, {s(S_WS, 4)}, 0 offen sc1")

    def ldx(so):
        A(f"buffer_load_dwordx2 {v(XR, 2)}, {v(vXo)}, {s(S_X, 4)}, {s(so)} offen")
        A(f"buffer_load_dwordx2 {v(XR + 2, 2)}, {v(vL16)}, {s(S_WS, 4)}, {s(sG)} offen sc1")
        A(f"s_add_u32 {s(sG)}, {s(sG)}, 65536")
    ldf()
    for j in range(32):
        ldo(j)
    ldx(sXo)
    A.label(f"{pfx}_body")
    A(f"s_add_u32 {s(sS)}, {s(sS)}, 1")
    A("s_waitcnt vmcnt(34)")
    A(f"v_cmp_eq_u32 vcc, 0, {v(vFd)}")
    A(f"s_cmp_gt_u32 {s(sS)}, {(gw if g2 else 63) if P.get('wst', 1) else 0}")
    A(f"s_cbranch_scc1 {pfx}_b0")
    A(f"s_cbranch_vccnz {pfx}_b0")
    for st in (1, 0):
        if st:
            ldf()
            A(f"s_add_u32 {s(sT0)}, {s(sXo)}, 65536")
        else:
            A.label(f"{pfx}_b0")
        for j in range(32):
            A(f"s_waitcnt vmcnt({33 - j + st * max(1, j)})")
            for mt in range(2):
                d = v(ACC + mt * 4, 4)
                A(f"v_mfma_f32_16x16x32_bf16 {d}, {a((mt * 32 + j) * 4, 4)}, {v(4 * j, 4)}, {d if j else 0}")
            if st and j:
                ldo(j - 1)
        A(f"s_waitcnt vmcnt({32 * st})")
        for i in range(4):
            A(f"v_lshlrev_b32 {v(XG + (4 + 2 * i) % 8)}, 16, {v(XR + i)}")
            A(f"v_and_b32 {v(XG + (5 + 2 * i) % 8)}, 0xffff0000, {v(XR + i)}")
        if st:
            ldo(31)
            ldx(sT0)
        A(f"s_cmp_ge_u32 {s(sWv)}, 2")
        A.nop(0 if st else 1)
        for tl in range(2):
            A(f"ds_write_b128 {v(vRw)}, {v(ACC + 4 * tl, 4)} offset:{tl * 1024}")
        A(f"v_xor_b32 {v(vRw)}, 0x4000, {v(vRw)}")
        A("s_waitcnt lgkmcnt(0)")
        A("s_barrier")
        A(f"s_cbranch_scc1 {pfx}_nx{st}")
        for w in range(4):
            A(f"ds_read_b128 {v(RD + 4 * w, 4)}, {v(vRr)} offset:{w * 2048}")
        A(f"v_xor_b32 {v(vRr)}, 0x4000, {v(vRr)}")
        A("s_waitcnt lgkmcnt(2)")
        A(f"v_pk_add_f32 {v(RD, 2)}, {v(RD, 2)}, {v(RD + 4, 2)}")
        A(f"v_pk_add_f32 {v(RD + 2, 2)}, {v(RD + 2, 2)}, {v(RD + 6, 2)}")
        A("s_waitcnt lgkmcnt(0)")
        A(f"v_pk_add_f32 {v(RD + 8, 2)}, {v(RD + 8, 2)}, {v(RD + 12, 2)}")
        A(f"v_pk_add_f32 {v(RD + 10, 2)}, {v(RD + 10, 2)}, {v(RD + 14, 2)}")
        A(f"v_pk_add_f32 {v(RD, 2)}, {v(RD, 2)}, {v(RD + 8, 2)}")
        A(f"v_pk_add_f32 {v(RD + 2, 2)}, {v(RD + 2, 2)}, {v(RD + 10, 2)}")
        A(f"v_pk_fma_f32 {v(RD, 2)}, {v(RD, 2)}, {v(XG, 2)}, {v(XG + 4, 2)}")
        A(f"v_pk_fma_f32 {v(RD + 2, 2)}, {v(RD + 2, 2)}, {v(XG + 2, 2)}, {v(XG + 6, 2)}")
        A(f"v_cvt_pk_bf16_f32 {v(RD + 4)}, {v(RD)}, {v(RD + 1)}")
        A(f"v_cvt_pk_bf16_f32 {v(RD + 5)}, {v(RD + 2)}, {v(RD + 3)}")
        A(f"buffer_store_dwordx2 {v(RD + 4, 2)}, {v(vXo)}, {s(S_OUT, 4)}, {s(sXo)} offen{L.OSC[1]}")
        if P.get("diag"):
            rt_stamp(A, 40, t0, t1)
        A.label(f"{pfx}_nx{st}")
        A(f"s_add_u32 {s(sXo)}, {s(sXo)}, 65536")
        if st:
            A(f"s_branch {pfx}_body")
    if g2:
        A(f"s_cmp_le_u32 {s(sS)}, {gw}")
        A(f"s_cbranch_scc1 {pfx}_top")
        A(f"v_add_u32 {v(vF)}, {v(vF)}, {v(vFi)}")
        A(f"s_add_u32 {s(sG)}, {s(sG)}, 65536")
        A(f"s_add_u32 {s(sXo)}, {s(sXo)}, 65536")
        A(f"s_add_u32 {s(sO)}, {s(sO)}, 262144")
        A(f"s_add_u32 {s(sS)}, {s(sS)}, 1")
        if P.get("diag"):
            A("s_add_u32 s40, s40, 4")
    A(f"s_cmp_lt_u32 {s(sS)}, 64")
    A(f"s_cbranch_scc1 {pfx}_top")
    A(f"s_branch {exit_lbl}")
```

```python
import math
from asmlib import *
import layout as L
from chain import S_WS, sX, sT, sWv, sBud, OOB
from gemm import f32, vLane
from att import rt_init, rt_stamp

QF, KF, VF, KMF, VMF = 0, 32, 64, 96, 112
SA, SB = 128, 140
BD, BM = 152, 156
PA, PB, DA, DB, ONES = 160, 168, 176, 180, 184
tA, tB, mA, mB, t0 = 188, 190, 192, 193, 194
vL16, vKMa, vVMa, vFl, vOne, vZ, vPg, vPd, vFd = 196, 197, 198, 199, 200, 202, 203, 204, 205
OA, OB = 0, 32
OP = 208
sQ, sK, sV, sKM, sVM, sO, sFQ, sFO, sS, sCc, sH, sE = range(15, 27)
sT0, sT1 = 31, 32


def attention(A, pfx, exit_lbl, P):
    diag = P.get("diag")

    def mf(d, a_, b_, c_):
        A(f"v_mfma_f32_16x16x32_bf16 {v(d, 4)}, {v(a_, 4)}, {v(b_, 4)}, {v(c_, 4) if c_ is not None else 0}")

    def m16(d, a_, b_):
        A(f"v_mfma_f32_16x16x16_bf16 {v(d, 4)}, {v(a_, 2)}, {v(b_, 2)}, {v(d, 4)}")

    def ld(dst, va, so, off):
        A(f"buffer_load_dwordx4 {v(dst, 4)}, {v(va)}, {s(S_WS, 4)}, {s(so)} offen offset:{off} sc1")

    def bud(lbl):
        A(f"s_sub_u32 {s(sBud)}, {s(sBud)}, 1")
        A(f"s_cbranch_scc0 {lbl}")
        A(f"s_branch {exit_lbl}")

    A(f"s_lshl_b32 {s(sH)}, {s(sT)}, 1")
    A(f"s_lshr_b32 {s(sT0)}, {s(sWv)}, 1")
    A(f"s_add_u32 {s(sH)}, {s(sH)}, {s(sT0)}")
    A(f"s_and_b32 {s(sS)}, {s(sWv)}, 1")
    A(f"v_lshlrev_b32 {v(vL16)}, 4, {v(vLane)}")
    A(f"v_and_b32 {v(tA)}, 15, {v(vLane)}")
    A(f"v_lshrrev_b32 {v(tB)}, 4, {v(vLane)}")
    A(f"v_and_b32 {v(vPg)}, 7, {v(vLane)}")
    A(f"v_lshl_add_u32 {v(t0)}, {v(tB)}, 3, {v(vPg)}")
    A(f"v_lshlrev_b32 {v(vKMa)}, 4, {v(t0)}")
    A(f"v_lshlrev_b32 {v(vPg)}, 8, {v(vPg)}")
    A(f"v_bfe_u32 {v(vVMa)}, {v(vL16)}, 1, 8")
    A(f"v_min_u32 {v(vFl)}, 2, {v(vLane)}")
    A(f"v_lshlrev_b32 {v(vFl)}, 13, {v(vFl)}")
    A(f"s_lshl_b32 {s(sT0)}, {s(sH)}, {L.FC}")
    A(f"s_sub_u32 {s(sT0)}, {L.T_FILL * 8192 + (4 << L.FS) - (4 << L.FC)}, {s(sT0)}")
    A("s_mov_b64 exec, 0xf0")
    A(f"v_lshl_add_u32 {v(vFl)}, {v(vLane)}, {L.FC}, {s(sT0)}")
    A("s_mov_b64 exec, -1")
    A(f"v_mov_b32 {v(vOne)}, 1")
    A(f"v_mov_b32 {v(vOne + 1)}, 1")
    A(f"v_mov_b32 {v(vZ)}, 0")
    A(f"v_lshlrev_b32 {v(t0)}, 2, {v(tB)}")
    A(f"v_sub_u32 {v(tA)}, {v(tA)}, {v(t0)}")
    A(f"v_mov_b32 {v(t0)}, 0xf149f2ca")
    for r_ in range(4):
        A(f"v_cmp_le_i32 vcc, {r_}, {v(tA)}")
        A("s_nop 1")
        A(f"v_cndmask_b32 {v(BD + r_)}, {v(t0)}, 0, vcc")
    A(f"v_cmp_le_u32 vcc, 2, {v(tB)}")
    A("s_nop 1")
    for r_ in range(4):
        A(f"v_cndmask_b32 {v(BM + r_)}, {v(t0)}, 0, vcc")
        A(f"v_mov_b32 {v(ONES + r_)}, 0x3f803f80")
    A(f"v_mov_b32 {v(PA + 2)}, 0")
    A(f"v_mov_b32 {v(PA + 3)}, 0")
    A(f"s_mov_b32 {s(sCc)}, {f32((128 ** -0.5) * math.log2(math.e))}")
    for sh, hs, regs in ((18, 12, ((sQ, L.Q), (sK, L.K), (sO, L.O))), (18, 13, ((sV, L.VT),)), (16, 11, ((sKM, L.KM), (sVM, L.VM))),
                         (L.FS, L.FC, ((sFQ, L.FLAGS + L.F_T),)), (8, 3, ((sFO, L.FLAGS + L.F_O),))):
        A(f"s_lshl_b32 {s(sT0)}, {s(sS)}, {sh}")
        A(f"s_lshl_b32 {s(sT1)}, {s(sH)}, {hs}")
        A(f"s_add_u32 {s(sT0)}, {s(sT0)}, {s(sT1)}")
        for x, b in regs:
            A(f"s_add_u32 {s(x)}, {s(sT0)}, {hex(b)}")
    if diag:
        rt_init(A, 40)
        A(f"s_lshl3_add_u32 s40, {s(sS)}, s40")

    def peek(so):
        A(f"v_mov_b32 {v(vPd)}, 0")
        A("s_mov_b64 exec, 0xff")
        A(f"buffer_atomic_add {v(vPd)}, {v(vPg)}, {s(S_WS, 4)}, {s(so)} offen sc0 sc1")
        A("s_mov_b64 exec, -1")

    def tok():
        for x, b in ((sK, KF), (sQ, QF)):
            for t in range(2):
                for kk in range(4):
                    ld(b + 16 * t + 4 * kk, vL16, x, kk * 1024)
                A(f"s_add_u32 {s(x)}, {s(x)}, {(1 << 19) - 131072 if t else 131072}")
        for et in range(8):
            ld(VF + 4 * et, vL16, sV, (et & 3) * 1024)
            if et & 3 == 3:
                A(f"s_add_u32 {s(sV)}, {s(sV)}, {(1 << 19) - 4096 if et == 7 else 4096}")

    def mem():
        for kk in range(4):
            ld(KMF + 4 * kk, vKMa, sKM, kk * 512)
        for k in range(8):
            A(f"buffer_load_dwordx2 {v(VMF + 2 * k, 2)}, {v(vVMa)}, {s(S_WS, 4)}, {s(sVM)} offen offset:{k * 256} sc1")

    def flag(n):
        A(f"s_waitcnt vmcnt({n})")
        A("s_mov_b64 exec, 1")
        A(f"buffer_store_dwordx2 {v(vOne, 2)}, {v(vZ)}, {s(S_WS, 4)}, {s(sFO)} offen sc1")
        A("s_mov_b64 exec, -1")
        A(f"s_add_u32 {s(sFO)}, {s(sFO)}, 512")
        if diag:
            rt_stamp(A, 40, t0, vZ)
            A("s_add_u32 s40, s40, 8")

    A.label(f"{pfx}_fp")
    A(f"buffer_load_dword {v(t0)}, {v(vFl)}, {s(S_WS, 4)}, {s(sFQ)} offen sc1")
    A("s_waitcnt vmcnt(0)")
    A(f"v_cmp_eq_u32 vcc, 0, {v(t0)}")
    A(f"s_cbranch_vccz {pfx}_fok")
    A("s_sleep 8")
    bud(f"{pfx}_fp")
    A.label(f"{pfx}_fok")
    tok()
    A(f"s_mov_b32 {s(sE)}, 0")
    A.label(f"{pfx}_top")
    A(f"s_add_u32 {s(sFQ)}, {s(sFQ)}, {2 << L.FS}")
    for kk in range(4):
        A(f"s_waitcnt vmcnt({15 - kk})")
        mf(SA, KF + 4 * kk, QF + 4 * kk, SA if kk else BD)
    for kk in range(4):
        A(f"s_waitcnt vmcnt({11 - kk})")
        mf(SB, KF + 4 * kk, QF + 16 + 4 * kk, SB if kk else None)
        mf(SB + 4, KF + 16 + 4 * kk, QF + 16 + 4 * kk, SB + 4 if kk else BD)
    A(f"v_max3_f32 {v(mA)}, {v(SA)}, {v(SA + 1)}, {v(SA + 2)}")
    A(f"v_max_f32 {v(mA)}, {v(mA)}, {v(SA + 3)}")
    A(f"s_cmp_lg_u32 {s(sE)}, 0")
    A.nop(3)
    A(f"v_max3_f32 {v(mB)}, {v(SB)}, {v(SB + 1)}, {v(SB + 2)}")
    A.nop(2)
    A(f"v_max3_f32 {v(mB)}, {v(mB)}, {v(SB + 3)}, {v(SB + 4)}")
    A(f"v_max3_f32 {v(mB)}, {v(mB)}, {v(SB + 5)}, {v(SB + 6)}")
    A(f"v_max_f32 {v(mB)}, {v(mB)}, {v(SB + 7)}")
    A(f"s_cbranch_scc1 {pfx}_me")
    A.label(f"{pfx}_pp")
    peek(sVM)
    A(f"s_sub_u32 {s(sBud)}, {s(sBud)}, 1")
    A(f"s_cbranch_scc1 {exit_lbl}")
    A("s_waitcnt vmcnt(0)")
    A(f"v_cmp_eq_u32 vcc, -1, {v(vPd)}")
    if P.get("a2s", 0):
        A(f"s_cbranch_vccz {pfx}_mp")
        A(f"s_cmp_ge_u32 {s(sS)}, {P.get('a2t', 60)}")
        A(f"s_cbranch_scc1 {pfx}_pp")
        A(f"s_sleep {P['a2s']}")
        A(f"s_branch {pfx}_pp")
    else:
        A(f"s_cbranch_vccnz {pfx}_pp")
    A.label(f"{pfx}_mp")
    mem()
    A.label(f"{pfx}_me")
    A(f"buffer_load_dword {v(vFd)}, {v(vFl)}, {s(S_WS, 4)}, {s(sFQ)} offen sc1")
    A(f"s_add_u32 {s(sT0)}, {s(sVM)}, 0x20000")
    A(f"s_cmp_ge_u32 {s(sS)}, {P.get('a2e', 54)}")
    A(f"s_cselect_b32 {s(sT0)}, {hex(OOB)}, {s(sT0)}")
    A(f"s_cselect_b32 {s(sE)}, 0, 1")
    peek(sT0)
    for kk in range(4):
        A(f"s_waitcnt vmcnt({13 - kk})")
        mf(SA + 4, KMF + 4 * kk, QF + 4 * kk, SA + 4 if kk else BM)
        mf(SB + 8, KMF + 4 * kk, QF + 16 + 4 * kk, SB + 8 if kk else BM)
        b = KMF + 4 * kk
        A(f"v_max3_u32 {v(t0)}, {v(t0 if kk else b)}, {v(b)}, {v(b + 1)}")
        A(f"v_max3_u32 {v(t0)}, {v(t0)}, {v(b + 2)}, {v(b + 3)}")
    for k in range(4):
        b = VMF + 4 * k
        A(f"s_waitcnt vmcnt({8 - 2 * k})")
        A(f"v_max3_u32 {v(t0)}, {v(t0)}, {v(b)}, {v(b + 1)}")
        A(f"v_max3_u32 {v(t0)}, {v(t0)}, {v(b + 2)}, {v(b + 3)}")
    A(f"v_cmp_eq_u32 vcc, -1, {v(t0)}")
    A(f"s_cbranch_vccz {pfx}_mok")
    A("s_waitcnt vmcnt(0)")
    bud(f"{pfx}_mp")
    A.label(f"{pfx}_mok")
    if diag:
        rt_stamp(A, 40, t0, vZ)
    TL = ((SB, 12, mB, tB, PB, DB, OB), (SA, 8, mA, tA, PA, DA, OA))
    for S, n, m, t, *_ in TL:
        for i in range(4):
            A(f"v_mul_f32 {v(S + n - 4 + i)}, {s(sCc)}, {v(S + n - 4 + i)}")
        A(f"v_max3_f32 {v(t)}, {v(m)}, {v(S + n - 4)}, {v(S + n - 3)}")
        A(f"v_max3_f32 {v(t)}, {v(t)}, {v(S + n - 2)}, {v(S + n - 1)}")
        A(f"v_mov_b32 {v(t + 1)}, {v(t)}")
    A(f"s_add_u32 {s(sKM)}, {s(sKM)}, 0x20000")
    A(f"s_add_u32 {s(sVM)}, {s(sVM)}, 0x20000")
    for op in ("v_permlane32_swap_b32", "v_permlane16_swap_b32"):
        for S, n, m, t, *_ in TL:
            A(f"{op} {v(t)}, {v(t + 1)}")
            A(f"v_max_f32 {v(t)}, {v(t)}, {v(t + 1)}")
            if "32" in op[:12]:
                A(f"v_mov_b32 {v(t + 1)}, {v(t)}")

    def prob(S, n, m, t, PT):
        o = [f"v_sub_f32 {v(S + i)}, {v(S + i)}, {v(t)}" for i in range(n)]
        for i in range(n + 2):
            if i < n:
                o.append(f"v_exp_f32 {v(S + i)}, {v(S + i)}")
            if i >= 3 and i % 2:
                k = (i - 3) // 2
                o.append(f"v_cvt_pk_bf16_f32 {v(PT + (k if 2 * k < n - 4 else k + 4 - (n - 4) // 2))}, {v(S + 2 * k)}, {v(S + 2 * k + 1)}")
            if i == n:
                o.append("s_nop 0")
        return o

    def pv(PT, D, O):
        o = [lambda: mf(D, ONES, PT, None), lambda: mf(O, VF, PT, None), lambda: m16(D, ONES, PT + 4)]
        o += [lambda et=et: mf(O + 4 * et, VF + 4 * et, PT, None) for et in range(1, 8)]
        return o + [lambda et=et: m16(O + 4 * et, VMF + 2 * et, PT + 4) for et in range(8)]

    def out(t, D, O, op, so):
        o = [f"v_rcp_f32 {v(t)}, {v(D)}", "s_nop 0", f"v_mov_b32 {v(t + 1)}, {v(t)}"]
        for ks in range(4):
            b = O + 8 * ks
            o += [f"v_pk_mul_f32 {v(b + 2 * i, 2)}, {v(b + 2 * i, 2)}, {v(t, 2)}" for i in range(4)]
            o += [f"v_cvt_pk_bf16_f32 {v(op + 4 * ks + i)}, {v(b + 2 * i)}, {v(b + 2 * i + 1)}" for i in range(4)]
            o.append(f"buffer_store_dwordx4 {v(op + 4 * ks, 4)}, {v(vL16)}, {s(S_WS, 4)}, {s(so)} offen offset:{ks * 1024} sc1")
        return o

    def mix(ms, vs):
        for i, f in enumerate(ms):
            f()
            for _ in range(3 if i < 10 else 1):
                if vs:
                    A(vs.pop(0))
        for x in vs:
            A(x)
    for x in prob(*TL[0][:5]):
        A(x)
    A(f"s_add_u32 {s(sT0)}, {s(sO)}, 131072")
    A.nop(1)
    mix(pv(PB, DB, OB), prob(*TL[1][:5]))
    mix(pv(PA, DA, OA), out(tB, DB, OB, OP, sT0))
    A(f"s_add_u32 {s(sS)}, {s(sS)}, 2")
    for x in out(tA, DA, OA, OP + 16, sO):
        A(x)
    A(f"s_add_u32 {s(sO)}, {s(sO)}, {1 << 19}")
    A(f"s_cmp_ge_u32 {s(sS)}, {P.get('a2f', 60)}")
    A(f"s_cbranch_scc1 {pfx}_slow")
    A("s_waitcnt vmcnt(8)")
    A(f"v_cmp_eq_u32 vcc, 0, {v(vFd)}")
    A(f"s_cbranch_vccnz {pfx}_slow")
    A(f"v_cmp_eq_u32 vcc, -1, {v(vPd)}")
    tok()
    A("s_cmp_eq_u64 vcc, 0")
    A(f"s_cselect_b32 {s(sE)}, {s(sE)}, 0")
    A(f"s_cmp_eq_u32 {s(sE)}, 0")
    A(f"s_cbranch_scc1 {pfx}_nm")
    mem()
    flag(36)
    A(f"s_branch {pfx}_top")
    A.label(f"{pfx}_nm")
    flag(24)
    A(f"s_branch {pfx}_top")
    A.label(f"{pfx}_slow")
    flag(0)
    A(f"s_cmp_lt_u32 {s(sS)}, 64")
    A(f"s_cbranch_scc1 {pfx}_fp")
    A(f"s_branch {exit_lbl}")
```

```python
from asmlib import *
import layout as L

S_WS = 4
S_W = 8
sX, sT, sWv, sH, sC = 12, 13, 14, 15, 16
sStep = 17
sAL, sAR, sZld, sZst, sOst, sOld0, sOld1, sMst, sVMst, sKT, sVT = range(18, 29)
sBud = 29
sCc, sNegC = 30, 31
sT0, sT1, sT2, sT3 = 32, 33, 34, 35
sM0a, sKM = 36, 37
sMK = 38
sPRG = 39
S_PTR = 40
S_CNT = 48
S_ST = 60
S_DBG = 60
sSTO = 58
sDM = 3
sD, sFw = 0, 1
vRW = 77

ACC = 0
AL, AR = 32, 48
VACC = 64
VT_, ONES = 96, 100
FW, FK = 104, 108
IDX = 112
vWO, vXrd, vXwr, vG16, vZst, vOst, vMst, vVMst, vPF, vPFi, vPFd, vBias, vZrd = range(113, 126)
t0, t1 = 126, 127
t2, t3 = 94, 95
WV = 128

X1 = 0
X2 = 16384
KT = 24576
WVB = 32768
OOB = 0x7F000000


def mpos(A, dst, tmp, P):
    A(f"s_lshl_b32 {s(dst)}, {s(sT)}, 9")
    if P.get("msw", 0):
        A(f"s_and_b32 {s(tmp)}, {s(sT)}, 8")
        A(f"s_lshl_b32 {s(tmp)}, {s(tmp)}, 7")
        A(f"s_xor_b32 {s(dst)}, {s(dst)}, {s(tmp)}")


def quart(A, dst, shift, rot):
    if rot:
        A(f"s_lshr_b32 {s(dst)}, {s(sT)}, {rot - 1}")
        A(f"s_add_u32 {s(dst)}, {s(dst)}, {s(sWv)}")
        A(f"s_and_b32 {s(dst)}, {s(dst)}, 3")
        A(f"s_lshl_b32 {s(dst)}, {s(dst)}, {shift}")
    else:
        A(f"s_lshl_b32 {s(dst)}, {s(sWv)}, {shift}")


def rotx(A, dst, mode, mask, shift, cu):
    if mode == 2:
        A(f"s_xor_b32 {s(dst)}, {s(sWv)}, {s(cu)}")
    else:
        A(f"s_mov_b32 {s(dst)}, {s(sWv) if mode == 1 else s(cu) if mode else 0}")
    A(f"s_and_b32 {s(dst)}, {s(dst)}, {mask}")
    A(f"s_lshl_b32 {s(dst)}, {s(dst)}, {shift}")


def srd(A, dst, ptr, nbytes):
    A(f"s_mov_b32 {s(dst)}, {s(ptr)}")
    A(f"s_and_b32 {s(dst + 1)}, {s(ptr + 1)}, 0xffff")
    A(f"s_mov_b32 {s(dst + 2)}, {hex(nbytes)}")
    A(f"s_mov_b32 {s(dst + 3)}, 0x20000")


def read_counts(A, lbl, exit_lbl):
    A(f"v_and_b32 {v(t0)}, 7, {v(t2)}")
    A(f"v_lshlrev_b32 {v(t0)}, 5, {v(t0)}")
    A.label(lbl)
    A(f"buffer_load_dword {v(t1)}, {v(t0)}, {s(S_DBG, 4)}, 0 offen sc1")
    A("s_waitcnt vmcnt(0)")
    for i in range(8):
        A(f"v_readlane_b32 {s(S_CNT + i)}, {v(t1)}, {i}")
    A("s_nop 3")
    A(f"s_add_u32 {s(sT1)}, {s(S_CNT)}, {s(S_CNT + 1)}")
    for i in range(2, 8):
        A(f"s_add_u32 {s(sT1)}, {s(sT1)}, {s(S_CNT + i)}")
    A(f"s_cmp_ge_u32 {s(sT1)}, 256")
    A(f"s_cbranch_scc1 {lbl}_ok")
    A(f"s_sub_u32 {s(sBud)}, {s(sBud)}, 1")
    A(f"s_cbranch_scc1 {exit_lbl}")
    A("s_sleep 4")
    A(f"s_branch {lbl}")
    A.label(f"{lbl}_ok")


def wait_a(A, lbl, exit_lbl, va, vd):
    A(f"v_mov_b32 {v(va)}, 0")
    A.label(lbl)
    A(f"buffer_load_dword {v(vd)}, {v(va)}, {s(S_DBG, 4)}, 0 offen offset:{L.D_A} sc1")
    A("s_waitcnt vmcnt(0)")
    A(f"v_cmp_gt_u32 vcc, 4, {v(vd)}")
    A(f"s_cbranch_vccz {lbl}_ok")
    A("s_sleep 4")
    A(f"s_sub_u32 {s(sBud)}, {s(sBud)}, 1")
    A(f"s_cbranch_scc0 {lbl}")
    A(f"s_branch {exit_lbl}")
    A.label(f"{lbl}_ok")


def wait_fill(A, lbl, exit_lbl, lane, va, vd):
    A(f"v_lshlrev_b32 {v(va)}, 2, {v(lane)}")
    A(f"s_mov_b32 {s(sT0)}, {hex(L.FLAGS + L.F_FILL)}")
    A.label(lbl)
    A(f"buffer_load_dword {v(vd)}, {v(va)}, {s(S_WS, 4)}, {s(sT0)} offen sc1")
    A("s_waitcnt vmcnt(0)")
    A(f"v_cmp_eq_u32 vcc, 0, {v(vd)}")
    A(f"s_cbranch_vccz {lbl}_ok")
    A("s_sleep 4")
    A(f"s_sub_u32 {s(sBud)}, {s(sBud)}, 1")
    A(f"s_cbranch_scc0 {lbl}")
    A(f"s_branch {exit_lbl}")
    A.label(f"{lbl}_ok")


def slot_assign(A, pfx, exit_lbl):
    A(f"s_cmp_lg_u32 {s(sWv)}, 0")
    A(f"s_cbranch_scc1 {pfx}_slot_wait")
    A(f"s_getreg_b32 {s(sX)}, hwreg(HW_REG_XCC_ID, 0, 4)")
    A(f"s_and_b32 {s(sX)}, {s(sX)}, 7")
    A(f"s_lshl_b32 {s(sT0)}, {s(sX)}, 5")
    A(f"v_mov_b32 {v(t0)}, 0")
    A(f"v_mov_b32 {v(t1)}, 1")
    A("s_mov_b64 exec, 1")
    A(f"buffer_atomic_add {v(t1)}, {v(t0)}, {s(S_DBG, 4)}, {s(sT0)} offen sc0 sc1")
    A("s_waitcnt vmcnt(0)")
    A("s_mov_b64 exec, -1")
    A(f"v_readfirstlane_b32 {s(sT)}, {v(t1)}")
    A("s_nop 3")
    A(f"s_cmp_lt_u32 {s(sT)}, 32")
    A(f"s_cbranch_scc1 {pfx}_slot_pub")
    read_counts(A, f"{pfx}_ovf_cnt", exit_lbl)
    A(f"v_mov_b32 {v(t0)}, 0")
    A(f"v_mov_b32 {v(t1)}, 1")
    A("s_mov_b64 exec, 1")
    A(f"buffer_atomic_add {v(t1)}, {v(t0)}, {s(S_DBG, 4)}, 0 offen offset:{L.D_OVF} sc0 sc1")
    A("s_waitcnt vmcnt(0)")
    A("s_mov_b64 exec, -1")
    A(f"v_readfirstlane_b32 {s(sT1)}, {v(t1)}")
    A("s_nop 3")
    for i in range(8):
        A(f"s_min_u32 {s(sT2)}, {s(S_CNT + i)}, 32")
        A(f"s_sub_u32 {s(sT3)}, 32, {s(sT2)}")
        A(f"s_mov_b32 {s(sX)}, {i}")
        A(f"s_add_u32 {s(sT)}, {s(sT2)}, {s(sT1)}")
        A(f"s_cmp_lt_u32 {s(sT1)}, {s(sT3)}")
        A(f"s_cbranch_scc1 {pfx}_slot_pub")
        A(f"s_sub_u32 {s(sT1)}, {s(sT1)}, {s(sT3)}")
    A(f"s_mov_b32 {s(sX)}, 8")
    A(f"s_mov_b32 {s(sT)}, 0")
    A.label(f"{pfx}_slot_pub")
    A(f"v_mov_b32 {v(t0)}, 0")
    A(f"v_mov_b32 {v(t1)}, {s(sX)}")
    A(f"v_mov_b32 {v(t3)}, {s(sT)}")
    A(f"ds_write_b32 {v(t0)}, {v(t1)}")
    A(f"ds_write_b32 {v(t0)}, {v(t3)} offset:4")
    A("s_waitcnt lgkmcnt(0)")
    A.label(f"{pfx}_slot_wait")
    A("s_barrier")
    A(f"v_mov_b32 {v(t0)}, 0")
    A(f"ds_read_b32 {v(t1)}, {v(t0)}")
    A(f"ds_read_b32 {v(t3)}, {v(t0)} offset:4")
    A("s_waitcnt lgkmcnt(0)")
    A(f"v_readfirstlane_b32 {s(sX)}, {v(t1)}")
    A(f"v_readfirstlane_b32 {s(sT)}, {v(t3)}")
    A("s_nop 3")
    A("s_barrier")


def chain_prologue(A, pfx, P, mid, last):
    lane = t2
    A(f"s_lshr_b32 {s(sH)}, {s(sT)}, 1")
    A(f"s_lshl_b32 {s(sT0)}, {s(sX)}, 4")
    A(f"s_add_u32 {s(sH)}, {s(sH)}, {s(sT0)}")
    A(f"s_and_b32 {s(sC)}, {s(sT)}, 1")
    vW1, vW2, vT1, vT1v, vT2, rowl, cc = 64, 65, 66, 67, 68, 69, 70
    sLW = sM0a
    A(f"s_lshl_b32 {s(sLW)}, {s(sWv)}, 15")
    A(f"s_add_u32 {s(sLW)}, {s(sLW)}, {WVB}")
    A(f"v_lshrrev_b32 {v(t0)}, 3, {v(lane)}")
    A(f"v_and_b32 {v(t1)}, 7, {v(lane)}")
    A(f"v_lshlrev_b32 {v(t0)}, 13, {v(t0)}")
    A(f"v_lshl_add_u32 {v(vW1)}, {v(t1)}, 4, {v(t0)}")
    A(f"v_lshrrev_b32 {v(t0)}, 2, {v(lane)}")
    A(f"v_and_b32 {v(cc)}, 3, {v(lane)}")
    A(f"v_lshlrev_b32 {v(t0)}, 11, {v(t0)}")
    A(f"v_lshl_add_u32 {v(vW2)}, {v(cc)}, 4, {v(t0)}")
    A(f"v_lshrrev_b32 {v(t0)}, 5, {v(lane)}")
    A(f"v_lshlrev_b32 {v(rowl)}, 4, {v(t0)}")
    A(f"v_bfe_u32 {v(t0)}, {v(lane)}, 4, 1")
    A(f"v_lshl_add_u32 {v(rowl)}, {v(t0)}, 2, {v(rowl)}")
    A(f"v_bfe_u32 {v(t0)}, {v(lane)}, 2, 1")
    A(f"v_add_u32 {v(rowl)}, {v(rowl)}, {v(t0)}")
    A(f"v_bfe_u32 {v(t0)}, {v(lane)}, 3, 1")
    A(f"v_lshl_add_u32 {v(rowl)}, {v(t0)}, 3, {v(rowl)}")
    A(f"v_lshl_add_u32 {v(t0)}, {v(rowl)}, 7, {s(sLW)}")
    A(f"v_lshl_add_u32 {v(vT1v)}, {v(cc)}, 3, {v(t0)}")
    A(f"v_lshl_add_u32 {v(t0)}, {v(rowl)}, 6, {s(sLW)}")
    v3 = P.get("v3", 0)
    A(f"v_lshl_add_u32 {v(vT2)}, {v(cc)}, {3 if v3 else 4}, {v(t0)}")
    A(f"v_lshlrev_b32 {v(vG16)}, 4, {v(lane)}")
    A(f"v_add_u32 {v(vWO)}, {s(sLW)}, {v(vG16)}")
    vTq, vTv = 32, 36
    f16 = v3 and P.get("f16", 0)
    if v3:
        A(f"v_lshlrev_b32 {v(t0)}, 7, {v(rowl)}")
        A(f"v_lshl_add_u32 {v(41)}, {v(cc)}, 3, {v(t0)}")
        A(f"v_lshl_add_u32 {v(41)}, {s(sWv)}, 5, {v(41)}")
        A(f"v_and_b32 {v(t1)}, 1, {v(cc)}")
        A(f"v_lshl_add_u32 {v(40)}, {v(t1)}, 3, {v(t0)}")
        A(f"v_lshrrev_b32 {v(t1)}, 1, {v(cc)}")
        A(f"v_lshl_add_u32 {v(40)}, {v(t1)}, 5, {v(40)}")
        A(f"s_lshr_b32 {s(sT0)}, {s(sWv)}, 1")
        A(f"s_and_b32 {s(sT1)}, {s(sWv)}, 1")
        A(f"v_lshl_add_u32 {v(40)}, {s(sT0)}, 6, {v(40)}")
        A(f"v_lshl_add_u32 {v(40)}, {s(sT1)}, 4, {v(40)}")
        for dq in range(4):
            A(f"s_xor_b32 {s(sT0)}, {s(sWv)}, {dq}")
            A(f"s_lshl_b32 {s(sT0)}, {s(sT0)}, 15")
            A(f"s_add_u32 {s(sT0)}, {s(sT0)}, {WVB}")
            A(f"v_add_u32 {v(vTq + dq)}, {s(sT0)}, {v(40)}")
            A(f"v_add_u32 {v(vTv + dq)}, {s(sT0)}, {v(41)}")
    sB1, sB2 = sT2, sT3
    quart(A, sB1, 21, P.get("rM", 0))
    A(f"s_lshl_b32 {s(sT0)}, {s(sH)}, 8")
    A(f"s_add_u32 {s(sB1)}, {s(sB1)}, {s(sT0)}")
    A(f"s_lshl_b32 {s(sT0)}, {s(sC)}, 7")
    A(f"s_add_u32 {s(sB1)}, {s(sB1)}, {s(sT0)}")
    A(f"s_lshl_b32 {s(sB2)}, {s(sX)}, 22")
    quart(A, sT0, 20, P.get("rO", 0))
    A(f"s_add_u32 {s(sB2)}, {s(sB2)}, {s(sT0)}")
    A(f"s_lshl_b32 {s(sT0)}, {s(sT)}, 6")
    A(f"s_add_u32 {s(sB2)}, {s(sB2)}, {s(sT0)}")
    if v3:
        rotx(A, sT0, P["xM"], 3, 19, sT)
        A(f"s_add_u32 {s(sB1)}, {s(sB1)}, {s(sT0)}")
        rotx(A, sT0, P["xO"], 7, 17, sT)
        A(f"s_add_u32 {s(sB2)}, {s(sB2)}, {s(sT0)}")

    mats = [["q", "k", "v", "o"], ["k", "v", "q", "o"], ["v", "k", "q", "o"]][P.get("mo", 0)]
    nt = {m: " nt" if (P.get("nt", 0) >> i) & 1 else "" for i, m in enumerate("qkvo")}
    ptr = {"q": S_PTR, "k": S_PTR + 2, "v": S_PTR + 4, "o": S_PTR + 6}

    c3 = P.get("c3", 1)
    vC3a, vC3b, vC3d, sO3 = 80, 81, 82, sMK + 1
    if c3 == 1:
        A(f"v_bfe_u32 {v(t0)}, {v(lane)}, 2, 1")
        A(f"v_lshl_add_u32 {v(t0)}, {s(sT)}, 1, {v(t0)}")
        A(f"v_lshlrev_b32 {v(t0)}, 13, {v(t0)}")
        A(f"v_lshl_add_u32 {v(vC3a)}, {v(cc)}, 10, {v(t0)}")
        A(f"v_and_b32 {v(t0)}, 7, {v(lane)}")
        A(f"v_lshl_add_u32 {v(t0)}, {s(sT)}, 3, {v(t0)}")
        A(f"v_lshlrev_b32 {v(vC3b)}, 10, {v(t0)}")
    elif c3:
        A(f"v_lshrrev_b32 {v(t0)}, 5, {v(lane)}")
        A(f"v_lshl_add_u32 {v(t0)}, {s(sT)}, 1, {v(t0)}")
        A(f"v_lshlrev_b32 {v(t0)}, 13, {v(t0)}")
        A(f"v_and_b32 {v(t1)}, 31, {v(lane)}")
        A(f"v_lshl_add_u32 {v(vC3a)}, {v(t1)}, 7, {v(t0)}")
        A(f"v_lshl_add_u32 {v(t0)}, {s(sT)}, 6, {v(lane)}")
        A(f"v_lshlrev_b32 {v(vC3b)}, 7, {v(t0)}")

    c3on = lambda m: c3 > 0 and P.get("c3m", 15) >> "kvqo".index(m) & 1

    def issue(m, j):
        if j == 0:
            srd(A, S_W, ptr[m], 8 * 1024 * 1024)
            if c3 == 1:
                A(f"s_sub_u32 {s(sO3)}, {3 * 128 + 127}, {s(ptr[m])}")
                A(f"s_and_b32 {s(sO3)}, {s(sO3)}, 0x380")
                if v3:
                    A(f"s_lshr_b32 {s(sT1)}, {s(sO3)}, {6 if m == 'o' else 7}")
                    if m == "o":
                        rotx(A, sT1, P["xO"], 6, 17, sT1)
                    else:
                        rotx(A, sT1, P["xM"], 3, 19, sT1)
                    A(f"s_add_u32 {s(sO3)}, {s(sO3)}, {s(sT1)}")
                A(f"s_andn2_b32 {s(sT0)}, {s(sB2 if m == 'o' else sB1)}, {hex(0xe0fff if m == 'o' else 0x180fff)}")
                A(f"s_add_u32 {s(sO3)}, {s(sO3)}, {s(sT0)}")
            elif c3:
                A(f"s_andn2_b32 {s(sO3)}, {s(sB2 if m == 'o' else sB1)}, 0xfff")
        if c3 and c3on(m):
            A(f"s_xor_b32 {s(sT0)}, {s(sO3)}, {hex(128 * j * 2048 if m == 'o' else 64 * j * 8192)}")
            if P.get("c3w", 0):
                A(f"buffer_load_dwordx2 {v(vC3d, 2)}, {v(vC3b if m == 'o' else vC3a)}, {s(S_W, 4)}, {s(sT0)} offen offset:60")
            else:
                A(f"buffer_load_dword {v(vC3d)}, {v(vC3b if m == 'o' else vC3a)}, {s(S_W, 4)}, {s(sT0)} offen")
        for p in range(8):
            if m == "o":
                A(f"s_xor_b32 {s(sT0)}, {s(sB2)}, {hex((128 * j + 16 * p) * 2048)}")
            else:
                A(f"s_xor_b32 {s(sT0)}, {s(sB1)}, {hex((64 * j + 8 * p) * 8192)}")
            A(f"s_add_u32 m0, {s(sLW)}, {j * 8192 + p * 1024}")
            A("s_nop 0")
            A(f"buffer_load_dwordx4 {v(vW2 if m == 'o' else vW1)}, {s(S_W, 4)}, {s(sT0)} offen{nt[m]} lds")

    def consume(m, j):
        if m == "o":
            for jj in range(2):
                for t in range(2):
                    for p in range(0, 8, 2):
                        off = j * 8192 + (64 * jj + 32 * (p >> 2) + 2 * ((p >> 1) & 1)) * 64 + (32 if v3 else 8) * t
                        A(f"ds_read_b64_tr_b16 {v((jj * 2 + t) * 8 + p, 2)}, {v(vT2)} offset:{off}")
        else:
            if v3:
                A("s_barrier")
            for t in range(4):
                for p in range(0, 8, 2):
                    off = j * 8192 + (32 * (p >> 2) + 2 * ((p >> 1) & 1)) * 128
                    ad = f"{v((vTv if m == 'v' else vTq) + t)} offset:{off}" if v3 else f"{v(vT1v)} offset:{off + 32 * t}"
                    if m == "v":
                        A(f"ds_read_b64_tr_b16 {v(WV + (j * 4 + t) * 8 + p, 2)}, {ad}")
                    else:
                        d = (0 if m == "q" else 128) + (t * 4 + j) * 8 + p
                        A(f"ds_read_b64_tr_b16 {v(t * 8 + p, 2) if f16 else a(d, 2)}, {ad}")
        A("s_waitcnt lgkmcnt(0)")
        if v3 and m != "o":
            A("s_barrier")
        if m == "o":
            for t in range(4):
                for hf in range(2):
                    A(f"ds_write_b128 {v(vWO)}, {v(t * 8 + 4 * hf, 4)} offset:{(j * 4 + t) * 2048 + hf * 1024}")
            A("s_waitcnt lgkmcnt(0)")

    def convert(m, j):
        if not f16 or m == "o":
            return
        for t in range(4):
            for p in range(8):
                x = WV + (j * 4 + t) * 8 + p if m == "v" else t * 8 + p
                u = 42 + 2 * (p & 1)
                A(f"v_lshlrev_b32 {v(u)}, 16, {v(x)}")
                A(f"v_and_b32 {v(u + 1)}, 0xffff0000, {v(x)}")
                A(f"v_cvt_pk_f16_f32 {v(x)}, {v(u)}, {v(u + 1)}")
            if m != "v":
                for p in range(8):
                    A(f"v_accvgpr_write_b32 {a((0 if m == 'q' else 128) + (t * 4 + j) * 8 + p)}, {v(t * 8 + p)}")

    seq = [(m, j) for m in mats for j in range(4)]
    A(f"v_min_u32 {v(73)}, 8, {v(lane)}")
    A(f"v_lshlrev_b32 {v(73)}, 5, {v(73)}")
    A(f"v_mov_b32 {v(t0)}, {L.D_A}")
    A(f"v_cmp_gt_u32 vcc, 8, {v(lane)}")
    A(f"v_lshlrev_b32 {v(74)}, 2, {v(lane)}")
    A(f"v_add_u32 {v(74)}, {hex(L.FLAGS + L.F_FILL)}, {v(74)}")
    A(f"v_cndmask_b32 {v(73)}, {v(t0)}, {v(73)}, vcc")
    A(f"v_and_b32 {v(75)}, 1, {v(lane)}")
    A(f"s_lshl_b32 {s(sT0)}, {s(sH)}, {L.FC}")
    A(f"s_add_u32 {s(sT0)}, {s(sT0)}, {hex(L.FLAGS + L.F_T + L.T_K * 8192)}")
    A(f"v_lshl_add_u32 {v(75)}, {v(75)}, 13, {s(sT0)}")
    ops = []
    D = 4
    ot = P.get("ot", 0)
    if ot:
        vOT, S_O = 71, 96
        srd(A, S_O, ptr["o"], 8 * 1024 * 1024)
        A(f"v_lshlrev_b32 {v(vOT)}, 12, {v(lane)}")
        A(f"v_lshl_add_u32 {v(vOT)}, {s(sC)}, 11, {v(vOT)}")

    def otouch(i):
        j = i + ot - 12
        if ot and 0 <= j < 4:
            A(f"s_andn2_b32 {s(sT0)}, {s(sB2)}, 0x7f")
            A(f"s_add_u32 {s(sT0)}, {s(sT0)}, {hex(128 * j * 2048)}")
            A(f"buffer_load_dwordx2 {v(86, 2)}, {v(vOT)}, {s(S_O, 4)}, {s(sT0)} offen offset:60")
            ops.append(-1)
    for i in range(D):
        issue(*seq[i])
        ops += [i] * (8 + c3on(seq[i][0]))
    e1, e2 = P.get("e1", 6), P.get("e2", 14)
    for i in range(16):
        A(f"s_waitcnt vmcnt({len(ops) - 1 - max(k for k, x in enumerate(ops) if x == i)})")
        if P.get("diag"):
            A(f"s_memrealtime s[{64 + 2 * i}:{65 + 2 * i}]")
        if i == e1 + 4:
            for k in range(8):
                A(f"v_readlane_b32 {s(S_CNT + k)}, {v(72)}, {k}")
            A(f"v_readlane_b32 {s(sMK)}, {v(72)}, 8")
            A("s_nop 3")
            A(f"s_add_u32 {s(sT1)}, {s(S_CNT)}, {s(S_CNT + 1)}")
            for k in range(2, 8):
                A(f"s_add_u32 {s(sT1)}, {s(sT1)}, {s(S_CNT + k)}")
            A(f"s_cmp_ge_u32 {s(sMK)}, 4")
            A(f"s_cselect_b32 {s(sT1)}, {s(sT1)}, 0")
            A(f"s_cmp_ge_u32 {s(sT1)}, 256")
            A(f"s_cselect_b32 {s(sMK)}, 0, 1")
        if i == e2:
            A(f"buffer_load_dword {v(76)}, {v(74)}, {s(S_WS, 4)}, 0 offen sc1")
            A(f"buffer_load_dword {v(79)}, {v(75)}, {s(S_WS, 4)}, 0 offen sc1")
            ops += [-1, -1]
        if i == 15:
            last()
        if D < 4 and i + D < 16:
            issue(*seq[i + D])
            ops += [i + D] * (8 + c3on(seq[i + D][0]))
        consume(*seq[i])
        if i == e1:
            A(f"buffer_load_dword {v(72)}, {v(73)}, {s(S_DBG, 4)}, 0 offen sc1")
            A(f"buffer_load_dwordx2 {v(84, 2)}, off, {s(S_DBG, 4)}, 0 offset:{L.D_NB} sc1")
            ops += [-1, -1]
        if D == 4 and i + 4 < 16:
            issue(*seq[i + 4])
            ops += [i + 4] * (8 + c3on(seq[i + 4][0]))
            otouch(i + 4)
        convert(*seq[i])
        if i == 11:
            mid()

    if P.get("diag"):
        A("s_memrealtime s[96:97]")


def chain_consts(A, P):
    lane = t2
    n_, g_ = 64, 65
    A(f"v_and_b32 {v(n_)}, 15, {v(lane)}")
    A(f"v_lshrrev_b32 {v(g_)}, 4, {v(lane)}")
    A(f"v_bfe_u32 {v(t0)}, {v(lane)}, 4, 1")
    A(f"v_lshlrev_b32 {v(t0)}, 2, {v(t0)}")
    A(f"v_sub_u32 {v(t0)}, {v(n_)}, {v(t0)}")
    A(f"v_mov_b32 {v(66)}, 0x3f80")
    A(f"v_mov_b32 {v(67)}, 0x3f800000")
    A(f"s_and_b32 {s(sT1)}, {s(sWv)}, 1")
    A(f"s_lshl_b32 {s(sT0)}, {s(sT1)}, 3")
    A(f"v_subrev_u32 {v(71)}, {s(sT0)}, {v(t0)}")
    v3 = P.get("v3", 0)
    ix = 69
    if v3:
        A(f"v_lshrrev_b32 {v(70)}, 3, {v(n_)}")
        A(f"v_and_b32 {v(ix)}, 5, {v(n_)}")
        A(f"v_lshl_add_u32 {v(ix)}, {v(70)}, 1, {v(ix)}")
        A(f"v_sub_u32 {v(t0)}, {v(t0)}, {v(n_)}")
        A(f"v_add_u32 {v(t0)}, {v(t0)}, {v(ix)}")
        A(f"v_and_b32 {v(70)}, 2, {v(n_)}")
        A(f"v_lshl_add_u32 {v(t0)}, {v(70)}, 4, {v(t0)}")
    for base, dd, src in ((FW, 32, t0), (FK, 0, t0)) if v3 else ((FW, 0, 71), (FK, 8, t0)):
        for rg in range(2):
            A(f"v_cmp_eq_u32 vcc, {dd + 2 * rg}, {v(src)}")
            A("s_nop 1")
            A(f"v_cndmask_b32 {v(t1)}, 0, {v(66)}, vcc")
            A(f"v_cmp_eq_u32 vcc, {dd + 2 * rg + 1}, {v(src)}")
            A("s_nop 1")
            A(f"v_cndmask_b32 {v(base + rg)}, {v(t1)}, {v(67)}, vcc")
            A(f"v_mov_b32 {v(base + rg + 2)}, {v(base + rg)}")
            if v3 and base == FK:
                A(f"v_mov_b32 {v(FW + rg + 2)}, {v(base + rg)}")
    A(f"v_mov_b32 {v(t1)}, 0x4444")
    A(f"v_mov_b32 {v(t3)}, 0xeeee")
    A(f"v_cmp_gt_u32 vcc, 8, {v(n_)}")
    A("s_nop 1")
    A(f"v_cndmask_b32 {v(IDX)}, {v(t3)}, {v(t1)}, vcc")
    A(f"v_lshrrev_b32 {v(t0)}, 1, {v(g_)}")
    A(f"v_lshlrev_b32 {v(t0)}, 7, {v(t0)}")
    A(f"v_lshl_add_u32 {v(t0)}, {v(n_)}, 4, {v(t0)}")
    A(f"v_and_b32 {v(t1)}, 1, {v(g_)}")
    A(f"v_lshl_add_u32 {v(t0)}, {v(t1)}, 3, {v(t0)}")
    A(f"v_mov_b32 {v(t3)}, {hex(OOB)}")
    A(f"v_cndmask_b32 {v(vOst)}, {v(t3)}, {v(t0)}, vcc")
    A(f"v_lshlrev_b32 {v(t0)}, 3, {v(n_)}")
    A(f"v_lshl_add_u32 {v(t0)}, {v(t1)}, 7, {v(t0)}")
    A(f"v_cmp_le_u32 vcc, 2, {v(g_)}")
    A("s_nop 1")
    A(f"v_cndmask_b32 {v(vVMst)}, {v(t3)}, {v(t0)}, vcc")
    A(f"v_mov_b32 {v(t0)}, 0xf149f2ca")
    A(f"v_cndmask_b32 {v(vBias)}, {v(t0)}, 0, vcc")
    A(f"v_lshrrev_b32 {v(t0)}, 3, {v(n_)}")
    A(f"v_cmp_eq_u32 vcc, {s(sT1)}, {v(t0)}")
    A(f"v_and_b32 {v(t0)}, 7, {v(n_)}")
    A(f"v_lshlrev_b32 {v(t0)}, 4, {v(t0)}")
    A(f"v_lshl_add_u32 {v(t0)}, {v(g_)}, 7, {v(t0)}")
    A(f"v_cndmask_b32 {v(vZst)}, {v(t3)}, {v(vG16)}, vcc")
    A(f"v_cndmask_b32 {v(vMst)}, {v(t3)}, {v(t0)}, vcc")
    A(f"s_lshl_b32 {s(sT0)}, {s(sWv)}, 11")
    A(f"v_add_u32 {v(vXrd)}, {s(sT0)}, {v(vG16)}")
    A(f"s_lshr_b32 {s(sT0)}, {s(sWv)}, 1")
    A(f"s_lshl_b32 {s(sT0)}, {s(sT0)}, 10")
    A(f"s_lshl_b32 {s(sT1)}, {s(sT1)}, 3")
    A(f"s_add_u32 {s(sT0)}, {s(sT0)}, {s(sT1)}")
    A(f"v_add_u32 {v(vXwr)}, {s(sT0)}, {v(vG16)}")
    A(f"v_lshrrev_b32 {v(t0)}, 3, {v(n_)}")
    A(f"v_lshl_add_u32 {v(vZrd)}, {v(t0)}, 11, {v(vG16)}")
    if v3:
        A(f"v_lshrrev_b32 {v(71)}, 1, {v(g_)}")
        A(f"v_cmp_ne_u32 vcc, 0, {v(70)}")
        A(f"v_lshlrev_b32 {v(t0)}, 4, {v(n_)}")
        A(f"v_lshl_add_u32 {v(t0)}, {v(t1)}, 8, {v(t0)}")
        A(f"v_lshl_add_u32 {v(vZst)}, {v(71)}, 3, {v(t0)}")
        A(f"v_lshrrev_b32 {v(vVMst)}, 1, {v(vZst)}")
        A(f"v_lshlrev_b32 {v(ix)}, 4, {v(ix)}")
        A(f"v_lshl_add_u32 {v(t0)}, {v(t1)}, 7, {v(ix)}")
        A(f"v_lshl_add_u32 {v(t0)}, {v(71)}, 3, {v(t0)}")
        A(f"v_cndmask_b32 {v(vMst)}, {v(t0)}, {v(t3)}, vcc")
        A(f"v_lshl_add_u32 {v(t0)}, {v(71)}, 7, {v(ix)}")
        A(f"v_lshl_add_u32 {v(t0)}, {v(t1)}, 3, {v(t0)}")
        A(f"v_cndmask_b32 {v(vZrd)}, {v(t0)}, {v(t3)}, vcc")
        A(f"v_cndmask_b32 {v(vOst)}, {v(t3)}, {v(t0)}, vcc")
    A(f"s_mov_b32 {s(sStep)}, 0")
    A(f"s_lshl_b32 {s(sT0)}, {s(sX)}, 14")
    quart(A, sT1, 12, P.get("rM", 0))
    A(f"s_add_u32 {s(sAL)}, {s(sT0)}, {s(sT1)}")
    if v3:
        rotx(A, sT1, P["xM"], 3, 10, sT)
        A(f"s_add_u32 {s(sAL)}, {s(sAL)}, {s(sT1)}")
    A(f"s_xor_b32 {s(sAR)}, {s(sAL)}, 0x4000")
    A(f"s_add_u32 {s(sAL)}, {s(sAL)}, {hex(L.STEP + L.S_MEML)}")
    A(f"s_add_u32 {s(sAR)}, {s(sAR)}, {hex(L.STEP + L.S_MEMR)}")
    if P.get("swp"):
        A(f"s_mov_b32 {s(sT0)}, {s(sAL)}")
        A(f"s_mov_b32 {s(sAL)}, {s(sAR)}")
        A(f"s_mov_b32 {s(sAR)}, {s(sT0)}")
    A(f"s_lshl_b32 {s(sZld)}, {s(sH)}, 12")
    A(f"s_add_u32 {s(sZld)}, {s(sZld)}, {hex(L.STEP + L.S_Z)}")
    A(f"s_lshl_b32 {s(sT0)}, {s(sC)}, 11")
    if v3:
        A(f"s_lshl_b32 {s(sT1)}, {s(sWv)}, 9")
    else:
        A(f"s_lshr_b32 {s(sT1)}, {s(sWv)}, 1")
        A(f"s_lshl_b32 {s(sT1)}, {s(sT1)}, 10")
    A(f"s_add_u32 {s(sT0)}, {s(sT0)}, {s(sT1)}")
    A(f"s_add_u32 {s(sZst)}, {s(sZld)}, {s(sT0)}")
    if P.get("pa"):
        A(f"s_lshl_b32 {s(sT0)}, {s(sC)}, 11")
        A(f"s_xor_b32 {s(sT0)}, {s(sT0)}, 2048")
        A(f"s_add_u32 {s(sZld)}, {s(sZld)}, {s(sT0)}")
    A(f"s_lshl_b32 {s(sT0)}, {s(sX)}, 15")
    A(f"s_add_u32 {s(sT0)}, {s(sT0)}, {hex(L.STEP + L.S_OB)}")
    A(f"s_lshl_b32 {s(sT1)}, {s(sT)}, 10")
    A(f"s_add_u32 {s(sOst)}, {s(sT0)}, {s(sT1)}")
    A(f"s_lshl_b32 {s(sT1)}, {s(sWv)}, 8")
    A(f"s_add_u32 {s(sOst)}, {s(sOst)}, {s(sT1)}")
    quart(A, sT1, 13, P.get("rO", 0))
    A(f"s_add_u32 {s(sOld0)}, {s(sT0)}, {s(sT1)}")
    A(f"s_add_u32 {s(sOld1)}, {s(sOld0)}, 4096")
    if v3:
        rotx(A, sT1, P["xO"], 7, 10, sT)
        A(f"s_add_u32 {s(sOld0)}, {s(sOld0)}, {s(sT1)}")
    A(f"s_lshl_b32 {s(sT0)}, {s(sX)}, 14")
    mpos(A, sT1, sT2, P)
    A(f"s_add_u32 {s(sT0)}, {s(sT0)}, {s(sT1)}")
    if v3:
        A(f"s_bitcmp1_b32 {s(sWv)}, 0")
        A(f"s_cselect_b32 {s(sT1)}, 256, 0")
    else:
        A(f"s_cmp_eq_u32 {s(sWv)}, 0")
        A(f"s_cselect_b32 {s(sT1)}, {hex(L.S_MEMR - L.S_MEML)}, 0")
    A(f"s_add_u32 {s(sT0)}, {s(sT0)}, {s(sT1)}")
    A(f"s_add_u32 {s(sMst)}, {s(sT0)}, {hex(L.STEP + (0 if P.get('pa') else L.STEP_STRIDE) + L.S_MEML)}")
    if not v3:
        A(f"s_cmp_lt_u32 {s(sWv)}, 2")
        A(f"s_cselect_b32 {s(sMst)}, {s(sMst)}, {hex(OOB)}")
    A(f"s_lshl_b32 {s(sT0)}, {s(sC)}, 6")
    A(f"s_lshl_b32 {s(sT1)}, {s(sWv)}, 4")
    A(f"s_add_u32 {s(sT0)}, {s(sT0)}, {s(sT1)}")
    A(f"s_lshl_b32 {s(sT1)}, {s(sH)}, 7")
    A(f"s_add_u32 {s(sT0)}, {s(sT0)}, {s(sT1)}")
    A(f"s_lshl_b32 {s(sVMst)}, {s(sT0)}, 4")
    A(f"s_add_u32 {s(sVMst)}, {s(sVMst)}, {hex(L.VM)}")
    A(f"s_lshl_b32 {s(sKM)}, {s(sH)}, 2")
    A(f"s_lshl_b32 {s(sT1)}, {s(sC)}, 1")
    A(f"s_add_u32 {s(sKM)}, {s(sKM)}, {s(sT1)}")
    A(f"s_lshr_b32 {s(sT1)}, {s(sWv)}, 1")
    A(f"s_add_u32 {s(sKM)}, {s(sKM)}, {s(sT1)}")
    A(f"s_lshl_b32 {s(sKM)}, {s(sKM)}, 9")
    A(f"s_add_u32 {s(sKM)}, {s(sKM)}, {hex(L.KM)}")
    A(f"s_bitcmp1_b32 {s(sWv)}, 0")
    if v3:
        A(f"s_cselect_b32 {s(sT1)}, 256, 0")
        A(f"s_add_u32 {s(sKM)}, {s(sKM)}, {s(sT1)}")
    else:
        A(f"s_cselect_b32 {s(sKM)}, {s(sKM)}, {hex(OOB)}")
    A(f"s_lshl_b32 {s(sVT)}, {s(sT0)}, 6")
    A(f"s_add_u32 {s(sVT)}, {s(sVT)}, {hex(L.VT)}")
    A(f"s_lshl_b32 {s(sKT)}, {s(sH)}, 12")
    A(f"s_lshl_b32 {s(sM0a)}, {s(sWv)}, 11")
    A(f"s_and_b32 {s(sT1)}, {s(sM0a)}, 2048")
    if P.get("pa"):
        A(f"s_lshl_b32 {s(sT0)}, {s(sC)}, 11")
        A(f"s_xor_b32 {s(sT1)}, {s(sT1)}, {s(sT0)}")
    A(f"s_add_u32 {s(sKT)}, {s(sKT)}, {s(sT1)}")
    A(f"s_lshr_b32 {s(sT1)}, {s(sWv)}, 1")
    A(f"s_lshl_b32 {s(sT1)}, {s(sT1)}, 17")
    A(f"s_add_u32 {s(sKT)}, {s(sKT)}, {s(sT1)}")
    A(f"s_add_u32 {s(sKT)}, {s(sKT)}, {hex(L.K)}")
    A(f"s_add_u32 {s(sM0a)}, {s(sM0a)}, {KT}")
    import math
    import struct
    cval = (128 ** -0.5) * math.log2(math.e)
    cb = struct.unpack("<I", struct.pack("<f", cval))[0]
    A(f"s_mov_b32 {s(sCc)}, {hex(cb)}")
    A(f"s_mov_b32 {s(sNegC)}, {hex(cb | 0x80000000)}")
    for i in range(4):
        A(f"v_mov_b32 {v(ONES + i)}, 0x3f803f80")
    A(f"v_mov_b32 {v(vPF)}, {hex(OOB)}")
    A(f"v_mov_b32 {v(vPFi)}, 0")
    A(f"v_and_b32 {v(t1)}, 1, {v(lane)}")
    A(f"v_mov_b32 {v(vRW)}, {hex(OOB)}")
    p64 = P.get("p64", 0)
    if p64 & 1:
        A("s_mov_b64 exec, 0xffff")
        A(f"s_lshl_b32 {s(sT0)}, {s(sC)}, 10")
        A(f"s_add_u32 {s(sT0)}, {s(sT0)}, {s(sKT)}")
    elif P.get("kdd", 1):
        A(f"s_lshl_b32 {s(sT0)}, {s(sC)}, 3")
        A(f"s_lshl_b64 exec, 0xff, {s(sT0)}")
    else:
        A("s_mov_b64 exec, 0xffff")
    A(f"s_add_u32 {s(sT0)}, {s(sT0 if p64 & 1 else sKT)}, {hex(32 * 8192)}")
    A(f"v_lshl_add_u32 {v(vPF)}, {v(n_)}, {7 - (p64 & 1)}, {s(sT0)}")
    A(f"v_mov_b32 {v(vPFi)}, {hex(32 * 8192)}")
    A("s_mov_b32 exec_lo, " + ("0xffff0000" if p64 & 2 else "0xff0000"))
    A(f"s_add_u32 {s(sT0)}, {s(sVT)}, {hex(32 * 8192)}")
    A(f"v_lshl_add_u32 {v(vPF)}, {v(n_)}, {7 - (p64 >> 1)}, {s(sT0)}")
    A(f"v_mov_b32 {v(vPFi)}, {hex(32 * 8192)}")
    A("s_mov_b32 exec_lo, 0x000f000f")
    A("s_mov_b32 exec_hi, 0x000f000f")
    A(f"s_and_b32 {s(sT1)}, {s(sWv)}, 1")
    A(f"s_lshl_b32 {s(sT1)}, {s(sT1)}, 7")
    A(f"s_add_u32 {s(sT0)}, {s(sZst)}, {s(sT1)}")
    A(f"v_lshl_add_u32 {v(vRW)}, {v(n_)}, 7, {s(sZst)}" if v3 else f"v_lshl_add_u32 {v(vRW)}, {v(n_)}, 8, {s(sT0)}")
    A("s_mov_b32 exec_lo, 0x00300030")
    A("s_mov_b32 exec_hi, 0x00300030")
    A(f"v_lshl_add_u32 {v(vRW)}, {v(t1)}, 7, {s(sOst)}")
    A("s_mov_b32 exec_lo, 0x00400040")
    A("s_mov_b32 exec_hi, 0x00400040")
    A(f"s_lshl_b32 {s(sT0)}, {s(sX)}, 14")
    mpos(A, sT1, sT2, P)
    A(f"s_add_u32 {s(sT1)}, {s(sT0)}, {s(sT1)}")
    A(f"s_add_u32 {s(sT1)}, {s(sT1)}, {hex(L.STEP + L.S_MEML)}")
    A(f"s_andn2_b32 {s(sDM)}, {s(sT1)}, 0x3ff")
    A(f"s_andn2_b32 {s(sT2)}, {s(sOst)}, 0x3ff")
    A(f"s_cmp_eq_u32 {s(sWv)}, 1")
    A(f"s_cselect_b32 {s(sDM)}, {s(sT2)}, {s(sDM)}")
    A(f"s_bitcmp0_b32 {s(sWv)}, 0")
    A(f"s_cselect_b32 {s(sDM)}, {s(sZst)}, {s(sDM)}")
    A(f"s_add_u32 {s(sDM)}, {s(sDM)}, {hex(2 * L.STEP_STRIDE)}")
    A(f"s_lshl_b32 {s(sT2)}, {s(sWv)}, 7")
    A(f"s_add_u32 {s(sT1)}, {s(sT1)}, {s(sT2)}")
    A(f"v_mov_b32 {v(vRW)}, {s(sT1)}")
    A("s_mov_b32 exec_lo, 0x00800080")
    A("s_mov_b32 exec_hi, 0x00800080")
    A(f"s_add_u32 {s(sT0)}, {s(sT0)}, {s(sT2)}")
    A(f"s_add_u32 {s(sT0)}, {s(sT0)}, {hex(L.STEP + L.S_MEMR)}")
    A(f"v_mov_b32 {v(vRW)}, {s(sT0)}")
    A("s_mov_b64 exec, -1")
    A(f"v_lshl_add_u32 {v(vRW)}, {v(g_)}, 18, {v(vRW)}")
    A("s_mov_b32 exec_lo, 0")
    A("s_mov_b32 exec_hi, 0x300")
    A(f"s_lshl_b32 {s(sT0)}, {s(sH)}, {L.FC}")
    A(f"s_add_u32 {s(sT0)}, {s(sT0)}, {hex(L.FLAGS + L.F_T + L.T_K * 8192)}")
    A(f"v_lshl_add_u32 {v(vPF)}, {v(t1)}, 13, {s(sT0)}")
    A("s_mov_b32 exec_hi, 0x3c00")
    A(f"s_mov_b32 {s(sT0)}, {hex(L.FLAGS + L.F_T + L.T_FILL * 8192 + (3 << L.FS) - (10 << L.FC))}")
    A(f"v_lshl_add_u32 {v(vPF)}, {v(n_)}, {L.FC}, {s(sT0)}")
    A("s_mov_b32 exec_hi, 0x3f00")
    A(f"v_mov_b32 {v(vPFi)}, {1 << L.FS}")
    A("s_mov_b64 exec, -1")


def kv_wait(A, lbl, exit_lbl, back):
    A("s_mov_b32 exec_lo, 0")
    A(f"s_mov_b32 exec_hi, {hex(0x3f00 if back else 0x300)}")
    A(f"v_subrev_u32 {v(t1)}, {back // 4 << L.FS}, {v(vPF)}")
    A.label(lbl)
    A(f"buffer_load_dword {v(t0)}, {v(t1)}, {s(S_WS, 4)}, 0 offen sc1")
    A("s_waitcnt vmcnt(0)")
    A(f"v_cmp_eq_u32 vcc, 0, {v(t0)}")
    A(f"s_cbranch_vccz {lbl}_ok")
    A("s_sleep 2")
    A(f"s_sub_u32 {s(sBud)}, {s(sBud)}, 1")
    A(f"s_cbranch_scc0 {lbl}")
    A(f"s_branch {exit_lbl}")
    A.label(f"{lbl}_ok")


def kt_issue(A, vt=True):
    A(f"s_mov_b32 m0, {s(sM0a)}")
    A(f"buffer_load_dwordx4 {v(VT_, 4)}, {v(vG16)}, {s(S_WS, 4)}, {s(sVT)} offen sc1")
    A(f"buffer_load_dwordx4 {v(vG16)}, {s(S_WS, 4)}, {s(sKT)} offen sc1 lds")
    A(f"buffer_load_dwordx4 {v(vG16)}, {s(S_WS, 4)}, {s(sKT)} offen offset:1024 sc1 lds")
    A(f"s_add_u32 {s(sKT)}, {s(sKT)}, {hex(32 * 8192)}")
    if vt:
        A(f"s_add_u32 {s(sVT)}, {s(sVT)}, {hex(32 * 8192)}")


STAMP_NAMES = []


def chain_loop(A, pfx, fast, exit_lbl, P):
    diag = P.get("diag", False)
    loc = "" if fast else " sc1"
    tails = []
    names = []
    FC = {"al": S_CNT, "ar": S_CNT + 1, "z": S_CNT + 2, "o": S_CNT + 3}

    def stamp(name):
        if diag and len(names) < 18 and name not in ("al3", "o3", "al1", "al2", "ar1", "ar2", "z1", "z2", "o1", "o2", "o4", "o5", "o6"):
            A(f"s_memtime {s(S_ST + 2 * len(names), 2)}")
            names.append(name)

    vmn = [0]
    vidx = {}

    def ld(dst, so, j, track=True):
        A(f"buffer_load_dwordx4 {v(dst, 4)}, {v(vG16)}, {s(S_WS, 4)}, {s(so)} offen offset:{j * 1024} sc1")
        if track:
            vidx[dst] = vmn[0]
            vmn[0] += 1

    def chk_parts(name, j, n, base, reissue):
        lbl = f"{pfx}_{name}{j}"
        b = base + 4 * j

        def p0():
            A(f"s_waitcnt vmcnt({vmn[0] - 1 - vidx[b]})")
            A(f"v_max3_u32 {v(t0)}, {v(b)}, {v(b + 1)}, {v(b + 2)}")

        def p1():
            A(f"v_max_u32 {v(t0)}, {v(t0)}, {v(b + 3)}")
            A(f"v_cmp_eq_u32 vcc, -1, {v(t0)}")

        def p2():
            A(f"s_cbranch_vccnz {lbl}_f")
            A.label(lbl)
            stamp(f"{name}{j}")
            nn = j + 1
            while nn < n and vidx.get(base + 4 * nn, -1) > vidx[b]:
                nn += 1
            younger = vmn[0] - 1 - vidx[base + 4 * (nn - 1)]
            tails.append((name, lbl, j, nn, b, reissue, younger))
        return [p0, p1, p2]

    def chk(*a_, **k_):
        for p in chk_parts(*a_, **k_):
            p()

    def smf(d, a_, b_):
        A(f"v_smfmac_f32_16x16x64_bf16 {v(d, 4)}, {v(a_, 4)}, {r(b_, 8)}, {v(IDX)}")

    def qk(T, j, ab):
        smf(ACC + 4 * T, ab + 4 * j, 256 + (T * 4 + j) * 8)

    def cvtwr(b, off, part=3):
        if part & 1:
            A(f"v_cvt_pk_bf16_f32 {v(b)}, {v(b)}, {v(b + 1)}")
            A(f"v_cvt_pk_bf16_f32 {v(b + 1)}, {v(b + 2)}, {v(b + 3)}")
        if part & 2:
            A(f"ds_write_b64 {v(vXwr)}, {v(b, 2)} offset:{off}")

    def x1wr(T, part=3):
        slot = 2 * ((T & 3) >> 1) + (T >> 2) + 4 * (T & 1)
        cvtwr(ACC + 4 * T, X1 + slot * 2048, part)

    def vsm(j, t, which):
        smf(VACC + 4 * t, (AL if which == 0 else AR) + 4 * j, WV + (j * 4 + t) * 8)

    def mf(d, a_, b_, c_):
        A(f"v_mfma_f32_16x16x32_bf16 {v(d, 4)}, {v(a_, 4)}, {v(b_, 4)}, {v(c_, 4) if c_ is not None else 0}")

    def run(ms, fill):
        for i in range(len(ms) + 1):
            for f in fill.get(i, []):
                f()
            if i < len(ms):
                ms[i]()

    def add(fill, i, f):
        fill.setdefault(i, []).append(f)

    zero = [ACC + i for i in range(32)] + [VACC + i for i in range(16)]
    A.label(f"{pfx}_top")
    A("s_barrier")
    for x in zero[:P["dM"]]:
        A(f"v_mov_b32 {v(x)}, 0")
    if P["dM"] > 48:
        A.nop(P["dM"] - 48)
    stamp("top")
    for j in range(4):
        ld(AL + 4 * j, sAL, j)
    for x in zero[P["dM"]:]:
        A(f"v_mov_b32 {v(x)}, 0")
    re_al = lambda j: ld(AL + 4 * j, sAL, j, False)
    re_ar = lambda j: ld(AR + 4 * j, sAR, j, False)
    seq = [(T, j) for j in range(4) for T in range(8)]
    vall = [(j, t, w) for j in range(4) for t in range(4) for w in range(2)]
    v1 = [(j, t, 0) for j in range(4) for t in range(4)][:P["nV1"]]
    vrest = [x for x in vall if x not in v1]
    ms = [(lambda T=T, j=j: qk(T, j, AL)) for T, j in seq] + [(lambda x=x: vsm(*x)) for x in v1]
    fill = {}
    cA = P["cA"]
    for j in range(4):
        parts = chk_parts("al", j, 4, AL, re_al)
        for k, p in enumerate(parts):
            add(fill, max(0, cA * j - 2 + k), p)
    for jj in range(4):
        pos = min(len(ms), P["pAR"] + P["sp"] * jj)
        if pos < 0:
            ld(AR + 4 * jj, sAR, jj)
        else:
            add(fill, pos, lambda jj=jj: ld(AR + 4 * jj, sAR, jj))

    def pf():
        vmn[0] += 1
        if P.get("xp"):
            A(f"buffer_load_dword {v(vPFd)}, {v(vG16)}, {s(S_WS, 4)}, {s(sAL)} offen sc1")
            return
        A(f"buffer_load_dword {v(vPFd)}, {v(vPF)}, {s(S_WS, 4)}, 0 offen sc1")
        A(f"v_add_u32 {v(vPF)}, {v(vPF)}, {v(vPFi)}")
    add(fill, min(len(ms), max(P["pAR"] + P["sp"] * 4, P["pPF"])), pf)
    run(ms, fill)
    stamp("ALe")
    tm = P["tm"]
    seq2 = [(T, j) for j in range(4 - tm) for T in range(8)] + [(T, j) for T in range(8) for j in range(4 - tm, 4)]
    ms = [(lambda T=T, j=j: qk(T, j, AR)) for T, j in seq2]
    fill = {}
    for j in range(4):
        parts = chk_parts("ar", j, 4, AR, re_ar)
        assert P["cR"] * j <= min(i for i, x in enumerate(seq2) if x[1] == j)
        for k, p in enumerate(parts):
            add(fill, max(0, P["cR"] * j - 2 + k), p)
    for _ in range(3):
        x = vrest.pop(0)
        ms.append(lambda x=x: vsm(*x))
    add(fill, 32, lambda: stamp("i32"))

    def prg():
        A("s_mov_b64 exec, 1")
        A(f"buffer_store_dword {v(ONES)}, off, {s(S_WS, 4)}, {s(sPRG)} sc1")
        A("s_mov_b64 exec, -1")
        A(f"s_add_u32 {s(sPRG)}, {s(sPRG)}, 4")
    add(fill, 3 * P["cR"] + 1, prg)
    for T in range(8):
        add(fill, seq2.index((T, 3)) + 4, lambda T=T: x1wr(T, 1))
        add(fill, min(len(ms), seq2.index((T, 3)) + 5), lambda T=T: x1wr(T, 2))
    run(ms, fill)
    A("s_waitcnt lgkmcnt(0)")
    stamp("B1w")
    A("s_barrier")
    stamp("B1")
    A(f"ds_read_b128 {v(0, 4)}, {v(vXrd)} offset:{X1}")
    A(f"ds_read_b128 {v(8, 4)}, {v(vXrd)} offset:{X1 + 8192}")
    A(f"ds_read_b128 {v(4, 4)}, {v(vXrd)} offset:{X1 + 1024}")
    A(f"ds_read_b128 {v(12, 4)}, {v(vXrd)} offset:{X1 + 9216}")

    def ktrd(j):
        A(f"ds_read_b128 {v(AL + 4 * j, 4)}, {v(vG16)} offset:{KT + j * 1024}")
        A(f"ds_read_b128 {v(AR + 4 * j, 4)}, {v(vG16)} offset:{KT + 4096 + j * 1024}")

    for _ in range(P["nV2"]):
        vsm(*vrest.pop(0))
    A("s_waitcnt lgkmcnt(3)")
    mf(16, 0, FW, None)
    A("s_waitcnt lgkmcnt(2)")
    mf(20, 8, FW, None)
    A("s_waitcnt lgkmcnt(1)")
    mf(16, 4, FW, 16)
    A("s_waitcnt lgkmcnt(0)")
    mf(20, 12, FW, 20)
    for _ in range(2):
        vsm(*vrest.pop(0))
    A(f"v_cvt_pk_bf16_f32 {v(28)}, {v(16)}, {v(17)}")
    A(f"v_cvt_pk_bf16_f32 {v(29)}, {v(18)}, {v(19)}")
    A(f"v_cvt_pk_bf16_f32 {v(30)}, {v(20)}, {v(21)}")
    A(f"v_cvt_pk_bf16_f32 {v(31)}, {v(22)}, {v(23)}")
    A(f"buffer_store_dwordx4 {v(28, 4)}, {v(vZst)}, {s(S_WS, 4)}, {s(sZst)} offen{loc}")
    stamp("Zst")
    re_z = lambda j: ld(4 * j, sZld, j, False)
    ms = [(lambda x=x: vsm(*x)) for x in vrest]
    nv = len(ms)
    fill = {}
    for j in range(4):
        lastuse = max([i for i, x in enumerate(vrest) if x[0] == j], default=-1)
        add(fill, max(lastuse + 1, j), lambda j=j: ktrd(j))
    for jj in range(4):
        add(fill, min(nv, max(0, nv - P["pZ"]) + P["sp"] * jj), lambda jj=jj: ld(4 * jj, sZld, jj))
    for i in range(4):
        add(fill, 4 + i, lambda i=i: A(f"v_mov_b32 {v(16 + i)}, {v(vBias)}"))
    for tt in range(4):
        lastuse = max(i for i, x in enumerate(vrest) if x[1] == tt)
        if tt == 3:
            add(fill, nv, lambda: A.nop(3))
        add(fill, min(nv, lastuse + 4), lambda tt=tt: cvtwr(VACC + 4 * tt, X2 + tt * 2048, 1))
        add(fill, min(nv, lastuse + 5), lambda tt=tt: cvtwr(VACC + 4 * tt, X2 + tt * 2048, 2))
    run(ms, fill)
    A("s_waitcnt lgkmcnt(0)")
    A("s_barrier")
    stamp("B2")
    A(f"ds_read_b128 {v(80, 4)}, {v(vXrd)} offset:{X2}")
    A(f"ds_read_b128 {v(84, 4)}, {v(vXrd)} offset:{X2 + 1024}")
    wbuf = [72, 32, 40, 48, 56, 80, 88]
    wq = [(f, hf) for f in range(16) for hf in range(2)]

    def wrd(n=1):
        for _ in range(n):
            f, hf = wq.pop(0)
            A(f"ds_read_b128 {v(wbuf[f % 7] + 4 * hf, 4)}, {v(vWO)} offset:{f * 2048 + hf * 1024}")

    wrd(2)
    SM, S0, S1 = 16, 20, 24
    ms = []
    fill = {}
    for kk in range(4):
        ms.append(lambda kk=kk: mf(SM, 4 * kk, 4 * kk, SM))
        ms.append(lambda kk=kk: mf(S0, AL + 4 * kk, 4 * kk, S0 if kk else None))
        ms.append(lambda kk=kk: mf(S1, AR + 4 * kk, 4 * kk, S1 if kk else None))
        for k, p in enumerate(chk_parts("z", kk, 4, 0, re_z)):
            add(fill, max(0, 3 * kk - 2 + k), p)
    add(fill, 12, lambda: A("s_waitcnt lgkmcnt(2)"))
    xs = "" if P.get("xs", 0) & 1 else " sc1"
    xk = "" if P.get("xs", 0) & 2 else " sc1"
    add(fill, 12, lambda: A(f"buffer_store_dwordx4 {v(28, 4)}, {v(vMst)}, {s(S_WS, 4)}, {s(sKM)} offen{xk}"))
    ms.append(lambda: mf(88, FK, 80, None))
    ms.append(lambda: mf(88, FK, 84, 88))
    add(fill, 10, lambda: [A(f"v_mov_b32 {v(VACC + i)}, 0") for i in range(2)])
    add(fill, 11, lambda: [A(f"v_mov_b32 {v(VACC + i)}, 0") for i in range(2, 4)])
    add(fill, 13, lambda: A(f"v_max3_f32 {v(t0)}, {v(SM)}, {v(SM + 1)}, {v(SM + 2)}"))
    run(ms, fill)
    A(f"v_max3_f32 {v(t0)}, {v(t0)}, {v(SM + 3)}, {v(S0)}")
    A(f"v_max3_f32 {v(t0)}, {v(t0)}, {v(S0 + 1)}, {v(S0 + 2)}")
    A(f"v_max3_f32 {v(t1)}, {v(S1)}, {v(S1 + 1)}, {v(S1 + 2)}")
    A(f"v_max3_f32 {v(t0)}, {v(t0)}, {v(S0 + 3)}, {v(S1 + 3)}")
    A(f"v_max_f32 {v(t0)}, {v(t0)}, {v(t1)}")
    A(f"v_max_f32 {v(t1)}, {v(t0)}, {v(t1)}")
    wrd(2)
    A(f"v_permlane32_swap_b32 {v(t0)}, {v(t1)}")
    A(f"v_max_f32 {v(28)}, {v(t0)}, {v(t1)}")
    A(f"v_max_f32 {v(t1)}, {v(t0)}, {v(t1)}")
    A(f"v_cvt_pk_bf16_f32 {v(92)}, {v(88)}, {v(89)}")
    A(f"v_cvt_pk_bf16_f32 {v(93)}, {v(90)}, {v(91)}")
    A(f"v_permlane16_swap_b32 {v(28)}, {v(t1)}")
    A(f"v_max_f32 {v(t0)}, {v(28)}, {v(t1)}")
    A(f"v_mul_f32 {v(t0)}, {s(sNegC)}, {v(t0)}")
    A(f"buffer_store_dwordx2 {v(92, 2)}, {v(vVMst)}, {s(S_WS, 4)}, {s(sVMst)} offen{xs}")
    order = list(range(S0, S0 + 8)) + list(range(SM, SM + 4))
    for i, x in enumerate(order):
        A(f"v_fma_f32 {v(x)}, {v(x)}, {s(sCc)}, {v(t0)}")
        if i >= 1:
            A(f"v_exp_f32 {v(order[i - 1])}, {v(order[i - 1])}")
        if i in (3, 5, 7, 9):
            k = (i - 3) // 2
            A(f"v_cvt_pk_bf16_f32 {v(80 + k)}, {v(order[i - 3])}, {v(order[i - 2])}")
        if i == 11:
            mf(28, ONES, 80, None)
    A(f"v_exp_f32 {v(order[11])}, {v(order[11])}")
    A(f"v_cvt_pk_bf16_f32 {v(84)}, {v(SM)}, {v(SM + 1)}")
    mf(88, VT_, 80, None)
    A(f"v_cvt_pk_bf16_f32 {v(85)}, {v(SM + 2)}, {v(SM + 3)}")
    wrd(2)
    A(f"v_mfma_f32_16x16x16_bf16 {v(28, 4)}, {v(ONES, 2)}, {v(84, 2)}, {v(28, 4)}")
    A(f"v_mfma_f32_16x16x16_bf16 {v(88, 4)}, {v(92, 2)}, {v(84, 2)}, {v(88, 4)}")
    wrd(4)
    A(f"s_cmp_eq_u32 {s(sStep)}, 63")
    A(f"v_rcp_f32 {v(t0)}, {v(28)}")
    A(f"v_mov_b32 {v(VACC + 4)}, 0")
    A(f"v_mov_b32 {v(VACC + 5)}, 0")
    for i in range(4):
        A(f"v_mul_f32 {v(88 + i)}, {v(88 + i)}, {v(t0)}")
    A(f"v_cvt_pk_bf16_f32 {v(t0)}, {v(88)}, {v(89)}")
    A(f"v_cvt_pk_bf16_f32 {v(t1)}, {v(90)}, {v(91)}")
    A(f"buffer_store_dwordx2 {v(t0, 2)}, {v(vOst)}, {s(S_WS, 4)}, {s(sOst)} offen{loc}")
    stamp("Ost")
    A(f"s_cbranch_scc1 {exit_lbl}")
    A(f"v_cmp_eq_u32 vcc, 0, {v(vPFd)}")
    A(f"s_add_u32 {s(sKM)}, {s(sKM)}, 65536")
    A(f"s_and_b32 {s(sT0)}, vcc_hi, 0x3f00")
    A(f"s_cbranch_scc1 {pfx}_kvw")
    A.label(f"{pfx}_kvok")
    if not P.get("ktp"):
        kt_issue(A)
    assert len(wq) == 22
    wrd(4)
    A(f"v_mov_b32 {v(VACC + 6)}, 0")
    A(f"v_mov_b32 {v(VACC + 7)}, 0")
    re_o = lambda j, tr=False: ld(4 * j, sOld0 if j < 4 else sOld1, j & 3, tr)
    for x in (sAL, sAR, sZld, sZst, sOst, sVMst):
        A(f"s_add_u32 {s(x)}, {s(x)}, {hex(L.STEP_STRIDE)}")
    A(f"s_add_u32 {s(sStep)}, {s(sStep)}, 1")
    if P.get("dO", 0):
        A.nop(P["dO"])
    stamp("Old")
    ms = []
    fill = {}
    for j in range(8):
        if j < P["nO"]:
            re_o(j, True)
        else:
            add(fill, 2 * (j - P["nO"]) + 1, lambda j=j: re_o(j, True))
    issued = [14]
    for f in range(16):
        j, tt = f >> 1, f & 1
        ms.append(lambda f=f, j=j, tt=tt: smf(VACC + 4 * tt, 4 * j, wbuf[f % 7]))
        if tt == 0:
            parts = chk_parts("o", j, 8, 0, re_o)
            add(fill, max(0, f - 1), parts[0])
            add(fill, max(0, f - 1), parts[1])
            add(fill, f, parts[2])
            add(fill, f, lambda f=f: A(f"s_waitcnt lgkmcnt({min(15, issued[0] - 2 * (f + 2))})"))

        def more():
            if wq:
                wrd(2)
                issued[0] += 2
        add(fill, f + 1, more)
    if P.get("ktp"):
        add(fill, 15, lambda: kt_issue(A))
    run(ms, fill)
    A.nop(5)
    cvtwr(VACC, X1)
    cvtwr(VACC + 4, X1 + 2048)
    A("s_waitcnt lgkmcnt(0)")
    A("s_barrier")
    stamp("B3")
    A(f"ds_read_b128 {v(80, 4)}, {v(vG16)} offset:{X1}")
    A(f"ds_read_b128 {v(32, 4)}, {v(vG16)} offset:{X1 + 2048}")
    A(f"ds_read_b128 {v(84, 4)}, {v(vG16)} offset:{X1 + 1024}")
    A(f"ds_read_b128 {v(36, 4)}, {v(vG16)} offset:{X1 + 3072}")
    A(f"s_add_u32 {s(sOld0)}, {s(sOld0)}, {hex(L.STEP_STRIDE)}")
    A(f"s_add_u32 {s(sOld1)}, {s(sOld1)}, {hex(L.STEP_STRIDE)}")
    A("s_waitcnt lgkmcnt(3)")
    mf(88, 80, FW, None)
    A("s_waitcnt lgkmcnt(2)")
    mf(92, 32, FW, None)
    A("s_waitcnt lgkmcnt(1)")
    mf(88, 84, FW, 88)
    A("s_waitcnt lgkmcnt(0)")
    mf(92, 36, FW, 92)
    A(f"s_cmp_eq_u32 {s(sWv)}, 0")
    A.nop(4)
    A(f"v_cvt_pk_bf16_f32 {v(80)}, {v(88)}, {v(89)}")
    A(f"v_cvt_pk_bf16_f32 {v(81)}, {v(90)}, {v(91)}")
    A.nop(1)
    A(f"v_cvt_pk_bf16_f32 {v(82)}, {v(92)}, {v(93)}")
    A(f"v_cvt_pk_bf16_f32 {v(83)}, {v(94)}, {v(95)}")
    A(f"s_cbranch_scc1 {pfx}_mst_r")
    A(f"s_cmp_eq_u32 {s(sWv)}, 1")
    A(f"s_cbranch_scc0 {pfx}_mst_d")
    A(f"buffer_store_dwordx4 {v(80, 4)}, {v(vMst)}, {s(S_WS, 4)}, {s(sMst)} offen{loc}")
    A(f"s_branch {pfx}_mst_d")
    A.label(f"{pfx}_mst_r")
    A(f"buffer_store_dwordx4 {v(80, 4)}, {v(vMst)}, {s(S_WS, 4)}, {s(sMst)} offen sc1")
    A.label(f"{pfx}_mst_d")
    stamp("Mst")
    A(f"s_add_u32 {s(sMst)}, {s(sMst)}, {hex(L.STEP_STRIDE)}")
    if diag:
        A(f"s_and_b32 {s(sT0)}, {s(sStep)}, 7")
        A(f"s_cbranch_scc1 {pfx}_top")
        A("s_memrealtime s[100:101]")
        A("s_waitcnt lgkmcnt(0)")
        A(f"v_mov_b32 {v(t0)}, 0")
        A(f"v_writelane_b32 {v(t0)}, s100, 31")
        for i in range(len(names)):
            A(f"v_writelane_b32 {v(t0)}, {s(S_ST + 2 * i)}, {i}")
        for i in range(4):
            A(f"v_writelane_b32 {v(t0)}, {s(S_CNT + i)}, {24 + i}")
        A(f"v_writelane_b32 {v(t0)}, s56, 30")
        A(f"v_writelane_b32 {v(t0)}, s96, 28")
        A(f"v_writelane_b32 {v(t0)}, s98, 29")
        A(f"v_lshrrev_b32 {v(t1)}, 2, {v(vG16)}")
        A("s_mov_b32 exec_hi, 0")
        A(f"buffer_store_dword {v(t0)}, {v(t1)}, {s(S_WS, 4)}, {s(sSTO)} offen")
        A("s_mov_b64 exec, -1")
        A(f"s_add_u32 {s(sSTO)}, {s(sSTO)}, 128")
        STAMP_NAMES[:] = names
    A(f"s_branch {pfx}_top")
    A.label(f"{pfx}_kvw")
    kv_wait(A, f"{pfx}_kvp", exit_lbl, 4)
    A("s_mov_b64 exec, -1")
    A(f"s_branch {pfx}_kvok")

    def test(b):
        A(f"v_max3_u32 {v(t0)}, {v(b)}, {v(b + 1)}, {v(b + 2)}")
        A(f"v_max_u32 {v(t0)}, {v(t0)}, {v(b + 3)}")
        A(f"v_cmp_eq_u32 vcc, -1, {v(t0)}")

    for name, lbl, j, n, b, reissue, younger in tails:
        A.label(f"{lbl}_f")
        for jj in range(j, n):
            reissue(jj)
        A(f"s_sub_u32 {s(sBud)}, {s(sBud)}, 1")
        A(f"s_cbranch_scc1 {exit_lbl}")
        if diag:
            A(f"s_add_u32 {s(FC[name])}, {s(FC[name])}, 1")
        A(f"s_waitcnt vmcnt({0 if younger else n - 1 - j})")
        test(b)
        A(f"s_cbranch_vccnz {lbl}_f")
        A(f"s_branch {lbl}")


def chain_body(A, pfx, exit_lbl, P):
    import chain2

    def mid():
        chain_consts(A, P)
        A(f"s_lshl_b32 {s(sT0)}, {s(sH)}, 3")
        A(f"s_lshl_b32 {s(sT1)}, {s(sC)}, 2")
        A(f"s_add_u32 {s(sT0)}, {s(sT0)}, {s(sT1)}")
        A(f"s_add_u32 {s(sT0)}, {s(sT0)}, {s(sWv)}")
        A(f"s_mov_b32 {s(sPRG)}, {hex(OOB)}")
        A(f"s_cmp_eq_u32 {s(sT0)}, {2 if P.get('v3') else 3}")
        A(f"s_cselect_b32 {s(sPRG)}, {hex(L.FLAGS + L.F_PRG)}, {s(sPRG)}")

    def last():
        A("s_waitcnt vmcnt(0)")
        A(f"v_min_u32 {v(76)}, {v(76)}, {v(79)}")
        A(f"v_cmp_eq_u32 vcc, 0, {v(76)}")
        A(f"s_cmp_eq_u32 {s(sMK)}, 0")
        A(f"s_cbranch_scc0 {pfx}_sl0")
        A(f"s_cbranch_vccnz {pfx}_sl1")
        A(f"s_branch {pfx}_kv0_ok")
        A.label(f"{pfx}_sl0")
        read_counts(A, f"{pfx}_mode_cnt", exit_lbl)
        wait_a(A, f"{pfx}_wa", exit_lbl, t0, t1)
        A.label(f"{pfx}_sl1")
        wait_fill(A, f"{pfx}_wf", exit_lbl, t2, t0, 0)
        kv_wait(A, f"{pfx}_kv0", exit_lbl, 0)
        A("s_mov_b32 exec_lo, 0")
        A("s_mov_b32 exec_hi, 0x3f00")
        A(f"v_add_u32 {v(vPF)}, {1 << L.FS}, {v(vPF)}")
        A("s_mov_b64 exec, -1")
        kt_issue(A, not P.get("v3"))
        if P.get("tw", 0):
            A(f"s_lshl_b32 {s(sT0)}, {s(sT)}, 8")
            A(f"s_add_u32 {s(sT0)}, {s(sT0)}, {hex(L.MR + 0x8000)}")
            for i, x in enumerate((sKM, sVMst, sVT, sT0)):
                A(f"v_writelane_b32 {v(vRW)}, {s(x)}, {8 + i}")
        A(f"buffer_load_dword {v(vPFd)}, {v(vRW)}, {s(S_WS, 4)}, 0 offen sc1")
    chain_prologue(A, pfx, P, mid, last)
    if P.get("diag"):
        A(f"s_lshl_b32 {s(sT0)}, {s(sX)}, 5")
        A(f"s_add_u32 {s(sT0)}, {s(sT0)}, {s(sT)}")
        A(f"s_lshl_b32 {s(sT0)}, {s(sT0)}, 2")
        A(f"s_add_u32 {s(sT0)}, {s(sT0)}, {s(sWv)}")
        A(f"s_lshl_b32 {s(sSTO)}, {s(sT0)}, 13")
        A(f"s_add_u32 {s(sSTO)}, {s(sSTO)}, {hex(L.STAMP)}")
        A(f"s_lshl_b32 {s(sT0)}, {s(sT0)}, 10")
        A(f"s_add_u32 {s(sT0)}, {s(sT0)}, {hex(L.STAMP + (3 << 20))}")
        A(f"v_mov_b32 {v(t0)}, 0")
        for i in range(16):
            A(f"v_writelane_b32 {v(t0)}, s{64 + 2 * i}, {i}")
        A(f"v_lshrrev_b32 {v(t1)}, 2, {v(vG16)}")
        A(f"buffer_store_dword {v(t0)}, {v(t1)}, {s(S_WS, 4)}, {s(sT0)} offen")
    import chain3
    (chain3 if P.get("v3") else chain2).mr_init(A, pfx, exit_lbl, P)
    if P.get("diag"):
        A("s_mov_b32 s9, 0")
    if P.get("diag"):
        A("s_memrealtime s[98:99]")
        if P.get("v3"):
            A("s_waitcnt lgkmcnt(0)")
            A("s_mov_b32 s38, s98")
    A(f"s_min_u32 {s(sT0)}, {s(S_CNT)}, {s(S_CNT + 1)}")
    A(f"s_cmp_ge_u32 {s(sT0)}, 32")
    if P.get("pa"):
        A("s_waitcnt vmcnt(0)")
    if P.get("v3"):
        chain3.loops(A, pfx, exit_lbl, P)
        return
    if P.get("force_slow"):
        A(f"s_branch {pfx}s_top")
    A(f"s_cbranch_scc0 {pfx}s_top")
    if P.get("pa"):
        import chain2
        chain2.chain_loop(A, pfx + "f", True, exit_lbl, P)
        chain2.chain_loop(A, pfx + "s", False, exit_lbl, P)
        return
    chain_loop(A, pfx + "f", True, exit_lbl, P)
    chain_loop(A, pfx + "s", False, exit_lbl, P)
```

```python
import math
import struct
from asmlib import *
import layout as L
import chain
from chain import *

LIM = 2000
sBase, sOff, sKV, sNan = 2, 11, 10, 0
sClk, sNo, sTM, sRSw, sRSr, sLSw, sRem = 40, 42, 43, 44, 45, 46, 47
sMRb, sIncB, sARo, sPFa, sMso = 52, 53, 54, 55, 59
sOld, sInc, sOwn, sML = sOld0, sOld1, sNegC, sM0a
sStp = sKV
sDr, sM, sM0, sMp = sPRG, sH, sC, sKT
OFFL = X2 + 2048
sRT = 80
TW = 3
SH, ZO, X3 = X1, X2, X2 + 4096
RR, QA, KA, VA, TM = 64, 80, 84, 88, 92
ZP, VMq, vMs, vRS = vXrd, vBias, vZrd, vPFd
FR = lambda j, dq: 16 * j + 4 * dq
ORD = ["L0 L1 R0 R1 L2 R2 L3 R3", "L0 R0 L1 R1 L2 R2 L3 R3", "L0 L1 R0 L2 R1 R2 L3 R3", "L0 L1 L2 R0 R1 R2 L3 R3", "L0 L1 L2 L3 R0 R1 R2 R3",
       "L0 L1 R0 L2 R1 L3 R2 R3", "L0 L1 R0 R1 R2 R3 L2 L3", "R0 L0 R1 L1 R2 L2 R3 L3", "L0 R0 R1 L1 R2 L2 R3 L3"]
MP = [
    "p a a a a c w b o o v B r r r p a a a a c w b o o m m B r p m a r m a r m a m a c w b o L o p m a F m a B r m a r m a r c w b m m o o B r m r m r m "
    "m m m m k m k q k q k m m",
    "p a a a a c w b o o p a a a a c w b o o v B2 r r r r r r p a a a a c w b o o m L m F m p a m a m a m a c w b m m o o B2 r m r m r m r m r r "
    "m m m m m m m k m k q k q k m m",
    "p a a a a c w b o F o p a a a a c w b o o v v B2 r p a r a a a c w b o r o r p m a r m a r m a L m a c w b m m m m m B2 r m r m r m r o r o r "
    "m m m m m m m k m k q k q k m m",
    "p a a a a c w b o F o p a a a a c B r w b r o r o m m p B r m a r m a r m a m a c w b o L o p m a m a B r m a r m a r c w b m m o o m B r m r m r m "
    "m m m k m k q k q k m m",
    "p a a a a c w b o F o p a a a a c w b B r o r o r v m p m a B r m a r m a r m a c m w b o L o p m a m a m a B r m a r c m r w b m o o m m B r m r m r m "
    "m m k m k q k q k m m",
    "p a a a a c w b o F o p a a a a c B r r r w b o o m m m p a m B r a m r a m r a v w c m b o L o p a m a m a m B r a m w c m r b o r o m m B r m r m r "
    "m m q q q m k m k k C m k n1 C",
    "p a a a a c w b o F o p a a a a c B r w3 b o wc o r v r m m v m B p a m r a m r a m r a v w3 c m wc b o L o p a m a m a m a m B c m r b o w3 o wc "
    "v r m r m m m B m r m r v r q q q k m k m k n1 C m k n1 C",
    "p a a h a a c h b o F o p a a a a c B r w3 b o wc o r v r m m v B m p r a m r a m r a m a m w3 c m wc b o L o m p a m B r a m r a m r a v w3 c "
    "m wc b o o m m B r m r m r m q q q k m k m k n1 C m k n1 C",
    "p a a a a c b o w o F p a a a a c B r w3 b o wc o r v r m m v B m p r a m r a m r a m a m w3 c m wc b o L o m p a m B r a m r a m r a v w3 c "
    "m wc b o o m m B r m r m r m q q q k m k m k n1 C m k n1 C",
    "p a a a a c b o w o F v p a a a a c B r w3 b o wc o r v r m m v B m p r a m r a m r a m a m w3 c m wc b o L o m p a m B a m r a m r a v r c "
    "v w3 b o wc o m m m m B r m r m r v q q q k m k m k n1 C m k n1 C",
    "p a a a a c b o w o F v p a a a a c B r w3 b o wc o r v r m m v B m p r a m r a m r a m a m w3 c m wc b o L o m p a m B r a m r a m r a v w3 c "
    "m wc b o o m m B r m r m r m q q q k m k m k n1 C m k n1 C",
]


def mr_init(A, pfx, exit_lbl, P):
    A.label(f"{pfx}_nb")
    A(f"v_readfirstlane_b32 {s(sT1)}, {v(84)}")
    A(f"v_readfirstlane_b32 {s(sT0)}, {v(85)}")
    A.nop(4)
    A(f"s_and_b32 {s(sT2)}, {s(sT0)}, {s(sT1)}")
    A(f"s_cbranch_scc1 {pfx}_nb_ok")
    A(f"buffer_load_dwordx2 {v(84, 2)}, off, {s(S_DBG, 4)}, 0 offset:{L.D_NB} sc1")
    A(f"s_sub_u32 {s(sBud)}, {s(sBud)}, 1")
    A(f"s_cbranch_scc1 {exit_lbl}")
    A("s_waitcnt vmcnt(0)")
    A(f"s_branch {pfx}_nb")
    A.label(f"{pfx}_nb_ok")
    A(f"s_and_b32 {s(sT1)}, {s(sT1)}, 1")
    A(f"s_lshl_b32 {s(sT1)}, {s(sT1)}, 13")
    A(f"s_add_u32 {s(sMRb)}, {s(sT1)}, {hex(L.MR + 65536)}")
    A(f"s_and_b32 {s(sT0)}, {s(sT0)}, 1")
    A(f"s_lshl_b32 {s(sT0)}, {s(sT0)}, 13")
    A(f"s_sub_u32 {s(sIncB)}, {s(sT0)}, {s(sT1)}")
    A(f"s_add_u32 {s(sIncB)}, {s(sIncB)}, 65536")

    def spread(dst, src):
        A(f"s_and_b32 {s(sT1)}, {s(src)}, 0x6000")
        A(f"s_add_u32 {s(dst)}, {s(src)}, {s(sT1)}")
    A(f"s_and_b32 {s(sMso)}, {s(sMst)}, 0x7fff")
    spread(sMso, sMso)
    A(f"s_and_b32 {s(sARo)}, {s(sAR)}, 0x7fff")
    spread(sARo, sARo)
    if P.get("mx") == 2:
        for x in (sMso, sARo):
            A(f"s_xor_b32 {s(x)}, {s(x)}, 0x800")
    A(f"s_xor_b32 {s(sT2)}, {s(sMRb)}, 0x2000")
    A(f"s_lshl_b32 {s(sT0)}, {s(sWv)}, 14")
    A(f"s_lshl_b32 {s(sT1)}, {s(sT)}, 8")
    A(f"s_add_u32 {s(sT1)}, {s(sT1)}, {s(sT2)}")
    A(f"s_add_u32 {s(sPFa)}, {s(sT0)}, {s(sT1)}")
    A(f"v_writelane_b32 {v(vPF)}, {s(sPFa)}, 39")
    A(f"s_lshl_b32 {s(sT0)}, {s(sX)}, 15")
    A(f"s_add_u32 {s(sRSw)}, {s(sT0)}, {s(sT1)}")
    A(f"s_xor_b32 {s(sT0)}, {s(sT0)}, 0x8000")
    A(f"s_add_u32 {s(sRSr)}, {s(sT0)}, {s(sT2)}")
    A(f"s_lshl_b32 {s(sT0)}, {s(sX)}, 14")
    A(f"s_add_u32 {s(sT0)}, {s(sT0)}, {hex(L.STEP + L.STEP_STRIDE + L.S_MEMR)}")
    A(f"s_lshl_b32 {s(sT1)}, {s(sT)}, 3")
    A(f"s_add_u32 {s(sLSw)}, {s(sT0)}, {s(sT1)}")
    A(f"s_andn2_b32 {s(sT0)}, {s(sMst)}, 0x3ff")
    A(f"s_add_u32 {s(sT0)}, {s(sT0)}, {hex(2 * L.STEP_STRIDE)}")
    A(f"s_cmp_eq_u32 {s(sWv)}, 1")
    A(f"s_cselect_b32 {s(sLSw)}, {s(sT0)}, {s(sLSw)}")
    for x in (sZld, sZst, sOst, sOld):
        A(f"s_add_u32 {s(x)}, {s(x)}, {hex(3 * L.STEP_STRIDE)}")
    A(f"s_sub_u32 {s(sDM)}, {s(sDM)}, {hex(L.STEP_STRIDE)}")
    if P["on"]:
        A(f"s_andn2_b32 {s(sT0)}, {s(sRSw)}, 0x1f00")
        A(f"s_add_u32 {s(sT0)}, {s(sT0)}, 0x4000")
        A(f"s_cmp_eq_u32 {s(sWv)}, {TW}")
        A(f"s_cselect_b32 {s(sDM)}, {s(sT0)}, {s(sDM)}")
        A(f"s_lshl_b32 {s(sT0)}, {s(sX)}, 14")
        A(f"s_add_u32 {s(sT0)}, {s(sT0)}, {s(sMRb)}")
        A(f"s_sub_u32 {s(sRSw)}, {s(sT0)}, {65536 + 128}")
        A(f"s_cmp_eq_u32 {s(sT)}, 0")
        A(f"s_cselect_b32 {s(sRSr)}, {s(sRSw)}, {hex(OOB)}")
    for x, k in ((sKM, "pk"), (sVMst, "pv")):
        if P[k] < 19:
            A(f"s_sub_u32 {s(x)}, {s(x)}, 65536")
    A(f"s_cmp_eq_u32 {s(sWv)}, {TW}")
    A(f"s_cselect_b32 {s(sDr)}, 0, {s(sDr)}")
    for x in (sM, sM0):
        A(f"s_mov_b32 {s(x)}, 0")
    A(f"s_cselect_b32 {s(sMp)}, 0, {s(sMp)}")
    A(f"s_mov_b32 {s(sStep)}, -1")
    A(f"s_memrealtime {s(sT0, 2)}")
    A(f"s_memtime {s(sClk, 2)}")
    A("s_waitcnt lgkmcnt(0)")
    A(f"s_mul_i32 {s(sT0)}, {s(sT0)}, 22")
    A(f"s_sub_u32 {s(sOff)}, {s(sClk)}, {s(sT0)}")
    A(f"s_sub_u32 {s(sOwn)}, {s(sT0)}, {hex(1 << 17)}")
    A(f"s_sub_u32 {s(sTM)}, {s(sOwn)}, {hex(1 << 17)}")
    if P.get("diag"):
        A("s_mov_b32 s57, s96")


def zredo(A, pfx, P, tim, loc, zld, budget, exact, prods):
    a_, b_, sL = 69, 70, sRT + 4
    st = lambda d, so, o, f: A(f"buffer_store_dword {v(d)}, off, {s(S_WS, 4)}, {s(so)} offset:{o}{f}")
    A(f"s_sub_u32 {s(sT2)}, {s(sAR)}, {s(sARo)}")
    A(f"s_lshl_b32 {s(sT3)}, {s(sX)}, 15")
    A(f"s_xor_b32 {s(sT2)}, {s(sT2)}, 0x6000")
    A(f"v_mov_b32 {v(a_ + 3)}, 0")
    A(f"s_add_u32 {s(sT2)}, {s(sT2)}, {s(sT3)}")
    A(f"v_mov_b32 {v(b_)}, -1")
    st(a_ + 3, sT2, 0, loc)
    zld(False)
    A(f"s_memtime {s(sT0, 2)}")
    A(f"s_andn2_b32 {s(sL)}, {s(sAL)}, 0x3fff")
    A(f"s_lshl3_add_u32 {s(sL)}, {s(sT)}, {s(sL)}")
    A(f"s_add_u32 {s(sL)}, {s(sL)}, {L.S_MEMR - L.S_MEML}")
    A(f"ds_read_b32 {v(a_)}, {v(vG16)} offset:{OFFL}")
    st(b_, sL, 4, loc)
    A(f"s_lshl_b32 {s(sT3)}, {s(sT)}, 8")
    A(f"s_add_u32 {s(sT3)}, {s(sT3)}, {s(sT2)}")
    A(f"s_sub_u32 {s(sT3)}, {s(sT3)}, 0x4000")
    A("s_waitcnt lgkmcnt(0)")
    if not tim:
        A(f"s_sub_u32 {s(sT0)}, {s(sT0)}, {P['zl']}")
        A(f"v_sub_u32 {v(a_ + 2)}, {s(sT0)}, {v(a_)}")
        st(a_ + 2, sT3, 136, " sc1")
    budget("z")
    A(f"s_waitcnt vmcnt({1 if tim else 2})")
    A.label(f"{pfx}_zx_g")
    exact([8, 10, 12, 14], f"{pfx}_zx_h")
    A(f"s_memtime {s(sT0, 2)}")
    prods()
    A("s_waitcnt lgkmcnt(0)")
    A(f"s_sub_u32 {s(sT0)}, {s(sT0)}, {P['zk']}")
    A(f"v_sub_u32 {v(b_)}, {s(sT0)}, {v(a_)}")
    if tim:
        A(f"v_mov_b32 {v(t0)}, {s(sRT)}")
        A(f"v_max_u32 {v(t1)}, {v(t1)}, {v(b_)}")
    st(t1 if tim else b_, sL, 4, loc)
    if not tim:
        st(b_, sT3, 136, " sc1")
    A("s_mov_b32 vcc_lo, 0xcccccccc")
    A("s_mov_b32 vcc_hi, 0xcccccccc")
    A(f"s_branch {pfx}_z")
    A.label(f"{pfx}_zx_h")
    zld(False)
    st(b_, sL, 4, loc)
    budget("z")
    A("s_waitcnt vmcnt(1)")
    A(f"s_branch {pfx}_zx_g")


def chain_loop(A, pfx, w, fast, exit_lbl, P):
    diag = P.get("diag", False)
    loc = "" if fast else " sc1"
    tim = w == TW
    names = []
    FC = {"m": S_CNT, "oi": S_CNT + 1, "z": S_CNT + 2, "o": S_CNT + 3}
    fine = P.get("fine", 0)

    def stamp(name, grp=0):
        if fine and name != "top" and not (grp & fine):
            return
        if not fine and name[0] == "_":
            return
        if diag and len(names) < 10:
            if not P.get("dl") or w == 0:
                A(f"s_memtime {s(S_ST + 2 * len(names), 2)}")
            names.append(name)

    vmn = [0]
    vidx = {}

    def vm(txt, dst=None):
        A(txt)
        if dst is not None:
            vidx[dst] = vmn[0]
        vmn[0] += 1

    def ldx(dst, so, j, track=True):
        if j:
            A(f"s_xor_b32 {s(sT0)}, {s(so)}, {j << 10}")
        (vm if track else lambda t, d: A(t))(f"buffer_load_dwordx4 {v(dst, 4)}, {v(vG16)}, {s(S_WS, 4)}, {s(sT0 if j else so)} offen sc1", dst)

    def wt(*bs):
        A(f"s_waitcnt vmcnt({vmn[0] - 1 - max(vidx[b] for b in bs)})")

    lq = []

    def ds(txt, tag=None):
        A(txt)
        lq.append(tag)

    def lw(*tags):
        ix = [i for i, x in enumerate(lq) if x in tags]
        if ix:
            n = min(15, len(lq) - 1 - max(ix))
            A(f"s_waitcnt lgkmcnt({n})")
            del lq[:len(lq) - n]

    def lw0():
        A("s_waitcnt lgkmcnt(0)")
        lq.clear()

    def budget(name):
        A(f"s_sub_u32 {s(sBud)}, {s(sBud)}, 1")
        A(f"s_cbranch_scc1 {exit_lbl}")
        if diag and name:
            A(f"s_add_u32 {s(FC[name])}, {s(FC[name])}, 1")

    def exact(regs, lbl):
        A(f"v_max_u32 {v(t0)}, {v(regs[0])}, {v(regs[1])}")
        for i in range(2, len(regs), 2):
            A(f"v_max3_u32 {v(t0)}, {v(t0)}, {v(regs[i])}, {v(regs[i + 1])}")
        A(f"v_cmp_eq_u32 vcc, -1, {v(t0)}")
        A(f"s_cbranch_vccnz {lbl}")

    f16 = P.get("f16", 0)

    def smf(d, a_, b_, fmt="bf16"):
        A(f"v_smfmac_f32_16x16x64_{fmt} {v(d, 4)}, {v(a_, 4)}, {r(b_, 8)}, {v(IDX)}")

    def mf(d, a_, b_, c_):
        A(f"v_mfma_f32_16x16x32_bf16 {v(d, 4)}, {v(a_, 4)}, {v(b_, 4)}, {v(c_, 4) if c_ is not None else 0}")

    def cvt(d, a_, fmt="bf16"):
        return f"v_cvt_pk_{fmt}_f32 {v(d)}, {v(a_)}, {v(a_ + 1)}"

    def do(f):
        A(f) if isinstance(f, str) else f()

    def ring(x):
        return [f"s_add_u32 {s(x)}, {s(x)}, {hex(L.STEP_STRIDE)}", f"s_bitset0_b32 {s(x)}, 20"]

    def addops(j):
        if f16:
            return [f"v_pk_add_f16 {v(FR(j, 0) + i)}, {v(FR(j, 0) + i)}, {v(RR + 4 * j + i)}" for i in range(4)]
        o = []
        for i in range(4):
            a_, b_ = RR + 4 * j + i, FR(j, 0) + i
            o.append(f"v_fma_mix_f32 {v(TM + (i & 1))}, {v(a_)}, 1.0, {v(b_)} op_sel_hi:[1,0,1]")
            o.append(f"v_fma_mix_f32 {v(a_)}, {v(a_)}, 1.0, {v(b_)} op_sel:[1,0,1] op_sel_hi:[1,0,1]")
            o.append(f"v_cvt_pk_bf16_f32 {v(b_)}, {v(TM + (i & 1))}, {v(a_)}")
        return [o[0], o[1], o[3], o[4], o[2], o[6], o[5], o[7], o[9], o[10], o[8], o[11]]

    shw = lambda j: f"ds_write_b128 {v(vG16)}, {v(FR(j, 0), 4)} offset:{SH + j * 4096 + w * 1024}"
    kreg = [RR + 4 * j for j in range(4)] + [16 + 4 * j for j in range(4)]
    KQ = lambda tile, kk: kreg[2 * kk + tile]

    def kt(i):
        ds(f"ds_read_b128 {v(kreg[i], 4)}, {v(vG16)} offset:{KT + (i & 1) * 4096 + (i >> 1) * 1024}", f"k{i}")

    sal = []

    def fil(n):
        while n and sal:
            A(sal.pop(0))
            n -= 1
        A.nop(n)

    qk, vl, nk = [], [], [0]

    def mm(n, vonly=False):
        for _ in range(n):
            if qk and not vonly:
                j, dq, m = qk.pop(0)
                lw((j, dq))
                smf(KA if m else QA, FR(j, dq), 256 + 128 * m + (dq * 4 + j) * 8, "f16" if f16 else "bf16")
            elif vl:
                j, dq = vl.pop(0)
                lw((j, dq))
                smf(VA, FR(j, dq), WV + (j * 4 + dq) * 8, "f16" if f16 else "bf16")
            else:
                continue
            for _ in range(2):
                if sal:
                    do(sal.pop(0))

    rsw = f"buffer_store_dword {v(t1)}, off, {s(S_WS, 4)}, {s(sRSw)} offset:132 sc1"
    on = P["on"]
    zx = P.get("zx", 0)
    late_post = lambda d, x: f"v_and_b32 {v(d)}, 0x7fffffff, {v(x)}\n s_mov_b64 exec, 1\n buffer_atomic_smax {v(d)}, off, {s(S_WS, 4)}, {s(sRSw)} offset:4 sc1\n s_mov_b64 exec, -1"

    def kvst(f):
        if f == P["pk"]:
            vm(f"buffer_store_dwordx2 {v(ZP, 2)}, {v(vMst)}, {s(S_WS, 4)}, {s(sKM)} offen sc1")
        if f == P["pv"]:
            vm(f"buffer_store_dword {v(VMq)}, {v(vVMst)}, {s(S_WS, 4)}, {s(sVMst)} offen sc1")

    pfl = f"buffer_load_dword {v(vPFd)}, {v(vPF)}, {s(S_WS, 4)}, 0 offen sc1"

    def pause(nm):
        A(".p2align 3")
        A.label(f"{pfx}_{nm}1")
        A(f"s_sub_u32 {s(sRem)}, {s(sRem)}, 28")
        A(f"s_cbranch_scc0 {pfx}_{nm}1")

    A(".p2align 6")
    A.label(f"{pfx}_top")
    A("s_barrier")
    stamp("top")
    sal += ring(sZld) + ring(sZst) + ring(sOst) + ring(sOld) + ring(sDM) * (not (tim and on)) + [f"s_add_u32 {s(sStep)}, {s(sStep)}, 1"]
    if on:
        sal += [f"s_add_u32 {s(x)}, {s(x)}, 128" for x in (sRSw, sRSr)[:1 + tim]]
    if P.get("mx"):
        sal += [f"s_bitcmp1_b32 0x77777777, {s(sStep)}\n s_cselect_b32 {s(sT1)}, 0x800, 0", f"s_xor_b32 {s(sARo)}, {s(sARo)}, {s(sT1)}"]
        sal += [f"s_xor_b32 {s(sMso)}, {s(sMso)}, {s(sT1)}"] * (w < 2)
    sal += [f"s_add_u32 {s(sMst)}, {s(sMRb)}, {s(sMso)}"] if w < 2 else ring(sMst)
    zl = [f"v_mov_b32 {v(QA + i)}, 0" for i in range(12)]
    for k, x in enumerate(ORD[P["od"]].split()):
        j = int(x[1])
        ldx(FR(j, 0) if x[0] == "L" else RR + 4 * j, sAL if x[0] == "L" else sAR, j)
        if k < 7:
            n = P["sp"]
            if k >= 2 and len(zl) > P["zn"]:
                A(zl.pop(0))
                A(zl.pop(0))
                n -= 4
            fil(max(0, n))
    stamp("_iss", 48)
    if P["pF"] < 0:
        A.nop(-P["pF"] - 1)
        vm(pfl, vPFd)
    while sal:
        A(sal.pop(0))
    if tim:
        A(f"s_memtime {s(sClk, 2)}")
        for i in range(11):
            A(f"s_memrealtime {s(sRT + 2 * i, 2)}")
        A(f"s_sub_u32 {s(sT0)}, {s(sM)}, {s(sM0)}")
        if P.get("ra", 0) & 2:
            A(f"s_max_u32 {s(sT1)}, {s(sStep)}, 2")
            A(f"s_sub_u32 {s(sT1)}, {s(sT1)}, 2")
        else:
            A(f"s_lshr_b32 {s(sT1)}, {s(sStep)}, 1")
        A(f"s_min_u32 {s(sT1)}, {s(sT1)}, {P['kof']}")
        A(f"s_ashr_i32 {s(sT0)}, {s(sT0)}, {s(sT1)}")
        A(f"s_add_u32 {s(sOff)}, {s(sOff)}, {s(sT0)}")
        A(f"s_sub_u32 {s(sT0)}, {s(sM0)}, {s(sMp)}")
        A(f"s_sub_u32 {s(sT0)}, {s(sT0)}, {s(sDr)}")
        A(f"s_ashr_i32 {s(sT0)}, {s(sT0)}, {P['ema']}")
        A(f"s_add_u32 {s(sDr)}, {s(sDr)}, {s(sT0)}")
        A(f"s_mov_b32 {s(sMp)}, {s(sM0)}")
        A(f"s_mov_b32 {s(sBase)}, {s(sOwn)}")
        A(f"v_mov_b32 {v(t0)}, {s(sOff)}")
        A(f"s_add_u32 {s(sT0)}, {s(sTM)}, {P['nom']}")
        if on:
            A(f"s_bitset0_b32 {s(sT0)}, 31")
        A(f"v_mov_b32 {v(t1)}, {s(sT0)}")
        A("s_waitcnt lgkmcnt(0)")
        ds(f"ds_write_b32 {v(vG16)}, {v(t0)} offset:{OFFL}")
        for i in range(1, 11):
            A(f"s_add_u32 {s(sRT)}, {s(sRT)}, {s(sRT + 2 * i)}")
            if len(zl) > P["zt"]:
                A(zl.pop(0))
        A(f"s_lshl1_add_u32 {s(sRT)}, {s(sRT)}, {s(sOff)}")
        A(f"s_sub_u32 {s(sM)}, {s(sClk)}, {s(sRT)}")
        if P.get("lp", 0) >= 2:
            A(f"s_add_u32 {s(sRT)}, {s(sM)}, {s(sDr)}")
        else:
            A(f"s_add_u32 {s(sT0)}, {s(sM)}, {s(sDr)}")
            A(f"v_mov_b32 {v(t0)}, {s(sT0)}")
            vm(f"buffer_store_dwordx2 {v(t0, 2)}, off, {s(S_WS, 4)}, " + (f"{s(sRSr)} sc1" if on else f"{s(sRSw)} offset:128 sc1"))
    else:
        A.nop(P["zs"])
    kvst(-1)
    for x in zl:
        A(x)
    stamp("_wm", 48)
    if fine & 128:
        for k in range(8):
            A(f"s_waitcnt vmcnt({7 - k})")
            stamp(f"_a{k}", 128)
    prog = MP[P["mp"]].split()
    prog.append("G")
    for x, k in (("F", P["pF"]), ("L", P["pL"]), ("G", P["pG"] if w == 2 and not P.get("apl") else 99)):
        if k:
            prog.remove(x)
            if 0 < k < 40:
                prog.insert([i for i, y in enumerate(prog) if y in "omqv"][k - 1] + 1, x)
    prog = [x[0] if x[0] == "w" else x for x in prog if x[0] != "w" or int(x[1:] or "f", 16) >> w & 1]
    own, rdq, wrt, wdone, chk = [], [], [], [], []
    j, nb = -1, 0
    fm = "f16" if f16 else "bf16"
    def nxt(x, pop):
        q_ = vl if x == "v" else own if x == "o" else qk
        i = [y[2] for y in q_].index(0) if x == "q" else 0
        return q_.pop(i) if pop else q_[i] if q_ else None

    cq = [cvt(TM, QA), cvt(TM + 1, QA + 2)]
    for k, x in enumerate(prog):
        if x in "acC" and k + 1 < len(prog) and prog[k + 1] in "mqv":
            lw(nxt(prog[k + 1], False)[:2])
        if x == "C":
            A(cq.pop(0))
        elif x == "p":
            j += 1
            wt(FR(j, 0), RR + 4 * j)
            stamp(f"_p{j}", 32)
            ao = addops(j)
        elif x == "a":
            for _ in range(1 if f16 else 3):
                A(ao.pop(0))
        elif x == "c":
            assert not ao
            A(f"v_cmp_u_f16 vcc, {v(FR(j, 0))}, {v(FR(j, 0) + 2)}" if f16 else f"v_cmp_u_f32 vcc, {v(RR + 4 * j)}, {v(RR + 4 * j + 2)}")
        elif x == "w":
            nw = len(wdone)
            assert nw < j or not ao
            ds(shw(nw), ("w", nw))
            wdone.append(nw in chk)
            wrt.append(nw)
        elif x == "h":
            hf = int(not ao)
            ds(f"ds_write_b64 {v(vG16)}, {v(FR(j, 0) + 2 * hf, 2)} offset:{SH + j * 4096 + w * 1024 + 8 * hf}", ("w", j))
            if hf:
                wdone.append(False)
                wrt.append(j)
        elif x == "b":
            A(f"s_cbranch_vccnz {pfx}_m{j}_f")
            A.label(f"{pfx}_m{j}")
            own += [(j, 0, 0), (j, 0, 1)]
            vl.append((j, 0))
            vl.sort()
            chk.append(j)
        elif x[0] == "B":
            js = wrt[:int(x[1:] or 1)]
            del wrt[:len(js)]
            assert js[-1] in chk
            lw(("w", js[-1]))
            stamp(f"_w{js[-1]}", 2)
            A("s_barrier")
            stamp(f"_R{js[-1]}", 2)
            rdq += [(jj, dq) for jj in js for dq in range(1, 4)]
            if js[-1] == 3:
                assert not sal
                sal += [f"s_memtime {s(sClk, 2)}"] * tim + [f"s_add_u32 {s(sAR)}, {s(sMRb)}, {s(sARo)}"] + ring(sAL)
                sal += [f"s_cmp_eq_u32 {s(sStep)}, 30\n s_cselect_b32 {s(sT0)}, {s(sIncB)}, 0x10000", f"s_add_u32 {s(sMRb)}, {s(sMRb)}, {s(sT0)}",
                        f"s_sub_u32 {s(sInc)}, 0x20000, {s(sT0)}", f"s_add_u32 {s(sPFa)}, {s(sPFa)}, {s(sInc)}"]
        elif x == "r":
            jj, dq = rdq.pop(0)
            ds(f"ds_read_b128 {v(FR(jj, dq), 4)}, {v(vG16)} offset:{SH + jj * 4096 + (w ^ dq) * 1024}", (jj, dq))
            qk += [(jj, dq, 0), (jj, dq, 1)]
            vl.append((jj, dq))
            vl.sort()
        elif x == "L":
            vm(f"buffer_load_dwordx4 {v(VT_, 4)}, {v(vG16)}, {s(S_WS, 4)}, {s(sVT)} offen sc1", VT_)
            sal.insert(0, f"s_add_u32 {s(sVT)}, {s(sVT)}, {hex(32 * 8192)}")
        elif x == "F":
            vm(pfl, vPFd)
        elif x == "G":
            vm(f"buffer_store_dword {v(ONES)}, off, {s(S_WS, 4)}, {s(sPRG)} sc1")
            sal.insert(0, f"s_add_u32 {s(sPRG)}, {s(sPRG)}, 4")
        elif x == "k":
            kt(nk[0])
            nk[0] += 1
        elif x[0] == "n":
            fil(int(x[1:]))
        else:
            jj, dq, *m = nxt(x, True)
            lw((jj, dq))
            if x == "v":
                smf(VA, FR(jj, dq), WV + (jj * 4 + dq) * 8, fm)
            else:
                smf(KA if m[0] else QA, FR(jj, dq), 256 + 128 * m[0] + (dq * 4 + jj) * 8, fm)
            n = 2
            for y in prog[k + 1:]:
                if y in "omqv":
                    n -= y != "o" and (nxt(y, False) or (0, 0))[:2] in lq
                    break
                n -= 2 if y[0] == "B" else y not in "acC"
            for _ in range(n):
                if sal:
                    do(sal.pop(0))
    assert j == 3 and not (own or qk or rdq or wrt or sal)
    stamp("_qk", 2)
    mm(1)
    n = P["tn"]
    while nk[0] < 4:
        kt(nk[0])
        nk[0] += 1
        n -= 1
    A.nop(n - len(cq))
    for x in cq:
        A(x)
    A(cvt(TM + 2, KA))
    A(cvt(TM + 3, KA + 2))
    A("s_mov_b32 vcc_lo, 0xcccccccc")
    A("s_mov_b32 vcc_hi, 0xcccccccc")
    mf(KA, TM, FW, None)
    A(f"v_add_u32 {v(vPF)}, {v(vPF)}, {v(vPFi)}")
    if tim:
        lw0()
        A(f"s_sub_u32 {s(sOwn)}, {s(sClk)}, {s(sOff)}")
        mm(1)
        A(f"s_sub_u32 {s(sT0)}, {s(sOwn)}, {s(sTM)}")
        A(f"s_sub_u32 {s(sRem)}, {P['nom']}, {s(sT0)}")
        A(f"s_max_i32 {s(sRem)}, {s(sRem)}, 0")
    else:
        A(f"v_writelane_b32 {v(vPF)}, {s(sPFa)}, 39")
        A.nop(1)
        mm(1)
        A.nop(3)
    A(f"s_cmp_eq_u32 {s(sStep)}, 63")
    A(cvt(ZP, KA))
    A(cvt(ZP + 1, KA + 2))
    vm(f"buffer_store_dwordx2 {v(ZP, 2)}, {v(vZst)}, {s(S_WS, 4)}, {s(sZst)} offen{loc}")
    stamp("Zst", 3)
    A(f"s_cbranch_scc1 {pfx}_last")
    vlast = list(vl)
    ds(f"ds_write_b64 {v(vZst)}, {v(ZP, 2)} offset:{ZO + w * 512}")
    if tim:
        sal += [f"s_mov_b32 s82, {s(sT0)}"] * diag + [f"s_cmp_gt_u32 {s(sT0)}, {P['nom'] + P['tol']}", f"s_cselect_b32 {s(sT1)}, {P['pen']}, {s(sRem)}",
                f"s_add_u32 {s(sStp)}, {s(sT1)}, {s(sOwn)}", f"s_andn2_b32 {s(sNo)}, {s(sRSw)}, 0x1f00\n" * (not on) + f" v_mov_b32 {v(t0)}, {s(sM)}",
                f"s_add_u32 {s(sNo)}, {s(sNo)}, 0x4000\n" * (not on) + f" v_mov_b32 {v(t1)}, {s(sStp)}"]
    mm(P["nA"] - tim * P["nAt"])
    if tim:
        assert not sal
        pause("b2")
        mm(P["nAt"])
    assert all(x[0] for x in vl)
    lw0()
    A("s_barrier")
    stamp("_B2", 1)
    S0, S1, SM = 0, 4, VA
    SP = [(QA, KA, TM), (S0, S1, SM)]
    PB, PM, DEN, OA = TM, 64, 16, 8
    OC = 80

    def zld(track=True, js=(0, 1)):
        for j in js:
            (vm if track else lambda t, d: A(t))(f"buffer_load_dwordx4 {v(8 + 4 * j, 4)}, {v(vG16)}, {s(S_WS, 4)}, {s(sZld)} offen offset:{j * 1024} sc1", 8 + 4 * j)

    def zown(js=(0, 1)):
        for j in js:
            ds(f"ds_read_b128 {v(4 * j, 4)}, {v(vG16)} offset:{ZO + 1024 * j}", f"z{j}")

    def sc(kk):
        d, c = SP[kk >> 1], SP[kk == 3] if kk else (None,) * 3
        return [lambda: [lw(f"z{kk}", f"k{2 * kk}"), mf(d[0], KQ(0, kk), 4 * kk, c[0])],
                lambda: [lw(f"k{2 * kk + 1}"), mf(d[1], KQ(1, kk), 4 * kk, c[1])],
                lambda: mf(d[2], 4 * kk, 4 * kk, c[2])]
    vfold = [f"v_permlane32_swap_b32 {v(VA)}, {v(VA + 2)}", f"v_permlane32_swap_b32 {v(VA + 1)}, {v(VA + 3)}",
             f"v_pk_add_f32 {v(VA, 2)}, {v(VA, 2)}, {v(VA + 2, 2)}", cvt(VMq, VA)]
    wbuf = [32, 40, 48, 56, 64, 72, 88]
    wq = [(f, hf) for f in range(16) for hf in range(2)]

    def wline(f, hf):
        return f"ds_read_b128 {v(wbuf[f % 7] + 4 * hf, 4)}, {v(vWO)} offset:{f * 2048 + hf * 1024}"

    def wrd(n=1):
        for _ in range(n):
            f, hf = wq.pop(0)
            ds(wline(f, hf), f)

    def lpost(k):
        if tim and P.get("lp", 0) >= 2:
            if k and k != P["lp"] - 1:
                pass
            elif k:
                vm(f"buffer_store_dwordx2 {v(t0, 2)}, off, {s(S_WS, 4)}, {s(sRSw)} offset:128 sc1")
            else:
                A(f"v_mov_b32 {v(t0)}, {s(sRT)}")
                if diag:
                    A(f"s_cmp_gt_u32 {s(sT0)}, {P['nom'] + P['tol']}")
                    A(f"s_addc_u32 {s(FC['o'])}, {s(FC['o'])}, 0")
        elif k > 1:
            pass
        elif tim and P.get("lp", 0):
            if k:
                vm(f"buffer_store_dword {v(t1)}, off, {s(S_WS, 4)}, {s(sRT)} offset:132 sc1")
            else:
                A(f"s_cmp_gt_u32 {s(sT0)}, {P['nom'] + P.get('tp', P['tol'])}")
                A(f"s_cselect_b32 {s(sRT)}, {s(sRSw)}, {hex(OOB)}")
                if diag:
                    A(f"s_addc_u32 {s(FC['o'])}, {s(FC['o'])}, 0")
        elif tim and not k:
            A(f"s_cmp_gt_u32 {s(sT0)}, {P['nom'] + P['tol']}")
            A(f"s_cbranch_scc1 {pfx}_rp")
            A.label(f"{pfx}_rq")

    pw = P.get("pw", 0)
    LS, LA = 66, 68 if pw else vRS
    lsa = f"s_andn2_b32 {s(sT3)}, {s(sLSw)}, 0xff\n v_bfe_u32 {v(LA)}, {v(vG16)}, 1, 8"
    lsl = f"buffer_load_dwordx2 {v(LS, 2)}, {v(LA)}, {s(S_WS, 4)}, {s(sT3)} offen sc1"
    if tim:
        vx = [lambda: vm(f"buffer_store_dwordx2 {v(t0, 2)}, off, {s(S_WS, 4)}, {s(sLSw)}{loc}"),
              lambda: lpost(0),
              f"v_writelane_b32 {v(vPF)}, {s(sPFa)}, 39", lambda: [wt(vPFd), A(lsa)]][:4 - pw]
    else:
        vx = [lambda: [wt(vPFd), A(f"v_cmp_eq_u32 {s(sNan, 2)}, 0, {v(vPFd)}")], f"s_and_b32 {s(sKV)}, {s(sNan + 1)}, 0x3f00"] * (not pw)
    zown((0,))
    nv = len(vl)
    s01 = sc(0) + sc(1)
    vf = list(vfold)
    for i in range(nv + 6):
        mm(1) if i < nv else s01[i - nv]()
        if i - P["pZ"] in (0, 1):
            zld(True, (i - P["pZ"],))
            stamp("_zl", 1 if i == P["pZ"] else 0)
        elif i == 0:
            zown((1,))
        elif nk[0] < 8 and (1, nk[0] - 4) not in vl:
            kt(nk[0])
            nk[0] += 1
        if i >= nv + 2:
            A(vf.pop(0))
        elif vx:
            do(vx.pop(0))
    assert nk[0] == 8 and not vx and not vf
    if P["pZ"] >= nv + 6:
        A.nop(4 * (P["pZ"] - nv - 6))
        zld()
        stamp("_zl", 1)
    assert P["nw0"] <= 8
    wrd(P["nw0"])
    if tim and pw:
        A(lsa)
    A(f"v_mov_b32 {v(PM + 1)}, 0")
    if tim:
        vm(lsl, LS)
    lpost(1)
    lw("k7")
    if P.get("st", 0) and w == 0:
        A(f"s_xor_b32 {s(sT2)}, {s(sRSw)}, 0x8080")
        A(f"s_buffer_load_dword {s(sRT)}, {s(S_WS, 4)}, {s(sT2)}")
    stamp("_own", 1)
    so = [2, 0, 1] if P["smf"] else [0, 1, 2]
    wt(8)
    stamp("z0", 5)
    f = sc(2)
    f[so[0]]()
    f[so[1]]()
    A(f"v_cmp_u_f32 {s(sNan, 2)}, {v(8)}, {v(10)}")
    f[so[2]]()
    kvst(19)
    wt(12)
    stamp("_z1", 5)
    f = sc(3)
    f[so[0]]()
    f[so[1]]()
    A(f"v_cmp_u_f32 {s(sT0, 2)}, {v(12)}, {v(14)}")
    f[so[2]]()
    A(f"s_or_b64 {s(sNan, 2)}, {s(sNan, 2)}, {s(sT0, 2)}")
    A(f"s_cbranch_scc1 {pfx}_z_f")
    A.label(f"{pfx}_z")

    def soft(main):
        qp = "row_mask:0xf bank_mask:0xf"

        def ls(k):
            if main:
                kvst(20 + k)
                lpost(2 + k)
            if tim and main and k == P["pl"]:
                A(f"s_buffer_load_dword {s(sNo)}, {s(S_WS, 4)}, {s(sDM if on else sNo)}")
        cnd = lambda b: f"v_cndmask_b32_dpp {v(b)}, {v(b + 2)}, {v(b)}, vcc quad_perm:[2,3,2,3] {qp}"
        ex = lambda b: f"v_exp_f32 {v(b)}, {v(b)}"
        mul = lambda b: f"v_mul_f32 {v(b)}, {s(sCc)}, {v(b)}"
        dup = lambda b: f"v_mov_b32_dpp {v(b + 1)}, {v(b)} quad_perm:[0,1,0,1] {qp}"
        m16 = lambda d, a_, c: f"v_mfma_f32_16x16x16_bf16 {v(d, 4)}, {v(a_, 2)}, {v(PM, 2)}, {v(d, 4) if c else 0}"
        zo = lambda i: f"v_mov_b32 {v(OC + i)}, 0"
        if P["smf"]:
            for x in [mul(SM), mul(SM + 1), ex(SM), ex(SM + 1), cnd(S0), cvt(PM, SM), cnd(S0 + 1), ex(S0), m16(DEN, ONES, 0), lambda: ls(0), ex(S0 + 1),
                      cnd(S1), m16(OA, VMq, 0), lambda: ls(1), cnd(S1 + 1), ex(S1), ex(S1 + 1), cvt(PB, S0), cvt(PB + 2, S1), zo(0), dup(PB), dup(PB + 2), zo(1), zo(2),
                      lambda: mf(DEN, ONES, PB, DEN), lambda: ls(2), zo(3), zo(4), lambda: mf(OA, VT_, PB, OA), lambda: ls(3), "s_nop 1", zo(5), zo(6), zo(7)]:
                do(x)
        else:
            for x in [cnd(S0), cnd(S0 + 1), ex(S0), ex(S0 + 1), cnd(S1), cnd(S1 + 1), ex(S1), ex(S1 + 1), cvt(PB, S0), cvt(PB + 2, S1), mul(SM), dup(PB), dup(PB + 2),
                      mul(SM + 1), ex(SM), lambda: mf(DEN, ONES, PB, None), lambda: ls(0), ex(SM + 1), lambda: mf(OA, VT_, PB, None), lambda: ls(1), cvt(PM, SM),
                      zo(0), zo(1), m16(DEN, ONES, 1), lambda: ls(2), zo(2), zo(3), m16(OA, VMq, 1), lambda: ls(3), "s_nop 0", zo(4), zo(5), zo(6), zo(7)]:
                do(x)
        A(f"v_rcp_f32 {v(t0)}, {v(DEN)}")
        A(f"v_subrev_u32 {v(t1)}, 0x21800000, {v(DEN)}")
        A(f"v_cmp_lt_u32 vcc, 0x3c000000, {v(t1)}")
        A(f"v_pk_mul_f32 {v(OA, 2)}, {v(OA, 2)}, {v(t0, 2)} op_sel_hi:[1,0]")
        A(f"v_pk_mul_f32 {v(OA + 2, 2)}, {v(OA + 2, 2)}, {v(t0, 2)} op_sel_hi:[1,0]")
        A(f"s_and_b32 {s(sT0)}, vcc_lo, 0xcccc")
        ls(4)
        A(cvt(t0, OA))
        A(cvt(t1, OA + 2))

    soft(True)
    A(f"s_cbranch_scc1 {pfx}_sm_f")
    A.label(f"{pfx}_ost")
    vm(f"buffer_store_dwordx2 {v(t0, 2)}, {v(vOst)}, {s(S_WS, 4)}, {s(sOst)} offen{loc}")
    stamp("Ost", 12)

    def timer(nm, reg, fin, ex):
        A.label(f"{pfx}_{nm}0")
        A(f"s_memtime {s(sClk, 2)}")
        on = nm == "tm" and P["on"]
        if on:
            A(f"v_readlane_b32 {s(sRT)}, {v(reg - 1)}, 32")
            A(f"v_readlane_b32 {s(sRT + 1)}, {v(reg)}, 32")
            A(f"v_readlane_b32 {s(sRT + 5)}, {v(reg)}, 0")
            A.label(f"{pfx}_{nm}5")
            A(f"s_add_u32 {s(sT2)}, {s(sOff)}, {s(sBase)}")
            A(f"s_sub_u32 {s(sT0)}, {s(sRT + 1)}, {s(sRT)}")
            A(f"s_sub_u32 {s(sT1)}, {s(sRT + 5)}, {s(sBase)}")
            A(f"s_sub_u32 {s(sT0)}, {s(sT0)}, {s(sNan)}")
            A(f"s_bitset0_b32 {s(sT1)}, 31")
            A(f"s_bitset0_b32 {s(sT0)}, 31")
            A("s_waitcnt lgkmcnt(0)")
        else:
            if nm == "tm":
                if zx:
                    A(f"v_add_u32 {v(reg + 1)}, 1, {v(reg + 1)}")
                    A(f"v_max_u32 {v(reg)}, {v(reg)}, {v(reg + 1)}")
                A(f"v_sub_u32 {v(reg)}, {v(reg)}, {v(reg - 1)}")
            else:
                A(f"v_readlane_b32 {s(sM0)}, {v(reg - 1)}, 0")
            A(f"v_subrev_u32 {v(reg)}, {s(sNan if nm == 'tm' else sBase)}, {v(reg)}")
            A(f"s_add_u32 {s(sT2)}, {s(sOff)}, {s(sBase)}")
            for k in (8, 4, 2, 1):
                ex(1 if k == 8 else 2)
                A(f"v_max_u32_dpp {v(reg)}, {v(reg)}, {v(reg)} row_ror:{k} row_mask:0xf bank_mask:0xf")
            A("s_waitcnt lgkmcnt(0)")
            A(f"v_readlane_b32 {s(sT0)}, {v(reg)}, 0")
            A(f"v_readlane_b32 {s(sT1)}, {v(reg)}, 16")
        A(f"s_sub_u32 {s(sT2)}, {s(sClk)}, {s(sT2)}")
        A(f"s_max_u32 {s(sT0)}, {s(sT0)}, {s(sT1)}")
        A(f"s_add_u32 {s(sT3)}, {s(sT2)}, 1536")
        A(f"s_cmp_gt_u32 {s(sT0)}, {s(sT3)}")
        A(f"s_cbranch_scc1 {pfx}_{nm}2")
        if zx and nm == "to":
            A(f"s_cmp_eq_u32 {s(sNo)}, 0")
            A(f"s_cbranch_scc1 {pfx}_{nm}2")
        A.label(f"{pfx}_{nm}3")
        fin()
        A(f"s_sub_u32 {s(sRem)}, {s(sT0)}, {s(sT2)}")
        if diag:
            A(f"s_mov_b32 s{8 if nm == 'tm' else 10}, {s(sRem)}")
        if on:
            A(f"s_max_i32 {s(sRem)}, {s(sRem)}, {s(sNo)}")
            A(f"s_add_u32 {s(sT1)}, {s(sRem)}, {P['tl']}")
            A(f"s_cmp_gt_u32 {s(sT1)}, {P['tl'] + P['th']}")
            A(f"s_cbranch_scc1 {pfx}_{nm}4")
        A(f"s_max_i32 {s(sRem)}, {s(sRem)}, 0")
        pause(nm)

    def repoll(nm, adr, ldi):
        A.label(f"{pfx}_{nm}2")
        A(f"s_mov_b32 {s(sT0)}, {s(sT2)}")
        if nm == "to":
            A(f"s_mov_b32 {s(sM0)}, {s(sM)}")
            if zx:
                A(f"s_mov_b32 {s(sNo)}, -1")
        elif P["on"]:
            A(f"s_add_u32 {s(sTM)}, {s(sT2)}, {s(sBase)}")
            A(f"s_mov_b32 {s(sRem)}, 0")
        A(f"s_cmp_gt_u32 {s(sT2)}, {hex(1 << 18)}")
        A(f"s_cbranch_scc1 {pfx}_{nm}{1 if nm == 'tm' and P['on'] else 3}")
        if nm == "tm" and P["on"]:
            A.label(f"{pfx}_{nm}4")
            A(f"s_cmp_eq_u32 {s(sNo)}, 0")
            A(f"s_cbranch_scc1 {pfx}_{nm}6")
            A(f"s_mov_b32 {s(sNo)}, 0")
            A(f"s_xor_b32 {s(sT0)}, {s(sRSw)}, 0x4000")
            A(f"s_buffer_load_dwordx2 {s(sRT, 2)}, {s(S_WS, 4)}, {s(sT0)}")
            A(f"s_buffer_load_dwordx2 {s(sRT + 4, 2)}, {s(S_WS, 4)}, {s(sRSw)}")
            if diag:
                A("s_add_u32 s9, s9, 1")
            A("s_waitcnt lgkmcnt(0)")
            A(f"s_memtime {s(sClk, 2)}")
            A(f"s_branch {pfx}_{nm}5")
            A.label(f"{pfx}_{nm}6")
        A(adr)
        A(ldi)
        budget(None)
        if diag:
            A(f"s_add_u32 s9, s9, {1 if nm == 'tm' else 65536}")
        if P.get("ra", 0):
            A(f"s_cmp_lg_u32 {s(sStep)}, 0")
            A(f"s_cbranch_scc1 {pfx}_{nm}7")
            A(f"s_memtime {s(sClk, 2)}")
            for i in range(11):
                A(f"s_memrealtime {s(sRT + 2 * i, 2)}")
            A("s_waitcnt lgkmcnt(0)")
            for i in range(1, 11):
                A(f"s_add_u32 {s(sRT)}, {s(sRT)}, {s(sRT + 2 * i)}")
            A(f"s_lshl1_add_u32 {s(sRT)}, {s(sRT)}, {s(sM)}")
            A(f"s_sub_u32 {s(sOff)}, {s(sClk)}, {s(sRT)}")
            A.label(f"{pfx}_{nm}7")
        A("s_waitcnt vmcnt(0)")
        A(f"s_branch {pfx}_{nm}0")

    SN = 24
    sn = [f"v_mov_b32 {v(SN + i)}, -1" for i in range(4)]
    rst = lambda: vm(f"buffer_store_dwordx4 {v(SN, 4)}, {v(vG16)}, {s(S_WS, 4)}, {s(sDM)} offen{loc}")
    if tim:
        wt(LS)
        lq.clear()
        if P["pl"] == 5:
            A(f"s_buffer_load_dword {s(sNo)}, {s(S_WS, 4)}, {s(sNo)}")
        timer("to", LS + 1, lambda: [zx or [A(f"s_sub_u32 {s(sT1)}, {s(sNo)}, {s(sBase)}"), A(f"s_cmp_le_u32 {s(sT1)}, {s(sT3)}"),
                                            A(f"s_cselect_b32 {s(sT1)}, {s(sT1)}, 0"), A(f"s_max_u32 {s(sT0)}, {s(sT0)}, {s(sT1)}")],
                                      A(f"s_add_u32 {s(sML)}, {s(sT0)}, {P['cL']}"), A(f"s_add_u32 {s(sT0)}, {s(sT0)}, {P['cO']}")], A.nop)
    else:
        if pw:
            A(f"v_cmp_eq_u32 {s(sNan, 2)}, 0, {v(vPFd)}")
        for x in sn:
            A(x)
        wrd(P["nw1"])
        if pw:
            A(f"s_and_b32 {s(sKV)}, {s(sNan + 1)}, 0x3f00")
        A.nop(P["dr"])
        rst()
        if w == 1:
            vm(f"buffer_store_dwordx4 {v(SN, 4)}, {v(vG16)}, {s(S_WS, 4)}, {s(sLSw)} offen{loc}")
    stamp("_BOw", 8)
    A("s_barrier")
    stamp("Old", 8)
    rsa = f"v_and_b32 {v(t1)}, 0x1f0, {v(vG16)}\n v_lshlrev_b32 {v(t1)}, 4, {v(t1)}"
    if P["on"]:
        rsa = f"v_and_b32 {v(t1)}, 0x200, {v(vG16)}\n v_lshlrev_b32 {v(t1)}, 5, {v(t1)}\n v_xor_b32 {v(t1)}, {s(sRSw)}, {v(t1)}"
    rsl = f"buffer_load_dwordx{2 + zx} {v(VT_, 2 + zx)}, {v(t1)}, {s(S_WS, 4)}, " + ("0 offen sc1" if on else f"{s(sRSr)} offen offset:128 sc1")
    if tim or w == 1:
        sal += ring(sLSw)
    sal += [f"s_add_u32 {s(x)}, {s(x)}, 65536" for x in (sKM, sVMst)]
    if tim or P.get("st", 0) and w == 0:
        sal.append(f"s_add_u32 {s(sDM if on else sRSw)}, {s(sDM if on else sRSw)}, {s(sInc)}")
    for j in range(8):
        ldx(4 * j, sOld, j)
        if j < 7:
            n = min(2, len(wq) - 18)
            wrd(n)
            fil(max(0, P["spo"] - P["spr"] * n))
    while sal:
        A(sal.pop(0))
    kvst(-2)
    if P["on"]:
        vm(f"buffer_load_dword {v(VT_ + 2)}, off, {s(S_WS, 4)}, {s(sOld)} sc1")
    if tim:
        A(rsa)
        if P["pr"] < 0:
            vm(rsl, "rs")
    stamp("_oi", 8)
    def oprod(f):
        lw(f)
        smf(OC + 4 * (f & 1), 4 * (f >> 1), wbuf[f % 7])
        if f < 9:
            wrd(2)
        if tim and f == P["pr"]:
            vm(rsl, "rs")
        kvst(f)

    late = lambda j: 0 < j < P["nC"] and j < P["nL"]
    for j in range(8):
        lw(2 * j - 1 if late(j) else 2 * j)
        wt(4 * j)
        stamp(f"o{j}" if j == 7 else f"_o{j}", 8 if j in (0, 7) else 64)
        if j < P["nC"]:
            A(f"v_cmp_u_f32 vcc, {v(4 * j)}, {v(4 * j + 2)}")
            if late(j):
                oprod(2 * j - 1)
            A(f"s_cbranch_vccnz {pfx}_o{j}_f")
            A.label(f"{pfx}_o{j}")
        oprod(2 * j)
        if not late(j + 1):
            oprod(2 * j + 1)
    A.nop(P.get("x3n", 5))
    x3o = X3 + (w >> 1) * 1024 + (w & 1) * 8
    A(cvt(OC, OC) + "\n" + cvt(OC + 1, OC + 2))
    A(f"ds_write_b64 {v(vG16)}, {v(OC, 2)} offset:{x3o}")
    A(cvt(OC + 2, OC + 4) + "\n" + cvt(OC + 3, OC + 6))
    A(f"ds_write_b64 {v(vG16)}, {v(OC + 2, 2)} offset:{x3o + 2048}")
    if P["nC"] < 8:
        A(f"v_cmp_u_f32 vcc, {v(OC + 4)}, {v(OC + 5)}")
        A(f"v_cmp_u_f32 {s(sNan, 2)}, {v(OC + 6)}, {v(OC + 7)}")
        A(f"s_or_b64 vcc, vcc, {s(sNan, 2)}")
        A(f"s_cbranch_scc1 {pfx}_o_f")
        A.label(f"{pfx}_o_ok")
    kvst(17)
    lw0()
    stamp("_B3w", 8)
    A("s_barrier")
    stamp("_B3", 24)
    A(f"ds_read_b128 {v(72, 4)}, {v(vG16)} offset:{X3 + (w & 1) * 2048}")
    A(f"ds_read_b128 {v(76, 4)}, {v(vG16)} offset:{X3 + (w & 1) * 2048 + 1024}")
    if not tim:
        A(f"s_mov_b32 m0, {KT + w * 2048}")
        A(f"s_cmp_lg_u32 {s(sKV)}, 0")
    A("s_waitcnt lgkmcnt(1)")
    mf(64, 72, FK, None)
    A("s_waitcnt lgkmcnt(0)")
    mf(64, 76, FK, 64)
    A.nop(8)
    A(cvt(68, 64, "f16"))
    A(cvt(69, 66, "f16"))
    if w < 2:
        A.nop(P.get("mo2", 0))
    vm(f"buffer_store_dwordx2 {v(68, 2)}, {v(vMs)}, {s(S_WS, 4)}, {s(sMst)} offen{' sc1' if w < 2 else loc}")
    stamp("Mst", 24)
    kvst(16)
    if tim:
        A(f"s_sub_u32 {s(sNan)}, {s(sBase)}, {s(sM0)}")
        A(f"s_sub_u32 {s(sNan)}, {s(sNan)}, {s(sDr)}")
        if P["on"]:
            A(f"s_brev_b32 {s(sNo)}, 1")
        wt("rs")
        timer("tm", VT_ + 1, lambda: [A(f"s_add_u32 {s(sT0)}, {s(sT0)}, {P['cR']}"), A(f"s_max_u32 {s(sT0)}, {s(sT0)}, {s(sML)}"),
                                       P.get("kd", 0) and [A(f"s_ashr_i32 {s(sT1)}, {s(sDr)}, {P['kd']}"), A(f"s_max_i32 {s(sT1)}, {s(sT1)}, {-P.get('kl', 90)}"),
                                                           A(f"s_min_i32 {s(sT1)}, {s(sT1)}, {P.get('kh', 30)}"), A(f"s_add_u32 {s(sT0)}, {s(sT0)}, {s(sT1)}")],
                                       A(f"s_add_u32 {s(sTM)}, {s(sT0)}, {s(sBase)}")], A.nop)
        if not on:
            A(f"s_add_u32 {s(sRSr)}, {s(sRSr)}, {s(sInc)}")
    else:
        A(f"s_cbranch_scc1 {pfx}_kvw")
        A.label(f"{pfx}_kvok")
        A.nop(P.get("dk", 4))
        A(f"buffer_load_dwordx4 {v(vG16)}, {s(S_WS, 4)}, {s(sKT)} offen sc1 lds")
        A(f"buffer_load_dwordx4 {v(vG16)}, {s(S_WS, 4)}, {s(sKT)} offen offset:1024 sc1 lds")
        if w:
            A(f"s_mov_b32 m0, {KT + 3 * 2048}")
            A(f"s_xor_b32 {s(sT0)}, {s(sKT)}, {131072 if w == 1 else 2048}")
            A(f"buffer_load_dwordx4 {v(vG16)}, {s(S_WS, 4)}, {s(sT0)} offen offset:{(w - 1) * 1024} sc1 lds")
        A(f"s_add_u32 {s(sKT)}, {s(sKT)}, {hex(32 * 8192)}")
    stamp("_end", 16)
    if diag and not (tim and P.get("dl")):
        A(f"s_add_u32 {s(sT0)}, {s(sStep)}, 1")
        A(f"s_and_b32 {s(sT0)}, {s(sT0)}, {P.get('dm', 7)}")
        A(f"s_cbranch_scc1 {pfx}_top")
        A("s_memrealtime s[100:101]")
        A("s_memtime s[34:35]")
        A("s_waitcnt lgkmcnt(0)")
        A(f"v_mov_b32 {v(t0)}, 0")
        A(f"v_writelane_b32 {v(t0)}, s100, 31")
        A(f"v_writelane_b32 {v(t0)}, s34, 23")
        A(f"s_add_u32 {s(sT0)}, {s(sOff)}, {s(sM0)}")
        A(f"v_writelane_b32 {v(t0)}, {s(sT0)}, 19")
        A(f"v_writelane_b32 {v(t0)}, s82, 18")
        for i in range(3):
            A(f"v_writelane_b32 {v(t0)}, s{8 + i}, {20 + i}")
        for i in range(len(names)):
            A(f"v_writelane_b32 {v(t0)}, {s(S_ST + 2 * i)}, {i}")
        for i in range(4):
            A(f"v_writelane_b32 {v(t0)}, {s(S_CNT + i)}, {24 + i}")
        A(f"v_writelane_b32 {v(t0)}, s56, 30")
        A(f"v_writelane_b32 {v(t0)}, s57, 28")
        A(f"v_writelane_b32 {v(t0)}, s38, 29")
        A(f"v_lshrrev_b32 {v(t1)}, 2, {v(vG16)}")
        A("s_mov_b32 exec_hi, 0")
        A(f"buffer_store_dword {v(t0)}, {v(t1)}, {s(S_WS, 4)}, {s(sSTO)} offen")
        A("s_mov_b64 exec, -1")
        A(f"s_add_u32 {s(sSTO)}, {s(sSTO)}, 128")
        if tim:
            A("s_memtime s[32:33]")
            A(f"s_sub_u32 {s(sTM)}, {s(sTM)}, s34")
            A("s_waitcnt lgkmcnt(0)")
            A(f"s_add_u32 {s(sTM)}, {s(sTM)}, s32")
            A(f"s_add_u32 {s(sTM)}, {s(sTM)}, 60")
        chain.STAMP_NAMES[:] = names
    A(f"s_branch {pfx}_top")
    if tim:
        repoll("to", lsa, lsl)
        repoll("tm", rsa, rsl)
        if not P.get("lp", 0):
            A.label(f"{pfx}_rp")
            A("s_nop 0\n" + late_post(t0, t1) if on else rsw)
            if diag:
                A(f"s_add_u32 {s(FC['o'])}, {s(FC['o'])}, 1")
            A(f"s_branch {pfx}_rq")
    else:
        A.label(f"{pfx}_kvw")
        kv_wait(A, f"{pfx}_kvp", exit_lbl, 4)
        A("s_mov_b64 exec, -1")
        A(f"s_branch {pfx}_kvok")
    A.label(f"{pfx}_last")
    for x, k in ((sKM, "pk"), (sVMst, "pv")):
        if P[k] < 19:
            A(f"s_add_u32 {s(x)}, {s(x)}, 65536")
    A(f"buffer_store_dwordx2 {v(ZP, 2)}, {v(vMst)}, {s(S_WS, 4)}, {s(sKM)} offen sc1")
    vl[:] = vlast
    mm(len(vl))
    A.nop(8)
    for x in vfold:
        A(x)
        A.nop(2)
    A(f"buffer_store_dword {v(VMq)}, {v(vVMst)}, {s(S_WS, 4)}, {s(sVMst)} offen sc1")
    A(f"s_branch {exit_lbl}")
    for j in range(4):
        A.label(f"{pfx}_m{j}_f")
        if diag and P.get("dR2"):
            A(f"v_max_u32 {v(t0)}, {v(RR + 4 * j)}, {v(RR + 4 * j + 2)}")
            A(f"v_cmp_eq_u32 vcc, -1, {v(t0)}")
            A("s_cmp_lg_u64 vcc, 0")
            A(f"s_addc_u32 {s(FC['oi'])}, {s(FC['oi'])}, 0")
        A("s_waitcnt lgkmcnt(0)")
        if P.get("mb", 0) > 2 * j:
            A(f"s_sleep {P['mb'] - 2 * j}")
        for k in range(j, 4):
            ldx(FR(k, 0), sAL, k, False)
            ldx(RR + 4 * k, sAR, k, False)
        budget("m")
        A("s_waitcnt vmcnt(0)")
        exact([FR(j, 0), FR(j, 0) + 2, RR + 4 * j, RR + 4 * j + 2], f"{pfx}_m{j}_f")
        for x in addops(j):
            A(x)
        A("s_nop 0" if wdone[j] else shw(j))
        A(f"s_branch {pfx}_m{j}")
    A.label(f"{pfx}_z_f")
    if zx:
        zredo(A, pfx, P, tim, loc, zld, budget, exact, lambda: [sc(kk)[i]() for kk in (2, 3) for i in so])
    else:
        zld(False)
        A(f"s_memtime {s(sT0, 2)}")
        A(f"ds_read_b32 {v(t0)}, {v(vG16)} offset:{OFFL}")
        A(f"s_sub_u32 {s(sT2)}, {s(sAR)}, {s(sARo)}")
        A(f"s_xor_b32 {s(sT2)}, {s(sT2)}, 0x2000")
        A(f"s_lshl_b32 {s(sT3)}, {s(sX)}, 15")
        A(f"s_add_u32 {s(sT2)}, {s(sT2)}, {s(sT3)}")
        A(f"s_lshl_b32 {s(sT3)}, {s(sT)}, 8")
        A(f"s_add_u32 {s(sT3)}, {s(sT3)}, {s(sT2)}")
        A(f"s_add_u32 {s(sT2)}, {s(sT2)}, 0x4000")
        A("s_waitcnt lgkmcnt(0)")
        A(f"s_sub_u32 {s(sT0)}, {s(sT0)}, {P['zl']}")
        A(f"v_sub_u32 {v(t0 if tim else t1)}, {s(sT0)}, {v(t0)}")
        if tim:
            A(f"v_max_u32 {v(t1)}, {v(t0)}, {v(t1)}")
        A(f"buffer_store_dword {v(t1)}, off, {s(S_WS, 4)}, {s(sT2)}{loc}")
        budget("z")
        A("s_waitcnt vmcnt(1)")
        A.label(f"{pfx}_z_g")
        exact([8, 10, 12, 14], f"{pfx}_z_h")
        for kk in (2, 3):
            for i in so:
                sc(kk)[i]()
        A(late_post(t1, t1) if on else f"buffer_store_dword {v(t1)}, off, {s(S_WS, 4)}, {s(sT3)} offset:132 sc1")
        A("s_mov_b32 vcc_lo, 0xcccccccc")
        A("s_mov_b32 vcc_hi, 0xcccccccc")
        A(f"s_branch {pfx}_z")
        A.label(f"{pfx}_z_h")
        zld(False)
        budget("z")
        A(f"v_add_u32 {v(t1)}, 300, {v(t1)}")
        A("s_waitcnt vmcnt(0)")
        A(f"s_branch {pfx}_z_g")
    A.label(f"{pfx}_sm_f")
    A("s_waitcnt vmcnt(0) lgkmcnt(0)")
    zld(False)
    zown()
    for i in range(8):
        kt(i)
    A("s_waitcnt vmcnt(0)")
    lw0()
    for kk in range(4):
        for f in sc(kk):
            f()
    A.nop(8)
    A(f"v_mov_b32 {v(PM + 1)}, 0")
    A(f"v_max_f32 {v(t0)}, {v(SM)}, {v(SM + 1)}")
    A(f"v_mul_f32 {v(t0)}, {s(sCc)}, {v(t0)}")
    for i in range(0, 8, 2):
        A(f"v_max3_f32 {v(t0)}, {v(t0)}, {v(S0 + i)}, {v(S0 + i + 1)}")
    for op in ("v_permlane32_swap_b32", "v_permlane16_swap_b32"):
        A(f"v_mov_b32 {v(t1)}, {v(t0)}")
        A.nop(2)
        A(f"{op} {v(t0)}, {v(t1)}")
        A(f"v_max_f32 {v(t0)}, {v(t0)}, {v(t1)}")
    ic = struct.unpack("<I", struct.pack("<f", 1.0 / ((128 ** -0.5) * math.log2(math.e))))[0]
    A(f"v_mul_f32 {v(t1)}, {hex(ic)}, {v(t0)}")
    A("s_mov_b32 vcc_lo, 0xcccccccc")
    A("s_mov_b32 vcc_hi, 0xcccccccc")
    for i in range(8):
        A(f"v_sub_f32 {v(S0 + i)}, {v(S0 + i)}, {v(t0)}")
    for i in range(2):
        A(f"v_sub_f32 {v(SM + i)}, {v(SM + i)}, {v(t1)}")
    A("s_waitcnt lgkmcnt(0)")
    A.nop(1)
    soft(False)
    if tim:
        A(lsa)
        A(lsl)
        A("s_waitcnt vmcnt(0)")
    A(f"s_branch {pfx}_ost")
    for j in range(P["nC"]):
        A.label(f"{pfx}_o{j}_f")
        A.nop(1)
        ks = range(j, min(8, j + P["nR"]))
        for k in ks:
            ldx(4 * k, sOld, k, False)
        if P["on"]:
            A(f"s_memtime {s(sT0, 2)}")
            A(f"ds_read_b32 {v(VT_ + 3)}, {v(vG16)} offset:{OFFL}")
            A("s_waitcnt lgkmcnt(0)")
            A(f"s_sub_u32 {s(sT0)}, {s(sT0)}, {P['zo'] + 60 * j}")
            A(f"v_sub_u32 {v(VT_ + 3)}, {s(sT0)}, {v(VT_ + 3)}")
            A(late_post(VT_ + 3, VT_ + 3))
        budget("oi")
        A(f"s_waitcnt vmcnt({int(P['on'])})")
        exact([4 * j, 4 * j + 2], f"{pfx}_o{j}_f")
        A(f"s_branch {pfx}_o{j}")
    if P["nC"] == 8:
        return
    A.label(f"{pfx}_o_f")
    A("s_waitcnt lgkmcnt(0)")
    for j in range(8):
        ldx(4 * j, sOld, j, False)
    budget("o")
    for i in range(8):
        A(f"v_mov_b32 {v(OC + i)}, 0")
    A("s_waitcnt vmcnt(0)")
    exact(list(range(0, 32, 2)), f"{pfx}_o_f")
    for f0 in range(0, 16, 4):
        for f in range(f0, f0 + 4):
            for hf in range(2):
                A(f"ds_read_b128 {v(32 + 8 * (f & 3) + 4 * hf, 4)}, {v(vWO)} offset:{f * 2048 + hf * 1024}")
        A("s_waitcnt lgkmcnt(0)")
        for f in range(f0, f0 + 4):
            smf(OC + 4 * (f & 1), 4 * (f >> 1), 32 + 8 * (f & 3))
    A.nop(8)
    for i in range(4):
        A(cvt(OC + i, OC + 2 * i))
    A(f"ds_write_b64 {v(vG16)}, {v(OC, 2)} offset:{x3o}")
    A(f"ds_write_b64 {v(vG16)}, {v(OC + 2, 2)} offset:{x3o + 2048}")
    A(f"s_branch {pfx}_o_ok")


def loops(A, pfx, exit_lbl, P):
    A(f"s_cselect_b32 {s(sT0)}, 0, 4")
    if P.get("force_slow"):
        A(f"s_mov_b32 {s(sT0)}, 4")
    A(f"s_add_u32 {s(sT0)}, {s(sT0)}, {s(sWv)}")
    for k in range(1, 8):
        A(f"s_cmp_eq_u32 {s(sT0)}, {k}")
        A(f"s_cbranch_scc1 {pfx}{k}_top")
    A(f"s_branch {pfx}0_top")
    for k in range(8):
        chain_loop(A, f"{pfx}{k}", k & 3, k < 4, exit_lbl, P)
```

```python
import math
import struct
from asmlib import *
import layout as L
from chain import S_WS, S_W, sX, sT, sWv, sBud, S_PTR, srd, OOB

S_P2 = 64
S_PX = 72
S_PO = 74
S_OUT, S_X = 92, 96
sWo, sXo, sWinc, sN, sMW, sMX, sOut, sOP, sTy, sRb, sCt, sRes, sQ, sI = range(15, 29)
sLdw, sXP = 30, 31
sT0, sT1, sT2, sT3 = 32, 33, 34, 35
sPk, sWm, sWn, sDb = 36, 37, 38, 39
sRlo, sRhi, sSh, sNmax, sQn, sO2, sCf = 48, 49, 50, 51, 52, 53, 54

vLane, vL16, vSh, vT0, vT1, vT2 = 250, 251, 252, 253, 254, 255
vC0, vC1, vONE, vNL = 240, 242, 244, 246
vWa, vXa, vWd, vXd = 128, 136, 137, 141
RES = 192
RESX = 160
WR, XR = 0, 65536
LDS_MISC = 131072


def f32(x):
    return hex(struct.unpack("<I", struct.pack("<f", x))[0])


class Cfg:
    def __init__(self, name, WM, WN, BK, accb):
        self.name, self.WM, self.WN, self.BK, self.accb = name, WM, WN, BK, accb
        self.TM, self.TN = 32 * WM, 32 * WN
        self.nsub = BK // 32
        self.Wst, self.Xst = BK * self.TM * 2, BK * self.TN * 2
        self.nW, self.nX = self.Wst // 4096, self.Xst // 4096
        self.nd = self.nW + self.nX
        self.pitch = self.TM * 2
        self.fs = 4 * (WM + WN)
        assert self.nW == 4 and 4 * self.Wst <= 65536 and 4 * self.Xst <= 65536

    def acc(self, mt, nt):
        return self.accb + (nt * self.WM + mt) * 4

    def fa(self, p, mt):
        return p * self.fs + 4 * mt

    def fb(self, p, nt):
        return p * self.fs + 4 * self.WM + 4 * nt


CFGS = [Cfg("A", 4, 4, 64, 146 + 0), Cfg("B", 8, 4, 32, 256), Cfg("C", 8, 8, 32, 256)]
CFGS[0].accb = 64


def worker_consts(A):
    A(f"v_lshlrev_b32 {v(vL16)}, 4, {v(vLane)}")
    c0 = -2.0 * math.sqrt(2.0 / math.pi) * math.log2(math.e)
    for rgs, val in ((vC0, c0), (vC1, c0 * 0.044715), (vONE, 1.0), (vNL, -math.log2(math.e))):
        A(f"v_mov_b32 {v(rgs)}, {f32(val)}")
        A(f"v_mov_b32 {v(rgs + 1)}, {f32(val)}")
    A(f"s_lshr_b32 {s(sWm)}, {s(sWv)}, 1")
    A(f"s_and_b32 {s(sWn)}, {s(sWv)}, 1")


def addr_setup(A, c):
    g_, q_, rl, pu = 0, 1, 2, 3
    A(f"v_lshrrev_b32 {v(g_)}, 4, {v(vLane)}")
    A(f"v_bfe_u32 {v(q_)}, {v(vLane)}, 2, 2")
    A(f"v_lshl_add_u32 {v(4)}, {v(g_)}, 2, {v(q_)}")
    A(f"v_and_b32 {v(5)}, 7, {v(4)}")
    A(f"v_mul_u32_u24 {v(4)}, {c.pitch}, {v(4)}")
    A(f"v_and_b32 {v(6)}, 3, {v(vLane)}")
    A(f"v_lshl_add_u32 {v(4)}, {v(6)}, 3, {v(4)}")
    A(f"s_mul_i32 {s(sT0)}, {s(sWm)}, {c.WM}")
    A(f"v_xor_b32 {v(5)}, {s(sT0)}, {v(5)}")
    A(f"v_lshl_add_u32 {v(vWa)}, {v(5)}, 5, {v(4)}")
    for mt in range(1, c.WM):
        A(f"v_xor_b32 {v(vWa + mt)}, {mt * 32}, {v(vWa)}")
    A(f"s_mul_i32 {s(sT0)}, {s(sWn)}, {c.WN * c.nsub * 1024}")
    A(f"s_add_u32 {s(sT0)}, {s(sT0)}, {XR}")
    A(f"v_add_u32 {v(vXa)}, {s(sT0)}, {v(vL16)}")
    rpi = 1024 // c.pitch
    lpr = 64 // rpi
    A(f"v_lshrrev_b32 {v(rl)}, {int(math.log2(lpr))}, {v(vLane)}")
    A(f"v_and_b32 {v(pu)}, {lpr - 1}, {v(vLane)}")
    A(f"s_mul_i32 {s(sT0)}, {s(sWv)}, {4 * rpi}")
    A(f"v_add_u32 {v(4)}, {s(sT0)}, {v(rl)}")
    for d in range(4):
        A(f"v_add_u32 {v(5)}, {d * rpi}, {v(4)}")
        A(f"v_and_b32 {v(6)}, 7, {v(5)}")
        A(f"v_lshlrev_b32 {v(6)}, 1, {v(6)}")
        A(f"v_xor_b32 {v(6)}, {v(6)}, {v(pu)}")
        A(f"v_mul_lo_u32 {v(5)}, {v(5)}, {s(sLdw)}")
        A(f"v_lshl_add_u32 {v(5)}, {v(6)}, 4, {v(5)}")
        A(f"v_subrev_u32 {v(vWd + d)}, {d * 1024}, {v(5)}")
    nrt = c.nX // c.nsub
    A(f"s_mul_i32 {s(sT0)}, {s(sWv)}, {nrt}")
    A(f"s_mul_i32 {s(sT0)}, {s(sT0)}, {s(sXP)}")
    for j in range(nrt):
        A(f"v_add_u32 {v(vXd + j)}, {s(sT0)}, {v(vL16)}")
        if j + 1 < nrt:
            A(f"s_add_u32 {s(sT0)}, {s(sT0)}, {s(sXP)}")
            A(f"s_sub_u32 {s(sT0)}, {s(sT0)}, {c.nsub * 1024}")
    A(f"s_mul_i32 {s(sMW)}, {s(sWv)}, {c.Wst // 4}")
    A(f"s_mul_i32 {s(sMX)}, {s(sWv)}, {c.Xst // 4}")
    A(f"s_add_u32 {s(sMX)}, {s(sMX)}, {XR}")
    A(f"s_mul_i32 {s(sWinc)}, {s(sLdw)}, {c.BK}")
    A(f"s_mov_b32 {s(sWo)}, 0")


def dma_ops(A, c, slot, which):
    ops = []
    if which == "x":
        ops.append(lambda: A(f"s_add_u32 m0, {s(sMX)}, {slot * c.Xst}\ns_nop 0"))
        for d in range(c.nX):
            ops.append(lambda d=d: A(f"buffer_load_dwordx4 {v(vXd + d // c.nsub)}, {s(S_WS, 4)}, {s(sXo)} offen offset:{d * 1024} sc1 lds"))
        ops.append(lambda: A(f"s_add_u32 {s(sXo)}, {s(sXo)}, {c.nsub * 1024}"))
    else:
        ops.append(lambda: A(f"s_add_u32 m0, {s(sMW)}, {slot * c.Wst}\ns_nop 0"))
        for d in range(c.nW):
            ops.append(lambda d=d: A(f"buffer_load_dwordx4 {v(vWd + d)}, {s(S_W, 4)}, {s(sWo)} offen offset:{d * 1024} lds"))
        ops.append(lambda: A(f"s_add_u32 {s(sWo)}, {s(sWo)}, {s(sWinc)}"))
    return ops


def read_ops(A, c, slot, sub, p):
    ops = []
    def ra(mt, i):
        A(f"ds_read_b64_tr_b16 {v(c.fa(p, mt) + 2 * i, 2)}, {v(vWa + mt)} offset:{slot * c.Wst + (32 * sub + 16 * i) * c.pitch}")
    def rb(nt):
        A(f"ds_read_b128 {v(c.fb(p, nt), 4)}, {v(vXa)} offset:{slot * c.Xst + (nt * c.nsub + sub) * 1024}")
    ops.append(lambda: rb(0))
    for mt in range(c.WM):
        for i in range(2):
            ops.append(lambda mt=mt, i=i: ra(mt, i))
    for nt in range(1, c.WN):
        ops.append(lambda nt=nt: rb(nt))
    return ops


def main_loop(A, c, vt, pfx, P, res_hook):
    nsub = c.nsub
    for st in range(4):
        for f in dma_ops(A, c, st, "x"):
            f()
        if st < 3 or nsub == 1:
            for f in dma_ops(A, c, st, "w"):
                f()
    for i in range(c.WM * c.WN * 4):
        x = c.accb + i
        A(f"v_mov_b32 {v(x)}, 0" if x < 256 else f"v_accvgpr_write_b32 {r(x)}, 0")
    A(f"s_waitcnt vmcnt({3 * c.nd - (c.nW if nsub == 2 else 0)})")
    A("s_barrier")
    for f in read_ops(A, c, 0, 0, 0):
        f()
    par = [0]

    def substep(reads, dmas, bar):
        p = par[0]
        par[0] ^= 1
        ms = [(mt, nt) for nt in range(c.WN) for mt in range(c.WM)]
        nm = len(ms)
        A("s_waitcnt lgkmcnt(0)")
        pre = P.get("gpre", 1) if bar is not None else 0
        fill = {}
        rp = P.get("grp", 1)
        for k, f in enumerate(reads):
            fill.setdefault(min(nm, pre + k // rp), []).append(f)
        d0 = pre + P.get("gd0", 0)
        nd_ = len(dmas)
        for k, f in enumerate(dmas):
            fill.setdefault(min(nm, d0 + (k * (nm - d0)) // max(1, nd_)), []).append(f)
        for i in range(nm + 1):
            if i == pre and bar is not None:
                A(f"s_waitcnt vmcnt({bar})")
                A("s_barrier")
            for f in fill.get(i, []):
                f()
            if i < nm:
                mt, nt = ms[i]
                wa, xb = v(c.fa(p, mt), 4), v(c.fb(p, nt), 4)
                d = r(c.acc(mt, nt), 4)
                if vt:
                    A(f"v_mfma_f32_16x16x32_bf16 {d}, {xb}, {wa}, {d}")
                else:
                    A(f"v_mfma_f32_16x16x32_bf16 {d}, {wa}, {xb}, {d}")

    def stage(slot, d1, d2, bar, last):
        nxt = (slot + 1) & 3
        if nsub == 2:
            substep(read_ops(A, c, slot, 1, par[0] ^ 1), dma_ops(A, c, (slot - 1) & 3, "w") if d2 else [], None)
            substep([] if last else read_ops(A, c, nxt, 0, par[0] ^ 1), dma_ops(A, c, slot, "x") if d1 else [], bar)
        else:
            substep([] if last else read_ops(A, c, nxt, 0, par[0] ^ 1),
                    (dma_ops(A, c, slot, "x") + dma_ops(A, c, slot, "w")) if d1 else [], bar)

    A.label(f"{pfx}_loop")
    for st in range(4):
        stage(st, True, True, 2 * c.nd, False)
    A(f"s_sub_u32 {s(sN)}, {s(sN)}, 1")
    A(f"s_cmp_lg_u32 {s(sN)}, 0")
    A(f"s_cbranch_scc1 {pfx}_loop")
    stage(0, False, True, 2 * c.nd, False)
    stage(1, False, False, c.nd, False)
    stage(2, False, False, 0, False)
    res_hook()
    stage(3, False, False, None, True)
    if P.get("diag"):
        A("s_memtime s[82:83]")
    A.nop(8)


def get8(A, c, srcs, tmp):
    out = []
    for k, x in enumerate(srcs):
        if x >= 256:
            for i in range(4):
                A(f"v_accvgpr_read_b32 {v(tmp + 4 * k + i)}, {r(x + i)}")
            out += [tmp + 4 * k + i for i in range(4)]
        else:
            out += [x + i for i in range(4)]
    return out


def act_pairs(A, kind, xs, tmp):
    P_ = [xs[2 * i] for i in range(4)]
    T_ = [tmp + 2 * i for i in range(4)]
    if kind == "gelu":
        for p_, t_ in zip(P_, T_):
            A(f"v_pk_mul_f32 {v(t_, 2)}, {v(p_, 2)}, {v(p_, 2)}")
        for p_, t_ in zip(P_, T_):
            A(f"v_pk_fma_f32 {v(t_, 2)}, {v(t_, 2)}, {v(vC1, 2)}, {v(vC0, 2)}")
        for p_, t_ in zip(P_, T_):
            A(f"v_pk_mul_f32 {v(t_, 2)}, {v(t_, 2)}, {v(p_, 2)}")
    else:
        for p_, t_ in zip(P_, T_):
            A(f"v_pk_mul_f32 {v(t_, 2)}, {v(p_, 2)}, {v(vNL, 2)}")
    for i in range(8):
        A(f"v_exp_f32 {v(tmp + i)}, {v(tmp + i)}")
    for t_ in T_:
        A(f"v_pk_add_f32 {v(t_, 2)}, {v(t_, 2)}, {v(vONE, 2)}")
    for i in range(8):
        A(f"v_rcp_f32 {v(tmp + i)}, {v(tmp + i)}")
    for p_, t_ in zip(P_, T_):
        A(f"v_pk_mul_f32 {v(p_, 2)}, {v(t_, 2)}, {v(p_, 2)}")


class ER:
    out, op, res, sh, pre, none = sOut, sOP, sRes, vSh, False, -1


def res_loads(A, c, grp, xonly=False):
    npm = c.WM // 2
    per = 8 // npm
    for j in range(per):
        nt = grp * per + j
        A(f"s_add_u32 {s(sT0)}, {s(ER.out if xonly else ER.res)}, {nt * 32768}")
        for mp in range(npm):
            if xonly:
                A(f"buffer_load_dwordx4 {v(RESX + 4 * (j * npm + mp), 4)}, {v(ER.sh)}, {s(S_X, 4)}, {s(sT0)} offen offset:{mp * 64}")
            else:
                A(f"buffer_load_dwordx4 {v(RES + 4 * (j * npm + mp), 4)}, {v(vL16)}, {s(S_WS, 4)}, {s(sT0)} offen offset:{mp * 1024} sc1")


def epilogue_fin(A, c):
    npm = c.WM // 2
    per = 8 // npm
    A(f"s_mov_b32 {s(sO2)}, {s(ER.out)}")
    if not ER.pre:
        res_loads(A, c, 0, True)
    k = 0
    nst = 0
    for nt in range(c.WN):
        if nt % per == 0 and nt > 0:
            A("s_nop 1")
            res_loads(A, c, nt // per)
            res_loads(A, c, nt // per, True)
            nst = 0
        for mp in range(npm):
            tb = (k % 2) * 28
            k += 1
            j = (nt % per) * npm + mp
            xs = get8(A, c, (c.acc(2 * mp, nt), c.acc(2 * mp + 1, nt)), tb)
            if nt >= per or not ER.pre:
                A(f"s_waitcnt vmcnt({7 - j + nst})")
            xr = RESX + 4 * j
            for h in range(2):
                A(f"v_permlane16_swap_b32 {v(xr + h)}, {v(xr + 2 + h)}")
            for i in range(4):
                A(f"v_lshlrev_b32 {v(tb + 8 + 2 * i)}, 16, {v(RES + 4 * j + i)}")
                A(f"v_and_b32 {v(tb + 9 + 2 * i)}, 0xffff0000, {v(RES + 4 * j + i)}")
            for h in range(2):
                A(f"v_permlane32_swap_b32 {v(xr + h)}, {v(xr + 2 + h)}")
            for i in range(4):
                A(f"v_lshlrev_b32 {v(tb + 16 + 2 * i)}, 16, {v(xr + i)}")
                A(f"v_and_b32 {v(tb + 17 + 2 * i)}, 0xffff0000, {v(xr + i)}")
            for i in range(4):
                A(f"v_pk_fma_f32 {v(tb + 8 + 2 * i, 2)}, {v(xs[2 * i], 2)}, {v(tb + 8 + 2 * i, 2)}, {v(tb + 16 + 2 * i, 2)}")
            for i in range(4):
                A(f"v_cvt_pk_bf16_f32 {v(tb + 24 + i)}, {v(tb + 8 + 2 * i)}, {v(tb + 9 + 2 * i)}")
            A.nop(1)
            for h in range(2):
                A(f"v_permlane32_swap_b32 {v(tb + 24 + h)}, {v(tb + 26 + h)}")
            A.nop(1)
            for h in range(2):
                A(f"v_permlane16_swap_b32 {v(tb + 24 + h)}, {v(tb + 26 + h)}")
            A(f"buffer_store_dwordx4 {v(tb + 24, 4)}, {v(ER.sh)}, {s(S_OUT, 4)}, {s(sO2)} offen offset:{mp * 64}{L.OSC[0]}")
            nst += 1
        if nt + 1 < c.WN:
            A(f"s_add_u32 {s(sO2)}, {s(sO2)}, 32768")


def held_stores():
    return [f"buffer_store_dwordx4 {v(RESX + 4 * k, 4)}, {v(ER.sh)}, {s(S_WS, 4)}, {s(sO2)} offen offset:{(k & 3) * 1024}{L.ESC[0]}" +
            f"\n s_add_u32 {s(sO2)}, {s(sO2)}, {s(ER.res if k == 7 else ER.op)}" * (k in (3, 7, 11)) for k in range(16)]


def epilogue_hold(A, c, kind):
    assert c.WM == 8 and c.WN == 4 and kind in ("plain", "scl", "vt", "gelu", "gelus")
    A(f"s_mov_b32 {s(sO2)}, {s(ER.out)}")
    if kind == "vt":
        A(f"s_mov_b32 {s(ER.op)}, 4096")
    A(f"s_mov_b32 {s(ER.res)}, {262144 - 4096 if kind == 'vt' else s(ER.op)}")
    if kind != "gelus":
        A(f"v_mov_b32 {v(ER.sh)}, {v(vL16)}")
    for k in range(16):
        tb = (k % 3) * 20
        xs = get8(A, c, (c.acc(k & 7, 2 * (k >> 3)), c.acc(k & 7, 2 * (k >> 3) + 1)) if kind == "vt" else
                  (c.acc(2 * (k & 3), k >> 2), c.acc(2 * (k & 3) + 1, k >> 2)), tb)
        if kind == "scl":
            for i in range(8):
                A(f"v_mul_f32 {v(xs[i])}, {f32((128 ** -0.5) * math.log2(math.e))}, {v(xs[i])}")
        if kind in ("gelu", "gelus"):
            act_pairs(A, "gelu", xs, tb + 8)
        for i in range(4):
            A(f"v_cvt_pk_bf16_f32 {v(RESX + 4 * k + i)}, {v(xs[2 * i])}, {v(xs[2 * i + 1])}")


def epilogue(A, c, kind):
    if kind == "fin":
        return epilogue_fin(A, c)
    npm = c.WM // 2
    A(f"s_mov_b32 {s(sO2)}, {s(ER.out)}")
    k = 0
    if kind == "vt":
        for np_ in range(c.WN // 2):
            for mt in range(c.WM):
                tb = (k & 3) * 16
                k += 1
                xs = get8(A, c, (c.acc(mt, 2 * np_), c.acc(mt, 2 * np_ + 1)), tb)
                for i in range(4):
                    A(f"v_cvt_pk_bf16_f32 {v(tb + 8 + i)}, {v(xs[2 * i])}, {v(xs[2 * i + 1])}")
                if L.THR[0] and k > L.THR[0]:
                    A(f"s_waitcnt vmcnt({L.THR[0] - 1})")
                A(f"buffer_store_dwordx4 {v(tb + 8, 4)}, {v(vL16)}, {s(S_WS, 4)}, {s(sO2)} offen offset:{(mt & 3) * 1024}{L.ESC[0]}")
                if mt == 3 and c.WM == 8:
                    A(f"s_add_u32 {s(sO2)}, {s(sO2)}, 4096")
            A(f"s_add_u32 {s(sO2)}, {s(sO2)}, {262144 - (4096 if c.WM == 8 else 0)}")
        return
    per = 8 // npm
    nst = 0
    for nt in range(c.WN):
        if kind in ("add", "silu") and nt % per == 0 and nt > 0:
            A("s_nop 1")
            res_loads(A, c, nt // per)
            nst = 0
        for mp in range(npm):
            tb = (k % 3) * 20
            k += 1
            xs = get8(A, c, (c.acc(2 * mp, nt), c.acc(2 * mp + 1, nt)), tb)
            if kind in ("add", "silu"):
                j = (nt % per) * npm + mp
                if nt >= per or not ER.pre:
                    A(f"s_waitcnt vmcnt({7 - j + nst})")
                for i in range(4):
                    A(f"v_lshlrev_b32 {v(tb + 8 + 2 * i)}, 16, {v(RES + 4 * j + i)}")
                    A(f"v_and_b32 {v(tb + 9 + 2 * i)}, 0xffff0000, {v(RES + 4 * j + i)}")
                for i in range(4):
                    A(f"v_pk_add_f32 {v(xs[2 * i], 2)}, {v(xs[2 * i], 2)}, {v(tb + 8 + 2 * i, 2)}")
            if kind == "scl":
                for i in range(8):
                    A(f"v_mul_f32 {v(xs[i])}, {f32((128 ** -0.5) * math.log2(math.e))}, {v(xs[i])}")
            if kind in ("gelu", "gelus"):
                act_pairs(A, "gelu", xs, tb + 8)
            if kind == "silu":
                act_pairs(A, "silu", xs, tb + 8)
            for i in range(4):
                A(f"v_cvt_pk_bf16_f32 {v(tb + 16 + i)}, {v(xs[2 * i])}, {v(xs[2 * i + 1])}")
            th = L.THR[1 if kind == "gelus" else 2 if kind == "gelu" else 0]
            if th and k > th and kind not in ("add", "silu"):
                A(f"s_waitcnt vmcnt({th - 1})")
            A(f"buffer_store_dwordx4 {v(tb + 16, 4)}, {v(ER.sh if kind == 'gelus' else vL16)}, {s(S_WS, 4)}, {s(sO2)} offen offset:{mp * 1024}{L.ESC[0]}")
            nst += 1
        if nt + 1 < c.WN:
            A(f"s_add_u32 {s(sO2)}, {s(sO2)}, {s(ER.op)}")


TYPES = {
    L.T_Q: (S_PTR, 8 << 20, 8192, L.XN, 32, 1024, L.Q, 128, "plain", None),
    L.T_K: (S_PTR + 2, 8 << 20, 8192, L.XN, 32, 1024, L.K, 128, "scl", None),
    L.T_V: (S_PTR + 4, 8 << 20, 8192, L.XN, 32, 1024, L.VT, 0, "vt", None),
    L.T_W1: (S_P2, 2 << 20, 2048, L.XN2, 32, 1024, L.H1G, 32, "gelus", None),
    L.T_W2: (S_P2 + 2, 2 << 20, 2048, L.H1, 32, 1024, L.X1, 32, "add", L.XN),
    L.T_W3: (S_P2 + 4, 7 << 20, 7168, L.X1N, 32, 1024, L.H3, 112, "gelu", None),
    L.T_W4: (S_P2 + 6, 7 << 20, 2048, L.H3, 112, 3584, L.G, 32, "silu", L.X1),
    L.T_WO: (S_PTR + 6, 8 << 20, 2048, L.O, 128, 4096, 0, 32, "fin", L.G),
}


def type_setup(A, c, pfx, types, done_lbl, ex=None):
    A.label(f"{pfx}_task")
    for ty in types:
        A(f"s_cmp_eq_u32 {s(sTy)}, {ty}")
        A(f"s_cbranch_scc1 {pfx}_set{ty}")
    A(f"s_branch {done_lbl}")
    for ty in types:
        ptr, wb, ldw, xb, cki, K, out, cko, epi, res = TYPES[ty]
        A.label(f"{pfx}_set{ty}")
        if ex:
            ex(ty)
        A(f"s_lshl_b32 {s(sT0)}, {s(sCt)}, 8")
        A(f"s_add_u32 {s(S_W)}, {s(ptr)}, {s(sT0)}")
        A(f"s_addc_u32 {s(S_W + 1)}, {s(ptr + 1)}, 0")
        A(f"s_and_b32 {s(S_W + 1)}, {s(S_W + 1)}, 0xffff")
        A(f"s_sub_u32 {s(S_W + 2)}, {hex(wb)}, {s(sT0)}")
        A(f"s_mov_b32 {s(S_W + 3)}, 0x20000")
        A(f"s_mov_b32 {s(sLdw)}, {ldw}")
        A(f"s_mov_b32 {s(sXP)}, {cki * 1024}")
        A(f"s_mul_i32 {s(sXo)}, {s(sRb)}, {8 * cki * 1024}")
        A(f"s_add_u32 {s(sXo)}, {s(sXo)}, {hex(xb)}")
        A(f"s_mov_b32 {s(sN)}, {K // c.BK // 4 - 1}")
        if epi == "vt":
            A(f"s_lshl_b32 {s(sT0)}, {s(sRb)}, 2")
            A(f"s_mul_i32 {s(sT1)}, {s(sWn)}, {c.WN // 2}")
            A(f"s_add_u32 {s(sT0)}, {s(sT0)}, {s(sT1)}")
            A(f"s_lshl_b32 {s(sT0)}, {s(sT0)}, 18")
            A(f"s_lshl_b32 {s(sT1)}, {s(sCt)}, 13")
            A(f"s_add_u32 {s(sT0)}, {s(sT0)}, {s(sT1)}")
            A(f"s_mul_i32 {s(sT1)}, {s(sWm)}, {c.WM * 1024}")
            A(f"s_add_u32 {s(sT0)}, {s(sT0)}, {s(sT1)}")
            A(f"s_add_u32 {s(sOut)}, {s(sT0)}, {hex(out)}")
            A(f"s_branch {pfx}_gov")
            continue
        A(f"s_lshl_b32 {s(sT0)}, {s(sRb)}, 3")
        A(f"s_mul_i32 {s(sT1)}, {s(sWn)}, {c.WN}")
        A(f"s_add_u32 {s(sT0)}, {s(sT0)}, {s(sT1)}")
        A(f"s_mul_i32 {s(sT0)}, {s(sT0)}, {cko * 1024}")
        if epi == "fin":
            A(f"s_lshl_b32 {s(sT1)}, {s(sCt)}, 8")
            A(f"s_add_u32 {s(sT2)}, {s(sT0)}, {s(sT1)}")
            A(f"s_mul_i32 {s(sT1)}, {s(sWm)}, {c.WM * 32}")
            A(f"s_add_u32 {s(sT2)}, {s(sT2)}, {s(sT1)}")
        A(f"s_lshl_b32 {s(sT1)}, {s(sCt)}, 12")
        A(f"s_add_u32 {s(sT0)}, {s(sT0)}, {s(sT1)}")
        A(f"s_mul_i32 {s(sT1)}, {s(sWm)}, {c.WM // 2 * 1024}")
        A(f"s_add_u32 {s(sT0)}, {s(sT0)}, {s(sT1)}")
        A(f"s_add_u32 {s(sOut)}, {s(sT0)}, {hex(out)}")
        A(f"s_mov_b32 {s(sOP)}, {cko * 1024}")
        if res is not None:
            A(f"s_add_u32 {s(sRes)}, {s(sT0)}, {hex(res)}")
        else:
            A(f"s_mov_b32 {s(sRes)}, {ER.none}")
        if epi == "fin":
            A(f"s_mov_b32 {s(sOut)}, {s(sT2)}")
            A(f"v_and_b32 {v(vT0)}, 15, {v(vLane)}")
            A(f"v_and_b32 {v(vT1)}, 48, {v(vLane)}")
            A(f"v_lshl_add_u32 {v(vSh)}, {v(vT0)}, 11, {v(vT1)}")
        if epi == "gelus":
            A(f"s_lshr_b32 {s(sT0)}, {s(sCt)}, 2")
            A(f"s_add_u32 {s(sT0)}, {s(sT0)}, 1")
            A(f"s_sub_u32 {s(sT1)}, 0, {s(sT0)}")
            A(f"s_bitcmp1_b32 {s(sCt)}, 1")
            A(f"s_cselect_b32 {s(sT0)}, {s(sT1)}, {s(sT0)}")
            A(f"s_add_u32 {s(sT0)}, {s(sT0)}, 16")
            A(f"v_and_b32 {v(vT0)}, 15, {v(vLane)}")
            A(f"v_add_u32 {v(vT0)}, {s(sT0)}, {v(vT0)}")
            A(f"v_lshrrev_b32 {v(vT1)}, 4, {v(vT0)}")
            A(f"v_lshlrev_b32 {v(vT1)}, 15, {v(vT1)}")
            A(f"v_and_b32 {v(vT0)}, 15, {v(vT0)}")
            A(f"v_lshl_add_u32 {v(vT1)}, {v(vT0)}, 4, {v(vT1)}")
            A(f"v_and_b32 {v(vT0)}, 0x300, {v(vL16)}")
            A(f"v_add_u32 {v(vSh)}, {v(vT0)}, {v(vT1)}")
        A(f"s_branch {pfx}_go")


def gemm_task(A, c, pfx, P, types, done_lbl):
    type_setup(A, c, pfx, types, done_lbl)
    ntypes = [t for t in types if TYPES[t][8] != "vt"]
    if ntypes:
        A.label(f"{pfx}_go")
        addr_setup(A, c)

        def hook():
            if any(TYPES[t][9] is not None for t in ntypes):
                A(f"s_cmp_eq_u32 {s(sRes)}, -1")
                A(f"s_cbranch_scc1 {pfx}_nores")
                res_loads(A, c, 0)
                A.label(f"{pfx}_nores")
        main_loop(A, c, False, f"{pfx}_n", P, hook)
        kinds = []
        for ty in ntypes:
            if TYPES[ty][8] not in kinds:
                kinds.append(TYPES[ty][8])
        for ty in ntypes:
            if TYPES[ty][8] != kinds[0]:
                A(f"s_cmp_eq_u32 {s(sTy)}, {ty}")
                A(f"s_cbranch_scc1 {pfx}_e{TYPES[ty][8]}")
        for kd in kinds:
            A.label(f"{pfx}_e{kd}")
            epilogue(A, c, kd)
            A(f"s_branch {done_lbl}")
    if L.T_V in types:
        A.label(f"{pfx}_gov")
        addr_setup(A, c)
        main_loop(A, c, True, f"{pfx}_v", P, lambda: None)
        epilogue(A, c, "vt")
        A(f"s_branch {done_lbl}")
```

```python
from asmlib import *
import layout as L
import chain
from chain import S_WS, S_W, S_DBG, sX, sT, sWv, sBud, S_PTR, srd, t0, t1, t2
import gemm
from gemm import S_P2, S_PX, S_PO, S_X, S_OUT, vLane, vL16, vT0, vT1, vT2, sT0, sT1, sT2, sT3, sQ, sQn, LDS_MISC
import worker
import pipe
import ln
import att
import att2
import wo

S_M0 = 76


def touch(A, P, ptr, nbytes, sidx, per, vaddr, vd):
    st = P.get("pfs", 128)
    srd(A, S_W, ptr, nbytes)
    A(f"s_mul_i32 {s(sT3)}, {s(sidx)}, {per}")
    for i in range(per // (256 * st)):
        if P.get("pf2", 1):
            A(f"buffer_load_dwordx2 {v(vd, 2)}, {v(vaddr)}, {s(S_W, 4)}, {s(sT3)} offen offset:60")
        else:
            A(f"buffer_load_dword {v(vd)}, {v(vaddr)}, {s(S_W, 4)}, {s(sT3)} offen")
        A(f"s_add_u32 {s(sT3)}, {s(sT3)}, {256 * st}")
        if P.get("apf", 0) > 1:
            A(f"s_waitcnt vmcnt({P['apf'] - 2})")


def slow_lines(A, mask, sidx, reps):
    if not mask:
        return
    A("v_cmp_gt_u32 vcc, 128, v0")
    A("v_mov_b32 v20, 0x1f80")
    A("v_mov_b32 v21, 0x380")
    A("v_cndmask_b32 v20, v20, v21, vcc")
    A("v_mov_b32 v21, 0x1fff")
    A("v_mov_b32 v22, 0x1ff")
    A("v_cndmask_b32 v21, v21, v22, vcc")
    A("v_subrev_u32 v22, 128, v0")
    A("v_lshlrev_b32 v22, 13, v22")
    A("v_lshlrev_b32 v23, 10, v0")
    A("v_cndmask_b32 v22, v22, v23, vcc")
    A("v_cmp_gt_u32 vcc, 144, v0")
    A("v_mov_b32 v23, 0x40000000")
    A("s_nop 0")
    A("v_cndmask_b32 v22, v23, v22, vcc")
    for b, k in enumerate((2, 4, 0, 6)):
        if not mask >> b & 1:
            continue
        srd(A, S_W, S_PTR + k, 8 << 20)
        A(f"s_lshl_b32 {s(sT3)}, {s(sidx)}, 17")
        A(f"v_subrev_u32 v23, {s(S_PTR + k)}, v21")
        A("v_and_b32 v23, v23, v20")
        A(f"v_add_u32 {v(24 + k)}, v23, v22")
        for i in range(reps):
            A(f"buffer_load_dwordx2 {v(14, 2)}, {v(24 + k)}, {s(S_W, 4)}, {s(sT3)} offen offset:60")
            A(f"s_add_u32 {s(sT3)}, {s(sT3)}, {(8 << 20) // reps}")


def startup(A, pfx, ex, P):
    sTile, sF = 15, 16
    vT16, ZR, SN = 1, 4, 8
    srd(A, S_X, S_PX, 4 << 20)
    srd(A, S_OUT, S_PO, 4 << 20)
    A(f"v_lshlrev_b32 {v(vT16)}, 4, v0")
    A(f"v_lshlrev_b32 {v(vL16)}, 4, {v(vLane)}")
    for i in range(4):
        A(f"v_mov_b32 {v(ZR + i)}, 0")
        A(f"v_mov_b32 {v(SN + i)}, -1")
    vPA, vPD = 12, 14
    A(f"v_mul_u32_u24 {v(vPA)}, {P.get('pfs', 128)}, v0")
    pf = P.get("pf", 0)
    A(f"s_lshl_b32 {s(sTile)}, {s(sX)}, 4")
    A(f"s_and_b32 {s(sT0)}, {s(sX)}, 1")
    A(f"s_lshl_b32 {s(sT0)}, {s(sT0)}, 5")
    A(f"s_cmp_lt_u32 {s(sX)}, 4")
    A(f"s_cselect_b32 {s(sTile)}, {s(sT0)}, {s(sTile)}")
    A(f"s_cselect_b32 {s(sT0)}, 32, 16")
    A(f"s_add_u32 {s(sTile)}, {s(sTile)}, {s(sT)}")
    A(f"s_sub_u32 {s(sF)}, {s(sTile)}, 80")
    A(f"s_sub_u32 {s(sQ)}, {s(sX)}, 2")
    if P.get("asp", 0):
        A(f"s_lshl_b32 {s(sQn)}, {s(sX)}, 5")
        A(f"s_add_u32 {s(sQn)}, {s(sQn)}, {s(sT)}")
        A(f"s_cmp_ge_u32 {s(sQn)}, 248")
        A(f"s_cselect_b32 {s(sQ)}, 1, {s(sQ)}")
    A(f"s_mov_b32 {s(sQn)}, 0")
    A(f"s_cmp_lt_u32 {s(sT)}, {s(sT0)}")
    A(f"s_cbranch_scc1 {pfx}_ln")
    A(f"s_cmp_lg_u32 {s(sT)}, 16")
    A(f"s_cbranch_scc1 {pfx}_fill")
    A(f"s_lshl_b32 {s(sT0)}, {s(sF)}, 11")
    A(f"s_add_u32 {s(sT0)}, {s(sT0)}, {hex(L.FLAGS)}")
    for i in range(8):
        A(f"buffer_store_dwordx4 {v(ZR, 4)}, {v(vT16)}, {s(S_WS, 4)}, {s(sT0)} offen sc1")
        A(f"s_add_u32 {s(sT0)}, {s(sT0)}, 4096")
    A("v_bfe_u32 v2, v0, 2, 1")
    A(f"s_lshr_b32 {s(sT0)}, {s(sWv)}, 1")
    A(f"v_and_b32 v2, {s(sT0)}, v2")
    A(f"s_bitcmp1_b32 {s(sWv)}, 0")
    A(f"s_cselect_b32 {s(sT0)}, 15, 0")
    A(f"s_cselect_b32 {s(sT1)}, {127 * 32768}, 0")
    A(f"v_xor_b32 v2, {s(sT0)}, v2")
    A("v_lshlrev_b32 v2, 4, v2")
    A("v_and_b32 v3, 3, v0")
    A("v_lshl_add_u32 v2, v3, 8, v2")
    A("v_lshrrev_b32 v3, 3, v0")
    A("v_lshl_add_u32 v2, v3, 10, v2")
    A(f"s_add_u32 {s(sT1)}, {s(sT1)}, {hex(L.H1)}")
    A(f"buffer_store_dwordx4 {v(ZR, 4)}, v2, {s(S_WS, 4)}, {s(sT1)} offen sc1")
    A("s_waitcnt vmcnt(0)")
    A("s_barrier")
    A(f"s_cmp_lg_u32 {s(sWv)}, 0")
    A(f"s_cbranch_scc1 {pfx}_fill")
    A("v_mov_b32 v2, 1")
    A("s_mov_b64 exec, 1")
    A(f"buffer_atomic_add v2, {v(ZR)}, {s(S_DBG, 4)}, 0 offen offset:{L.D_A} sc1")
    A("s_mov_b64 exec, -1")
    A(f"s_branch {pfx}_fill")
    A.label(f"{pfx}_ln")
    A(f"v_and_b32 v3, 15, {v(vLane)}")
    A(f"v_and_b32 v2, 48, {v(vLane)}")
    A("v_lshl_add_u32 v3, v3, 11, v2")
    A(f"s_lshl_b32 {s(sT2)}, {s(sTile)}, 15")
    A(f"s_lshl_b32 {s(sT0)}, {s(sWv)}, 9")
    A(f"s_add_u32 {s(sT0)}, {s(sT2)}, {s(sT0)}")
    for b in range(8):
        A(f"buffer_load_dwordx4 {v(32 + 4 * b, 4)}, v3, {s(S_X, 4)}, {s(sT0)} offen offset:{64 * b}")
    ln.ln_addr(A, vLane, sWv, vT0, vT1, vT2, LDS_MISC + 1024)
    A(f"s_lshl_b32 {s(sT0)}, {s(sWv)}, 13")
    A(f"s_add_u32 {s(sT2)}, {s(sT2)}, {s(sT0)}")
    A("s_waitcnt vmcnt(0)")
    if pf & 2:
        touch(A, P, S_PTR + 6, 8 << 20, sTile, 65536, vPA, vPD)
    if pf & 16:
        touch(A, P, S_PTR, 8 << 20, sTile, 65536, vPA, vPD)
    ln.lin2nat(A, 32)
    A(f"s_lshr_b32 {s(sT0)}, {s(sTile)}, 3")
    A(f"s_lshl_b32 {s(sT0)}, {s(sT0)}, 9")
    A(f"s_and_b32 {s(sT1)}, {s(sTile)}, 7")
    A(f"s_lshl_b32 {s(sT1)}, {s(sT1)}, 4")
    A(f"s_add_u32 {s(sT0)}, {s(sT0)}, {s(sT1)}")
    A(f"s_add_u32 {s(sF)}, {s(sT0)}, {hex(L.FLAGS + L.F_T + L.T_LN1 * 8192)}")

    def xn_flag():
        A(f"s_cmp_lg_u32 {s(sWv)}, 0")
        A(f"s_cbranch_scc1 {pfx}_nf")
        A("v_cmp_gt_u32 vcc, 4, v2")
        A(f"s_cbranch_vccz {pfx}_wa1_ok")
        chain.wait_a(A, f"{pfx}_wa1", ex, 2, 3)
        A("s_mov_b64 exec, 1")
        A(f"buffer_store_dword {v(SN)}, {v(ZR)}, {s(S_WS, 4)}, {s(sF)} offen sc1")
        A("s_mov_b64 exec, -1")
        A.label(f"{pfx}_nf")

    for rep, dst in ((0, L.XN), (1, L.XN2)):
        src, out = (32, 128) if rep == 0 else (128, 32)
        ln.ln_core(A, src, 64, 16, vT0, vT1, 0, out, xn_flag if rep else None)
        A(f"s_add_u32 {s(sT0)}, {s(sT2)}, {hex(dst)}")
        A(f"s_add_u32 {s(sT1)}, {s(sT0)}, 4096")
        for b in range(8):
            A(f"buffer_store_dwordx4 {v(out + 4 * b, 4)}, {v(vL16)}, {s(S_WS, 4)}, {s(sT0 + (b >> 2))} offen offset:{(b & 3) * 1024} sc1")
        if not rep:
            A(f"buffer_load_dword v2, {v(ZR)}, {s(S_DBG, 4)}, 0 offen offset:{L.D_A} sc1")
    A(f"s_add_u32 {s(sF)}, {s(sF)}, 4")
    A(f"s_branch {pfx}_wa2_ok")
    A.label(f"{pfx}_fill")
    slow_lines(A, P.get("w3", 0), sF, 1)
    if P.get("wk", 0):
        A("v_lshrrev_b32 v20, 4, v0")
        A("v_and_b32 v21, 15, v0")
        A("v_lshlrev_b32 v20, 13, v20")
        A("v_lshl_add_u32 v20, v21, 7, v20")
        A(f"s_lshr_b32 {s(sT3)}, {s(sF)}, 4")
        A(f"s_and_b32 {s(sT2)}, {s(sF)}, 15")
        A(f"s_lshl_b32 {s(sT3)}, {s(sT3)}, 11")
        A(f"s_lshl_b32 {s(sT2)}, {s(sT2)}, 17")
        A(f"s_add_u32 {s(sT3)}, {s(sT3)}, {s(sT2)}")
        for i in range(P["wk"]):
            srd(A, S_W, S_PTR + (4 if i & 1 else 2), 8 << 20)
            A(f"buffer_load_dwordx2 {v(14, 2)}, v20, {s(S_W, 4)}, {s(sT3)} offen offset:60")
            if i & 1:
                A(f"s_add_u32 {s(sT3)}, {s(sT3)}, {1 << 21}")
    if pf & 1:
        touch(A, P, S_PTR + 2, 8 << 20, sF, 131072, vPA, vPD)
        touch(A, P, S_PTR + 4, 8 << 20, sF, 131072, vPA, vPD)
    if pf & 32:
        touch(A, P, S_PTR + 4, 8 << 20, sF, 131072, vPA, vPD)
    if pf & 4:
        touch(A, P, S_PTR, 8 << 20, sF, 131072, vPA, vPD)
    if pf & 8:
        touch(A, P, S_PTR + 6, 8 << 20, sF, 131072, vPA, vPD)
    A(f"s_lshl_b32 {s(sT0)}, {s(sF)}, 2")
    for i in range(4):
        A(f"s_sub_u32 {s(sT1)}, {s(sT0)}, {48 - i}")
        A(f"s_lshl_b32 {s(sT2)}, {s(sT0)}, 12")
        A(f"s_add_u32 {s(sT2)}, {s(sT2)}, {hex(L.STEP + 4096 * i)}")
        A(f"s_cmp_lt_u32 {s(sT1)}, 16")
        A(f"s_cselect_b32 {s(sT2)}, {hex(chain.OOB)}, {s(sT2)}")
        A(f"buffer_store_dwordx4 {v(SN, 4)}, {v(vT16)}, {s(S_WS, 4)}, {s(sT2)} offen sc1")
    A(f"s_lshl_b32 {s(sT0)}, {s(sF)}, 12")
    A(f"s_add_u32 {s(sT1)}, {s(sT0)}, {hex(L.MR)}")
    A(f"s_add_u32 {s(sT2)}, {s(sT0)}, {hex(L.MR if P.get('xkv') else L.VM)}")
    A(f"buffer_store_dwordx4 {v(SN, 4)}, {v(vT16)}, {s(S_WS, 4)}, {s(sT2)} offen sc1")
    A(f"s_add_u32 {s(sT0)}, {s(sT0)}, {hex(L.MR if P.get('xkv') else L.KM)}")
    A(f"buffer_store_dwordx4 {v(SN, 4)}, {v(vT16)}, {s(S_WS, 4)}, {s(sT0)} offen sc1")
    A(f"buffer_store_dwordx4 {v(SN, 4)}, {v(vT16)}, {s(S_WS, 4)}, {s(sT1)} offen sc1")
    A(f"s_lshl_b32 {s(sF)}, {s(sF)}, 2")
    A(f"s_add_u32 {s(sF)}, {s(sF)}, {hex(L.FLAGS + L.F_FILL)}")
    A(f"s_cmp_lg_u32 {s(sF)}, {hex(L.FLAGS + L.F_FILL + 52)}")
    A(f"s_cbranch_scc1 {pfx}_fd")
    assert L.S_MEML == 48 * 4096 and L.S_MEMR == 56 * 4096
    srd(A, S_W, S_M0, 16384)
    A("v_and_b32 v2, 7, v0")
    A("v_lshlrev_b32 v2, 11, v2")
    A("v_lshrrev_b32 v3, 6, v0")
    A("v_lshl_add_u32 v2, v3, 7, v2")
    A("v_bfe_u32 v3, v0, 4, 2")
    A("v_lshl_add_u32 v2, v3, 5, v2")
    A("v_bfe_u32 v3, v0, 3, 1")
    A("v_lshl_add_u32 v2, v3, 4, v2")
    for q in range(4):
        A(f"buffer_load_dwordx4 {v(16 + 4 * q, 4)}, v2, {s(S_W, 4)}, 0 offen offset:{512 * q}")
    A(f"s_mov_b32 {s(sT0)}, {hex(L.STEP + L.S_MEML)}")
    A("s_waitcnt vmcnt(0)")
    if P.get("pa"):
        A(f"s_cmp_lt_u32 {s(sWv)}, {P['nD']}")
        A(f"s_cbranch_scc1 {pfx}_m0b")
        for i in range(16):
            A(f"v_lshlrev_b32 v2, 16, {v(16 + i)}")
            A(f"v_and_b32 v3, 0xffff0000, {v(16 + i)}")
            A(f"v_cvt_pk_f16_f32 {v(16 + i)}, v2, v3")
        A.label(f"{pfx}_m0b")
    A(f"v_xor_b32 v2, {0x400 if P.get('msw', 0) else 0}, {v(vT16)}")
    for q in range(16):
        A(f"buffer_store_dwordx4 {v(ZR if q & 4 else 16 + 4 * (q & 3), 4)}, {v(2 if q & 1 else vT16)}, {s(S_WS, 4)}, {s(sT0)} offen sc1")
        A(f"s_add_u32 {s(sT0)}, {s(sT0)}, 4096")
    chain.wait_a(A, f"{pfx}_wa3", ex, 2, 3)
    A(f"v_lshlrev_b32 v2, {max(L.FS, L.FC)}, {v(vLane)}")
    A(f"s_mov_b32 {s(sT0)}, {hex(L.FLAGS + L.F_T + L.T_FILL * 8192 + (64 << L.FS))}")
    A("s_mov_b64 exec, 15")
    A(f"buffer_store_dwordx4 {v(SN, 4)}, v2, {s(S_WS, 4)}, {s(sT0)} offen sc1")
    A("s_mov_b64 exec, -1")
    A.label(f"{pfx}_fd")
    A(f"s_cmp_lg_u32 {s(sWv)}, 0")
    A(f"s_cbranch_scc1 {pfx}_wa2_ok")
    chain.wait_a(A, f"{pfx}_wa2", ex, 2, 3)
    A("s_waitcnt vmcnt(0)")
    A("s_barrier")
    A(f"s_cmp_lg_u32 {s(sWv)}, 0")
    A(f"s_cbranch_scc1 {pfx}_end")
    A("s_mov_b64 exec, 1")
    A(f"buffer_store_dword {v(SN)}, {v(ZR)}, {s(S_WS, 4)}, {s(sF)} offen sc1")
    A("s_mov_b64 exec, -1")
    A.label(f"{pfx}_end")

def probe(A, pfx, P):
    sMin = 20
    A(f"s_cmp_gt_u32 {s(sT)}, 1")
    A(f"s_cbranch_scc1 {pfx}_end")
    A(f"s_cmp_lg_u32 {s(sWv)}, 0")
    A(f"s_cbranch_scc1 {pfx}_bar")
    A(f"s_lshl_b32 {s(sT0)}, {s(sT)}, 21")
    A(f"s_add_u32 {s(sT0)}, {s(sT0)}, {hex(L.MR)}")
    A(f"v_lshlrev_b32 v2, 2, {v(vLane)}")
    A("v_mov_b32 v3, -1")
    A(f"s_mov_b64 {s(sMin, 2)}, -1")
    A(f"s_mov_b32 {s(sT2)}, {P.get('npr', 12)}")
    A("s_mov_b32 exec_hi, 0")
    A("s_waitcnt vmcnt(0)")
    A.label(f"{pfx}_lp")
    for h in range(2):
        A("s_memtime s[16:17]")
        A("s_waitcnt lgkmcnt(0)")
        A(f"buffer_store_dword v3, v2, {s(S_WS, 4)}, {s(sT0)} offen sc1")
        A("s_waitcnt vmcnt(0)")
        A("s_memtime s[18:19]")
        A(f"s_xor_b32 {s(sT0)}, {s(sT0)}, 0x2000")
        A("s_waitcnt lgkmcnt(0)")
        A(f"s_sub_u32 {s(sT1)}, s18, s16")
        A(f"s_min_u32 {s(sMin + h)}, {s(sMin + h)}, {s(sT1)}")
    A(f"s_add_u32 {s(sT0)}, {s(sT0)}, 128")
    A(f"s_sub_u32 {s(sT2)}, {s(sT2)}, 1")
    A(f"s_cmp_lg_u32 {s(sT2)}, 0")
    A(f"s_cbranch_scc1 {pfx}_lp")
    A(f"s_cmp_lt_u32 {s(sMin + 1)}, {s(sMin)}")
    A(f"s_cselect_b32 {s(sT0)}, {3 ^ P.get('nbx', 0)}, {2 ^ P.get('nbx', 0)}")
    A(f"s_lshl_b32 {s(sT1)}, {s(sT)}, 2")
    A(f"v_mov_b32 v3, {s(sT0)}")
    A("s_mov_b64 exec, 1")
    A(f"buffer_store_dword v3, off, {s(S_DBG, 4)}, {s(sT1)} offset:{L.D_NB} sc1")
    if P.get("diag"):
        A(f"s_lshl_b32 {s(sT1)}, {s(sT)}, 3")
        A(f"v_mov_b32 v4, {s(sMin)}")
        A(f"v_mov_b32 v5, {s(sMin + 1)}")
        A(f"buffer_store_dwordx2 v[4:5], off, {s(S_DBG, 4)}, {s(sT1)} offset:48 sc1")
    A("s_mov_b64 exec, -1")
    A.label(f"{pfx}_bar")
    A("s_barrier")
    A.label(f"{pfx}_end")


def main_kernel(A, name, P, queues):
    kernel_begin(A, name)
    ex = f"{name}_end"
    A(f"s_load_dwordx4 {s(20, 4)}, s[0:1], 104")
    A(f"s_load_dwordx8 {s(S_PTR, 8)}, s[0:1], 16")
    A(f"s_load_dwordx8 {s(S_P2, 8)}, s[0:1], 64")
    A(f"s_load_dwordx2 {s(S_PX, 2)}, s[0:1], 0")
    A(f"s_load_dwordx2 {s(S_PO, 2)}, s[0:1], 96")
    A(f"s_load_dwordx2 {s(S_M0, 2)}, s[0:1], 8")
    if P.get("diag"):
        A("s_memtime s[56:57]")
        A("s_memrealtime s[100:101]")
    A("s_cmp_ge_u32 s2, 256")
    A(f"s_cbranch_scc1 {ex}")
    A(f"v_lshrrev_b32 {v(t0)}, 6, v0")
    A(f"v_and_b32 {v(t2)}, 63, v0")
    A(f"v_and_b32 {v(vLane)}, 63, v0")
    A(f"v_readfirstlane_b32 {s(sWv)}, {v(t0)}")
    A(f"s_mov_b32 {s(sBud)}, {hex(1 << 19)}")
    A("s_waitcnt lgkmcnt(0)")
    srd(A, S_DBG, 20, 256)
    srd(A, S_WS, 22, L.WS_BYTES)
    chain.slot_assign(A, name, ex)
    A(f"s_cmp_ge_u32 {s(sX)}, 8")
    A(f"s_cbranch_scc1 {ex}")
    if P.get("asp", 0):
        A(f"s_lshl_b32 {s(sT0)}, {s(sX)}, 2")
        A(f"s_lshr_b32 {s(sT1)}, {s(sT)}, 3")
        A(f"s_add_u32 {s(sT0)}, {s(sT0)}, {s(sT1)}")
        A(f"s_bitcmp1_b32 {hex(1 << 13 | 1 << 31)}, {s(sT0)}")
        A(f"s_cselect_b32 {s(sT0)}, 4, 0")
        A(f"s_cselect_b32 {s(sT1)}, 16, 0")
        A(f"s_xor_b32 {s(sX)}, {s(sX)}, {s(sT0)}")
        A(f"s_xor_b32 {s(sT)}, {s(sT)}, {s(sT1)}")
    if P.get("rot"):
        A(f"s_add_u32 {s(sT)}, {s(sT)}, {P['rot']}")
        A(f"s_and_b32 {s(sT)}, {s(sT)}, 31")
    if P.get("diag"):
        A("s_memrealtime s[58:59]")
        A(f"s_lshl_b32 {s(sT0)}, {s(sX)}, 5")
        A(f"s_add_u32 {s(sT0)}, {s(sT0)}, {s(sT)}")
        A(f"s_lshl_b32 {s(sT0)}, {s(sT0)}, 12")
        A(f"s_add_u32 {s(sT0)}, {s(sT0)}, {hex(L.STAMP + (2 << 20) + 4096 - 32)}")
        A("s_waitcnt lgkmcnt(0)")
        A("v_mov_b32 v2, s100")
        A("v_mov_b32 v3, s58")
        A("v_mov_b32 v4, 0")
        A(f"buffer_store_dwordx2 v[2:3], v4, {s(S_WS, 4)}, {s(sT0)} offen")
    A(f"s_cmp_lt_u32 {s(sX)}, 2")
    A(f"s_cbranch_scc1 {name}_chain")
    startup(A, name + "_s", ex, P)
    A(f"s_lshl_b32 {s(sT0)}, {s(sX)}, 5")
    A(f"s_add_u32 {s(sT0)}, {s(sT0)}, {s(sT)}")
    A(f"s_sub_u32 {s(sT0)}, {s(sT0)}, 96")
    A(f"s_cmp_lt_u32 {s(sT0)}, 16")
    A(f"s_cbranch_scc1 {name}_att")
    if P.get("hold", 0):
        A(f"s_cmp_lt_u32 {s(sX)}, 4")
        A(f"s_cselect_b32 {s(sT0)}, 32, 16")
        A(f"s_cmp_lt_u32 {s(sT)}, {s(sT0)}")
        A(f"s_cbranch_scc0 {name}_nh")
        for _ in range(P["hold"]):
            A("s_sleep 64")
        A.label(f"{name}_nh")
    A(f"s_branch {name}_worker")
    A.label(ex)
    A("s_endpgm")
    A.label(f"{name}_chain")
    chain.chain_body(A, name + "_c", ex, P)
    A.label(f"{name}_att")
    probe(A, name + "_p", P)
    slow_lines(A, P.get("w3a", 0), sT, 4)
    if P.get("apf", 0):
        for k in range(P.get('apn', 4)):
            n = (2 if k < 2 else 7) << 20
            touch(A, P, S_P2 + 2 * k, n, sT, n // 16, 12, 14)
    if P.get("ah", 0):
        A(f"s_lshl_b32 {s(sT3)}, {s(sT)}, 18")
        A(f"s_add_u32 {s(sT3)}, {s(sT3)}, {hex(L.H1)}")
        if P["ah"] == 2:
            A("v_bfe_u32 v13, v0, 5, 1")
            A("v_mul_u32_u24 v13, 192, v13")
            A("v_lshl_add_u32 v13, v0, 8, v13")
        for i in range(8 // P["ah"]):
            A(f"buffer_load_dword v14, v13, {s(S_WS, 4)}, {s(sT3)} offen" if P["ah"] == 2 else
              f"buffer_load_dwordx2 v[14:15], v12, {s(S_WS, 4)}, {s(sT3)} offen offset:60")
            A(f"s_add_u32 {s(sT3)}, {s(sT3)}, {32768 * P['ah']}")
    chain.wait_fill(A, f"{name}_awf", ex, vLane, 0, 2)
    if len(queues) == 7:
        A(f"s_mov_b32 {s(sQ)}, 6")
        A(f"s_branch {name}_worker")
    A.label(f"{name}_att2")
    (att2 if P.get("a2") else att).attention(A, name + "_a", ex, P)
    A.label(f"{name}_wo")
    wo.wo_stream(A, name + "_o", ex, P)
    A.label(f"{name}_end2")
    A("s_endpgm")
    A.label(f"{name}_worker")
    (pipe if P.get('pipe') else worker).worker(A, name + "_w", f"{name}_end2", P, queues, f"{name}_wo", f"{name}_att2" if P.get("g2", 0) else None)
    kernel_desc(A, name, 512, 256)
```

```python
from asmlib import *
import layout as L
import gemm
from gemm import *
from worker import pack, small_jobs, LN2_TILES

sFm, sOutE, sOPE, sResE = 0, 1, 2, 3
sEv, sEp, sEpN, sGo, sFb = 55, 56, 57, 58, 59
sDq, sNW, sNx, sRs = 60, 61, 62, 63
sW0 = 100
sNn, sCur = 72, 73
vShE, vQa, vRow, vCon = 145, 146, 147, 151
vZq, vDa, vSt, vTb, vPl, vPq, vFa, vTk = 224, 228, 229, 230, 231, 232, 248, 249
NONE = 15
GM = sum(1 << t for t in TYPES)


def flag_ops():
    return [f"s_add_u32 {s(sT0)}, {s(sTy)}, 1\n s_bitcmp0_b32 {s(sT0)}, 2\n s_cselect_b32 {s(sT2)}, 7, 2\n s_cselect_b32 {s(sT3)}, 2, 4",
            f"s_lshl_b32 {s(sFb)}, {s(sTy)}, 13", f"s_add_u32 {s(sFb)}, {s(sFb)}, {hex(L.FLAGS + L.F_T)}",
            f"v_lshrrev_b32 {v(vT0)}, 3, {v(vLane)}", f"v_add_lshl_u32 {v(vT0)}, {s(sRb)}, {v(vT0)}, 9", f"v_and_b32 {v(vT1)}, 3, {v(vLane)}",
            f"v_lshl_add_u32 {v(vT0)}, {v(vT1)}, {s(sT2)}, {v(vT0)}",
            f"v_bfe_u32 {v(vT1)}, {v(vLane)}, 2, 1", f"v_add_u32 {v(vT1)}, {s(sCt)}, {v(vT1)}", f"v_lshl_add_u32 {v(vFa)}, {v(vT1)}, {s(sT3)}, {v(vT0)}",
            f"s_lshl_b32 {s(sFm)}, 4, {s(sCf)}"]


def poll_ld():
    return (f"buffer_load_dword {v(vPl)}, {v(vDa)}, {s(S_WS, 4)}, {s(sDb)} offen sc1\n"
            f"buffer_load_dwordx4 {v(vPq, 4)}, {v(vQa)}, {s(S_WS, 4)}, {s(sDq)} offen sc1")


def decode_ops():
    bfe = lambda d, o, w: f"s_bfe_u32 {s(d)}, {s(sPk)}, {hex(o | (w << 16))}"
    sel = lambda ty, *x: f"s_cmp_eq_u32 {s(sTy)}, {ty}" + "".join(f"\n s_cselect_b32 {s(d)}, {a_}, {b_}" for d, a_, b_ in x)
    return [f"v_readfirstlane_b32 {s(sI)}, {v(vTk)}", "s_nop 1", f"v_cmp_ge_u32 vcc, {s(sI)}, {v(vSt)}", "s_nop 1",
            f"s_bcnt1_i32_b64 {s(sT0)}, vcc", f"s_sub_u32 {s(sT0)}, {s(sT0)}, 1", f"v_readlane_b32 {s(sPk)}, {v(vTb)}, {s(sT0)}", "s_nop 1",
            f"s_and_b32 {s(sT0)}, {s(sPk)}, 0x7ff", f"s_sub_u32 {s(sI)}, {s(sI)}, {s(sT0)}", bfe(sT0, 26, 3),
            f"s_lshr_b32 {s(sCt)}, {s(sI)}, {s(sT0)}", f"s_lshl_b32 {s(sT1)}, {s(sCt)}, {s(sT0)}", f"s_sub_u32 {s(sRb)}, {s(sI)}, {s(sT1)}",
            bfe(sT2, 29, 1), f"s_lshl_b32 {s(sRb)}, {s(sRb)}, {s(sT2)}", bfe(sT3, 30, 1), f"s_lshl_b32 {s(sCt)}, {s(sCt)}, {s(sT3)}",
            bfe(sT0, 17, 4), f"s_add_u32 {s(sRb)}, {s(sRb)}, {s(sT0)}", bfe(sT0, 21, 5), f"s_add_u32 {s(sCt)}, {s(sCt)}, {s(sT0)}",
            bfe(sTy, 11, 4), bfe(sPk, 11, 6), f"s_lshl_b32 {s(sT0)}, {s(sRb)}, 8", f"s_or_b32 {s(sPk)}, {s(sPk)}, {s(sT0)}",
            f"s_lshl_b32 {s(sT0)}, {s(sCt)}, 16", f"s_or_b32 {s(sPk)}, {s(sPk)}, {s(sT0)}",
            sel(L.T_W2, (sT0, 1, 0)), f"s_sub_u32 {s(sRlo)}, {s(sRb)}, {s(sT0)}", f"s_max_i32 {s(sRlo)}, {s(sRlo)}, 0",
            f"s_add_u32 {s(sRhi)}, {s(sRb)}, {s(sT2)}", f"s_add_u32 {s(sRhi)}, {s(sRhi)}, {s(sT0)}", f"s_min_u32 {s(sRhi)}, {s(sRhi)}, 15",
            sel(L.T_W3, (sNmax, 8 // LN2_TILES - 1, 7)), sel(L.T_W4, (sNmax, 27, s(sNmax)), (sSh, 5, 4)),
            f"s_add_u32 {s(sT1)}, {s(sCt)}, {s(sT3)}", f"s_lshl_b32 {s(sT2)}, {s(sRb)}, 9",
            sel(L.T_WO, (sNmax, 0, s(sNmax)), (sRlo, s(sCt), s(sRlo)), (sRhi, s(sT1), s(sRhi))),
            sel(L.T_WO, (sRs, 2, 9), (sNW, 0, hex(OOB)), (sT2, s(sT2), 0)),
            f"v_lshrrev_b32 {v(vDa)}, {s(sSh)}, {v(vLane)}", f"v_lshlrev_b32 {v(vT1)}, {s(sSh)}, {v(vDa)}", f"v_sub_u32 {v(vT1)}, {v(vLane)}, {v(vT1)}",
            f"s_cmp_lt_u32 {s(sTy)}, {L.T_W2}\n s_cselect_b32 {s(sDb)}, {L.T_LN1 + 1}, {s(sTy)}",
            f"v_min_u32 {v(vT1)}, {s(sNmax)}, {v(vT1)}", f"s_lshl_b32 {s(sDb)}, {s(sDb)}, 13", sel(L.T_W1, (sT2, 4, s(sT2))),
            f"v_add_u32 {v(vDa)}, {s(sRlo)}, {v(vDa)}", f"s_add_u32 {s(sDb)}, {s(sDb)}, {s(sT2)}",
            f"s_add_u32 {s(sDb)}, {s(sDb)}, {hex(L.FLAGS + L.F_T - 8192)}", f"v_min_u32 {v(vDa)}, {s(sRhi)}, {v(vDa)}",
            f"s_lshl_b32 {s(sDq)}, {s(sRb)}, 10", f"s_add_u32 {s(sDq)}, {s(sDq)}, {hex(L.FLAGS + L.F_O)}",
            f"v_lshlrev_b32 {v(vDa)}, {s(sRs)}, {v(vDa)}", f"v_lshl_add_u32 {v(vDa)}, {v(vT1)}, 4, {v(vDa)}", f"v_or_b32 {v(vQa)}, {s(sNW)}, {v(vL16)}"]


def eval_ops():
    return [f"v_min3_u32 {v(vT0)}, {v(vPq)}, {v(vPq + 1)}, {v(vPq + 2)}", f"v_min_u32 {v(vT0)}, {v(vT0)}, {v(vPq + 3)}",
            f"v_or_b32 {v(vT0)}, {s(sNW)}, {v(vT0)}", f"v_min_u32 {v(vT0)}, {v(vT0)}, {v(vPl)}", f"v_cmp_eq_u32 vcc, 0, {v(vT0)}"]


def unpack_ops(x):
    return [f"s_and_b32 {s(sTy)}, {s(x)}, 15", f"s_bfe_u32 {s(sCf)}, {s(x)}, {hex(4 | (2 << 16))}",
            f"s_bfe_u32 {s(sRb)}, {s(x)}, {hex(8 | (8 << 16))}", f"s_lshr_b32 {s(sCt)}, {s(x)}, 16"]


def ticket(A):
    A(f"s_lshl_b32 {s(sT0)}, {s(sQ)}, 8")
    A(f"s_add_u32 {s(sT0)}, {s(sT0)}, {hex(L.FLAGS + L.F_QUE)}")
    A("s_mov_b64 exec, 1")
    A(f"v_mov_b32 {v(vTk)}, 1")
    A(f"buffer_atomic_add {v(vTk)}, off, {s(S_WS, 4)}, {s(sT0)} sc0 sc1")
    A("s_mov_b64 exec, -1")


def post(A, diag):
    A(f"s_bfm_b64 exec, {s(sFm)}, 0")
    A(f"buffer_store_dword {v(vONE)}, {v(vFa)}, {s(S_WS, 4)}, {s(sFb)} offen sc1")
    A("s_mov_b64 exec, -1")
    if diag:
        A("s_memtime s[86:87]")
        A("s_memrealtime s[90:91]")
        A("s_waitcnt lgkmcnt(0)")
        A(f"v_mov_b32 {v(vT1)}, 0")
        for i, x in enumerate((89, 76, 77, 90, 83, 82, 84, 86)):
            A(f"v_writelane_b32 {v(vT1)}, s{x}, {i}")
        A(f"v_lshlrev_b32 {v(vT0)}, 2, {v(vLane)}")
        A("s_mov_b64 exec, 0xff")
        A(f"buffer_store_dword {v(vT1)}, {v(vT0)}, {s(S_WS, 4)}, s88 offen")
        A("s_mov_b64 exec, -1")
        A("s_add_u32 s88, s88, 32")
        A("s_mov_b32 s76, s85")


def dsave(A):
    A("s_memtime s[82:83]")
    A("s_waitcnt lgkmcnt(0)")
    A("s_mov_b32 s89, s79\n s_mov_b32 s77, s78\n s_mov_b32 s83, s80")


def addr_cfg(A, c):
    g_, q_, rl, pu = 0, 1, 2, 3
    A(f"v_lshrrev_b32 {v(g_)}, 4, {v(vLane)}")
    A(f"v_bfe_u32 {v(q_)}, {v(vLane)}, 2, 2")
    A(f"v_lshl_add_u32 {v(4)}, {v(g_)}, 2, {v(q_)}")
    A(f"v_and_b32 {v(5)}, 7, {v(4)}")
    A(f"v_mul_u32_u24 {v(4)}, {c.pitch}, {v(4)}")
    A(f"v_and_b32 {v(6)}, 3, {v(vLane)}")
    A(f"v_lshl_add_u32 {v(4)}, {v(6)}, 3, {v(4)}")
    A(f"s_mul_i32 {s(sT0)}, {s(sWm)}, {c.WM}")
    A(f"v_xor_b32 {v(5)}, {s(sT0)}, {v(5)}")
    A(f"v_lshl_add_u32 {v(vWa)}, {v(5)}, 5, {v(4)}")
    for mt in range(1, c.WM):
        A(f"v_xor_b32 {v(vWa + mt)}, {mt * 32}, {v(vWa)}")
    A(f"s_mul_i32 {s(sT0)}, {s(sWn)}, {c.WN * c.nsub * 1024}")
    A(f"s_add_u32 {s(sT0)}, {s(sT0)}, {XR}")
    A(f"v_add_u32 {v(vXa)}, {s(sT0)}, {v(vL16)}")
    rpi = 1024 // c.pitch
    lpr = 64 // rpi
    A(f"v_lshrrev_b32 {v(rl)}, {int(math.log2(lpr))}, {v(vLane)}")
    A(f"v_and_b32 {v(pu)}, {lpr - 1}, {v(vLane)}")
    A(f"s_mul_i32 {s(sT0)}, {s(sWv)}, {4 * rpi}")
    A(f"v_add_u32 {v(vRow)}, {s(sT0)}, {v(rl)}")
    for d in range(4):
        if d:
            A(f"v_add_u32 {v(vRow + d)}, {d * rpi}, {v(vRow)}")
        A(f"v_and_b32 {v(6)}, 7, {v(vRow + d)}")
        A(f"v_lshlrev_b32 {v(6)}, 1, {v(6)}")
        A(f"v_xor_b32 {v(6)}, {v(6)}, {v(pu)}")
        A(f"v_lshlrev_b32 {v(vCon + d)}, 4, {v(6)}")
        if d:
            A(f"v_subrev_u32 {v(vCon + d)}, {d * 1024}, {v(vCon + d)}")
    A(f"s_mul_i32 {s(sMW)}, {s(sWv)}, {c.Wst // 4}")
    A(f"s_mul_i32 {s(sMX)}, {s(sWv)}, {c.Xst // 4}")
    A(f"s_add_u32 {s(sMX)}, {s(sMX)}, {XR}")


def addr_job(A, c):
    nrt = c.nX // c.nsub
    A(f"s_mul_i32 {s(sT0)}, {s(sWv)}, {nrt}")
    A(f"s_mul_i32 {s(sT0)}, {s(sT0)}, {s(sXP)}")
    for d in range(4):
        A(f"v_mad_u32_u24 {v(vWd + d)}, {v(vRow + d)}, {s(sLdw)}, {v(vCon + d)}")
    for j in range(nrt):
        A(f"v_add_u32 {v(vXd + j)}, {s(sT0)}, {v(vL16)}")
        if j + 1 < nrt:
            A(f"s_add_u32 {s(sT0)}, {s(sT0)}, {s(sXP)}")
            A(f"s_sub_u32 {s(sT0)}, {s(sT0)}, {c.nsub * 1024}")
    A(f"s_mul_i32 {s(sWinc)}, {s(sLdw)}, {c.BK}")
    A(f"s_mov_b32 {s(sWo)}, 0")


def main_loop(A, c, cf, vt, pfx, wp, P, gid, has_res, fin_id):
    nsub = c.nsub
    diag = P.get("diag")
    w0 = lambda x: f"s_mov_b64 exec, {s(sW0, 2)}\n {x}\n s_mov_b64 exec, -1"
    A("s_waitcnt vmcnt(0)")
    for st in range(4):
        for f in dma_ops(A, c, st, "x"):
            f()
        if st < 3 or nsub == 1:
            for f in dma_ops(A, c, st, "w"):
                f()
    A(f"s_cmp_lg_u32 {s(sEp)}, 0")
    A(f"s_cbranch_scc1 {wp}_epi")
    def entry(lbl, npk):
        A.label(f"{pfx}_{lbl}")
        if diag:
            A("s_memrealtime s[78:79]\n s_memtime s[80:81]\n s_waitcnt lgkmcnt(0)")
            A(f"s_mov_b32 s79, {s(sNx)}")
        zc = [f"v_mfma_f32_32x32x16_bf16 {r(c.accb + 16 * i, 16)}, {v(vZq, 4)}, {v(vZq, 4)}, 0" for i in range(c.WM * c.WN // 4)]
        A(zc.pop(0))
        A(f"s_waitcnt vmcnt({3 * c.nd - (c.nW if nsub == 2 else 0)})")
        A("s_barrier")
        sa = [f"s_sub_u32 {s(sN)}, {s(sNn)}, {1 + npk}", f"s_sub_u32 {s(sEv)}, {s(sNn)}, {2 + npk}", f"s_orn2_b32 {s(sEv)}, {s(sEv)}, {s(sW0)}", f"s_mov_b32 {s(sCur)}, -1"]
        for k, f in enumerate(read_ops(A, c, 0, 0, 0)):
            f()
            if k % 3 == 2 and zc:
                A(zc.pop(0))
        for x in zc + sa:
            A(x)
        A.nop(1)

    entry("ent", 0)
    par = [0]

    def since(stop):
        n = nd = 0
        for ln_ in reversed(A.lines):
            if ln_.startswith("buffer_"):
                if stop(ln_, nd):
                    return n
                nd += ln_.endswith("lds")
                n += f"{v(vDa)}," not in ln_ and f"{v(vQa)}," not in ln_ and f"{s(S_X, 4)}" not in ln_

    def substep(reads, dmas, bar, ex=(), e0=1, e1=99):
        p = par[0]
        par[0] ^= 1
        ms = [(mt, nt) for nt in range(c.WN) for mt in range(c.WM)]
        nm = len(ms)
        A("s_waitcnt lgkmcnt(0)")
        pre = P.get("gpre", 1) if bar is not None else 0
        fill = {}
        rp = P.get("grp", 1)
        for k, f in enumerate(reads):
            fill.setdefault(min(nm, pre + k // rp), []).append(f)
        d0 = pre + P.get("gd0", 0)
        nd_ = len(dmas)
        for k, f in enumerate(dmas):
            fill.setdefault(min(nm, d0 + (k * (nm - d0)) // max(1, nd_)), []).append(f)
        e0 = e0 % nm
        for k, x in enumerate(ex):
            fill.setdefault(e0 + (k * (min(nm, e1) - e0)) // len(ex), []).append((lambda x=x: A(x)) if isinstance(x, str) else x)
        for i in range(nm + 1):
            if i == pre and bar is not None:
                if callable(bar):
                    bar = bar()
                if bar == "n":
                    bar = since(lambda l_, nd: l_.endswith("lds") and nd == 2 * c.nd)
                if bar >= 0:
                    A(f"s_waitcnt vmcnt({bar})")
                A("s_barrier")
            for f in fill.get(i, []):
                f()
            if i < nm:
                mt, nt = ms[i]
                wa, xb = v(c.fa(p, mt), 4), v(c.fb(p, nt), 4)
                d = r(c.acc(mt, nt), 4)
                A(f"v_mfma_f32_16x16x32_bf16 {d}, {xb}, {wa}, {d}" if vt else f"v_mfma_f32_16x16x32_bf16 {d}, {wa}, {xb}, {d}")

    def half(slot, d, ex=()):
        if nsub == 2:
            substep(read_ops(A, c, slot, 1, par[0] ^ 1), dma_ops(A, c, (slot - 1) & 3, "w") if d else [], None, ex)

    def rest(slot, d, bar, last=False, ex=(), e0=1, e1=99):
        substep([] if last else read_ops(A, c, (slot + 1) & 3, 0, par[0] ^ 1),
                dma_ops(A, c, slot, "x") + dma_ops(A, c, slot, "w") * (nsub == 1) if d else [], bar, ex, e0, e1)

    A.label(f"{pfx}_loop")
    for st in range(4):
        half(st, True)
        if st == 0:
            A.label(f"{pfx}_mid")
        rest(st, True, 2 * c.nd)
    A(f"s_sub_u32 {s(sN)}, {s(sN)}, 1")
    A(f"s_cmp_eq_u32 {s(sN)}, {s(sEv)}")
    A(f"s_cbranch_scc1 {pfx}_ev")
    A(f"s_cmp_lg_u32 {s(sN)}, 0")
    A(f"s_cbranch_scc1 {pfx}_loop")
    A(f"s_cmp_lg_u32 {s(sCur)}, -1")
    A(f"s_cbranch_scc1 {wp}_epn")
    ex = flag_ops() + decode_ops() + [w0(poll_ld())]
    h = len(ex) // 2 if nsub == 2 else 0
    half(0, True, ex[:h])
    rest(0, True, 2 * c.nd, False, ex[h:])
    ex = [f"s_mov_b32 {s(sOutE)}, {s(sOut)}", f"s_mov_b32 {s(sOPE)}, {s(sOP)}", f"s_mov_b32 {s(sResE)}, {s(sRes)}",
          f"s_mov_b32 {s(sEp)}, {s(sEpN)}", f"v_mov_b32 {v(vShE)}, {v(vSh)}", f"v_mov_b32 {v(vT2)}, {LDS_MISC}"]
    if has_res:
        B = Asm()
        res_loads(B, c, 0)
        ex += B.lines
    h = len(ex) * 2 // 3 if nsub == 2 else 0
    half(1, True, ex[:h])
    rest(1, True, "n", False, ex[h:])
    if has_res and fin_id:
        A(f"s_cmp_lg_u32 {s(sEp)}, {fin_id}")
        A(f"s_cbranch_scc1 {pfx}_nox")
        res_loads(A, c, 0, True)
        A.label(f"{pfx}_nox")
    half(2, True)
    rest(2, True, "n", False, [lambda: A(f"s_waitcnt vmcnt({since(lambda l_, nd: f'{v(vQa)},' in l_)})")] + eval_ops() + [
        "s_nop 1", f"s_cmp_eq_u64 vcc, 0\n s_cselect_b32 {s(sT0)}, {s(sPk)}, -4", f"s_bitcmp1_b32 {hex(GM)}, {s(sTy)}\n s_cselect_b32 {s(sT0)}, {s(sT0)}, -4"] + [
        f"s_sub_u32 {s(sT1)}, {s(sFb)}, {hex(L.FLAGS + L.F_T + L.T_K * 8192)}\n s_cmp_lt_u32 {s(sT1)}, 0x4000\n s_cselect_b32 {s(sT0)}, -4, {s(sT0)}"
        ] * (cf == 0 and P.get("urg", 0)) + [
        f"v_mov_b32 {v(vT1)}, {s(sT0)}", w0(f"ds_write_b32 {v(vT2)}, {v(vT1)}")], -11)
    half(3, True)
    ex = [f"v_readfirstlane_b32 {s(sNx)}, {v(vT1)}", "s_nop 1"] + unpack_ops(sNx)
    rest(3, True, "n", False, [f"ds_read_b32 {v(vT1)}, {v(vT2)}"] + ([""] * 12 + ["s_waitcnt lgkmcnt(8)"] + ex) * (nsub == 1))
    half(0, True, ex)
    if P.get("strm", 1):
        A(f"s_cmp_eq_u32 {s(sCf)}, {cf}")
        A(f"s_cselect_b32 {s(sCur)}, {gid}, -1")
        A(f"s_cbranch_scc1 {wp}_c{cf}_task")
    rest(0, False, 2 * c.nd)
    half(1, False)
    rest(1, False, c.nd)
    half(2, False)
    rest(2, False, 0)
    half(3, False)
    rest(3, False, -1, True)
    if diag:
        dsave(A)
    A(f"s_cmp_lg_u32 {s(sNx)}, -4")
    A(f"s_cbranch_scc1 {wp}_gemm")
    A(f"s_branch {wp}_slow")
    A.label(f"{pfx}_ev")
    A(f"s_mov_b32 {s(sEv)}, 1")
    A(f"s_cmp_eq_u32 {s(sEp)}, 0")
    A(f"s_cbranch_scc1 {pfx}_et")
    post(A, diag)
    A(f"s_mov_b32 {s(sEp)}, 0")
    A.label(f"{pfx}_et")
    A(f"s_cmp_lg_u32 {s(sN)}, 1")
    A(f"s_cbranch_scc1 {pfx}_loop")
    ticket(A)
    A(f"s_branch {pfx}_loop")
    npk = P.get("hs", 0)
    if npk and not (vt and cf == 0):
        npk = max(1, npk // nsub)
        entry("enh", npk)
        i0 = len(A.lines)

        def cnt():
            n = nd = 0
            for ln_ in reversed(A.lines[i0:]):
                if ln_.startswith("buffer_"):
                    if ln_.endswith("lds") and nd == 2 * c.nd:
                        break
                    n += 1
                    nd += ln_.endswith("lds")
            return n + 2 * c.nd - nd
        hs = held_stores()
        per = 16 // (4 * npk * nsub)
        assert par[0] == 0
        for st in range(4 * npk):
            if nsub == 2:
                half(st & 3, True, [""] + hs[:per])
                del hs[:per]
            rest(st & 3, True, cnt, False, [""] + hs[:per])
            del hs[:per]
        assert not hs
        A(f"s_branch {pfx}_loop")


def warm(A, P, ty):
    tk = P.get("tk", 0)
    for m, rb0, n in {L.T_K: [(0, 1, 2), (2, P.get("tk3", 3), 3)], L.T_V: [(3, P.get("tk4", 4), 2)], L.T_W1: [(1, 0, 1)]}.get(ty, []):
        if not tk >> m & 1:
            continue
        srd(A, S_W, S_P2 + 2 * m, (2 if m < 2 else 7) << 20)
        A(f"s_sub_u32 {s(sT0)}, {s(sRb)}, {rb0}")
        A(f"s_lshl_b32 {s(sT0)}, {s(sT0)}, {4 if ty == L.T_W1 else 6}")
        A(f"s_lshl1_add_u32 {s(sT0)}, {s(sCt)}, {s(sT0)}")
        A(f"s_add_u32 {s(sT0)}, {s(sT0)}, {s(sWv)}")
        A(f"s_mul_i32 {s(sT0)}, {s(sT0)}, {n * 8192}")
        A(f"s_min_u32 {s(sT0)}, {s(sT0)}, {hex(OOB)}")
        A(f"v_lshlrev_b32 {v(vT0)}, 7, {v(vLane)}")
        for i in range(n):
            A(f"buffer_load_dword {v(155)}, {v(vT0)}, {s(S_W, 4)}, {s(sT0)} offen")
            if i + 1 < n:
                A(f"s_add_u32 {s(sT0)}, {s(sT0)}, 8192")


def worker(A, pfx, exit_lbl, P, queues, wo_lbl=None, att_lbl=None):
    NQ = len(queues)
    ER.out, ER.op, ER.res, ER.sh, ER.pre, ER.none = sOutE, sOPE, sResE, vShE, True, hex(OOB)
    worker_consts(A)
    A(f"v_mov_b32 {v(vSh)}, 0")
    for x in list(range(vZq, vZq + 12)) + [vTk, vFa] + list(range(vWa, vCon + 4)):
        A(f"v_mov_b32 {v(x)}, 0")
    A(f"s_cmp_eq_u32 {s(sWv)}, 0")
    A(f"s_cselect_b64 {s(sW0, 2)}, -1, 0")
    for x in (sOut, sOP, sRes, sFm, sOutE, sOPE, sResE, sFb, sDq, sDb):
        A(f"s_mov_b32 {s(x)}, 0")
    srd(A, S_W, S_PTR, 0)
    used, enc = {}, []
    small = (L.T_LN2, L.T_FILL, L.T_PREF)
    for q in queues:
        st, ph = 0, []
        for ty, cf, rb0, nrb, ct0, nct in q:
            lg = nrb.bit_length() - 1
            assert 1 << lg == nrb
            c = CFGS[cf]
            rs, cs = (0, 0) if ty in small else (c.TN // 256, c.TM // 256)
            ph.append(pack(st, ty, cf, rb0, ct0, lg, rs, cs))
            st += nrb * nct
            assert not (ty == L.T_WO and rs)
            if ty not in small:
                used.setdefault(cf, set()).add(ty)
        assert st < 1400 and len(ph) < 63
        enc.append(ph + [st | NONE << 11])
    diag = P.get("diag")
    if diag:
        A(f"s_lshl_b32 {s(sT0)}, {s(sX)}, 5")
        A(f"s_add_u32 {s(sT0)}, {s(sT0)}, {s(sT)}")
        A(f"s_lshl_b32 s88, {s(sT0)}, 12")
        A(f"s_add_u32 s88, s88, {hex(L.STAMP + (2 << 20))}")
        A("s_memrealtime s[76:77]\n s_waitcnt lgkmcnt(0)")
    A(f"s_cmp_lg_u32 {s(sWv)}, 0")
    A(f"s_cbranch_scc1 {pfx}_bar")
    A.label(f"{pfx}_selq")
    ticket(A)
    A(f"v_mov_b32 {v(vTb)}, {hex(0x7ff | NONE << 11)}")
    for q in range(NQ):
        if q + 1 < NQ:
            A(f"s_cmp_lg_u32 {s(sQ)}, {q}")
            A(f"s_cbranch_scc1 {pfx}_q{q + 1}")
        for p_, x in enumerate(enc[q]):
            A(f"s_mov_b32 {s(sT0)}, {hex(x)}")
            A(f"v_writelane_b32 {v(vTb)}, {s(sT0)}, {p_}")
        if q + 1 < NQ:
            A(f"s_branch {pfx}_qe")
            A.label(f"{pfx}_q{q + 1}")
    A.label(f"{pfx}_qe")
    A(f"v_and_b32 {v(vSt)}, 0x7ff, {v(vTb)}")
    A.label(f"{pfx}_dec")
    A("s_waitcnt vmcnt(0)")
    for x in decode_ops():
        A(x)
    A.label(f"{pfx}_chk")
    A(f"s_and_b32 {s(sTy)}, {s(sPk)}, 15")
    A(f"s_cmp_lg_u32 {s(sTy)}, {NONE}")
    A(f"s_cbranch_scc1 {pfx}_got")
    if NQ == 7:
        NQ = 6
        A(f"s_mov_b32 {s(sPk)}, -3")
        A(f"s_cmp_eq_u32 {s(sQ)}, 6")
        A(f"s_cbranch_scc1 {pfx}_pub")
    A(f"s_add_u32 {s(sQ)}, {s(sQ)}, 1")
    A(f"s_cmp_ge_u32 {s(sQ)}, {NQ}")
    A(f"s_cselect_b32 {s(sQ)}, 0, {s(sQ)}")
    A(f"s_add_u32 {s(sQn)}, {s(sQn)}, 1")
    A(f"s_mov_b32 {s(sPk)}, -1")
    if wo_lbl:
        A(f"s_lshl_b32 {s(sT0)}, 1, {s(sX)}")
        A(f"s_and_b32 {s(sT0)}, {s(sT0)}, {0x74 if att_lbl and P.get('g2s', 0) else 0x14}")
        A(f"s_cselect_b32 {s(sPk)}, -2, -1")
        A(f"s_cbranch_scc1 {pfx}_pub")
    A(f"s_cmp_lt_u32 {s(sQn)}, {NQ}")
    A(f"s_cbranch_scc1 {pfx}_selq")
    if att_lbl:
        A(f"s_lshl_b32 {s(sT0)}, {s(sX)}, 5")
        A(f"s_add_u32 {s(sT0)}, {s(sT0)}, {s(sT)}")
        A(f"s_sub_u32 {s(sT0)}, {s(sT0)}, 160")
        A(f"s_cmp_lt_u32 {s(sT0)}, {0 if P.get('a2') else 80}")
        A(f"s_cselect_b32 {s(sPk)}, -3, -1")
        A(f"s_cmp_lt_u32 {s(sT0)}, 64")
        A(f"s_cselect_b32 {s(sPk)}, -2, {s(sPk)}")
    A(f"s_branch {pfx}_pub")
    A.label(f"{pfx}_got")
    A(f"s_cmp_ge_u32 {s(sTy)}, {L.T_FILL}")
    A(f"s_cbranch_scc1 {pfx}_pub")
    A.label(f"{pfx}_poll")
    A(poll_ld())
    A("s_waitcnt vmcnt(0)")
    for x in eval_ops():
        A(x)
    A(f"s_cbranch_vccz {pfx}_pub")
    A("s_sleep 8")
    A(f"s_sub_u32 {s(sBud)}, {s(sBud)}, 1")
    A(f"s_cbranch_scc0 {pfx}_poll")
    A(f"s_mov_b32 {s(sPk)}, -1")
    A.label(f"{pfx}_pub")
    A(f"v_mov_b32 {v(vT0)}, {LDS_MISC}")
    A(f"v_mov_b32 {v(vT1)}, {s(sPk)}")
    A(f"ds_write_b32 {v(vT0)}, {v(vT1)}")
    A("s_waitcnt lgkmcnt(0)")
    A.label(f"{pfx}_bar")
    A("s_barrier")
    A(f"v_mov_b32 {v(vT0)}, {LDS_MISC}")
    A(f"ds_read_b32 {v(vT1)}, {v(vT0)}")
    A(f"s_mov_b32 {s(sEp)}, 0")
    A(f"s_mov_b32 {s(sCur)}, -1")
    A(f"s_mov_b32 {s(sGo)}, -2")
    A("s_waitcnt lgkmcnt(0)")
    A(f"v_readfirstlane_b32 {s(sNx)}, {v(vT1)}")
    A("s_nop 3")
    A(f"s_cmp_eq_u32 {s(sNx)}, -1")
    A(f"s_cbranch_scc1 {exit_lbl}")
    if wo_lbl:
        A(f"s_cmp_eq_u32 {s(sNx)}, -2")
        A(f"s_cbranch_scc1 {wo_lbl}")
    if att_lbl:
        A(f"s_cmp_eq_u32 {s(sNx)}, -3")
        A(f"s_cbranch_scc1 {att_lbl}")
    if diag:
        A("s_memrealtime s[78:79]\n s_memtime s[80:81]\n s_waitcnt lgkmcnt(0)")
        A(f"s_mov_b32 s79, {s(sNx)}")
    for x in unpack_ops(sNx):
        A(x)
    for ty, nm in ((L.T_LN2, "ln2"), (L.T_FILL, "fill"), (L.T_PREF, "pref")):
        A(f"s_cmp_eq_u32 {s(sTy)}, {ty}")
        A(f"s_cbranch_scc1 {pfx}_{nm}")
    A.label(f"{pfx}_gemm")
    cfl = sorted(used)
    for cf in cfl[1:]:
        A(f"s_cmp_eq_u32 {s(sCf)}, {cf}")
        A(f"s_cbranch_scc1 {pfx}_c{cf}_task")
    eps, gos = {}, []
    for cf in cfl:
        for ty in sorted(used[cf]):
            eps.setdefault((cf, TYPES[ty][8]), len(eps) + 1)
    for cf in cfl:
        c, px = CFGS[cf], f"{pfx}_c{cf}"
        types = sorted(used[cf])
        type_setup(A, c, px, types, exit_lbl, lambda ty: [A(f"s_mov_b32 {s(sEpN)}, {eps[cf, TYPES[ty][8]]}"), cf == 1 and warm(A, P, ty)])
        nt_ = [t for t in types if t != L.T_V]
        vts = [vt for vt in (0, 1) if (L.T_V in types if vt else nt_)]
        A.label(f"{px}_str")
        addr_job(A, c)
        A(f"s_mov_b32 {s(sN)}, 1")
        A(f"s_cmp_eq_u32 {s(sCur)}, {len(gos)}")
        A(f"s_cbranch_scc1 {px}_{'nv'[vts[0]]}_mid")
        A(f"s_branch {px}_{'nv'[vts[-1]]}_mid")
        for vt in vts:
            A.label(f"{px}_gov" if vt else f"{px}_go")
            A(f"s_mov_b32 {s(sGo)}, {len(gos)}")
            A(f"s_mov_b32 {s(sNn)}, {s(sN)}")
            A(f"s_cmp_lg_u32 {s(sCur)}, -1")
            A(f"s_cbranch_scc1 {px}_str")
            A("s_waitcnt lgkmcnt(0)")
            addr_cfg(A, c)
            addr_job(A, c)
            gos.append(f"{px}_{'nv'[vt]}")
            main_loop(A, c, cf, vt, gos[-1], pfx, P, len(gos) - 1, not vt and any(TYPES[t][9] is not None for t in nt_), eps.get((cf, "fin")))
    A.label(f"{pfx}_epn")
    if diag:
        dsave(A)
    A("s_waitcnt lgkmcnt(0)")
    A(f"s_branch {pfx}_epw")
    A.label(f"{pfx}_slow")
    A(f"s_mov_b32 {s(sGo)}, -1")
    A.label(f"{pfx}_epw")
    A.nop(6)
    A.label(f"{pfx}_epi")
    for k in list(eps.values())[1:]:
        A(f"s_cmp_eq_u32 {s(sEp)}, {k}")
        A(f"s_cbranch_scc1 {pfx}_e{k}")
    for (cf, kd), k in eps.items():
        A.label(f"{pfx}_e{k}")
        if cf == 1 and P.get("hs", 0):
            epilogue_hold(A, CFGS[cf], kd)
            A(f"s_branch {pfx}_eh")
            continue
        epilogue(A, CFGS[cf], kd)
        if k < len(eps) or P.get("hs", 0):
            A(f"s_branch {pfx}_ee")
    if P.get("hs", 0):
        A.label(f"{pfx}_eh")
        A(f"s_cmp_lt_u32 {s(sNn)}, 7")
        A(f"s_cbranch_scc1 {pfx}_es")
        if diag:
            A("s_memtime s[84:85]\n s_memrealtime s[86:87]\n s_waitcnt lgkmcnt(0)\n s_mov_b32 s85, s86")
        for k, g in enumerate(gos):
            if g != f"{pfx}_c0_v":
                A(f"s_cmp_eq_u32 {s(sGo)}, {k}")
                A(f"s_cbranch_scc1 {g}_enh")
        A.label(f"{pfx}_es")
        for x in held_stores():
            A(x)
    A.label(f"{pfx}_ee")
    if diag:
        A("s_memtime s[84:85]\n s_memrealtime s[86:87]\n s_waitcnt lgkmcnt(0)\n s_mov_b32 s85, s86")
    for k, g in enumerate(gos):
        A(f"s_cmp_eq_u32 {s(sGo)}, {k}")
        A(f"s_cbranch_scc1 {g}_ent")
    A(f"s_branch {pfx}_drain")
    small_jobs(A, pfx, P)
    A.label(f"{pfx}_done")
    if diag:
        dsave(A)
        A("s_memtime s[84:85]\n s_memrealtime s[86:87]\n s_waitcnt lgkmcnt(0)\n s_mov_b32 s85, s86")
    for x in flag_ops():
        A(x)
    A.label(f"{pfx}_drain")
    A("s_waitcnt vmcnt(0)")
    A("s_barrier")
    A(f"s_cmp_lg_u32 {s(sWv)}, 0")
    A(f"s_cbranch_scc1 {pfx}_bar")
    post(A, diag)
    A(f"s_cmp_eq_u32 {s(sGo)}, -1")
    A(f"s_cbranch_scc1 {pfx}_chk")
    ticket(A)
    A(f"s_branch {pfx}_dec")
```

```python
from asmlib import *
import layout as L
from gemm import *
import ln

LN2_TILES = 2


def pack(start, ty, cf, rb0, ct0, lg, rs, cs):
    assert start < 2048
    return start | (ty << 11) | (cf << 15) | (rb0 << 17) | (ct0 << 21) | (lg << 26) | (rs << 29) | (cs << 30)


def decode_tree(A, phases, pfx, done):
    items = phases + [(None, 0xFFFFFFFF)]

    def rec(lo, hi):
        if hi - lo == 1:
            A(f"s_mov_b32 {s(sPk)}, {hex(items[lo][1])}")
            A(f"s_branch {done}")
            return
        mid = (lo + hi) // 2
        lbl = A.uid(pfx)
        A(f"s_cmp_lt_u32 {s(sI)}, {items[mid - 1][0]}")
        A(f"s_cbranch_scc0 {lbl}")
        rec(lo, mid)
        A.label(lbl)
        rec(mid, hi)
    rec(0, len(items))


def small_jobs(A, pfx, P):
    A.label(f"{pfx}_pref")
    for k in range(4):
        if k < 3:
            A(f"s_cmp_lg_u32 {s(sRb)}, {k}")
            A(f"s_cbranch_scc1 {pfx}_pf{k}")
        srd(A, S_W, S_P2 + 2 * k, (2 if k < 2 else 7) << 20)
        if k < 3:
            A(f"s_branch {pfx}_pfg")
            A.label(f"{pfx}_pf{k}")
    A.label(f"{pfx}_pfg")
    A(f"s_lshl2_add_u32 {s(sT0)}, {s(sCt)}, {s(sWv)}")
    A(f"s_mul_i32 {s(sT0)}, {s(sT0)}, {8192 * P.get('pn', 16)}")
    A(f"v_lshlrev_b32 {v(vT0)}, 7, {v(vLane)}")
    for i in range(P.get("pn", 16)):
        A(f"buffer_load_dword {v(0)}, {v(vT0)}, {s(S_W, 4)}, {s(sT0)} offen")
        A(f"s_add_u32 {s(sT0)}, {s(sT0)}, 8192")
        if P.get("pfw", 16) < 16:
            A(f"s_waitcnt vmcnt({P['pfw'] - 1})")
    A(f"s_branch {pfx}_done")
    A.label(f"{pfx}_fill")
    A(f"s_lshl_b32 {s(sT0)}, {s(sRb)}, 2")
    A(f"s_add_u32 {s(sT0)}, {s(sT0)}, {s(sCt)}")
    A(f"s_lshl_b32 {s(sT1)}, {s(sT0)}, 16")
    A(f"s_add_u32 {s(sT0)}, {s(sT1)}, {hex(L.VM)}")
    A(f"s_add_u32 {s(sT3)}, {s(sT1)}, {hex(L.MR)}")
    A(f"s_add_u32 {s(sT1)}, {s(sT1)}, {hex(L.KM)}")
    A(f"s_lshl_b32 {s(sT2)}, {s(sWv)}, 12")
    A(f"v_add_u32 {v(vT0)}, {s(sT2)}, {v(vL16)}")
    for i in range(4):
        A(f"v_mov_b32 {v(i)}, -1")
    A(f"s_mov_b32 {s(sN)}, 4")
    A.label(f"{pfx}_fl")
    for sb, n in ((sT0, 1), (sT1, 1), (sT3, 1))[2 * P.get('xkv', 0):]:
        for i in range(n):
            for k in range(4):
                A(f"buffer_store_dwordx4 {v(0, 4)}, {v(vT0)}, {s(S_WS, 4)}, {s(sb)} offen offset:{k * 1024} sc1")
            A(f"s_add_u32 {s(sb)}, {s(sb)}, 16384")
    A(f"s_sub_u32 {s(sN)}, {s(sN)}, 1")
    A(f"s_cmp_lg_u32 {s(sN)}, 0")
    A(f"s_cbranch_scc1 {pfx}_fl")
    A(f"s_branch {pfx}_done")
    A.label(f"{pfx}_ln2")
    A(f"s_lshl_b32 {s(sT0)}, {s(sRb)}, 3")
    A(f"s_mul_i32 {s(sT1)}, {s(sCt)}, {LN2_TILES}")
    A(f"s_add_u32 {s(sT0)}, {s(sT0)}, {s(sT1)}")
    A(f"s_lshl_b32 {s(sT0)}, {s(sT0)}, 15")
    A(f"s_lshl_b32 {s(sT1)}, {s(sWv)}, 13")
    A(f"s_add_u32 {s(sT0)}, {s(sT0)}, {s(sT1)}")
    A(f"s_add_u32 {s(sOut)}, {s(sT0)}, {hex(L.X1N)}")
    A(f"s_add_u32 {s(sT0)}, {s(sT0)}, {hex(L.X1)}")
    for t in range(LN2_TILES):
        for b in range(8):
            A(f"buffer_load_dwordx4 {v(32 * t + 4 * b, 4)}, {v(vL16)}, {s(S_WS, 4)}, {s(sT0)} offen offset:{(b & 3) * 1024} sc1")
            if b & 3 == 3:
                A(f"s_add_u32 {s(sT0)}, {s(sT0)}, {4096 if b == 3 else 32768 - 4096}")
    ln.ln_addr(A, vLane, sWv, vT0, vT1, vT2, LDS_MISC + 1024)
    for t in range(LN2_TILES):
        A(f"s_waitcnt vmcnt({8 * (LN2_TILES - 1)})")
        ln.ln_core(A, 32 * t, 128, 192, vT0, vT1, 0, 32 * t)
        for b in range(8):
            A(f"buffer_store_dwordx4 {v(32 * t + 4 * b, 4)}, {v(vL16)}, {s(S_WS, 4)}, {s(sOut)} offen offset:{(b & 3) * 1024} sc1")
            if b & 3 == 3:
                A(f"s_add_u32 {s(sOut)}, {s(sOut)}, {4096 if b == 3 else 32768 - 4096}")
    A(f"s_mov_b32 {s(sCf)}, 0")


def worker(A, pfx, exit_lbl, P, queues, wo_lbl=None, att_lbl=None):
    NQ = len(queues)
    worker_consts(A)
    A(f"v_mov_b32 {v(vSh)}, 0")
    srd(A, S_W, S_PTR, 0)
    used = {}
    enc = []
    for q in queues:
        st = 0
        ph = []
        for ty, cf, rb0, nrb, ct0, nct in q:
            lg = nrb.bit_length() - 1
            assert 1 << lg == nrb
            c = CFGS[cf]
            rs, cs = (0, 0) if ty in (L.T_LN2, L.T_FILL, L.T_PREF) else (c.TN // 256, c.TM // 256)
            ph.append((st + nrb * nct, pack(st, ty, cf, rb0, ct0, lg, rs, cs)))
            st += nrb * nct
            assert not (ty == L.T_WO and rs)
            if ty not in (L.T_LN2, L.T_FILL, L.T_PREF):
                used.setdefault(cf, set()).add(ty)
        enc.append(ph)
    diag = P.get("diag")
    if diag:
        A(f"s_lshl_b32 {s(sT0)}, {s(sX)}, 5")
        A(f"s_add_u32 {s(sT0)}, {s(sT0)}, {s(sT)}")
        A(f"s_lshl_b32 s88, {s(sT0)}, 12")
        A(f"s_add_u32 s88, s88, {hex(L.STAMP + (2 << 20))}")
        A("s_memrealtime s[76:77]")
    A.label(f"{pfx}_next")
    A(f"s_cmp_lg_u32 {s(sWv)}, 0")
    A(f"s_cbranch_scc1 {pfx}_bar")
    A.label(f"{pfx}_try")
    A(f"s_lshl_b32 {s(sT0)}, {s(sQ)}, 8")
    A(f"s_add_u32 {s(sT0)}, {s(sT0)}, {hex(L.FLAGS + L.F_QUE)}")
    A(f"v_mov_b32 {v(vT0)}, 0")
    A(f"v_mov_b32 {v(vT1)}, 1")
    A("s_mov_b64 exec, 1")
    A(f"buffer_atomic_add {v(vT1)}, {v(vT0)}, {s(S_WS, 4)}, {s(sT0)} offen sc0 sc1")
    A("s_waitcnt vmcnt(0)")
    A("s_mov_b64 exec, -1")
    A(f"v_readfirstlane_b32 {s(sI)}, {v(vT1)}")
    A("s_nop 3")
    for q in range(NQ):
        if q + 1 < NQ:
            A(f"s_cmp_lg_u32 {s(sQ)}, {q}")
            A(f"s_cbranch_scc1 {pfx}_q{q + 1}")
        decode_tree(A, enc[q], f"{pfx}_d", f"{pfx}_dec")
        if q + 1 < NQ:
            A.label(f"{pfx}_q{q + 1}")
    A.label(f"{pfx}_dec")
    A(f"s_cmp_lg_u32 {s(sPk)}, -1")
    A(f"s_cbranch_scc1 {pfx}_got")
    A(f"s_add_u32 {s(sQ)}, {s(sQ)}, 1")
    A(f"s_cmp_ge_u32 {s(sQ)}, {NQ}")
    A(f"s_cselect_b32 {s(sQ)}, 0, {s(sQ)}")
    A(f"s_add_u32 {s(sQn)}, {s(sQn)}, 1")
    if wo_lbl:
        A(f"s_lshl_b32 {s(sT0)}, 1, {s(sX)}")
        A(f"s_and_b32 {s(sT0)}, {s(sT0)}, {0x74 if att_lbl and P.get('g2s', 0) else 0x14}")
        A(f"s_cselect_b32 {s(sPk)}, -2, -1")
        A(f"s_cbranch_scc1 {pfx}_pub")
    A(f"s_cmp_lt_u32 {s(sQn)}, {NQ}")
    A(f"s_cbranch_scc1 {pfx}_try")
    if att_lbl:
        A(f"s_lshl_b32 {s(sT0)}, {s(sX)}, 5")
        A(f"s_add_u32 {s(sT0)}, {s(sT0)}, {s(sT)}")
        A(f"s_sub_u32 {s(sT0)}, {s(sT0)}, 160")
        A(f"s_cmp_lt_u32 {s(sT0)}, 80")
        A(f"s_cselect_b32 {s(sPk)}, -3, -1")
        A(f"s_cmp_lt_u32 {s(sT0)}, 64")
        A(f"s_cselect_b32 {s(sPk)}, -2, {s(sPk)}")
    A(f"s_branch {pfx}_pub")
    A.label(f"{pfx}_got")
    A(f"s_and_b32 {s(sT0)}, {s(sPk)}, 0x7ff")
    A(f"s_sub_u32 {s(sI)}, {s(sI)}, {s(sT0)}")
    A(f"s_bfe_u32 {s(sT0)}, {s(sPk)}, {hex(26 | (3 << 16))}")
    A(f"s_lshr_b32 {s(sCt)}, {s(sI)}, {s(sT0)}")
    A(f"s_lshl_b32 {s(sT1)}, {s(sCt)}, {s(sT0)}")
    A(f"s_sub_u32 {s(sRb)}, {s(sI)}, {s(sT1)}")
    A(f"s_bfe_u32 {s(sT2)}, {s(sPk)}, {hex(29 | (1 << 16))}")
    A(f"s_lshl_b32 {s(sRb)}, {s(sRb)}, {s(sT2)}")
    A(f"s_bfe_u32 {s(sT3)}, {s(sPk)}, {hex(30 | (1 << 16))}")
    A(f"s_lshl_b32 {s(sCt)}, {s(sCt)}, {s(sT3)}")
    A(f"s_bfe_u32 {s(sT0)}, {s(sPk)}, {hex(17 | (4 << 16))}")
    A(f"s_add_u32 {s(sRb)}, {s(sRb)}, {s(sT0)}")
    A(f"s_bfe_u32 {s(sT0)}, {s(sPk)}, {hex(21 | (5 << 16))}")
    A(f"s_add_u32 {s(sCt)}, {s(sCt)}, {s(sT0)}")
    A(f"s_bfe_u32 {s(sTy)}, {s(sPk)}, {hex(11 | (4 << 16))}")
    A(f"s_bfe_u32 {s(sPk)}, {s(sPk)}, {hex(11 | (6 << 16))}")
    A(f"s_lshl_b32 {s(sT0)}, {s(sRb)}, 8")
    A(f"s_or_b32 {s(sPk)}, {s(sPk)}, {s(sT0)}")
    A(f"s_lshl_b32 {s(sT0)}, {s(sCt)}, 16")
    A(f"s_or_b32 {s(sPk)}, {s(sPk)}, {s(sT0)}")
    A(f"s_cmp_eq_u32 {s(sTy)}, {L.T_WO}")
    A(f"s_cbranch_scc1 {pfx}_dwo")
    A(f"s_cmp_ge_u32 {s(sTy)}, {L.T_FILL}")
    A(f"s_cbranch_scc1 {pfx}_pub")
    A(f"s_mov_b32 {s(sRlo)}, {s(sRb)}")
    A(f"s_add_u32 {s(sRhi)}, {s(sRb)}, {s(sT2)}")
    A(f"s_mov_b32 {s(sSh)}, 4")
    A(f"s_mov_b32 {s(sNmax)}, 7")
    A(f"s_cmp_lg_u32 {s(sTy)}, {L.T_W2}")
    A(f"s_cbranch_scc1 {pfx}_dp1")
    A(f"s_sub_u32 {s(sRlo)}, {s(sRlo)}, 1")
    A(f"s_max_i32 {s(sRlo)}, {s(sRlo)}, 0")
    A(f"s_add_u32 {s(sRhi)}, {s(sRhi)}, 1")
    A(f"s_min_u32 {s(sRhi)}, {s(sRhi)}, 15")
    A.label(f"{pfx}_dp1")
    A(f"s_cmp_eq_u32 {s(sTy)}, {L.T_W3}")
    A(f"s_cselect_b32 {s(sNmax)}, {8 // LN2_TILES - 1}, {s(sNmax)}")
    A(f"s_cmp_eq_u32 {s(sTy)}, {L.T_W4}")
    A(f"s_cselect_b32 {s(sNmax)}, 27, {s(sNmax)}")
    A(f"s_cselect_b32 {s(sSh)}, 5, {s(sSh)}")
    A(f"v_lshrrev_b32 {v(vT0)}, {s(sSh)}, {v(vLane)}")
    A(f"v_lshlrev_b32 {v(vT1)}, {s(sSh)}, {v(vT0)}")
    A(f"v_sub_u32 {v(vT1)}, {v(vLane)}, {v(vT1)}")
    A(f"v_min_u32 {v(vT1)}, {s(sNmax)}, {v(vT1)}")
    A(f"v_add_u32 {v(vT0)}, {s(sRlo)}, {v(vT0)}")
    A(f"v_min_u32 {v(vT0)}, {s(sRhi)}, {v(vT0)}")
    A(f"v_lshlrev_b32 {v(vT0)}, 9, {v(vT0)}")
    A(f"v_lshl_add_u32 {v(vT0)}, {v(vT1)}, 4, {v(vT0)}")
    A(f"s_cmp_lt_u32 {s(sTy)}, {L.T_W2}")
    A(f"s_cselect_b32 {s(sDb)}, {L.T_LN1 + 1}, {s(sTy)}")
    A(f"s_lshl_b32 {s(sDb)}, {s(sDb)}, 13")
    A(f"s_cmp_eq_u32 {s(sTy)}, {L.T_W1}")
    A(f"s_cselect_b32 {s(sT0)}, 4, 0")
    A(f"s_add_u32 {s(sDb)}, {s(sDb)}, {s(sT0)}")
    A(f"s_add_u32 {s(sDb)}, {s(sDb)}, {hex(L.FLAGS + L.F_T - 8192)}")
    A.label(f"{pfx}_poll")
    A(f"buffer_load_dword {v(vT1)}, {v(vT0)}, {s(S_WS, 4)}, {s(sDb)} offen sc1")
    A("s_waitcnt vmcnt(0)")
    A(f"v_cmp_eq_u32 vcc, 0, {v(vT1)}")
    A(f"s_cbranch_vccz {pfx}_pub")
    A("s_sleep 8")
    A(f"s_sub_u32 {s(sBud)}, {s(sBud)}, 1")
    A(f"s_cbranch_scc0 {pfx}_poll")
    A(f"s_mov_b32 {s(sPk)}, -1")
    A(f"s_branch {pfx}_pub")
    A.label(f"{pfx}_dwo")
    A(f"s_lshl_b32 {s(sDb)}, {s(sRb)}, 10")
    A(f"s_add_u32 {s(sDb)}, {s(sDb)}, {hex(L.FLAGS + L.F_O)}")
    A.label(f"{pfx}_pollo")
    A(f"buffer_load_dwordx4 {v(0, 4)}, {v(vL16)}, {s(S_WS, 4)}, {s(sDb)} offen sc1")
    A("s_waitcnt vmcnt(0)")
    A(f"v_min3_u32 {v(0)}, {v(0)}, {v(1)}, {v(2)}")
    A(f"v_min_u32 {v(0)}, {v(0)}, {v(3)}")
    A(f"v_cmp_eq_u32 vcc, 0, {v(0)}")
    A(f"s_cbranch_vccz {pfx}_oko")
    A("s_sleep 16")
    A(f"s_sub_u32 {s(sBud)}, {s(sBud)}, 1")
    A(f"s_cbranch_scc0 {pfx}_pollo")
    A(f"s_mov_b32 {s(sPk)}, -1")
    A(f"s_branch {pfx}_pub")
    A.label(f"{pfx}_oko")
    A(f"v_min_u32 {v(vT0)}, {s(sT3)}, {v(vLane)}")
    A(f"v_add_u32 {v(vT0)}, {s(sCt)}, {v(vT0)}")
    A(f"v_lshlrev_b32 {v(vT0)}, 8, {v(vT0)}")
    A(f"s_lshl_b32 {s(sDb)}, {s(sRb)}, 4")
    A(f"s_add_u32 {s(sDb)}, {s(sDb)}, {hex(L.FLAGS + L.F_T + L.T_W4 * 8192)}")
    A(f"s_branch {pfx}_poll")
    A.label(f"{pfx}_pub")
    A(f"v_mov_b32 {v(vT0)}, {LDS_MISC}")
    A(f"v_mov_b32 {v(vT1)}, {s(sPk)}")
    A(f"ds_write_b32 {v(vT0)}, {v(vT1)}")
    A("s_waitcnt lgkmcnt(0)")
    A.label(f"{pfx}_bar")
    A("s_barrier")
    A(f"v_mov_b32 {v(vT0)}, {LDS_MISC}")
    A(f"ds_read_b32 {v(vT1)}, {v(vT0)}")
    A("s_waitcnt lgkmcnt(0)")
    A(f"v_readfirstlane_b32 {s(sPk)}, {v(vT1)}")
    A("s_nop 3")
    A(f"s_cmp_eq_u32 {s(sPk)}, -1")
    A(f"s_cbranch_scc1 {exit_lbl}")
    if wo_lbl:
        A(f"s_cmp_eq_u32 {s(sPk)}, -2")
        A(f"s_cbranch_scc1 {wo_lbl}")
    if att_lbl:
        A(f"s_cmp_eq_u32 {s(sPk)}, -3")
        A(f"s_cbranch_scc1 {att_lbl}")
    if diag:
        A("s_memrealtime s[78:79]")
        A("s_memtime s[80:81]")
    A(f"s_and_b32 {s(sTy)}, {s(sPk)}, 15")
    A(f"s_bfe_u32 {s(sCf)}, {s(sPk)}, {hex(4 | (2 << 16))}")
    A(f"s_bfe_u32 {s(sRb)}, {s(sPk)}, {hex(8 | (8 << 16))}")
    A(f"s_lshr_b32 {s(sCt)}, {s(sPk)}, 16")
    A(f"s_cmp_eq_u32 {s(sTy)}, {L.T_LN2}")
    A(f"s_cbranch_scc1 {pfx}_ln2")
    A(f"s_cmp_eq_u32 {s(sTy)}, {L.T_FILL}")
    A(f"s_cbranch_scc1 {pfx}_fill")
    A(f"s_cmp_eq_u32 {s(sTy)}, {L.T_PREF}")
    A(f"s_cbranch_scc1 {pfx}_pref")
    cfl = sorted(used)
    for cf in cfl[1:]:
        A(f"s_cmp_eq_u32 {s(sCf)}, {cf}")
        A(f"s_cbranch_scc1 {pfx}_c{cf}_task")
    for cf in cfl:
        gemm_task(A, CFGS[cf], f"{pfx}_c{cf}", P, sorted(used[cf]), f"{pfx}_done")
    small_jobs(A, pfx, P)
    A.label(f"{pfx}_done")
    if diag:
        A("s_memtime s[84:85]")
    A("s_waitcnt vmcnt(0)")
    A("s_barrier")
    A(f"s_cmp_lg_u32 {s(sWv)}, 0")
    A(f"s_cbranch_scc1 {pfx}_bar")
    A(f"s_add_u32 {s(sT0)}, {s(sTy)}, 1")
    A(f"s_bitcmp0_b32 {s(sT0)}, 2")
    A(f"s_cselect_b32 {s(sT2)}, 4, 9")
    A(f"s_cselect_b32 {s(sT3)}, 8, 4")
    A(f"s_lshl_b32 {s(sT0)}, {s(sTy)}, 13")
    A(f"s_add_u32 {s(sT0)}, {s(sT0)}, {hex(L.FLAGS + L.F_T)}")
    A(f"v_lshrrev_b32 {v(vT0)}, 1, {v(vLane)}")
    A(f"v_add_u32 {v(vT0)}, {s(sRb)}, {v(vT0)}")
    A(f"v_lshlrev_b32 {v(vT0)}, {s(sT2)}, {v(vT0)}")
    A(f"v_and_b32 {v(vT1)}, 1, {v(vLane)}")
    A(f"v_add_u32 {v(vT1)}, {s(sCt)}, {v(vT1)}")
    A(f"v_lshlrev_b32 {v(vT1)}, {s(sT3)}, {v(vT1)}")
    A(f"v_add_u32 {v(vT0)}, {v(vT1)}, {v(vT0)}")
    for i in range(4):
        A(f"v_mov_b32 {v(i)}, 1")
    A(f"s_lshl_b32 {s(sT1)}, 1, {s(sCf)}")
    A(f"s_bfm_b64 exec, {s(sT1)}, 0")
    A(f"buffer_store_dwordx4 {v(0, 4)}, {v(vT0)}, {s(S_WS, 4)}, {s(sT0)} offen sc1")
    A("s_mov_b64 exec, -1")
    if diag:
        A("s_memtime s[86:87]")
        A("s_memrealtime s[90:91]")
        A("s_waitcnt lgkmcnt(0)")
        A(f"v_mov_b32 {v(vT1)}, 0")
        for i, x in enumerate((sPk, 76, 78, 90, 80, 82, 84, 86)):
            A(f"v_writelane_b32 {v(vT1)}, s{x}, {i}")
        A(f"v_lshlrev_b32 {v(vT0)}, 2, {v(vLane)}")
        A("s_mov_b64 exec, 0xff")
        A(f"buffer_store_dword {v(vT1)}, {v(vT0)}, {s(S_WS, 4)}, s88 offen")
        A("s_mov_b64 exec, -1")
        A("s_add_u32 s88, s88, 32")
        A("s_mov_b32 s76, s90")
    A(f"s_branch {pfx}_try")
```
